```python
import torch

def _softmax(x, axis=-1):
    return torch.softmax(x, dim=axis)
def _gelu(x):
    return torch.nn.functional.gelu(x, approximate="tanh")
def _silu(x):
    return torch.nn.functional.silu(x)
def _sigmoid(x):
    return torch.sigmoid(x)
def _layernorm(x, axis=-1, eps=1e-5):
    m = x.mean(dim=axis, keepdim=True)
    v = x.var(dim=axis, keepdim=True, unbiased=False)
    return (x - m) / torch.sqrt(v + eps)
def _scatter_add(tgt, idx, src, axis=0):
    return tgt.clone().index_add_(axis, idx, src)
def _segment_sum(src, seg, n):
    out = torch.zeros((n,) + src.shape[1:], dtype=src.dtype)
    return out.index_add_(0, seg, src)
def _pad(x, pw):
    flat = tuple(v for pair in reversed(pw) for v in pair)
    return torch.nn.functional.pad(x, flat)

kernel_name = 'gather_scatter__molecular_angular_gemnet__graph'

def setup_inputs():

    _w = (lambda a: (lambda t: t.to(torch.bfloat16) if t.is_floating_point() else t)(torch.as_tensor(a)))
    N, deg, De, L = 50000, 16, 16, 2
    E = N * deg
    T = E * deg
    NR = 8
    dist = torch.rand(E).to(float)
    angle = (torch.rand(T) * torch.pi).to(float)
    centers = torch.linspace(0.0, 1.0, NR).to(float)
    ang_freq = torch.arange(1, L + 1).to(float)
    return {
        "m": _w((lambda *s: torch.randn(*s, dtype=torch.bfloat16) * 0.05)(E, De)),
        "idx_in": _w((lambda lo, hi, *s: torch.randint(lo, hi, s))(0, E, T).to(torch.int64)),
        "idx_out": _w((lambda lo, hi, *s: torch.randint(lo, hi, s))(0, E, T).to(torch.int64)),
        "dist": _w(dist),
        "angle": _w(angle),
        "centers": _w(centers),
        "ang_freq": _w(ang_freq),
        "w_rbf": _w((lambda *s: torch.randn(*s, dtype=torch.bfloat16) * 0.2)(NR, De)),
        "w_sbf": _w((lambda *s: torch.randn(*s, dtype=torch.bfloat16) * 0.2)(NR * L, De)),
        "w_down": _w((lambda *s: torch.randn(*s, dtype=torch.bfloat16) * 0.2)(De, De)),
        "w_up": _w((lambda *s: torch.randn(*s, dtype=torch.bfloat16) * 0.2)(De, De)),
    }

def reference(m, idx_in, idx_out, dist, angle, centers, ang_freq, w_rbf, w_sbf, w_down, w_up):
    E, De = m.shape[0], m.shape[1]
    NR = centers.shape[0]
    L = ang_freq.shape[0]
    rbf = torch.exp(-10.0 * (dist[:, None] - centers[None, :]) ** 2)
    cbf = torch.cos(ang_freq[None, :] * angle[:, None])
    rbf_t = rbf[idx_out]
    sbf = torch.reshape(rbf_t[:, :, None] * cbf[:, None, :], (-1, NR * L))
    x = (m[idx_in] @ w_down) * (sbf @ w_sbf)
    agg = _segment_sum(x, idx_out, E)
    return m + (agg @ w_up) * (rbf @ w_rbf)
```

```python
import sys

NAME = "gather_scatter__molecular_angular_gemnet__graph"
E = 800000
T = 12800000
NB = 256
EB = 3125
CH = 25000
NCH = 512
NS = 8
CHB = 150016
REC_BYTES = NCH * CHB
TAB_OFF = REC_BYTES
TAB_BYTES = NB * NCH * 32

OPT = dict(
    nt_in=True,
    nt_rec=False,
    phase_bar=True,
    nt_out=False,
    guard=False,
)


class A:
    def __init__(self):
        self.l = []

    def __call__(self, s=""):
        for line in s.split("\n"):
            line = line.strip()
            if line:
                if line.endswith(":"):
                    self.l.append(line)
                else:
                    self.l.append("    " + line)

    def c(self, s):
        self.l.append("    ; " + s)

    def raw(self, s):
        self.l.append(s)

    def text(self):
        return "\n".join(self.l) + "\n"


def vr(a, n):
    return f"v[{a}:{a + n - 1}]"


def sr(a, n):
    return f"s[{a}:{a + n - 1}]"


def srd(a, dst, base, nbytes, stride=0):
    a(f"s_mov_b32 s{dst}, s{base}")
    a(f"s_and_b32 s{dst + 1}, s{base + 1}, 0xffff")
    if stride:
        a(f"s_or_b32 s{dst + 1}, s{dst + 1}, {stride << 16:#x}")
    a(f"s_mov_b32 s{dst + 2}, {nbytes}")
    a(f"s_mov_b32 s{dst + 3}, 0x20000")


def kernel_head(a, name):
    a.raw(".text")
    a.raw(f".globl {name}")
    a.raw(".p2align 8")
    a.raw(f".type {name},@function")
    a.raw(f"{name}:")


def kernel_desc(a, name, vgpr, sgpr):
    a.raw('.section .rodata,"a"')
    a.raw(".p2align 6")
    a.raw(f".amdhsa_kernel {name}")
    a.raw(f"  .amdhsa_next_free_vgpr {vgpr}")
    a.raw(f"  .amdhsa_next_free_sgpr {sgpr}")
    a.raw(f"  .amdhsa_accum_offset {(vgpr + 3) // 4 * 4}")
    a.raw("  .amdhsa_group_segment_fixed_size 0")
    a.raw("  .amdhsa_kernarg_size 112")
    a.raw("  .amdhsa_user_sgpr_count 2")
    a.raw("  .amdhsa_user_sgpr_kernarg_segment_ptr 1")
    a.raw("  .amdhsa_system_sgpr_workgroup_id_x 1")
    a.raw(".end_amdhsa_kernel")


P1_CNT = 16
P1_PART = P1_CNT + 8192
P1_REC = P1_PART + 64
P1_LDS = 158720


def gen_part(a, name):
    nt = " nt" if OPT["nt_in"] else ""
    S_IN, S_OUT, S_ANG, S_REC, S_TAB = 8, 12, 16, 20, 24
    sMAG, sNEG, sMASK, sHI, sDIV6 = 28, 29, 30, 31, 32
    sOI, sOA = 33, 34
    sW, sT0, sT1, sCH = 35, 36, 37, 38
    sEX = 40
    vT16, vT8, vSIX = 1, 2, 3
    tmp = list(range(4, 14))
    O = {"A": 14, "B": 62}
    I = {"A": 38, "B": 86}
    G = 110
    O6 = {"A": 122, "B": 124}
    I6 = {"A": 123, "B": 125}
    G6 = 126
    vX = 127

    kernel_head(a, name)
    a(f"""
    s_cmp_ge_u32 s2, {NB}
    s_cbranch_scc1 P1_done
    s_load_dwordx4 s[4:7], s[0:1], 8
    s_load_dwordx2 s[42:43], s[0:1], 32
    s_load_dwordx2 s[44:45], s[0:1], 104
    v_lshlrev_b32 v{vT16}, 4, v0
    v_lshlrev_b32 v{vT8}, 3, v0
    v_mov_b32 v{vSIX}, 6
    s_mov_b32 s{sMAG}, 1374390
    s_mov_b32 s{sNEG}, {-EB}
    s_mov_b32 s{sMASK}, 0x1c00
    s_mov_b32 s{sHI}, 0xffff0000
    s_mov_b32 s{sDIV6}, 0x2aaaaaab
    v_lshrrev_b32 v4, 6, v0
    v_mov_b32 v6, 0
    v_mov_b32 v7, 0
    v_readfirstlane_b32 s{sW}, v4
    ds_write_b64 v{vT8}, v[6:7] offset:{P1_CNT}
    v_mov_b32 v5, {P1_REC}
    ds_write_b32 v6, v5 offset:{P1_CNT - 4}
    s_waitcnt lgkmcnt(0)
    """)
    srd(a, S_IN, 4, T * 4)
    srd(a, S_OUT, 6, T * 4)
    srd(a, S_ANG, 42, T * 2)
    srd(a, S_REC, 44, REC_BYTES)
    a(f"s_add_u32 s44, s44, {TAB_OFF}")
    a("s_addc_u32 s45, s45, 0")
    srd(a, S_TAB, 44, TAB_BYTES)
    a(f"""
    s_mul_i32 s{sOI}, s2, {2 * CH * 4}
    s_mul_i32 s{sOA}, s2, {2 * CH * 2}
    """)

    def issue_round(X, r):
        if r < 6:
            a(f"""
            buffer_load_dwordx4 {vr(O[X] + 4 * r, 4)}, v{vT16}, {sr(S_OUT, 4)}, s{sOI} offen{nt}
            buffer_load_dwordx4 {vr(I[X] + 4 * r, 4)}, v{vT16}, {sr(S_IN, 4)}, s{sOI} offen{nt}
            buffer_load_dwordx2 {vr(G + 2 * r, 2)}, v{vT8}, {sr(S_ANG, 4)}, s{sOA} offen{nt}
            s_add_u32 s{sOI}, s{sOI}, 16384
            s_add_u32 s{sOA}, s{sOA}, 8192
            """)
        else:
            a(f"""
            v_cmp_gt_u32 vcc, {CH - 6 * 4096}, v0
            v_lshlrev_b32 v{tmp[8]}, 2, v0
            v_lshlrev_b32 v{tmp[9]}, 1, v0
            v_cndmask_b32 v{tmp[8]}, v{vX}, v{tmp[8]}, vcc
            v_cndmask_b32 v{tmp[9]}, v{vX}, v{tmp[9]}, vcc
            buffer_load_dword v{O6[X]}, v{tmp[8]}, {sr(S_OUT, 4)}, s{sOI} offen{nt}
            buffer_load_dword v{I6[X]}, v{tmp[8]}, {sr(S_IN, 4)}, s{sOI} offen{nt}
            buffer_load_ushort v{G6}, v{tmp[9]}, {sr(S_ANG, 4)}, s{sOA} offen{nt}
            s_add_u32 s{sOI}, s{sOI}, {(CH - 6 * 4096) * 4}
            s_add_u32 s{sOA}, s{sOA}, {(CH - 6 * 4096) * 2}
            """)

    def pack(recs):
        n = len(recs)
        tb = tmp[0:n]
        tc = tmp[4:4 + n]
        for k, (o, i, g, hi) in enumerate(recs):
            a(f"v_mul_hi_u32_u24 v{tb[k]}, s{sMAG}, v{o}")
            a(f"v_mul_u32_u24 v{tc[k]}, 167, v{i}")
        for k, (o, i, g, hi) in enumerate(recs):
            a(f"v_mad_i32_i24 v{o}, v{tb[k]}, s{sNEG}, v{o}")
            a(f"v_lshrrev_b32 v{tc[k]}, 14, v{tc[k]}")
            a(f"v_lshlrev_b32 v{tb[k]}, 2, v{tb[k]}")
        for k, (o, i, g, hi) in enumerate(recs):
            a(f"v_and_or_b32 v{tc[k]}, v{tc[k]}, s{sMASK}, v{tb[k]}")
            a(f"v_lshl_or_b32 v{i}, v{i}, 12, v{o}")
        for k, (o, i, g, hi) in enumerate(recs):
            a(f"ds_add_u32 v{tc[k]}, v{vSIX} offset:{P1_CNT}")
            if hi:
                a(f"v_and_or_b32 v{o}, v{g}, s{sHI}, v{tc[k]}")
            else:
                a(f"v_lshl_or_b32 v{o}, v{g}, 16, v{tc[k]}")

    def round_recs(X, r):
        if r < 6:
            return [(O[X] + 4 * r + k, I[X] + 4 * r + k, G + 2 * r + (k >> 1), k & 1) for k in range(4)]
        return [(O6[X], I6[X], G6, 0)]

    def tail_begin(lbl):
        a(f"""
        v_cmp_gt_u32 vcc, {CH - 6 * 4096}, v0
        s_and_saveexec_b64 {sr(sEX, 2)}, vcc
        s_cbranch_execz {lbl}
        """)

    def tail_end(lbl):
        a(f"{lbl}:")
        a(f"s_mov_b64 exec, {sr(sEX, 2)}")

    def wave_scan(v):
        a(f"""
        s_nop 1
        v_add_u32_dpp v{v}, v{v}, v{v} row_shr:1 row_mask:0xf bank_mask:0xf bound_ctrl:0
        s_nop 1
        v_add_u32_dpp v{v}, v{v}, v{v} row_shr:2 row_mask:0xf bank_mask:0xf bound_ctrl:0
        s_nop 1
        v_add_u32_dpp v{v}, v{v}, v{v} row_shr:4 row_mask:0xf bank_mask:0xf bound_ctrl:0
        s_nop 1
        v_add_u32_dpp v{v}, v{v}, v{v} row_shr:8 row_mask:0xf bank_mask:0xf bound_ctrl:0
        """)

    def sort_chunk(X):
        c01, s, inc, p, q = tmp[0], tmp[2], tmp[3], tmp[4], tmp[5]
        a.c("exclusive scan of the 2048 counters (units: bytes, 6 per record)")
        a(f"""
        s_waitcnt lgkmcnt(0)
        s_barrier
        ds_read_b64 {vr(c01, 2)}, v{vT8} offset:{P1_CNT}
        s_waitcnt lgkmcnt(0)
        v_add_u32 v{s}, v{c01}, v{c01 + 1}
        v_mov_b32 v{inc}, v{s}
        """)
        wave_scan(inc)
        a(f"""
        s_nop 1
        v_add_u32_dpp v{inc}, v{inc}, v{inc} row_bcast:15 row_mask:0xa bank_mask:0xf
        s_nop 1
        v_add_u32_dpp v{inc}, v{inc}, v{inc} row_bcast:31 row_mask:0xc bank_mask:0xf
        s_lshl_b32 s{sT1}, s{sW}, 2
        v_mov_b32 v{q}, s{sT1}
        v_readlane_b32 s{sT0}, v{inc}, 63
        s_nop 1
        v_mov_b32 v{p}, s{sT0}
        ds_write_b32 v{q}, v{p} offset:{P1_PART}
        v_and_b32 v{q}, 15, v0
        v_lshlrev_b32 v{p}, 2, v{q}
        s_waitcnt lgkmcnt(0)
        s_barrier
        v_cmp_gt_u32 vcc, s{sW}, v{q}
        ds_read_b32 v{p}, v{p} offset:{P1_PART}
        s_waitcnt lgkmcnt(0)
        v_cndmask_b32 v{p}, 0, v{p}, vcc
        """)
        wave_scan(p)
        a(f"""
        v_sub_u32 v{inc}, v{inc}, v{s}
        v_readlane_b32 s{sT0}, v{p}, 15
        s_add_u32 s{sT0}, s{sT0}, {P1_REC}
        s_nop 0
        v_add_u32 v{q + 1}, s{sT0}, v{inc}
        v_add_u32 v{q + 2}, v{q + 1}, v{c01}
        ds_write_b64 v{vT8}, {vr(q + 1, 2)} offset:{P1_CNT}
        s_waitcnt lgkmcnt(0)
        s_barrier
        """)
        assert (q + 1) % 2 == 0
        a.c("rank and scatter into the LDS image")
        m = [tmp[0:4], tmp[4:8]]
        u1, u2 = tmp[8], tmp[9]

        def rank_issue(recs, ms):
            for k, (o, i, g, hi) in enumerate(recs):
                a(f"v_and_b32 v{ms[k]}, 0xffff, v{o}")
            for k, (o, i, g, hi) in enumerate(recs):
                a(f"ds_add_rtn_u32 v{ms[k]}, v{ms[k]}, v{vSIX} offset:{P1_CNT}")

        def scatter(recs, ms):
            for k, (o, i, g, hi) in enumerate(recs):
                a(f"""
                v_and_b32 v{u1}, 2, v{ms[k]}
                v_add_u32 v{u2}, v{ms[k]}, v{u1}
                v_mad_i32_i24 v{ms[k]}, v{u1}, -2, v{ms[k]}
                ds_write_b32 v{u2}, v{i}
                ds_write_b16_d16_hi v{ms[k]}, v{o} offset:4
                """)

        rank_issue(round_recs(X, 0), m[0])
        for r in range(6):
            if r < 5:
                rank_issue(round_recs(X, r + 1), m[(r + 1) & 1])
                a("s_waitcnt lgkmcnt(4)")
            else:
                a("s_waitcnt lgkmcnt(0)")
            scatter(round_recs(X, r), m[r & 1])
        tail_begin(f"P1_sc6{X}")
        rank_issue(round_recs(X, 6), m[0])
        a("s_waitcnt lgkmcnt(0)")
        scatter(round_recs(X, 6), m[0])
        tail_end(f"P1_sc6{X}")
        a("""
        s_waitcnt lgkmcnt(0)
        s_barrier
        """)
        a.c("read the image back (into the dead record registers) and the counters (now segment ends)")
        dst = [O[X] + 4 * r for r in range(6)] + [I[X] + 4 * r for r in range(4)]
        ra, rb = tmp[8], tmp[9]
        a(f"v_add_u32 v{ra}, 0x10000, v{vT16}")
        a(f"v_add_u32 v{rb}, 0x20000, v{vT16}")
        for r in range(9):
            base = [vT16, ra, rb][r >> 2]
            a(f"ds_read_b128 {vr(dst[r], 4)}, v{base} offset:{P1_REC + (r & 3) * 16384}")
        nlast = CH * 6 // 16 - 9 * 1024
        a(f"""
        v_cmp_gt_u32 vcc, {nlast}, v0
        s_and_saveexec_b64 {sr(sEX, 2)}, vcc
        ds_read_b128 {vr(dst[9], 4)}, v{rb} offset:{P1_REC + 16384}
        s_mov_b64 exec, {sr(sEX, 2)}
        v_cndmask_b32 v{rb}, v{vX}, v{vT16}, vcc
        v_and_b32 v{ra}, 1, v0
        v_lshlrev_b32 v{ra}, 12, v{ra}
        v_lshrrev_b32 v{tmp[0]}, 1, v0
        v_lshl_add_u32 v{ra}, v{tmp[0]}, 2, v{ra}
        s_cmp_lt_u32 s{sW}, 8
        s_cbranch_scc0 P1_notab{X}
        """)
        for qq in range(4):
            if qq:
                a(f"v_add_u32 v{ra}, 1024, v{ra}")
            a(f"ds_read2_b32 {vr(tmp[2 * qq], 2)}, v{ra} offset0:{P1_CNT // 4 - 1} offset1:{P1_CNT // 4}")
        a("s_waitcnt lgkmcnt(0)")
        for qq in range(4):
            s_, e_ = tmp[2 * qq], tmp[2 * qq + 1]
            a(f"""
            v_sub_u32 v{e_}, v{e_}, v{s_}
            v_subrev_u32 v{s_}, {P1_REC}, v{s_}
            v_mul_hi_u32 v{e_}, v{e_}, s{sDIV6}
            v_mul_hi_u32 v{s_}, v{s_}, s{sDIV6}
            v_lshl_or_b32 v{tmp[qq]}, v{e_}, 16, v{s_}
            """)
        a(f"""
        v_lshrrev_b32 v{tmp[4]}, 1, v0
        v_and_b32 v{tmp[5]}, 1, v0
        v_lshlrev_b32 v{tmp[4]}, 14, v{tmp[4]}
        v_lshl_or_b32 v{tmp[4]}, v{tmp[5]}, 4, v{tmp[4]}
        s_branch P1_tab{X}
        P1_notab{X}:
        v_mov_b32 v{tmp[4]}, v{vX}
        P1_tab{X}:
        s_lshl_b32 s{sT0}, s{sCH}, 5
        s_mul_i32 s{sT1}, s{sCH}, {CHB}
        buffer_store_dwordx4 {vr(tmp[0], 4)}, v{tmp[4]}, {sr(S_TAB, 4)}, s{sT0} offen
        s_waitcnt lgkmcnt(0)
        """)
        for r in range(10):
            va = vT16 if r < 9 else rb
            a(f"buffer_store_dwordx4 {vr(dst[r], 4)}, v{va}, {sr(S_REC, 4)}, s{sT1} offen")
            if r < 9:
                a(f"s_add_u32 s{sT1}, s{sT1}, 16384")

    a(f"v_mov_b32 v{vX}, 0x7fffff00")
    for r in range(7):
        issue_round("A", r)
    a("s_barrier")
    for r in range(7):
        a("s_waitcnt vmcnt(18)")
        if r == 6:
            tail_begin("P1_pk6A")
        pack(round_recs("A", r))
        if r == 6:
            tail_end("P1_pk6A")
        issue_round("B", r)
    a(f"s_lshl_b32 s{sCH}, s2, 1")
    sort_chunk("A")
    a(f"""
    s_barrier
    v_mov_b32 v{tmp[8]}, 0
    v_mov_b32 v{tmp[9]}, 0
    ds_write_b64 v{vT8}, {vr(tmp[8], 2)} offset:{P1_CNT}
    s_add_u32 s{sCH}, s{sCH}, 1
    s_waitcnt lgkmcnt(0)
    s_barrier
    """)
    for r in range(7):
        a(f"s_waitcnt vmcnt({3 * (6 - r) + 11})")
        if r == 6:
            tail_begin("P1_pk6B")
        pack(round_recs("B", r))
        if r == 6:
            tail_end("P1_pk6B")
    sort_chunk("B")
    a("P1_done:")
    a("s_endpgm")
    kernel_desc(a, name, 128, 48)


L_LOCK = 0
L_RBF = 800
L_ACC0 = L_RBF + EB * 16
L_ACC1 = L_ACC0 + EB * 16
L_RING = L_ACC1 + EB * 16
RING_CAP = 101
RING_STRIDE = RING_CAP * 8
P2_LDS = 163840
assert L_RING + 16 * RING_STRIDE <= P2_LDS


def gen_main(a, name):
    ntr = " nt" if OPT["nt_rec"] else ""
    nto = " nt" if OPT["nt_out"] else ""
    S_REC, S_M, S_TMP, S_OUT = 8, 12, 16, 20
    sB, sW = 24, 25
    sCNT, sTOP = 26, 27
    sM = [28, 29]
    sN, sT0, sT1, sT2 = 30, 31, 32, 33
    sACQ, sFAIL = 34, 35
    sMSK = 36
    sRET = 38
    sLONG = [40, 42]
    sCO = 44
    sCOB = [45, 46]
    sK, sJ, sPH = 47, 48, 49
    sEX = 50
    sCEN = 52
    sP = 60
    sRB = 76
    sHI = 77
    vLANE = 1
    A1, A2, A3 = 2, 6, 10
    D = 14
    G = [30, 34]
    SBF = [38, 42]
    WA = [46, 48]
    O16 = [50, 51]
    C16 = [52, 53]
    IDX = 54
    ACC = 56
    TT = 60
    RB = [64, 68]
    RD = [67, 71]
    RL = [72, 73]
    RA = [74, 75]
    vBP, vCB, vL2, vN8, vKF, vHO, vONE, vOOB = 76, 77, 78, 79, 80, 81, 82, 83
    vE, vDUM = 84, 85
    AU, AR = 86, 90
    MP = 94
    t = list(range(118, 128)) + [G[0], G[0] + 1]

    kernel_head(a, name)
    a(f"""
    s_cmp_ge_u32 s2, {NB}
    s_cbranch_scc1 P2_done
    s_load_dwordx2 {sr(sP, 2)}, s[0:1], 0
    s_load_dwordx2 {sr(sP + 2, 2)}, s[0:1], 24
    s_load_dwordx4 {sr(sP + 4, 4)}, s[0:1], 40
    s_load_dwordx4 {sr(sP + 8, 4)}, s[0:1], 56
    s_load_dwordx4 {sr(sP + 12, 4)}, s[0:1], 72
    s_load_dwordx2 s[4:5], s[0:1], 88
    s_load_dwordx2 s[6:7], s[0:1], 104
    s_and_b32 s{sB}, s2, 7
    s_lshl_b32 s{sB}, s{sB}, 5
    s_lshr_b32 s{sT0}, s2, 3
    s_add_u32 s{sB}, s{sB}, s{sT0}
    v_lshrrev_b32 v{t[0]}, 6, v0
    v_and_b32 v{vLANE}, 63, v0
    s_mov_b32 s{sHI}, 0xffff0000
    v_readfirstlane_b32 s{sW}, v{t[0]}
    v_mov_b32 v{vOOB}, 0x7fffff00
    v_mov_b32 v{vONE}, 1
    s_waitcnt lgkmcnt(0)
    """)
    pM, pDIST, pCEN, pFREQ, pWRBF, pWSBF, pWDN, pWUP = [sP + 2 * k for k in range(8)]
    a(f"""
    s_load_dwordx4 {sr(sCEN, 4)}, {sr(pCEN, 2)}, 0
    s_load_dword s{sT2}, {sr(pFREQ, 2)}, 0
    """)
    srd(a, S_REC, 6, REC_BYTES)
    srd(a, S_M, pM, E, stride=32)
    srd(a, S_OUT, 4, E * 32)
    a(f"s_add_u32 s6, s6, {TAB_OFF}")
    a("s_addc_u32 s7, s7, 0")
    srd(a, S_TMP, 6, TAB_BYTES)
    a.c("this wave's 32 x 8 table entries: lane = chunk (l & 31), slices 4*(l >> 5) .. +3")
    a(f"""
    v_and_b32 v{t[0]}, 31, v{vLANE}
    v_lshrrev_b32 v{t[1]}, 5, v{vLANE}
    v_lshlrev_b32 v{vN8}, 3, v{t[0]}
    v_lshlrev_b32 v{IDX + 1}, 4, v{t[1]}
    v_lshl_add_u32 v{t[2]}, v{t[0]}, 5, v{IDX + 1}
    s_lshl_b32 s{sT0}, s{sB}, 14
    s_lshl_b32 s{sT1}, s{sW}, 10
    s_add_u32 s{sT0}, s{sT0}, s{sT1}
    buffer_load_dwordx4 {vr(TT, 4)}, v{t[2]}, {sr(S_TMP, 4)}, s{sT0} offen
    """)
    srd(a, S_TMP, pDIST, E * 2)
    a.c("dist of the bucket's edges t, t+1024, t+2048, t+3072")
    a(f"""
    s_mul_i32 s{sT0}, s{sB}, {EB * 2}
    v_lshlrev_b32 v{t[2]}, 1, v0
    buffer_load_ushort v{t[4]}, v{t[2]}, {sr(S_TMP, 4)}, s{sT0} offen
    buffer_load_ushort v{t[5]}, v{t[2]}, {sr(S_TMP, 4)}, s{sT0} offen offset:2048
    s_add_u32 s{sT0}, s{sT0}, 4096
    buffer_load_ushort v{t[6]}, v{t[2]}, {sr(S_TMP, 4)}, s{sT0} offen
    buffer_load_ushort v{t[7]}, v{t[2]}, {sr(S_TMP, 4)}, s{sT0} offen offset:2048
    """)
    a.c("weights: lane holds matrix row i = l & 31 (feature f(i & 15)), k = 8*(l >> 5) + j")
    vF2 = t[3]
    a(f"""
    v_and_b32 v{t[8]}, 3, v{vLANE}
    v_bfe_u32 v{t[9]}, v{vLANE}, 2, 1
    v_lshl_add_u32 v{t[8]}, v{t[9]}, 3, v{t[8]}
    v_bfe_u32 v{t[9]}, v{vLANE}, 3, 1
    v_lshl_add_u32 v{t[8]}, v{t[9]}, 2, v{t[8]}
    v_lshlrev_b32 v{vF2}, 1, v{t[8]}
    v_lshl_add_u32 v{t[9]}, v{t[1]}, 8, v{vF2}
    v_lshl_add_u32 v{t[10]}, v{t[1]}, 5, v{vF2}
    """)
    W1, W2 = MP, MP + 8
    srd(a, S_TMP, pWDN, 512)
    for j in range(8):
        a(f"buffer_load_ushort v{W1 + j}, v{t[9]}, {sr(S_TMP, 4)}, 0 offen offset:{32 * j}")
    srd(a, S_TMP, pWSBF, 512)
    for j in range(8):
        a(f"buffer_load_ushort v{W2 + j}, v{t[10]}, {sr(S_TMP, 4)}, 0 offen offset:{64 * j}")
    W3, W4 = SBF[0], WA[0]
    srd(a, S_TMP, pWUP, 512)
    for j in range(8):
        a(f"buffer_load_ushort v{W3 + j}, v{t[9]}, {sr(S_TMP, 4)}, 0 offen offset:{32 * j}")
    srd(a, S_TMP, pWRBF, 256)
    for j in range(8):
        a(f"buffer_load_ushort v{W4 + j}, v{vF2}, {sr(S_TMP, 4)}, 0 offen offset:{32 * j}")
    srd(a, S_TMP, pM, E * 32)
    a.c("zero the locks and the accumulators")
    a(f"""
    v_mov_b32 v{D}, 0
    v_mov_b32 v{D + 1}, 0
    v_mov_b32 v{D + 2}, 0
    v_mov_b32 v{D + 3}, 0
    v_lshlrev_b32 v{t[2]}, 4, v0
    v_add_u32 v{t[11]}, {L_ACC0}, v{t[2]}
    """)
    for r in range(4):
        a(f"ds_write_b128 v{t[11]}, {vr(D, 4)} offset:{r * 16384}")
    a(f"v_add_u32 v{t[11]}, 0x10000, v{t[11]}")
    for r in range(2):
        a(f"ds_write_b128 v{t[11]}, {vr(D, 4)} offset:{r * 16384}")
    a(f"""
    v_cmp_gt_u32 vcc, {2 * EB - 6 * 1024}, v0
    s_and_saveexec_b64 {sr(sEX, 2)}, vcc
    ds_write_b128 v{t[11]}, {vr(D, 4)} offset:{2 * 16384}
    s_mov_b64 exec, {sr(sEX, 2)}
    v_cmp_gt_u32 vcc, {L_RBF // 16}, v0
    s_and_saveexec_b64 {sr(sEX, 2)}, vcc
    ds_write_b128 v{t[2]}, {vr(D, 4)}
    s_mov_b64 exec, {sr(sEX, 2)}
    s_waitcnt lgkmcnt(0)
    """)
    a.c("centers and frequencies to f32")
    for k in (3, 2, 1, 0):
        a(f"s_and_b32 s{sCEN + 2 * k + 1}, s{sCEN + k}, 0xffff0000")
        a(f"s_lshl_b32 s{sCEN + 2 * k}, s{sCEN + k}, 16")
    a(f"""
    s_lshl_b32 s{sT0}, s{sT2}, 16
    s_and_b32 s{sT1}, s{sT2}, 0xffff0000
    v_mov_b32 v{t[8]}, s{sT0}
    v_mov_b32 v{t[9]}, s{sT1}
    v_cmp_gt_u32 vcc, 32, v{vLANE}
    v_mov_b32 v{t[10]}, {L_ACC0}
    v_mov_b32 v{t[11]}, {L_ACC1}
    v_cndmask_b32 v{vKF}, v{t[9]}, v{t[8]}, vcc
    v_cndmask_b32 v{vHO}, v{t[11]}, v{t[10]}, vcc
    v_mul_f32 v{vKF}, 0.15915494, v{vKF}
    """)
    a.c("record-stream lane constants")
    a(f"""
    v_and_b32 v{t[8]}, 15, v{vLANE}
    v_lshrrev_b32 v{t[9]}, 4, v{vLANE}
    v_lshlrev_b32 v{vL2}, 1, v{t[8]}
    v_lshlrev_b32 v{vBP}, 2, v{t[9]}
    v_mul_u32_u24 v{t[9]}, {CHB}, v{t[9]}
    v_mad_u32_u24 v{vCB}, v{t[8]}, 12, v{t[9]}
    s_mul_i32 s{sCO}, s{sW}, {32 * CHB}
    s_mul_i32 s{sRB}, s{sW}, {RING_STRIDE}
    s_add_u32 s{sRB}, s{sRB}, {L_RING}
    s_mov_b32 s{sTOP}, s{sRB}
    s_mov_b32 s{sCNT}, 0
    s_mov_b32 s{sM[0]}, 0
    s_mov_b32 s{sM[1]}, 0
    s_mov_b32 s{sJ}, 0
    s_mov_b32 s{sPH}, 0
    s_mov_b32 s78, 100000
    """)

    def prep(buf):
        a(f"""
        v_lshrrev_b32 v{RL[buf]}, 16, v{vE}
        v_and_b32 v{t[0]}, 1, v{vE}
        v_and_b32 v{t[1]}, 0xfffe, v{vE}
        v_sub_u32 v{RD[buf]}, v{vL2}, v{t[0]}
        v_mad_u32_u24 v{RA[buf]}, v{t[1]}, 6, v{vCB}
        v_cmp_lt_i32 vcc, v{RD[buf]}, v{RL[buf]}
        v_cmp_lt_u32 {sr(sLONG[buf], 2)}, 31, v{RL[buf]}
        s_mov_b32 s{sCOB[buf]}, s{sCO}
        v_cndmask_b32 v{t[1]}, v{vOOB}, v{RA[buf]}, vcc
        buffer_load_dwordx3 {vr(RB[buf], 3)}, v{t[1]}, {sr(S_REC, 4)}, s{sCO} offen{ntr}
        """)

    uid = [0]

    def advance():
        uid[0] += 1
        u = uid[0]
        a(f"""
        s_add_u32 s{sJ}, s{sJ}, 1
        s_add_u32 s{sCO}, s{sCO}, {4 * CHB}
        v_add_u32 v{vBP}, 16, v{vBP}
        s_cmp_lt_u32 s{sJ}, 8
        s_cbranch_scc1 P2_adv{u}
        s_mov_b32 s{sJ}, 0
        s_sub_u32 s{sCO}, s{sCO}, {32 * CHB}
        s_add_u32 s{sPH}, s{sPH}, 1
        s_cmp_eq_u32 s{sPH}, 4
        s_cselect_b32 s{sT0}, 0, 128
        v_subrev_u32 v{vBP}, s{sT0}, v{vBP}
        v_mov_b32 v{t[0]}, v{TT}
        v_mov_b32 v{TT}, v{TT + 1}
        v_mov_b32 v{TT + 1}, v{TT + 2}
        v_mov_b32 v{TT + 2}, v{TT + 3}
        v_mov_b32 v{TT + 3}, v{t[0]}
        s_cmp_lt_u32 s{sPH}, 8
        s_cbranch_scc1 P2_adv{u}
        v_mov_b32 v{TT}, 0
        P2_adv{u}:
        """)

    a("s_waitcnt vmcnt(36)")
    for buf in range(2):
        a(f"""
        ds_bpermute_b32 v{vE}, v{vBP}, v{TT}
        s_waitcnt lgkmcnt(0)
        """)
        prep(buf)
        advance()

    a.c("radial basis table (same roundings as the reference), stored as f16")
    a("s_waitcnt vmcnt(34)")
    sTEN, sL2E = sT0, sT1
    a(f"s_mov_b32 s{sTEN}, 0xc1200000")
    a(f"s_mov_b32 s{sL2E}, 0x3fb8aa3b")
    for r in range(4):
        dd = t[4 + r]
        if r == 3:
            a(f"""
            v_cmp_gt_u32 vcc, {EB - 3 * 1024}, v0
            s_and_saveexec_b64 {sr(sEX, 2)}, vcc
            s_cbranch_execz P2_rbf3
            """)
        a(f"v_lshlrev_b32 v{dd}, 16, v{dd}")
        x = [D + k for k in range(8)]
        for k in range(8):
            a(f"v_subrev_f32 v{x[k]}, s{sCEN + k}, v{dd}")

        def rnd():
            for k in range(0, 8, 2):
                a(f"v_cvt_pk_bf16_f32 v{D + 8 + k // 2}, v{x[k]}, v{x[k + 1]}")
            for k in range(0, 8, 2):
                a(f"v_lshlrev_b32 v{x[k]}, 16, v{D + 8 + k // 2}")
                a(f"v_and_b32 v{x[k + 1]}, s{sHI}, v{D + 8 + k // 2}")
        rnd()
        for k in range(8):
            a(f"v_mul_f32 v{x[k]}, v{x[k]}, v{x[k]}")
        rnd()
        for k in range(8):
            a(f"v_mul_f32 v{x[k]}, s{sTEN}, v{x[k]}")
        rnd()
        for k in range(8):
            a(f"v_mul_f32 v{x[k]}, s{sL2E}, v{x[k]}")
        for k in range(8):
            a(f"v_exp_f32 v{x[k]}, v{x[k]}")
        a("s_nop 0")
        rnd()
        for k in range(0, 8, 2):
            a(f"v_cvt_pk_f16_f32 v{D + 8 + k // 2}, v{x[k]}, v{x[k + 1]}")
        a(f"ds_write_b128 v{t[2]}, {vr(D + 8, 4)} offset:{L_RBF + r * 16384}")
        if r == 3:
            a("P2_rbf3:")
            a(f"s_mov_b64 exec, {sr(sEX, 2)}")

    def build_pair(Wb, Wf, Ab, Af, zero_hi_half_f16):
        mx, sw = t[8], t[9]
        for j in range(8):
            a(f"v_lshlrev_b32 v{Wf + j}, 16, v{Wf + j}")
            a(f"v_lshlrev_b32 v{Wb + j}, 16, v{Wb + j}")
        a(f"v_max3_f32 v{mx}, abs(v{Wf}), abs(v{Wf + 1}), abs(v{Wf + 2})")
        a(f"v_max3_f32 v{mx}, v{mx}, abs(v{Wf + 3}), abs(v{Wf + 4})")
        a(f"v_max3_f32 v{mx}, v{mx}, abs(v{Wf + 5}), abs(v{Wf + 6})")
        a(f"v_max_f32 v{mx}, v{mx}, abs(v{Wf + 7})")
        a(f"""
        v_mov_b32 v{sw}, v{mx}
        s_nop 1
        v_permlane32_swap_b32 v{mx}, v{sw}
        s_nop 1
        v_max_f32 v{mx}, v{mx}, v{sw}
        v_bfe_u32 v{mx}, v{mx}, 23, 8
        v_cmp_eq_u32 vcc, 0, v{mx}
        v_sub_u32 v{mx}, 141, v{mx}
        s_nop 0
        v_cndmask_b32 v{mx}, v{mx}, 0, vcc
        v_sub_u32 v{sw}, 0, v{mx}
        v_and_b32 v{t[10]}, 16, v{vLANE}
        v_cmp_eq_u32 vcc, 0, v{t[10]}
        """)
        for j in range(8):
            a(f"v_ldexp_f32 v{Wf + j}, v{Wf + j}, v{mx}")
            a(f"v_ldexp_f32 v{Wb + j}, v{Wb + j}, v{sw}")
        for j in range(4):
            a(f"v_cvt_pk_bf16_f32 v{Ab + j}, v{Wb + 2 * j}, v{Wb + 2 * j + 1}")
            a(f"v_cvt_pk_f16_f32 v{Af + j}, v{Wf + 2 * j}, v{Wf + 2 * j + 1}")
        for j in range(4):
            a(f"v_cndmask_b32 v{Ab + j}, 0, v{Ab + j}, vcc")
            a(f"v_cndmask_b32 v{Af + j}, v{Af + j}, 0, vcc")
        if zero_hi_half_f16:
            a(f"v_cmp_gt_u32 vcc, 32, v{vLANE}")
            a("s_nop 1")
            for j in range(4):
                a(f"v_cndmask_b32 v{Af + j}, 0, v{Af + j}, vcc")

    a.c("matrix operands")
    a("s_waitcnt vmcnt(2)")
    build_pair(W1, W2, A1, A2, False)
    build_pair(W3, W4, AU, AR, True)
    a.c("identity operand: row i < 16 has a one at k = f(i)")
    a(f"""
    v_lshrrev_b32 v{t[8]}, 1, v{vF2}
    v_lshrrev_b32 v{t[9]}, 5, v{vLANE}
    v_lshlrev_b32 v{t[9]}, 3, v{t[9]}
    v_sub_u32 v{t[8]}, v{t[8]}, v{t[9]}
    v_and_b32 v{t[10]}, 16, v{vLANE}
    v_or_b32 v{t[8]}, v{t[8]}, v{t[10]}
    v_mov_b32 v{t[10]}, 0x3f80
    v_mov_b32 v{t[11]}, 0x3f800000
    """)
    for j in range(4):
        a(f"""
        v_cmp_eq_u32 vcc, {2 * j}, v{t[8]}
        v_cmp_eq_u32 {sr(sMSK, 2)}, {2 * j + 1}, v{t[8]}
        s_nop 1
        v_cndmask_b32 v{A3 + j}, 0, v{t[10]}, vcc
        v_cndmask_b32 v{A3 + j}, v{A3 + j}, v{t[11]}, {sr(sMSK, 2)}
        """)
    a.c("three out-of-range loads stand in for the gathers of the steps before the first one")
    for k in range(3):
        a(f"buffer_load_dword v{vDUM}, v{vOOB}, {sr(S_REC, 4)}, 0 offen")
    a(f"""
    s_mov_b32 s{sK}, 0
    s_waitcnt lgkmcnt(0)
    s_barrier
    """)

    def stage1(buf, partial):
        W, An = WA[buf], WA[buf] + 1
        if partial:
            a(f"""
            s_min_u32 s{sN}, s{sCNT}, 32
            s_bfm_b64 {sr(sMSK, 2)}, s{sN}, 0
            s_mov_b32 s{sM[buf]}, s{sMSK}
            s_sub_u32 s{sCNT}, s{sCNT}, s{sN}
            s_lshl_b32 s{sN}, s{sN}, 3
            s_sub_u32 s{sTOP}, s{sTOP}, s{sN}
            """)
        else:
            a(f"""
            s_mov_b32 s{sM[buf]}, -1
            s_sub_u32 s{sCNT}, s{sCNT}, 32
            s_sub_u32 s{sTOP}, s{sTOP}, 256
            """)
        a(f"""
        v_add_u32 v{t[0]}, s{sTOP}, v{vN8}
        ds_read_b64 {vr(W, 2)}, v{t[0]}
        s_waitcnt lgkmcnt(0)
        v_lshrrev_b32 v{IDX}, 12, v{W}
        v_lshlrev_b32 v{O16[buf]}, 4, v{W}
        buffer_load_dwordx4 {vr(G[buf], 4)}, {vr(IDX, 2)}, {sr(S_M, 4)}, 0 idxen offen
        v_and_b32 v{O16[buf]}, 0xfff0, v{O16[buf]}
        v_and_b32 v{t[0]}, s{sHI}, v{An}
        ds_read_b128 {vr(SBF[buf], 4)}, v{O16[buf]} offset:{L_RBF}
        v_mul_f32 v{t[0]}, v{vKF}, v{t[0]}
        v_fract_f32 v{t[0]}, v{t[0]}
        v_cos_f32 v{t[0]}, v{t[0]}
        s_nop 0
        v_cvt_f16_f32 v{C16[buf]}, v{t[0]}
        """)

    def stage2(buf, vm, sync):
        uid[0] += 1
        u = uid[0]
        W = WA[buf]
        la, bit, aa, old = t[0], t[1], t[2], t[3]
        guard = "s_sub_u32 s78, s78, 1\ns_cbranch_scc1 P2_done" if OPT["guard"] else ""
        if sync:
            a("s_waitcnt lgkmcnt(0)")
        for j in range(4):
            a(f"v_pk_mul_f16 v{SBF[buf] + j}, v{SBF[buf] + j}, v{C16[buf]} op_sel_hi:[1,0]")
        a(f"""
        s_waitcnt vmcnt({vm})
        P2_retry{u}:
        v_mfma_f32_32x32x16_bf16 {vr(D, 16)}, {vr(A1, 4)}, {vr(G[buf], 4)}, 0
        v_lshrrev_b32 v{la}, 2, v{W}
        v_lshlrev_b32 v{bit}, v{W}, v{vONE}
        v_mfma_f32_32x32x16_f16 {vr(D, 16)}, {vr(A2, 4)}, {vr(SBF[buf], 4)}, {vr(D, 16)}
        v_and_b32 v{la}, 0x3fc, v{la}
        v_add_u32 v{aa}, v{vHO}, v{O16[buf]}
        s_mov_b32 exec_lo, s{sM[buf]}
        s_mov_b32 exec_hi, 0
        ds_or_rtn_b32 v{old}, v{la}, v{bit}
        s_mov_b32 exec_hi, s{sM[buf]}
        ds_read_b128 {vr(ACC, 4)}, v{aa}
        s_mov_b64 exec, -1
        s_nop 4
        """)
        for j in range(8):
            a(f"v_mul_f32 v{D + j}, v{D + j}, v{D + 8 + j}")
        a(f"""
        s_nop 0
        s_waitcnt lgkmcnt(0)
        v_mfma_f32_32x32x16_bf16 {vr(D, 16)}, {vr(A3, 4)}, {vr(ACC, 4)}, {vr(D, 16)}
        v_and_b32 v{old}, v{old}, v{bit}
        v_cmp_eq_u32 vcc, 0, v{old}
        s_and_b32 s{sACQ}, vcc_lo, s{sM[buf]}
        s_andn2_b32 s{sFAIL}, s{sM[buf]}, s{sACQ}
        s_mov_b32 s{sM[buf]}, 0
        s_nop 6
        """)
        for j in range(4):
            a(f"v_cvt_pk_bf16_f32 v{ACC + j}, v{D + 2 * j}, v{D + 2 * j + 1}")
        a(f"""
        s_mov_b32 exec_lo, s{sACQ}
        s_mov_b32 exec_hi, s{sACQ}
        ds_write_b128 v{aa}, {vr(ACC, 4)}
        s_mov_b32 exec_hi, 0
        ds_xor_b32 v{la}, v{bit}
        s_mov_b64 exec, -1
        s_bcnt1_i32_b32 s{sN}, s{sFAIL}
        s_cbranch_scc0 P2_s2end{u}
        {guard}
        s_add_u32 s{sT0}, s{sCNT}, s{sN}
        s_cmp_le_u32 s{sT0}, {RING_CAP}
        s_cbranch_scc1 P2_req{u}
        s_mov_b32 s{sM[buf]}, s{sFAIL}
        s_branch P2_retry{u}
        P2_req{u}:
        v_mbcnt_lo_u32_b32 v{old}, s{sFAIL}, 0
        s_mov_b32 s{sCNT}, s{sT0}
        v_lshl_add_u32 v{old}, v{old}, 3, s{sTOP}
        s_mov_b32 exec_lo, s{sFAIL}
        s_mov_b32 exec_hi, 0
        ds_write_b64 v{old}, {vr(W, 2)}
        s_mov_b64 exec, -1
        s_lshl3_add_u32 s{sTOP}, s{sN}, s{sTOP}
        P2_s2end{u}:
        """)

    def push(buf, slot, free):
        uid[0] += 1
        u = uid[0]
        d0, d1, d2 = RB[buf], RB[buf] + 1, RB[buf] + 2
        if slot == 0:
            a(f"v_cmp_lt_u32 {sr(sMSK, 2)}, v{RD[buf]}, v{RL[buf]}")
            a(f"v_lshlrev_b32 v{t[5]}, 16, v{d1}")
            w, an = d0, t[5]
        else:
            a(f"v_add_u32 v{t[5]}, 1, v{RD[buf]}")
            a(f"v_cmp_lt_u32 {sr(sMSK, 2)}, v{t[5]}, v{RL[buf]}")
            w, an = d2, d1
        a(f"""
        P2_push{u}:
        s_bcnt1_i32_b64 s{sN}, {sr(sMSK, 2)}
        s_add_u32 s{sT0}, s{sCNT}, s{sN}
        v_mbcnt_lo_u32_b32 v{t[4]}, s{sMSK}, 0
        v_mbcnt_hi_u32_b32 v{t[4]}, s{sMSK + 1}, v{t[4]}
        s_cmp_le_u32 s{sT0}, {RING_CAP}
        s_cbranch_scc1 P2_pok{u}
        s_mov_b64 {sr(sEX, 2)}, {sr(sMSK, 2)}
        s_call_b64 {sr(sRET, 2)}, P2_pop{free}
        s_mov_b64 {sr(sMSK, 2)}, {sr(sEX, 2)}
        s_branch P2_push{u}
        P2_pok{u}:
        v_lshl_add_u32 v{t[4]}, v{t[4]}, 3, s{sTOP}
        s_mov_b64 exec, {sr(sMSK, 2)}
        ds_write2_b32 v{t[4]}, v{w}, v{an} offset1:1
        s_mov_b64 exec, -1
        s_mov_b32 s{sCNT}, s{sT0}
        s_lshl3_add_u32 s{sTOP}, s{sN}, s{sTOP}
        """)

    def slot(buf, vm):
        uid[0] += 1
        u = uid[0]
        a(f"""
        s_cmp_ge_u32 s{sCNT}, 32
        s_cbranch_scc1 P2_pp{u}
        buffer_load_dword v{vDUM}, v{vOOB}, {sr(S_REC, 4)}, 0 offen
        s_waitcnt lgkmcnt(0)
        s_branch P2_pe{u}
        P2_pp{u}:
        """)
        stage1(buf, False)
        a(f"""
        P2_pe{u}:
        s_cmp_eq_u32 s{sM[buf ^ 1]}, 0
        s_cbranch_scc1 P2_se{u}
        """)
        stage2(buf ^ 1, vm, False)
        a(f"P2_se{u}:")

    def step(buf):
        uid[0] += 1
        u = uid[0]
        a(f"ds_bpermute_b32 v{vE}, v{vBP}, v{TT}")
        a("s_waitcnt vmcnt(4)")
        push(buf, 0, 0)
        slot(0, 1)
        push(buf, 1, 1)
        a.c("segments longer than the 16-lane window (rare)")
        a(f"""
        s_cmp_eq_u64 {sr(sLONG[buf], 2)}, 0
        s_cbranch_scc1 P2_nolong{u}
        P2_long{u}:
        v_add_u32 v{RD[buf]}, 32, v{RD[buf]}
        v_add_u32 v{RA[buf]}, 192, v{RA[buf]}
        v_cmp_lt_i32 vcc, v{RD[buf]}, v{RL[buf]}
        s_cbranch_vccz P2_nolong{u}
        s_nop 0
        v_cndmask_b32 v{t[6]}, v{vOOB}, v{RA[buf]}, vcc
        buffer_load_dwordx3 {vr(RB[buf], 3)}, v{t[6]}, {sr(S_REC, 4)}, s{sCOB[buf]} offen
        s_waitcnt vmcnt(0)
        """)
        push(buf, 0, 1)
        push(buf, 1, 1)
        a(f"""
        s_branch P2_long{u}
        P2_nolong{u}:
        s_waitcnt lgkmcnt(0)
        """)
        prep(buf)
        advance()
        slot(1, 2)

    a("P2_loop:")
    if OPT["phase_bar"]:
        a(f"""
        s_and_b32 s{sT0}, s{sK}, 7
        s_cbranch_scc1 P2_nobar
        s_barrier
        P2_nobar:
        """)
    step(0)
    step(1)
    a(f"""
    s_add_u32 s{sK}, s{sK}, 2
    s_cmp_lt_u32 s{sK}, 64
    s_cbranch_scc1 P2_loop
    """)
    a.c("prefetch the bucket's own m rows for the epilogue")
    vMO = RA[0]
    a(f"""
    s_lshl_b32 s{sT0}, s{sW}, 10
    v_lshl_add_u32 v{vMO}, v{vN8}, 2, v{IDX + 1}
    v_add_u32 v{vMO}, s{sT0}, v{vMO}
    s_mul_i32 s{sCO}, s{sB}, {EB * 32}
    s_mov_b32 s{sT1}, s{sCO}
    """)
    for i in range(6):
        a(f"buffer_load_dwordx4 {vr(MP + 4 * i, 4)}, v{vMO}, {sr(S_TMP, 4)}, s{sT1} offen")
        a(f"s_add_u32 s{sT1}, s{sT1}, 16384")
    a(f"buffer_load_dwordx4 {vr(TT, 4)}, v{vMO}, {sr(S_TMP, 4)}, s{sT1} offen")
    a(f"""
    s_cmp_eq_u32 s{sM[1]}, 0
    s_cbranch_scc1 P2_drain
    """)
    stage2(1, 7, True)
    a(f"""
    P2_drain:
    s_cmp_eq_u32 s{sCNT}, 0
    s_cbranch_scc1 P2_epi
    s_call_b64 {sr(sRET, 2)}, P2_pop0
    s_branch P2_drain
    P2_epi:
    s_lshl_b32 s{sT0}, s{sW}, 9
    v_lshlrev_b32 v{t[1]}, 1, v{vN8}
    v_add_u32 v{t[1]}, s{sT0}, v{t[1]}
    v_add_u32 v{t[0]}, v{vHO}, v{t[1]}
    s_waitcnt vmcnt(0) lgkmcnt(0)
    s_barrier
    """)
    a.c("epilogue: out = m + (agg @ w_up) * (rbf @ w_rbf), 32 edges per pass")
    for i in range(7):
        mreg = MP + 4 * i if i < 6 else TT
        va = vMO
        if i == 6:
            va = t[2]
            a(f"""
            s_cmp_lt_u32 s{sW}, 2
            s_cbranch_scc0 P2_done
            v_cmp_gt_u32 vcc, {(EB - 6 * 512) * 32}, v{vMO}
            s_nop 1
            v_cndmask_b32 v{va}, v{vOOB}, v{vMO}, vcc
            """)
        ob = G[i & 1]
        a(f"""
        ds_read_b128 {vr(ACC, 4)}, v{t[0]} offset:{8192 * i}
        ds_read_b128 {vr(SBF[0], 4)}, v{t[1]} offset:{L_RBF + 8192 * i}
        s_waitcnt lgkmcnt(1)
        v_mfma_f32_32x32x16_bf16 {vr(D, 16)}, {vr(AU, 4)}, {vr(ACC, 4)}, 0
        s_waitcnt lgkmcnt(0)
        v_mfma_f32_32x32x16_f16 {vr(D, 16)}, {vr(AR, 4)}, {vr(SBF[0], 4)}, {vr(D, 16)}
        s_nop 11
        """)
        for j in range(8):
            a(f"v_mul_f32 v{D + j}, v{D + j}, v{D + 8 + j}")
        a(f"""
        s_nop 1
        v_mfma_f32_32x32x16_bf16 {vr(D, 16)}, {vr(A3, 4)}, {vr(mreg, 4)}, {vr(D, 16)}
        s_nop 11
        """)
        for j in range(4):
            a(f"v_cvt_pk_bf16_f32 v{ob + j}, v{D + 2 * j}, v{D + 2 * j + 1}")
        a(f"buffer_store_dwordx4 {vr(ob, 4)}, v{va}, {sr(S_OUT, 4)}, s{sCO} offen{nto}")
        a(f"s_add_u32 s{sCO}, s{sCO}, 16384")
    a("P2_done:")
    a("s_endpgm")
    for buf in range(2):
        a.c(f"subroutine: pop up to 32 records into gather buffer {buf} and finish them")
        a(f"P2_pop{buf}:")
        stage1(buf, True)
        stage2(buf, 0, True)
        a(f"s_setpc_b64 {sr(sRET, 2)}")
    kernel_desc(a, name, 128, 80)


def build():
    a = A()
    ref = open(f"cdna_kernels/{NAME}.s.ref").read().split("\n")
    for line in ref:
        if line.startswith("; Override"):
            break
        a.raw(line)
    a.raw(f"; @launch kernel=part_kernel grid=({NB},1,1) block=(1024,1,1) lds={P1_LDS}")
    a.raw(f"; @launch kernel={NAME}_kernel grid=({NB},1,1) block=(1024,1,1) lds={P2_LDS}")
    a.raw('.amdgcn_target "amdgcn-amd-amdhsa--gfx950"')
    gen_part(a, "part_kernel")
    gen_main(a, f"{NAME}_kernel")
    return a.text()


def main():
    out = f"cdna_kernels/{NAME}.s"
    for arg in sys.argv[1:]:
        if "=" in arg:
            k, v = arg.split("=")
            assert k in OPT, k
            OPT[k] = type(OPT[k])(int(v))
        else:
            out = arg
    open(out, "w").write(build())


if __name__ == "__main__":
    main()
```

```python
import sys

NAME = "gather_scatter__molecular_angular_gemnet__graph"
E = 800000
T = 12800000
NB = 256
EB = 3125
CH = 25000
NCH = 512
NS = 8
CHB = 150016
REC_BYTES = NCH * CHB
TAB_OFF = REC_BYTES
TAB_BYTES = NB * NCH * 32
OPS_OFF = TAB_OFF + TAB_BYTES

OPT = dict(
    nt_in=True,
    nt_rec=False,
    phase_bar=False,
    nt_out=False,
    x_nogather=False, x_normw=False, x_norec=False,
    peel=1, pfg=1, stm=0, outm=2, pfw=2, pfpos=1, pffirst=0, spf=0, pfs=1, pfn=2, mimic=1, pf0=0, valu_add=0, early=0, stpos=1, stag=1, pfm=0, slide=0, ns=7, bdelay=0, stamp1=0, stamp2=0, lag=1, lagoff=12, cntreq=0, rot=0, rotshift=2, stamp=False, pkf32=True, x_fake=0, x_nocore=0, x_recx4=0, x_nomfma=0, x_nopop=0, prio=True, lock_pos=2,
    guard=False,
)


class A:
    def __init__(self):
        self.l = []

    def __call__(self, s=""):
        for line in s.split("\n"):
            line = line.strip()
            if line:
                if line.endswith(":"):
                    self.l.append(line)
                else:
                    self.l.append("    " + line)

    def c(self, s):
        self.l.append("    ; " + s)

    def raw(self, s):
        self.l.append(s)

    def text(self):
        return "\n".join(self.l) + "\n"


def vr(a, n):
    return f"v[{a}:{a + n - 1}]"


def sr(a, n):
    return f"s[{a}:{a + n - 1}]"


def srd(a, dst, base, nbytes, stride=0):
    a(f"s_mov_b32 s{dst}, s{base}")
    a(f"s_and_b32 s{dst + 1}, s{base + 1}, 0xffff")
    if stride:
        a(f"s_or_b32 s{dst + 1}, s{dst + 1}, {stride << 16:#x}")
    a(f"s_mov_b32 s{dst + 2}, {nbytes}")
    a(f"s_mov_b32 s{dst + 3}, 0x20000")


def kernel_head(a, name):
    a.raw(".text")
    a.raw(f".globl {name}")
    a.raw(".p2align 8")
    a.raw(f".type {name},@function")
    a.raw(f"{name}:")


def kernel_desc(a, name, vgpr, sgpr):
    a.raw('.section .rodata,"a"')
    a.raw(".p2align 6")
    a.raw(f".amdhsa_kernel {name}")
    a.raw(f"  .amdhsa_next_free_vgpr {vgpr}")
    a.raw(f"  .amdhsa_next_free_sgpr {sgpr}")
    a.raw(f"  .amdhsa_accum_offset {(vgpr + 3) // 4 * 4}")
    a.raw("  .amdhsa_group_segment_fixed_size 0")
    a.raw("  .amdhsa_kernarg_size 112")
    a.raw("  .amdhsa_user_sgpr_count 2")
    a.raw("  .amdhsa_user_sgpr_kernarg_segment_ptr 1")
    a.raw("  .amdhsa_system_sgpr_workgroup_id_x 1")
    a.raw(".end_amdhsa_kernel")


P1_CNT = 16
P1_PART = P1_CNT + 8192
P1_REC = P1_PART + 64
P1_LDS = 158720


def gen_part(a, name):
    nt = " nt" if OPT["nt_in"] else ""
    STM = ["", " sc1", " nt", " sc0 sc1", " sc1 nt"][OPT["stm"]]
    S_IN, S_OUT, S_ANG, S_REC, S_TAB = 8, 12, 16, 20, 24
    sMAG, sNEG, sMASK, sHI, sDIV6 = 28, 29, 30, 31, 32
    sOI, sOA = 33, 34
    sW, sT0, sT1, sCH = 35, 36, 37, 38
    sEX = 40
    stn = [0]

    def st1():
        if OPT["stamp1"]:
            a(f"s_memrealtime s[{48 + 2 * stn[0]}:{49 + 2 * stn[0]}]\ns_waitcnt lgkmcnt(0)")
            stn[0] += 1
    vT16, vT8, vSIX = 1, 2, 3
    tmp = list(range(4, 14))
    O = {"A": 14, "B": 62}
    I = {"A": 38, "B": 86}
    G = 110
    O6 = {"A": 122, "B": 124}
    I6 = {"A": 123, "B": 125}
    G6 = 126
    vX = 127

    kernel_head(a, name)
    a(f"""
    s_cmp_ge_u32 s2, {NB}
    s_cbranch_scc1 P1_done
    s_load_dwordx4 s[4:7], s[0:1], 8
    s_load_dwordx2 s[42:43], s[0:1], 32
    s_load_dwordx2 s[44:45], s[0:1], 104
    s_load_dwordx2 s[70:71], s[0:1], 0
    v_lshlrev_b32 v{vT16}, 4, v0
    v_lshlrev_b32 v{vT8}, 3, v0
    v_mov_b32 v{vSIX}, 6
    s_mov_b32 s{sMAG}, 1374390
    s_mov_b32 s{sNEG}, {-EB}
    s_mov_b32 s{sMASK}, 0x1c00
    s_mov_b32 s{sHI}, 0xffff0000
    s_mov_b32 s{sDIV6}, 0x2aaaaaab
    v_lshrrev_b32 v4, 6, v0
    v_mov_b32 v6, 0
    v_mov_b32 v7, 0
    v_readfirstlane_b32 s{sW}, v4
    ds_write_b64 v{vT8}, v[6:7] offset:{P1_CNT}
    v_mov_b32 v5, {P1_REC}
    ds_write_b32 v6, v5 offset:{P1_CNT - 4}
    s_waitcnt lgkmcnt(0)
    """)
    srd(a, S_IN, 4, T * 4)
    srd(a, S_OUT, 6, T * 4)
    srd(a, S_ANG, 42, T * 2)
    srd(a, S_REC, 44, REC_BYTES)
    a(f"s_add_u32 s44, s44, {TAB_OFF}")
    a("s_addc_u32 s45, s45, 0")
    srd(a, S_TAB, 44, TAB_BYTES + 8192)
    a(f"""
    s_lshr_b32 s39, s2, 1
    s_and_b32 s39, s39, 7
    s_lshr_b32 s46, s39, {1 if OPT["stag"] == 1 else 0}
    s_lshr_b32 s46, {0xf0 if OPT["stag"] == 1 else 0xff00}, s46
    s_and_b32 s46, s46, {0xf if OPT["stag"] == 1 else 0xff}
    s_mul_i32 s46, s46, {0x11 if OPT["stag"] == 1 else 1}
    s_lshl_b32 s39, s39, 21
    s_sub_u32 s39, {OPT['ns'] << 24}, s39
    s_mul_i32 s{sOI}, s2, {2 * CH * 4}
    s_mul_i32 s{sOA}, s2, {2 * CH * 2}
    """)

    vmq = []

    def vm_wait(tag):
        last = max(i for i, x in enumerate(vmq) if x == tag)
        a(f"s_waitcnt vmcnt({len(vmq) - 1 - last})")

    pend = []

    def slot(n=1):
        for _ in range(n):
            if pend:
                pend.pop(0)()

    def issue_round(X, r):
        vmq.extend([(X, r)] * 3)
        if r < 6:
            a(f"""
            buffer_load_dwordx4 {vr(O[X] + 4 * r, 4)}, v{vT16}, {sr(S_OUT, 4)}, s{sOI} offen{nt}
            buffer_load_dwordx4 {vr(I[X] + 4 * r, 4)}, v{vT16}, {sr(S_IN, 4)}, s{sOI} offen{nt}
            buffer_load_dwordx2 {vr(G + 2 * r, 2)}, v{vT8}, {sr(S_ANG, 4)}, s{sOA} offen{nt}
            s_add_u32 s{sOI}, s{sOI}, 16384
            s_add_u32 s{sOA}, s{sOA}, 8192
            """)
        else:
            a(f"""
            v_cmp_gt_u32 vcc, {CH - 6 * 4096}, v0
            v_lshlrev_b32 v{tmp[8]}, 2, v0
            v_lshlrev_b32 v{tmp[9]}, 1, v0
            v_cndmask_b32 v{tmp[8]}, v{vX}, v{tmp[8]}, vcc
            v_cndmask_b32 v{tmp[9]}, v{vX}, v{tmp[9]}, vcc
            buffer_load_dword v{O6[X]}, v{tmp[8]}, {sr(S_OUT, 4)}, s{sOI} offen{nt}
            buffer_load_dword v{I6[X]}, v{tmp[8]}, {sr(S_IN, 4)}, s{sOI} offen{nt}
            buffer_load_ushort v{G6}, v{tmp[9]}, {sr(S_ANG, 4)}, s{sOA} offen{nt}
            s_add_u32 s{sOI}, s{sOI}, {(CH - 6 * 4096) * 4}
            s_add_u32 s{sOA}, s{sOA}, {(CH - 6 * 4096) * 2}
            """)

    def pack(recs):
        n = len(recs)
        tb = tmp[0:n]
        tc = tmp[4:4 + n]
        for k, (o, i, g, hi) in enumerate(recs):
            a(f"v_mul_hi_u32_u24 v{tb[k]}, s{sMAG}, v{o}")
            a(f"v_mul_u32_u24 v{tc[k]}, {(OPT['ns'] << 24) // E}, v{i}")
        if OPT["slide"]:
            for k in range(n):
                a(f"v_add_u32 v{tc[k]}, s39, v{tc[k]}")
            if OPT["ns"] != 8:
                for k in range(n):
                    a(f"v_subrev_u32 v{tmp[8]}, {OPT['ns'] << 24}, v{tc[k]}")
                    a(f"v_min_u32 v{tc[k]}, v{tc[k]}, v{tmp[8]}")
        for k, (o, i, g, hi) in enumerate(recs):
            a(f"v_mad_i32_i24 v{o}, v{tb[k]}, s{sNEG}, v{o}")
            a(f"v_lshrrev_b32 v{tc[k]}, 14, v{tc[k]}")
            if OPT["stag"]:
                u = tmp[8 + (k & 1)]
                a(f"v_lshrrev_b32 v{u}, 5, v{tb[k]}")
                a(f"v_bfe_i32 v{u}, s46, v{u}, 1")
                a(f"v_lshl_add_u32 v{tc[k]}, v{u}, 10, v{tc[k]}")
                if OPT["ns"] != 8:
                    a(f"v_add_u32 v{u}, {OPT['ns'] << 10}, v{tc[k]}")
                    a(f"v_min_u32 v{tc[k]}, v{tc[k]}, v{u}")
            a(f"v_lshlrev_b32 v{tb[k]}, 2, v{tb[k]}")
        for k, (o, i, g, hi) in enumerate(recs):
            a(f"v_and_or_b32 v{tc[k]}, v{tc[k]}, s{sMASK}, v{tb[k]}")
            a(f"v_lshl_or_b32 v{i}, v{i}, 12, v{o}")
        for k, (o, i, g, hi) in enumerate(recs):
            a(f"ds_add_u32 v{tc[k]}, v{vSIX} offset:{P1_CNT}")
            if hi:
                a(f"v_and_or_b32 v{o}, v{g}, s{sHI}, v{tc[k]}")
            else:
                a(f"v_lshl_or_b32 v{o}, v{g}, 16, v{tc[k]}")

    def round_recs(X, r):
        if r < 6:
            return [(O[X] + 4 * r + k, I[X] + 4 * r + k, G + 2 * r + (k >> 1), k & 1) for k in range(4)]
        return [(O6[X], I6[X], G6, 0)]

    def tail_begin(lbl):
        a(f"""
        v_cmp_gt_u32 vcc, {CH - 6 * 4096}, v0
        s_and_saveexec_b64 {sr(sEX, 2)}, vcc
        s_cbranch_execz {lbl}
        """)

    def tail_end(lbl):
        a(f"{lbl}:")
        a(f"s_mov_b64 exec, {sr(sEX, 2)}")

    def wave_scan(v):
        a(f"""
        s_nop 1
        v_add_u32_dpp v{v}, v{v}, v{v} row_shr:1 row_mask:0xf bank_mask:0xf bound_ctrl:0
        s_nop 1
        v_add_u32_dpp v{v}, v{v}, v{v} row_shr:2 row_mask:0xf bank_mask:0xf bound_ctrl:0
        s_nop 1
        v_add_u32_dpp v{v}, v{v}, v{v} row_shr:4 row_mask:0xf bank_mask:0xf bound_ctrl:0
        s_nop 1
        v_add_u32_dpp v{v}, v{v}, v{v} row_shr:8 row_mask:0xf bank_mask:0xf bound_ctrl:0
        """)

    def sort_chunk(X):
        c01, s, inc, p, q = tmp[0], tmp[2], tmp[3], tmp[4], tmp[5]
        st1()
        a.c("exclusive scan of the 2048 counters (units: bytes, 6 per record)")
        a(f"""
        s_waitcnt lgkmcnt(0)
        s_barrier
        """)
        slot()
        a(f"""
        ds_read_b64 {vr(c01, 2)}, v{vT8} offset:{P1_CNT}
        s_waitcnt lgkmcnt(0)
        v_add_u32 v{s}, v{c01}, v{c01 + 1}
        v_mov_b32 v{inc}, v{s}
        """)
        wave_scan(inc)
        a(f"""
        s_nop 1
        v_add_u32_dpp v{inc}, v{inc}, v{inc} row_bcast:15 row_mask:0xa bank_mask:0xf
        s_nop 1
        v_add_u32_dpp v{inc}, v{inc}, v{inc} row_bcast:31 row_mask:0xc bank_mask:0xf
        s_lshl_b32 s{sT1}, s{sW}, 2
        v_mov_b32 v{q}, s{sT1}
        v_readlane_b32 s{sT0}, v{inc}, 63
        s_nop 1
        v_mov_b32 v{p}, s{sT0}
        ds_write_b32 v{q}, v{p} offset:{P1_PART}
        v_and_b32 v{q}, 15, v0
        v_lshlrev_b32 v{p}, 2, v{q}
        s_waitcnt lgkmcnt(0)
        s_barrier
        """)
        slot()
        a(f"""
        v_cmp_gt_u32 vcc, s{sW}, v{q}
        ds_read_b32 v{p}, v{p} offset:{P1_PART}
        s_waitcnt lgkmcnt(0)
        v_cndmask_b32 v{p}, 0, v{p}, vcc
        """)
        wave_scan(p)
        a(f"""
        v_sub_u32 v{inc}, v{inc}, v{s}
        v_readlane_b32 s{sT0}, v{p}, 15
        s_add_u32 s{sT0}, s{sT0}, {P1_REC}
        s_nop 0
        v_add_u32 v{q + 1}, s{sT0}, v{inc}
        v_add_u32 v{q + 2}, v{q + 1}, v{c01}
        ds_write_b64 v{vT8}, {vr(q + 1, 2)} offset:{P1_CNT}
        s_waitcnt lgkmcnt(0)
        s_barrier
        """)
        assert (q + 1) % 2 == 0
        st1()
        a.c("rank and scatter into the LDS image")
        m = [tmp[0:4], tmp[4:8]]
        u1, u2 = tmp[8], tmp[9]

        def rank_issue(recs, ms):
            for k, (o, i, g, hi) in enumerate(recs):
                a(f"v_and_b32 v{ms[k]}, 0xffff, v{o}")
            for k, (o, i, g, hi) in enumerate(recs):
                a(f"ds_add_rtn_u32 v{ms[k]}, v{ms[k]}, v{vSIX} offset:{P1_CNT}")

        def scatter(recs, ms):
            for k, (o, i, g, hi) in enumerate(recs):
                a(f"""
                v_and_b32 v{u1}, 2, v{ms[k]}
                v_add_u32 v{u2}, v{ms[k]}, v{u1}
                v_mad_i32_i24 v{ms[k]}, v{u1}, -2, v{ms[k]}
                ds_write_b32 v{u2}, v{i}
                ds_write_b16_d16_hi v{ms[k]}, v{o} offset:4
                """)

        rank_issue(round_recs(X, 0), m[0])
        for r in range(6):
            if r < 5:
                rank_issue(round_recs(X, r + 1), m[(r + 1) & 1])
                a("s_waitcnt lgkmcnt(4)")
            else:
                a("s_waitcnt lgkmcnt(0)")
            scatter(round_recs(X, r), m[r & 1])
            slot(2 if X == "B" else 1)
        tail_begin(f"P1_sc6{X}")
        rank_issue(round_recs(X, 6), m[0])
        a("s_waitcnt lgkmcnt(0)")
        scatter(round_recs(X, 6), m[0])
        tail_end(f"P1_sc6{X}")
        slot(99)
        a("""
        s_waitcnt lgkmcnt(0)
        s_barrier
        """)
        st1()
        a.c("read the image back (into the dead record registers) and the counters (now segment ends)")
        dst = [O[X] + 4 * r for r in range(6)] + [I[X] + 4 * r for r in range(4)]
        ra, rb = tmp[8], tmp[9]
        a(f"v_add_u32 v{ra}, 0x10000, v{vT16}")
        a(f"v_add_u32 v{rb}, 0x20000, v{vT16}")
        for r in range(9):
            base = [vT16, ra, rb][r >> 2]
            a(f"ds_read_b128 {vr(dst[r], 4)}, v{base} offset:{P1_REC + (r & 3) * 16384}")
        nlast = CH * 6 // 16 - 9 * 1024
        a(f"""
        v_cmp_gt_u32 vcc, {nlast}, v0
        s_and_saveexec_b64 {sr(sEX, 2)}, vcc
        ds_read_b128 {vr(dst[9], 4)}, v{rb} offset:{P1_REC + 16384}
        s_mov_b64 exec, {sr(sEX, 2)}
        v_cndmask_b32 v{rb}, v{vX}, v{vT16}, vcc
        v_and_b32 v{ra}, 1, v0
        v_lshlrev_b32 v{ra}, 12, v{ra}
        v_lshrrev_b32 v{tmp[0]}, 1, v0
        v_lshl_add_u32 v{ra}, v{tmp[0]}, 2, v{ra}
        s_cmp_lt_u32 s{sW}, 8
        s_cbranch_scc0 P1_notab{X}
        """)
        for qq in range(4):
            if qq:
                a(f"v_add_u32 v{ra}, 1024, v{ra}")
            a(f"ds_read2_b32 {vr(tmp[2 * qq], 2)}, v{ra} offset0:{P1_CNT // 4 - 1} offset1:{P1_CNT // 4}")
        a("s_waitcnt lgkmcnt(0)")
        for qq in range(4):
            s_, e_ = tmp[2 * qq], tmp[2 * qq + 1]
            a(f"""
            v_sub_u32 v{e_}, v{e_}, v{s_}
            v_subrev_u32 v{s_}, {P1_REC}, v{s_}
            v_mul_hi_u32 v{e_}, v{e_}, s{sDIV6}
            v_mul_hi_u32 v{s_}, v{s_}, s{sDIV6}
            v_lshl_or_b32 v{tmp[qq]}, v{e_}, 16, v{s_}
            """)
        a(f"""
        v_lshrrev_b32 v{tmp[4]}, 1, v0
        v_and_b32 v{tmp[5]}, 1, v0
        v_lshlrev_b32 v{tmp[4]}, 14, v{tmp[4]}
        v_lshl_or_b32 v{tmp[4]}, v{tmp[5]}, 4, v{tmp[4]}
        s_branch P1_tab{X}
        P1_notab{X}:
        v_mov_b32 v{tmp[4]}, v{vX}
        P1_tab{X}:
        s_lshl_b32 s{sT0}, s{sCH}, 5
        s_mul_i32 s{sT1}, s{sCH}, {CHB}
        buffer_store_dwordx4 {vr(tmp[0], 4)}, v{tmp[4]}, {sr(S_TAB, 4)}, s{sT0} offen
        s_waitcnt lgkmcnt(0)
        """)
        vmq.append("st")
        a(f"s_add_u32 s{sT0}, s{sT1}, {9 * 16384}")
        a(f"buffer_store_dwordx4 {vr(dst[9], 4)}, v{rb}, {sr(S_REC, 4)}, s{sT0} offen{STM}")
        vmq.append("st")
        a(f"s_mov_b32 s47, s{sT1}")

        def mk(r):
            def f():
                a(f"buffer_store_dwordx4 {vr(dst[r], 4)}, v{vT16}, {sr(S_REC, 4)}, s47 offen{STM}")
                a(f"s_add_u32 s47, s47, 16384")
                vmq.append("st")
            return f
        pend.extend(mk(r) for r in range(9))
        if X == "B" or OPT["stpos"] == 0:
            slot(99)
        st1()

    st1()
    a(f"v_mov_b32 v{vX}, 0x7fffff00")
    a.c("one wave also prepares the matrix operands of the second kernel")
    W1, W2, W3, W4 = 62, 78, 94, 102
    lane, f2, e0, e1, x0, x1, x2 = 4, 5, 6, 7, 12, 13, 124
    OPR = 8
    a(f"""
    s_lshl_b32 s{sT0}, s2, 4
    s_add_u32 s68, s{sT0}, s{sW}
    s_cmp_eq_u32 s68, 15
    s_cbranch_scc0 P1_now
    s_load_dwordx4 s[72:75], s[0:1], 56
    s_load_dwordx4 s[76:79], s[0:1], 72
    v_and_b32 v{lane}, 63, v0
    v_and_b32 v{e0}, 3, v0
    v_bfe_u32 v{e1}, v0, 2, 1
    v_lshl_add_u32 v{e0}, v{e1}, 3, v{e0}
    v_bfe_u32 v{e1}, v0, 3, 1
    v_lshl_add_u32 v{e0}, v{e1}, 2, v{e0}
    v_lshlrev_b32 v{f2}, 1, v{e0}
    v_lshrrev_b32 v{e1}, 5, v{lane}
    v_lshl_add_u32 v{e1}, v{e1}, 8, v{f2}
    s_waitcnt lgkmcnt(0)
    """)
    for (W, n, p, nbytes, va) in ((W1, 16, 76, 512, f2), (W2, 16, 74, 512, f2), (W3, 8, 78, 512, e1), (W4, 8, 72, 256, f2)):
        srd(a, 80, p, nbytes)
        for j in range(n):
            a(f"buffer_load_ushort v{W + j}, v{va}, {sr(80, 4)}, 0 offen offset:{32 * j}")
    a("P1_now:")
    for r in range(7):
        issue_round("A", r)
    a(f"""
    s_cmp_eq_u32 s68, 15
    s_cbranch_scc0 P1_noop
    s_waitcnt vmcnt(21)
    """)

    def scale_exp(Wf, n):
        a(f"v_max3_f32 v{e0}, abs(v{Wf}), abs(v{Wf + 1}), abs(v{Wf + 2})")
        for j in range(3, n - 1, 2):
            a(f"v_max3_f32 v{e0}, v{e0}, abs(v{Wf + j}), abs(v{Wf + j + 1})")
        a(f"""
        v_max_f32 v{e0}, v{e0}, abs(v{Wf + n - 1})
        v_bfe_u32 v{e0}, v{e0}, 23, 8
        v_cmp_eq_u32 vcc, 0, v{e0}
        v_sub_u32 v{e0}, 141, v{e0}
        s_nop 0
        v_cndmask_b32 v{e0}, v{e0}, 0, vcc
        v_sub_u32 v{e1}, 0, v{e0}
        """)

    def put(k, cvt, srcs, mask):
        for j in range(4):
            a(f"{cvt} v{OPR + j}, v{srcs[2 * j]}, v{srcs[2 * j + 1]}")
        for j in range(4):
            a(f"v_cndmask_b32 v{OPR + j}, 0, v{OPR + j}, {sr(mask, 2)}")
        a(f"""
        s_mov_b32 s{sT0}, {TAB_BYTES + 1024 * k}
        buffer_store_dwordx4 {vr(OPR, 4)}, v{x2}, {sr(S_TAB, 4)}, s{sT0} offen
        s_nop 1
        """)

    for j in range(48):
        a(f"v_lshlrev_b32 v{W1 + j}, 16, v{W1 + j}")
    mDIAG, mLO, mHI, mRB = 72, 74, 76, 78
    a(f"""
    v_lshrrev_b32 v{x0}, 1, v{lane}
    v_xor_b32 v{x0}, v{x0}, v{lane}
    v_and_b32 v{x0}, 16, v{x0}
    v_cmp_eq_u32 {sr(mDIAG, 2)}, 0, v{x0}
    v_and_b32 v{x0}, 16, v{lane}
    v_cmp_eq_u32 {sr(mLO, 2)}, 0, v{x0}
    v_cmp_eq_u32 {sr(mHI, 2)}, 16, v{x0}
    v_and_b32 v{x0}, 48, v{lane}
    v_cmp_eq_u32 {sr(mRB, 2)}, 16, v{x0}
    v_lshlrev_b32 v{x2}, 4, v{lane}
    """)
    scale_exp(W2, 16)
    for j in range(16):
        a(f"v_ldexp_f32 v{W2 + j}, v{W2 + j}, v{e0}")
        a(f"v_ldexp_f32 v{W1 + j}, v{W1 + j}, v{e1}")
    scale_exp(W4, 8)
    for j in range(8):
        a(f"v_ldexp_f32 v{W4 + j}, v{W4 + j}, v{e0}")
        a(f"v_ldexp_f32 v{W3 + j}, v{W3 + j}, v{e1}")
    bf, hf = "v_cvt_pk_bf16_f32", "v_cvt_pk_f16_f32"
    a.c("block diagonal: rows < 16 act on lanes < 32, rows >= 16 on lanes >= 32")
    put(0, bf, [W1 + j for j in range(8)], mDIAG)
    put(1, bf, [W1 + 8 + j for j in range(8)], mDIAG)
    put(2, hf, [W2 + 2 * j for j in range(8)], mDIAG)
    put(3, hf, [W2 + 2 * j + 1 for j in range(8)], mDIAG)
    put(6, bf, [W3 + j for j in range(8)], mLO)
    put(7, hf, [W4 + j for j in range(8)], mRB)
    a.c("identity: row i has a one at k = f(i & 15)")
    a(f"""
    v_lshrrev_b32 v{e0}, 1, v{f2}
    v_lshrrev_b32 v{e1}, 5, v{lane}
    v_lshlrev_b32 v{e1}, 3, v{e1}
    v_sub_u32 v{e0}, v{e0}, v{e1}
    """)
    for j in range(8):
        a(f"""
        v_cmp_eq_u32 vcc, {j}, v{e0}
        s_nop 1
        v_cndmask_b32 v{W1 + j}, 0, 1.0, vcc
        """)
    put(4, bf, [W1 + j for j in range(8)], mLO)
    put(5, bf, [W1 + j for j in range(8)], mHI)
    a("P1_noop:")
    a("s_barrier")
    order = [6, 0, 1, 2, 3, 4, 5]
    nb = 0
    for r in range(7):
        vm_wait(("A", r))
        if r == 6:
            tail_begin("P1_pk6A")
        pack(round_recs("A", r))
        if r == 6:
            tail_end("P1_pk6A")
        if r < 6 and r >= 6 - OPT["early"]:
            issue_round("B", nb)
            nb += 1
    for r in range(nb, 6):
        pend.append(lambda r=r: issue_round("B", r))
    a(f"s_lshl_b32 s{sCH}, s2, 1")
    sort_chunk("A")
    a(f"""
    s_barrier
    v_mov_b32 v{tmp[8]}, 0
    v_mov_b32 v{tmp[9]}, 0
    ds_write_b64 v{vT8}, {vr(tmp[8], 2)} offset:{P1_CNT}
    s_add_u32 s{sCH}, s{sCH}, 1
    s_waitcnt lgkmcnt(0)
    """)
    issue_round("B", 6)
    a("s_barrier")
    for r in range(7):
        vm_wait(("B", r))
        if r == 6:
            tail_begin("P1_pk6B")
        pack(round_recs("B", r))
        if r == 6:
            tail_end("P1_pk6B")
        if OPT["stpos"] == 1:
            slot()
    def prefetch_m():
        a.c("touch this workgroup's share of m (one load per 128-byte line) so that the second kernel finds it on chip")
        srd(a, 80, 70, E * 32)
        a(f"""
        v_cmp_gt_u32 vcc, 782, v0
        v_lshlrev_b32 v{G + 1}, 7, v0
        s_mul_i32 s{sT0}, s2, 100000
        s_and_b32 s{sT0}, s{sT0}, 0xffffff80
        v_cndmask_b32 v{G + 1}, v{vX}, v{G + 1}, vcc
        buffer_load_dword v{G}, v{G + 1}, {sr(80, 4)}, s{sT0} offen
        """)
    if OPT["pfm"]:
        prefetch_m()
    sort_chunk("B")
    if OPT["stamp1"]:
        a("s_waitcnt vmcnt(0)")
        st1()
        a(f"""
        s_lshl_b32 s3, s2, 4
        s_add_u32 s3, s3, s{sW}
        s_lshl_b32 s3, s3, 6
        s_add_u32 s44, s44, {17 << 20}
        s_addc_u32 s45, s45, 0
        """)
        srd(a, S_TAB, 44, 1 << 20)
        a("v_mov_b32 v4, 0")
        for i in range(stn[0]):
            a(f"v_mov_b32 v5, s{48 + 2 * i}")
            a(f"buffer_store_dword v5, v4, {sr(S_TAB, 4)}, s3 offen offset:{4 * i}")
    a("P1_done:")
    a("s_endpgm")
    kernel_desc(a, name, 128, 88)


L_LOCK = 0
L_RBF = 800
L_ACC0 = L_RBF + EB * 16
L_ACC1 = L_ACC0 + EB * 16
L_RING = L_ACC1 + EB * 16
RING_CAP = 101
RING_STRIDE = RING_CAP * 8
P2_LDS = 163840
assert L_RING + 16 * RING_STRIDE <= P2_LDS


def gen_main(a, name):
    ntr = " nt" if OPT["nt_rec"] else ""
    nto = ["", " sc1", " nt", " sc0 sc1", " sc1 nt"][OPT["outm"]]
    S_REC, S_M, S_TMP, S_OUT = 8, 12, 16, 20
    sB, sW = 24, 25
    sCNT, sTOP = 26, 27
    sM = [28, 30]
    sN, sT0, sT1, sT2 = 32, 33, 34, 35
    sACQ, sFAIL = 36, 38
    sM0, sM1 = 40, 42
    sRET, sRET2 = 44, 46
    sLONG = [48, 50]
    sEX = 52
    sCO = 54
    sCOB = [55, 56]
    sK, sJ, sPH = 57, 58, 59
    sP = 60
    sRB, sHI, sG, sKF0, sKF1, sN0 = 76, 77, 78, 79, 80, 81
    sCEN = 84
    sEVEN = 92
    sCAP = 94
    vLANE = 1
    A1a, A1b, A2a, A2b, A3a, A3b = 2, 6, 10, 14, 18, 22
    D1, D2 = 26, 42
    GP, GQ = [58, 66], [62, 70]
    TF = 74
    S0, S1 = 78, 82
    AX, AY = S0, S1
    WA = [86, 88]
    O = [90, 91]
    C = [92, 93]
    TT = 94
    RB = [98, 102]
    RD = [101, 105]
    RL = [106, 107]
    RA = [108, 109]
    vBP, vCB, vL2, vL8, vH16, vOOB, vE = range(110, 117)
    t = list(range(117, 128)) + [118]
    vDUM = GP[1]
    vPF = 0

    kernel_head(a, name)
    a(f"""
    s_cmp_ge_u32 s2, {NB}
    s_cbranch_scc1 P2_done
    {"s_memrealtime s[96:97]" if OPT["stamp2"] else ""}
    s_load_dwordx2 {sr(sP, 2)}, s[0:1], 0
    s_load_dwordx2 {sr(sP + 2, 2)}, s[0:1], 24
    s_load_dwordx4 {sr(sP + 4, 4)}, s[0:1], 40
    s_load_dwordx2 s[4:5], s[0:1], 88
    s_load_dwordx2 s[6:7], s[0:1], 104
    s_and_b32 s{sB}, s2, 7
    s_lshl_b32 s{sB}, s{sB}, 5
    s_lshr_b32 s{sT0}, s2, 3
    s_add_u32 s{sB}, s{sB}, s{sT0}
    v_lshrrev_b32 v{t[0]}, 6, v0
    v_and_b32 v{vLANE}, 63, v0
    s_mov_b32 s{sHI}, 0xffff0000
    v_readfirstlane_b32 s{sW}, v{t[0]}
    v_mov_b32 v{vOOB}, 0x7fffff00
    s_mov_b32 s{sEVEN}, 0x55555555
    s_mov_b32 s{sEVEN + 1}, 0x55555555
    s_waitcnt lgkmcnt(0)
    """)
    pM, pDIST, pCEN, pFREQ, pWRBF, pWSBF, pWDN, pWUP = [sP + 2 * k for k in range(8)]
    a(f"""
    s_load_dwordx4 {sr(sCEN, 4)}, {sr(pCEN, 2)}, 0
    s_load_dword s{sT2}, {sr(pFREQ, 2)}, 0
    """)
    sPM, sPFO, sPFD = 100, 99, 82
    a(f"s_mov_b64 {sr(sPM, 2)}, {sr(pM, 2)}")

    def spf():
        return f"""
        s_load_dword s{sPFD}, {sr(sPM, 2)}, s{sPFO}
        s_add_u32 s{sPFO}, s{sPFO}, {4096 * 128}
        s_min_u32 s{sPFO}, s{sPFO}, {E * 32 - 4}
        """
    srd(a, S_REC, 6, REC_BYTES)
    srd(a, S_M, pM, E * 32)
    srd(a, S_OUT, 4, E * 32)
    a(f"s_add_u32 s6, s6, {TAB_OFF}")
    a("s_addc_u32 s7, s7, 0")
    S_TAB = 68
    srd(a, S_TAB, 6, TAB_BYTES + 8192)
    a.c("this wave's 32 x 8 table entries: lane = chunk (l & 31), slices 4*(l >> 5) .. +3")
    a(f"""
    v_and_b32 v{t[0]}, 31, v{vLANE}
    v_lshrrev_b32 v{t[1]}, 5, v{vLANE}
    v_lshlrev_b32 v{vL8}, 3, v{vLANE}
    v_lshlrev_b32 v{t[2]}, 4, v{t[1]}
    v_lshl_add_u32 v{t[2]}, v{t[0]}, 5, v{t[2]}
    s_lshl_b32 s{sT0}, s{sB}, 14
    s_lshl_b32 s{sT1}, s{sW}, 10
    s_add_u32 s{sT0}, s{sT0}, s{sT1}
    v_lshrrev_b32 v{t[3]}, 4, v{vLANE}
    v_lshlrev_b32 v{t[3]}, 5, v{t[3]}
    buffer_load_dword v{vE}, v{t[3]}, {sr(S_TAB, 4)}, s{sT0} offen
    buffer_load_dword v{C[0]}, v{t[3]}, {sr(S_TAB, 4)}, s{sT0} offen offset:128
    buffer_load_dwordx4 {vr(TT, 4)}, v{t[2]}, {sr(S_TAB, 4)}, s{sT0} offen
    """)
    srd(a, S_TMP, pDIST, E * 2)
    a.c("dist of the bucket's edges t, t+1024, t+2048, t+3072")
    a(f"""
    s_mul_i32 s{sT0}, s{sB}, {EB * 2}
    v_lshlrev_b32 v{t[2]}, 1, v0
    buffer_load_ushort v{t[4]}, v{t[2]}, {sr(S_TMP, 4)}, s{sT0} offen
    buffer_load_ushort v{t[5]}, v{t[2]}, {sr(S_TMP, 4)}, s{sT0} offen offset:2048
    s_add_u32 s{sT0}, s{sT0}, 4096
    buffer_load_ushort v{t[6]}, v{t[2]}, {sr(S_TMP, 4)}, s{sT0} offen
    buffer_load_ushort v{t[7]}, v{t[2]}, {sr(S_TMP, 4)}, s{sT0} offen offset:2048
    """)
    a.c("matrix operands prepared by the first kernel")
    a(f"v_lshlrev_b32 v{t[3]}, 4, v{vLANE}")
    for k in range(6):
        a(f"s_mov_b32 s{sT0}, {TAB_BYTES + 1024 * k}")
        a(f"buffer_load_dwordx4 {vr(A1a + 4 * k, 4)}, v{t[3]}, {sr(S_TAB, 4)}, s{sT0} offen")
    npf = 0
    if OPT["pf0"]:
        a.c("touch a share of the first slice of m, one load per 128-byte line")
        lines = (E // OPT["ns"] * 32 // 128 + 31) // 32
        a(f"""
        v_cmp_gt_u32 vcc, {min(lines, 1024)}, v0
        v_lshlrev_b32 v{t[8]}, 7, v0
        s_lshr_b32 s{sT0}, s2, 3
        s_mul_i32 s{sT0}, s{sT0}, {lines * 128}
        v_cndmask_b32 v{t[8]}, v{vOOB}, v{t[8]}, vcc
        buffer_load_dword v{vDUM}, v{t[8]}, {sr(S_M, 4)}, s{sT0} offen
        """)
        npf = 1
    a.c("zero the locks and the accumulators")
    D = D1
    a(f"""
    v_mov_b32 v{D}, 0
    v_mov_b32 v{D + 1}, 0
    v_mov_b32 v{D + 2}, 0
    v_mov_b32 v{D + 3}, 0
    v_lshlrev_b32 v{t[2]}, 4, v0
    v_add_u32 v{t[9]}, {L_ACC0}, v{t[2]}
    """)
    for r in range(4):
        a(f"ds_write_b128 v{t[9]}, {vr(D, 4)} offset:{r * 16384}")
    a(f"v_add_u32 v{t[9]}, 0x10000, v{t[9]}")
    for r in range(2):
        a(f"ds_write_b128 v{t[9]}, {vr(D, 4)} offset:{r * 16384}")
    a(f"""
    v_cmp_gt_u32 vcc, {2 * EB - 6 * 1024}, v0
    s_and_saveexec_b64 {sr(sEX, 2)}, vcc
    ds_write_b128 v{t[9]}, {vr(D, 4)} offset:{2 * 16384}
    s_mov_b64 exec, {sr(sEX, 2)}
    v_cmp_gt_u32 vcc, {L_RBF // 16}, v0
    s_and_saveexec_b64 {sr(sEX, 2)}, vcc
    ds_write_b128 v{t[2]}, {vr(D, 4)}
    s_mov_b64 exec, {sr(sEX, 2)}
    s_waitcnt lgkmcnt(0)
    """)
    if OPT["spf"]:
        a.c("scalar loads walk over m, one per 128-byte line chip-wide, ahead of the gathers")
        a(f"""
        s_lshl_b32 s{sPFO}, s2, 4
        s_add_u32 s{sPFO}, s{sPFO}, s{sW}
        s_lshl_b32 s{sPFO}, s{sPFO}, 7
        """)
        for k in range(OPT["spf"]):
            a(spf())
    a.c("centers and frequencies to f32")
    for k in (3, 2, 1, 0):
        a(f"s_and_b32 s{sCEN + 2 * k + 1}, s{sCEN + k}, 0xffff0000")
        a(f"s_lshl_b32 s{sCEN + 2 * k}, s{sCEN + k}, 16")
    a(f"""
    s_lshl_b32 s{sT0}, s{sT2}, 16
    s_and_b32 s{sT1}, s{sT2}, 0xffff0000
    v_mov_b32 v{t[8]}, 0.15915494
    v_mul_f32 v{t[9]}, s{sT0}, v{t[8]}
    v_mul_f32 v{t[8]}, s{sT1}, v{t[8]}
    v_and_b32 v{vH16}, 1, v{vLANE}
    v_lshlrev_b32 v{vH16}, 4, v{vH16}
    v_readfirstlane_b32 s{sKF0}, v{t[9]}
    v_readfirstlane_b32 s{sKF1}, v{t[8]}
    """)
    a.c("record-stream lane constants")
    a(f"""
    v_and_b32 v{t[8]}, 15, v{vLANE}
    v_lshrrev_b32 v{t[9]}, 4, v{vLANE}
    v_lshlrev_b32 v{vL2}, 1, v{t[8]}
    v_lshlrev_b32 v{vBP}, 2, v{t[9]}
    v_mul_u32_u24 v{t[9]}, {CHB}, v{t[9]}
    v_mad_u32_u24 v{vCB}, v{t[8]}, 12, v{t[9]}
    s_mul_i32 s{sCO}, s{sW}, {32 * CHB}
    s_mul_i32 s{sRB}, s{sW}, {RING_STRIDE}
    s_add_u32 s{sRB}, s{sRB}, {L_RING}
    s_mov_b32 s{sTOP}, s{sRB}
    s_mov_b32 s{sCNT}, 0
    s_mov_b64 {sr(sM[0], 2)}, 0
    s_mov_b64 {sr(sM[1], 2)}, 0
    s_mov_b32 s{sJ}, 0
    s_mov_b32 s{sPH}, 0
    s_mov_b32 s{sG}, 100000
    s_mov_b32 s{sCAP}, {RING_CAP}
    s_and_b32 s3, s2, {3 if OPT["stag"] == 1 else (6 if OPT["stag"] == 2 else 0)}
    s_lshl_b32 s3, s3, {1 if OPT["stag"] == 1 else 0}
    s_mov_b32 s83, {-16 * OPT["lag"] + OPT["lagoff"]}
    s_mov_b32 s95, 0
    """)

    uid = [0]
    kmul = (OPT["ns"] << 24) // E
    SLB = ((1 << 24) // kmul * 32) & ~127
    SHARE = (SLB // 128 + 256) // 256

    PER = (SHARE + OPT["pfw"] - 1) // OPT["pfw"]

    def pf_share(sS, tmpv, vPF=vPF):
        return f"""
        s_mul_i32 s{sT0}, s{sS}, {SLB}
        s_mul_i32 s{sT1}, s2, {SHARE * 128}
        s_add_u32 s{sT0}, s{sT0}, s{sT1}
        s_mul_i32 s{sT1}, s{sW}, {PER}
        v_add_u32 v{tmpv}, s{sT1}, v{vLANE}
        v_cmp_gt_u32 vcc, {PER}, v{vLANE}
        v_lshlrev_b32 v{tmpv}, 7, v{tmpv}
        s_nop 0
        v_cndmask_b32 v{tmpv}, v{vOOB}, v{tmpv}, vcc
        buffer_load_dword v{vPF}, v{tmpv}, {sr(S_M, 4)}, s{sT0} offen
        """

    def prep(buf, mid=None, pf=True):
        uid[0] += 1
        u = uid[0]
        a(f"""
        v_lshrrev_b32 v{RL[buf]}, 16, v{vE}
        v_and_b32 v{t[0]}, 1, v{vE}
        v_and_b32 v{t[1]}, 0xfffe, v{vE}
        v_sub_u32 v{RD[buf]}, v{vL2}, v{t[0]}
        v_mad_u32_u24 v{RA[buf]}, v{t[1]}, 6, v{vCB}
        v_cmp_lt_i32 vcc, v{RD[buf]}, v{RL[buf]}
        v_cmp_lt_u32 {sr(sLONG[buf], 2)}, 31, v{RL[buf]}
        s_mov_b32 s{sCOB[buf]}, s{sCO}
        v_cndmask_b32 v{t[1]}, v{vOOB}, v{RA[buf]}, vcc
        v_add_u32 v{vBP}, 16, v{vBP}
        s_add_u32 s{sCO}, s{sCO}, {4 * CHB}
        s_add_u32 s{sJ}, s{sJ}, 1
        s_cmp_lt_u32 s{sJ}, 8
        s_cbranch_scc0 P2_adv{u}
        P2_advr{u}:
        {f"ds_bpermute_b32 v{vE}, v{vBP}, v{TT}" if mid else ""}
        """)
        if mid:
            a(mid)
        if OPT["x_fake"]:
            a(f"buffer_load_dword v{D2}, v{vOOB}, {sr(S_REC, 4)}, s{sCOB[buf]} offen{ntr}")
            sz = E // OPT['ns']
            a(f"""
            s_add_u32 s98, s{sK}, {2 + buf}
            s_lshr_b32 s98, s98, 3
            s_min_u32 s98, s98, {OPT['ns'] - 1}
            s_mul_i32 s98, s98, {sz}
            s_mov_b32 s99, {sz}
            s_mov_b32 s97, 0x9E3779B1
            """)
            for dd in (RB[buf], RB[buf] + 2):
                a(f"""
                v_mul_lo_u32 v{D1}, v{D1}, s97
                v_add_u32 v{D1}, 0x3c6ef35f, v{D1}
                v_lshrrev_b32 v{D1 + 1}, 15, v{D1}
                v_xor_b32 v{D1}, v{D1}, v{D1 + 1}
                v_mul_hi_u32 v{dd}, v{D1}, s99
                v_add_u32 v{dd}, s98, v{dd}
                v_lshlrev_b32 v{dd}, 12, v{dd}
                """)
        else:
            a(f"buffer_load_dwordx3 {vr(RB[buf], 3)}, v{t[1]}, {sr(S_REC, 4)}, s{sCOB[buf]} offen{ntr}")
        if OPT["pfn"] and mid and pf:
            a(f"""
            s_cmp_eq_u32 s{sJ}, s99
            s_cbranch_scc1 P2_pf{u}
            P2_pfr{u}:
            """)
            cold.append(f"""
            P2_pf{u}:
            s_cmp_eq_u32 s{sPH}, s98
            s_cbranch_scc0 P2_pfr{u}
            s_add_u32 s98, s98, {OPT["pfg"]}
            """ + "".join(f"s_add_u32 s{sT2}, s{sPH}, {OPT['pfn'] + g}\n" + pf_share(sT2, t[3]) for g in range(OPT["pfg"])) + f"""
            s_branch P2_pfr{u}
            """)
        cold.append(f"""
        P2_adv{u}:
        s_mov_b32 s{sJ}, 0
        s_sub_u32 s{sCO}, s{sCO}, {32 * CHB}
        s_add_u32 s{sPH}, s{sPH}, 1
        s_cmp_eq_u32 s{sPH}, 4
        s_cselect_b32 s{sT0}, 0, 128
        v_subrev_u32 v{vBP}, s{sT0}, v{vBP}
        v_mov_b32 v{t[0]}, v{TT}
        v_mov_b32 v{TT}, v{TT + 1}
        v_mov_b32 v{TT + 1}, v{TT + 2}
        v_mov_b32 v{TT + 2}, v{TT + 3}
        v_mov_b32 v{TT + 3}, v{t[0]}
        s_cmp_lt_u32 s{sPH}, 8
        s_cbranch_scc1 P2_advr{u}
        v_mov_b32 v{TT}, 0
        s_branch P2_advr{u}
        """)

    cold = []
    a(f"s_waitcnt vmcnt({11 + npf})")
    prep(0)
    a(f"v_mov_b32 v{vE}, v{C[0]}")
    prep(1)

    def pf_prologue():
        a(f"""
        s_bfe_u32 s99, s2, {(3 << 16) | 3 if OPT["pfs"] else 0}
        s_cmp_lt_u32 s99, {4 if OPT['peel'] else 3}
        s_cselect_b32 s98, {OPT["pfg"]}, 0
        s_cmp_lt_u32 s{sW}, {OPT["pfw"]}
        s_cselect_b32 s99, s99, 99
        s_cbranch_scc0 P2_nopf
        """)
        for k in range(OPT["pffirst"], OPT["pfn"] + OPT["pfg"]):
            if k == OPT["pfn"]:
                a(f"s_cmp_lt_u32 s99, {4 if OPT['peel'] else 3}\ns_cbranch_scc0 P2_nopf")
            a(f"s_mov_b32 s{sT2}, {k}")
            a(pf_share(sT2, t[3], vDUM))
        a("P2_nopf:")
    if OPT["pfn"] and OPT["pfpos"] == 0:
        pf_prologue()
    a.c("radial basis table (same roundings as the reference), stored as f16")
    a(f"s_waitcnt vmcnt({8 + npf})")
    sTEN, sL2E = sRET, sRET + 1
    a(f"s_mov_b32 s{sTEN}, 0xc1200000")
    a(f"s_mov_b32 s{sL2E}, {0x3fb8aa3b if OPT['mimic'] else 0xc166d4ca:#x}")
    def rbf_round(r):
        dd = t[4 + r]
        if r == 3:
            a(f"""
            v_cmp_gt_u32 vcc, {EB - 3 * 1024}, v0
            s_and_saveexec_b64 {sr(sEX, 2)}, vcc
            s_cbranch_execz P2_rbf3
            """)
        a(f"v_lshlrev_b32 v{dd}, 16, v{dd}")
        x = [D + k for k in range(8)]
        for k in range(8):
            a(f"v_subrev_f32 v{x[k]}, s{sCEN + k}, v{dd}")

        def rnd():
            if not OPT["mimic"]:
                return
            for k in range(0, 8, 2):
                a(f"v_cvt_pk_bf16_f32 v{D + 8 + k // 2}, v{x[k]}, v{x[k + 1]}")
            for k in range(0, 8, 2):
                a(f"v_lshlrev_b32 v{x[k]}, 16, v{D + 8 + k // 2}")
                a(f"v_and_b32 v{x[k + 1]}, s{sHI}, v{D + 8 + k // 2}")
        rnd()
        for k in range(8):
            a(f"v_mul_f32 v{x[k]}, v{x[k]}, v{x[k]}")
        rnd()
        if OPT["mimic"]:
            for k in range(8):
                a(f"v_mul_f32 v{x[k]}, s{sRET}, v{x[k]}")
        rnd()
        for k in range(8):
            a(f"v_mul_f32 v{x[k]}, s{sRET + 1}, v{x[k]}")
        for k in range(8):
            a(f"v_exp_f32 v{x[k]}, v{x[k]}")
        a("s_nop 0")
        rnd()
        for k in range(0, 8, 2):
            a(f"v_cvt_pk_f16_f32 v{D + 8 + k // 2}, v{x[k]}, v{x[k + 1]}")
        a(f"ds_write_b128 v{t[8]}, {vr(D + 8, 4)} offset:{L_RBF + r * 16384}")
        if r == 3:
            a("P2_rbf3:")
            a(f"s_mov_b64 exec, {sr(sEX, 2)}")


    def rbf_consts():
        a(f"v_lshlrev_b32 v{t[8]}, 4, v0")
    rbf_consts()
    a(f"ds_bpermute_b32 v{vE}, v{vBP}, v{TT}")
    for r in range(2 if OPT["peel"] else 4):
        rbf_round(r)
    a(f"""
    v_mov_b32 v{O[1]}, 0
    v_mov_b32 v{WA[1]}, 0
    """)
    a(f"s_mov_b32 s{sK}, 0")

    def prologue_tail():
        if OPT["peel"]:
            rbf_round(2)
            rbf_round(3)
        if OPT["pfn"] and OPT["pfpos"] == 1:
            pf_prologue()
        a("s_waitcnt lgkmcnt(0)\ns_barrier")
    if not OPT["peel"]:
        a.c("two out-of-range loads stand in for the gathers of the steps before the first one")
        for k in range(2):
            a(f"buffer_load_dword v{vDUM}, v{vOOB}, {sr(S_REC, 4)}, 0 offen")
        prologue_tail()

    la, bit, aX, aY, old = t[5], t[6], t[7], t[8], t[9]
    STAMP = OPT["stamp"]

    def st(i):
        return f"s_memtime s[{60 + 2 * i}:{61 + 2 * i}]" if STAMP else ""

    def lg(n):
        return f"s_waitcnt lgkmcnt({0 if STAMP else n})"
    if STAMP:
        for i in range(10):
            a(f"s_mov_b32 s{84 + i}, 0")
        a("s_memtime s[74:75]")

    def pop_issue(buf):
        return f"""
        s_min_u32 s{sN}, s{sCNT}, 64
        s_sub_u32 s{sCNT}, s{sCNT}, s{sN}
        s_lshl3_add_u32 s{sTOP}, s{sCNT}, s{sRB}
        v_cmp_gt_u32 {sr(sM[buf], 2)}, s{sN}, v{vLANE}
        v_add_u32 v{t[2]}, s{sTOP}, v{vL8}
        v_mov_b32 v{WA[buf]}, 0xfffff000
        v_mov_b32 v{WA[buf] + 1}, 0
        s_mov_b64 exec, {sr(sM[buf], 2)}
        ds_read_b64 {vr(WA[buf], 2)}, v{t[2]}
        s_mov_b64 exec, -1
        """

    def gathers(buf):
        W = WA[buf]
        g0 = f"v_mov_b32 v{t[2]}, v{vOOB}" if OPT["x_nogather"] else f"v_and_b32 v{t[2]}, 0xffffffe0, v{t[2]}"
        return f"""
        v_lshrrev_b32 v{t[2]}, 7, v{W}
        {g0}
        v_lshlrev_b32 v{O[buf]}, 4, v{W}
        v_and_b32 v{t[4]}, s{sHI}, v{W + 1}
        v_or_b32_dpp v{t[3]}, v{t[2]}, v{vH16} quad_perm:[0,0,2,2] row_mask:0xf bank_mask:0xf
        v_or_b32_dpp v{t[2]}, v{t[2]}, v{vH16} quad_perm:[1,1,3,3] row_mask:0xf bank_mask:0xf
        buffer_load_dwordx4 {vr(GP[buf], 4)}, v{t[3]}, {sr(S_M, 4)}, 0 offen
        buffer_load_dwordx4 {vr(GQ[buf], 4)}, v{t[2]}, {sr(S_M, 4)}, 0 offen
        """

    def coschain(buf):
        return f"""
        v_and_b32 v{O[buf]}, 0xfff0, v{O[buf]}
        v_mul_f32 v{C[buf]}, s{sKF0}, v{t[4]}
        v_mul_f32 v{t[4]}, s{sKF1}, v{t[4]}
        v_fract_f32 v{C[buf]}, v{C[buf]}
        v_fract_f32 v{t[4]}, v{t[4]}
        v_cos_f32 v{C[buf]}, v{C[buf]}
        v_cos_f32 v{t[4]}, v{t[4]}
        """

    def cospack(buf):
        return f"v_cvt_pk_f16_f32 v{C[buf]}, v{C[buf]}, v{t[4]}"

    def rbf_read(buf):
        return f"ds_read_b128 {vr(S1, 4)}, v{O[buf]} offset:{L_RBF}"

    def gate(buf):
        s = ""
        for j in range(4):
            s += f"v_pk_mul_f16 v{S0 + j}, v{S1 + j}, v{C[buf]} op_sel_hi:[1,0]\n"
        for j in range(4):
            s += f"v_pk_mul_f16 v{S1 + j}, v{S1 + j}, v{C[buf]} op_sel:[0,1]\n"
        s += f"""
        v_mfma_f32_32x32x16_f16 {vr(D2, 16)}, {vr(A2a, 4)}, {vr(S0, 4)}, 0
        s_mov_b64 vcc, {sr(sEVEN, 2)}
        v_mfma_f32_32x32x16_f16 {vr(D2, 16)}, {vr(A2b, 4)}, {vr(S1, 4)}, {vr(D2, 16)}
        """
        return s

    def fixup(buf):
        s = ""
        for j in range(4):
            s += f"v_cndmask_b32_dpp v{TF + j}, v{GQ[buf] + j}, v{GP[buf] + j}, vcc quad_perm:[0,0,2,2] row_mask:0xf bank_mask:0xf\n"
        s += "s_not_b64 vcc, vcc\n"
        for j in range(4):
            s += f"v_cndmask_b32_dpp v{GQ[buf] + j}, v{GP[buf] + j}, v{GQ[buf] + j}, vcc quad_perm:[1,1,3,3] row_mask:0xf bank_mask:0xf\n"
        return s

    def muls():
        for j in range(0, 16, 2):
            a(f"v_pk_mul_f32 {vr(D1 + j, 2)}, {vr(D1 + j, 2)}, {vr(D2 + j, 2)}")

    def core_a(buf, fill, fill2=""):
        W = WA[buf]
        a(f"""
        v_mfma_f32_32x32x16_bf16 {vr(D1, 16)}, {vr(A1a, 4)}, {vr(TF, 4)}, 0
        v_add_u32 v{aX}, {L_ACC0}, v{O[buf]}
        v_mfma_f32_32x32x16_bf16 {vr(D1, 16)}, {vr(A1b, 4)}, {vr(GQ[buf], 4)}, {vr(D1, 16)}
        v_add_u32 v{aY}, {L_ACC1}, v{O[buf]}
        v_lshrrev_b32 v{la}, 2, v{W}
        v_lshlrev_b32_e64 v{bit}, v{W}, 1
        v_permlane32_swap_b32 v{aX}, v{aY}
        v_and_b32 v{la}, 0x3fc, v{la}
        """)
        a(fill)
        if not OPT["valu_add"]:
            muls()
        else:
            a("s_nop 0")
        a(fill2)

    def core_b(buf, inline):
        uid[0] += 1
        u = uid[0]
        W, M = WA[buf], sM[buf]
        nrm = OPT["x_normw"]
        va = OPT["valu_add"]
        guard = f"s_sub_u32 s{sG}, s{sG}, 1\ns_cbranch_scc1 P2_done" if OPT["guard"] else ""
        a(f"""
        {st(5) if inline else ""}
        {"s_setprio 2" if OPT["prio"] else ""}
        s_mov_b64 exec, {sr(M, 2)}
        {f"v_mov_b32 v{old}, 0" if nrm else f"ds_or_rtn_b32 v{old}, v{la}, v{bit}"}
        s_mov_b64 exec, -1
        {"" if nrm else f"ds_read_b128 {vr(AX, 4)}, v{aX}"}
        {"" if nrm else f"ds_read_b128 {vr(AY, 4)}, v{aY}"}
        {f"ds_read_b32 v{t[10]}, v{vH16} offset:784" if inline else ""}
        {lg(2 if inline else 1)}
        {st(6) if inline else ""}
        """)
        check = f"""
        v_cmp_eq_u32 vcc, 0, v{old}
        s_and_b64 {sr(sACQ, 2)}, vcc, {sr(M, 2)}
        s_andn2_b64 {sr(sFAIL, 2)}, {sr(M, 2)}, vcc
        s_bcnt1_i32_b64 s{sN}, {sr(sFAIL, 2)}
        {"s_add_u32 s95, s95, s%d" % sN if OPT["cntreq"] else ""}
        s_add_u32 s{sT0}, s{sCNT}, s{sN}
        v_mbcnt_lo_u32_b32 v{old}, s{sFAIL}, 0
        v_mbcnt_hi_u32_b32 v{old}, s{sFAIL + 1}, v{old}
        v_lshl_add_u32 v{old}, v{old}, 3, s{sTOP}
        s_mov_b32 exec_lo, s{sACQ}
        s_mov_b32 exec_hi, s{sACQ}
        s_cmp_gt_u32 s{sT0}, s{sCAP}
        """
        U = [TF, TF + 1, TF + 2, TF + 3, GP[buf], GP[buf] + 1, GP[buf] + 2, GP[buf] + 3]

        def addhalf(Ac, off):
            for j in range(4):
                a(f"v_lshlrev_b32 v{U[2 * j]}, 16, v{Ac + j}")
                a(f"v_and_b32 v{U[2 * j + 1]}, s{sHI}, v{Ac + j}")
            for j in range(4):
                a(f"v_pk_fma_f32 {vr(U[2 * j], 2)}, {vr(D1 + off + 2 * j, 2)}, {vr(D2 + off + 2 * j, 2)}, {vr(U[2 * j], 2)}")
            for j in range(4):
                a(f"v_cvt_pk_bf16_f32 v{Ac + j}, v{U[2 * j]}, v{U[2 * j + 1]}")
        if va:
            a(f"v_and_b32 v{old}, v{old}, v{bit}")
            a(check)
            addhalf(AX, 0)
        else:
            a(f"""
            v_mfma_f32_32x32x16_bf16 {vr(D2, 16)}, {vr(A3a, 4)}, {vr(AX, 4)}, {vr(D1, 16)}
            v_and_b32 v{old}, v{old}, v{bit}
            s_waitcnt lgkmcnt({1 if inline else 0})
            v_mfma_f32_32x32x16_bf16 {vr(D2, 16)}, {vr(A3b, 4)}, {vr(AY, 4)}, {vr(D2, 16)}
            """)
            a(check)
            a("s_nop 0")
            for j in range(4):
                a(f"v_cvt_pk_bf16_f32 v{AX + j}, v{D2 + 2 * j}, v{D2 + 2 * j + 1}")
        a(f"""
        {"" if nrm else f"ds_write_b128 v{aX}, {vr(AX, 4)}"}
        s_mov_b32 exec_lo, s{sACQ + 1}
        s_mov_b32 exec_hi, s{sACQ + 1}
        """)
        if va:
            a(f"s_waitcnt lgkmcnt({2 if inline else 1})")
            addhalf(AY, 8)
        else:
            for j in range(4):
                a(f"v_cvt_pk_bf16_f32 v{AY + j}, v{D2 + 8 + 2 * j}, v{D2 + 8 + 2 * j + 1}")
        a(f"""
        {"" if nrm else f"ds_write_b128 v{aY}, {vr(AY, 4)}"}
        s_mov_b64 exec, {sr(sACQ, 2)}
        {"" if nrm else f"ds_xor_b32 v{la}, v{bit}"}
        {"s_setprio 0" if OPT["prio"] else ""}
        s_cbranch_scc1 P2_full{u}
        s_mov_b64 exec, {sr(sFAIL, 2)}
        s_mov_b32 s{sCNT}, s{sT0}
        ds_write_b64 v{old}, {vr(W, 2)}
        s_mov_b64 exec, -1
        s_lshl3_add_u32 s{sTOP}, s{sN}, s{sTOP}
        """)
        if inline:
            a(f"P2_fullr{u}:")
            cold.append(f"""
            P2_full{u}:
            s_mov_b64 exec, -1
            s_cmp_eq_u32 s{sN}, 0
            s_cbranch_scc1 P2_fullr{u}
            s_mov_b64 {sr(M, 2)}, {sr(sFAIL, 2)}
            s_call_b64 {sr(sRET2, 2)}, P2_rmw{buf}
            s_branch P2_fullr{u}
            """)
        else:
            a(f"""
            P2_ret{u}:
            s_setpc_b64 {sr(sRET2, 2)}
            P2_full{u}:
            s_mov_b64 exec, -1
            s_cmp_eq_u32 s{sN}, 0
            s_cbranch_scc1 P2_ret{u}
            {guard}
            s_mov_b64 {sr(M, 2)}, {sr(sFAIL, 2)}
            s_branch P2_rmw{buf}
            """)

    def slow_push(buf, slot):
        uid[0] += 1
        u = uid[0]
        d0, d1, d2 = RB[buf], RB[buf] + 1, RB[buf] + 2
        if slot == 0:
            s = f"""
            v_cmp_lt_u32 {sr(sM0, 2)}, v{RD[buf]}, v{RL[buf]}
            v_lshlrev_b32 v{t[11]}, 16, v{d1}
            """
            w, an = d0, t[11]
        else:
            s = f"""
            v_add_u32 v{t[11]}, 1, v{RD[buf]}
            v_cmp_lt_u32 {sr(sM0, 2)}, v{t[11]}, v{RL[buf]}
            """
            w, an = d2, d1
        return s + f"""
        P2_push{u}:
        s_bcnt1_i32_b64 s{sN0}, {sr(sM0, 2)}
        s_add_u32 s{sT0}, s{sCNT}, s{sN0}
        s_cmp_le_u32 s{sT0}, {RING_CAP}
        s_cbranch_scc1 P2_pok{u}
        s_call_b64 {sr(sRET, 2)}, P2_pop{buf}
        s_branch P2_push{u}
        P2_pok{u}:
        v_mbcnt_lo_u32_b32 v{t[4]}, s{sM0}, 0
        v_mbcnt_hi_u32_b32 v{t[4]}, s{sM0 + 1}, v{t[4]}
        v_lshl_add_u32 v{t[4]}, v{t[4]}, 3, s{sTOP}
        s_mov_b64 exec, {sr(sM0, 2)}
        ds_write2_b32 v{t[4]}, v{w}, v{an} offset1:1
        s_mov_b64 exec, -1
        s_mov_b32 s{sCNT}, s{sT0}
        s_lshl3_add_u32 s{sTOP}, s{sN0}, s{sTOP}
        """

    def step(buf, peeled=False):
        uid[0] += 1
        u = uid[0]
        prev = buf ^ 1
        d0, d1, d2 = RB[buf], RB[buf] + 1, RB[buf] + 2
        a.c(f"---- step, buffer {buf}: compact the loaded records onto the stack")
        if OPT["rot"] and (OPT["rot"] == 1 or buf == 0):
            a(f"""
            s_add_u32 s82, s82, 1
            s_bitcmp1_b32 s82, 1
            s_cbranch_scc1 P2_prh{u}
            s_setprio 0
            s_bitcmp1_b32 s82, 0
            s_cbranch_scc0 P2_pre{u}
            s_setprio 1
            s_branch P2_pre{u}
            P2_prh{u}:
            s_setprio 2
            s_bitcmp1_b32 s82, 0
            s_cbranch_scc0 P2_pre{u}
            s_setprio 3
            P2_pre{u}:
            """)
        a(f"""
        {st(0)}
        s_waitcnt vmcnt({1 if peeled else 3})
        {st(1)}
        v_cmp_lt_u32 {sr(sM0, 2)}, v{RD[buf]}, v{RL[buf]}
        v_add_u32 v{t[1]}, 1, v{RD[buf]}
        v_lshlrev_b32 v{t[2]}, 16, v{d1}
        v_cmp_lt_u32 {sr(sM1, 2)}, v{t[1]}, v{RL[buf]}
        s_bcnt1_i32_b64 s{sN0}, {sr(sM0, 2)}
        v_mbcnt_lo_u32_b32 v{t[0]}, s{sM0}, 0
        s_bcnt1_i32_b64 s{sN}, {sr(sM1, 2)}
        v_mbcnt_hi_u32_b32 v{t[0]}, s{sM0 + 1}, v{t[0]}
        v_mbcnt_lo_u32_b32 v{t[1]}, s{sM1}, 0
        s_add_u32 s{sT0}, s{sCNT}, s{sN0}
        v_mbcnt_hi_u32_b32 v{t[1]}, s{sM1 + 1}, v{t[1]}
        s_add_u32 s{sT0}, s{sT0}, s{sN}
        s_lshl3_add_u32 s{sT1}, s{sN0}, s{sTOP}
        v_lshl_add_u32 v{t[0]}, v{t[0]}, 3, s{sTOP}
        s_cmp_lg_u64 {sr(sLONG[buf], 2)}, 0
        s_cselect_b32 s{sT2}, 0, {RING_CAP + 1}
        v_lshl_add_u32 v{t[1]}, v{t[1]}, 3, s{sT1}
        s_cmp_ge_u32 s{sT0}, s{sT2}
        s_cbranch_scc1 {"P2_alt" if peeled else f"P2_slow{u}"}
        s_mov_b64 exec, {sr(sM0, 2)}
        ds_write2_b32 v{t[0]}, v{d0}, v{t[2]} offset1:1
        s_mov_b64 exec, {sr(sM1, 2)}
        ds_write2_b32 v{t[1]}, v{d2}, v{d1} offset1:1
        s_mov_b64 exec, -1
        s_mov_b32 s{sCNT}, s{sT0}
        P2_slowr{u}:
        """)
        if peeled:
            a(pop_issue(buf))
            a("s_waitcnt lgkmcnt(0)")
            prep(buf, gathers(buf), False)
            a(coschain(buf))
            a("s_nop 0")
            a(cospack(buf))
            return
        cold.append(f"P2_slow{u}:\n" + slow_push(buf, 0) + slow_push(buf, 1) + f"""
        P2_long{u}:
        v_add_u32 v{RD[buf]}, 32, v{RD[buf]}
        v_add_u32 v{RA[buf]}, 192, v{RA[buf]}
        v_cmp_lt_i32 vcc, v{RD[buf]}, v{RL[buf]}
        s_cbranch_vccz P2_slowr{u}
        s_nop 0
        v_cndmask_b32 v{t[4]}, v{vOOB}, v{RA[buf]}, vcc
        buffer_load_dwordx3 {vr(RB[buf], 3)}, v{t[4]}, {sr(S_REC, 4)}, s{sCOB[buf]} offen
        s_waitcnt vmcnt(0)
        """ + slow_push(buf, 0) + slow_push(buf, 1) + f"s_branch P2_long{u}\n")
        if OPT["x_nopop"]:
            a(f"s_mov_b32 s{sCNT}, 0\ns_mov_b32 s{sTOP}, s{sRB}")
            prep(buf)
            for k in range(2):
                a(f"buffer_load_dword v{vDUM}, v{vOOB}, {sr(S_REC, 4)}, 0 offen")
            a("s_waitcnt lgkmcnt(0)")
            return
        a(pop_issue(buf))
        a(rbf_read(prev))
        prep(buf, lg(2) + "\n" + st(2) + "\n" + gathers(buf))
        a(st(3))
        a(lg(1))
        if OPT["x_nocore"]:
            a("s_waitcnt vmcnt(4) lgkmcnt(0)")
            a(f"s_mov_b64 {sr(sM[buf], 2)}, 0")
        else:
            a(gate(prev))
            a("s_waitcnt vmcnt(4)")
            a(st(4))
            a(fixup(prev))
            core_a(prev, coschain(buf), cospack(buf))
            core_b(prev, True)
        if OPT["lag"]:
            a(f"""
            s_waitcnt lgkmcnt(4)
            v_readfirstlane_b32 s{sT1}, v{t[10]}
            {spf() if OPT["spf"] else ""}
            s_mov_b64 exec, 1
            s_add_u32 s83, s83, 16
            ds_inc_u32 v{vH16}, v{vOOB} offset:784
            s_mov_b64 exec, -1
            s_cmp_lt_i32 s{sT1}, s83
            s_cbranch_scc1 P2_poll{u}
            P2_pollr{u}:
            """)
            cold.append(f"""
            P2_poll{u}:
            ds_read_b32 v{t[10]}, v{vH16} offset:784
            ds_read_b32 v{t[10]}, v{vH16} offset:784
            s_waitcnt lgkmcnt(1)
            v_readfirstlane_b32 s{sT1}, v{t[10]}
            s_cmp_ge_i32 s{sT1}, s83
            s_cbranch_scc1 P2_pollr{u}
            s_sleep 1
            {f"s_sub_u32 s{sG}, s{sG}, 1" if OPT["guard"] else ""}
            {"s_cbranch_scc1 P2_done" if OPT["guard"] else ""}
            s_branch P2_poll{u}
            """)
        if STAMP:
            a("s_waitcnt lgkmcnt(0)")
            a("s_sub_u32 s94, s60, s74\ns_add_u32 s84, s84, s94")
            a("s_memtime s[74:75]\ns_waitcnt lgkmcnt(0)")
            for i in range(7):
                a(f"s_sub_u32 s94, s{62 + 2 * i}, s{60 + 2 * i}\ns_add_u32 s{85 + i}, s{85 + i}, s94")

    if OPT["peel"]:
        a.c("first half of step 0 runs before the rest of the setup, so that its gathers are under way")
        step(0, True)
        a(f"s_call_b64 {sr(sRET2, 2)}, P2_tail")
        if OPT["stamp2"]:
            a("s_memrealtime s[60:61]\ns_memtime s[72:73]\ns_waitcnt lgkmcnt(0)")
        if OPT["lag"]:
            a(f"""
            s_mov_b64 exec, 1
            s_add_u32 s83, s83, 16
            ds_inc_u32 v{vH16}, v{vOOB} offset:784
            s_mov_b64 exec, -1
            """)
        a(f"""
        s_branch P2_step1
        P2_tail:
        """)
        prologue_tail()
        a(f"""
        s_setpc_b64 {sr(sRET2, 2)}
        P2_alt:
        s_call_b64 {sr(sRET2, 2)}, P2_tail
        """)
    if OPT["stamp2"]:
        a("s_memrealtime s[60:61]\ns_memtime s[72:73]\ns_waitcnt lgkmcnt(0)")
    if OPT["x_fake"]:
        a(f"s_lshl_b32 s98, s2, 10\nv_add_u32 v{D1}, s98, v0\nv_mul_lo_u32 v{D1}, v{D1}, v{D1}\nv_add_u32 v{D1}, v{D1}, v0")
    a("P2_loop:")
    if OPT["phase_bar"]:
        a(f"""
        s_add_u32 s{sT0}, s{sK}, s3
        s_and_b32 s{sT0}, s{sT0}, 7
        s_cbranch_scc1 P2_nobar
        s_barrier
        P2_nobar:
        """)
    a(f"""
    s_cmp_lt_u32 s{sK}, {8 * OPT['ns'] - 2}
    s_cselect_b32 s{sCAP}, {RING_CAP}, 0
    """)
    step(0)
    a("P2_step1:")
    step(1)
    a(f"""
    s_add_u32 s{sK}, s{sK}, 2
    s_cmp_lt_u32 s{sK}, {8 * OPT['ns']}
    s_cbranch_scc1 P2_loop
    """)
    if STAMP:
        a(f"""
        s_lshl_b32 s94, s2, 4
        s_add_u32 s94, s94, s{sW}
        s_lshl_b32 s94, s94, 6
        s_add_u32 s6, s6, {16 << 20}
        s_addc_u32 s7, s7, 0
        """)
        srd(a, S_TMP, 6, 1 << 20)
        a(f"v_mov_b32 v{t[0]}, 0")
        for i in range(8):
            a(f"v_mov_b32 v{t[1]}, s{84 + i}")
            a(f"buffer_store_dword v{t[1]}, v{t[0]}, {sr(S_TMP, 4)}, s94 offen offset:{4 * i}")
        a("s_waitcnt vmcnt(0)")
    if OPT["stamp2"]:
        a("s_memrealtime s[62:63]\ns_memtime s[74:75]\ns_waitcnt lgkmcnt(0)\ns_sub_u32 s72, s74, s72")
    a.c("prefetch the bucket's own m rows for the epilogue; finish the last pop; empty the stack")
    MP = [TT, RB[0], RB[1], RL[0], GP[1], GQ[1], vBP]
    A1, A2, A3, DX, DY, SX, SY = A1a, A1b, A3a, D1, D2, A2a, A2b
    vMO = vE
    a(f"""
    v_and_b32 v{t[0]}, 31, v{vLANE}
    v_lshrrev_b32 v{t[1]}, 5, v{vLANE}
    v_lshlrev_b32 v{t[1]}, 4, v{t[1]}
    s_lshl_b32 s{sT0}, s{sW}, 10
    v_lshl_add_u32 v{vMO}, v{t[0]}, 5, v{t[1]}
    v_add_u32 v{vMO}, s{sT0}, v{vMO}
    s_mul_i32 s{sCO}, s{sB}, {EB * 32}
    s_mov_b32 s{sJ}, s{sCO}
    {rbf_read(1)}
    s_waitcnt vmcnt(0)
    """)
    for i in range(4):
        a(f"buffer_load_dwordx4 {vr(MP[i], 4)}, v{vMO}, {sr(S_M, 4)}, s{sJ} offen")
        a(f"s_add_u32 s{sJ}, s{sJ}, 16384")
    a("s_waitcnt lgkmcnt(0)")
    a(gate(1))
    a(fixup(1))
    core_a(1, "s_nop 6")
    a(f"s_call_b64 {sr(sRET2, 2)}, P2_rmw1")
    for i in range(4, 6):
        a(f"buffer_load_dwordx4 {vr(MP[i], 4)}, v{vMO}, {sr(S_M, 4)}, s{sJ} offen")
        a(f"s_add_u32 s{sJ}, s{sJ}, 16384")
    a(f"""
    P2_drain:
    s_cmp_eq_u32 s{sCNT}, 0
    s_cbranch_scc1 P2_epi
    s_call_b64 {sr(sRET, 2)}, P2_pop0
    s_branch P2_drain
    P2_epi:
    """)
    if OPT["cntreq"]:
        a(f"""
        s_load_dwordx2 s[60:61], s[0:1], 96
        s_waitcnt lgkmcnt(0)
        v_mov_b32 v{t[0]}, s95
        v_mov_b32 v{t[1]}, 0
        s_mov_b64 exec, 1
        global_atomic_add v{t[1]}, v{t[0]}, s[60:61]
        s_mov_b64 exec, -1
        s_waitcnt vmcnt(0)
        """)
    a(f"""
    v_lshlrev_b32 v{t[2]}, 4, v{vLANE}
    s_mov_b32 s{sT0}, {TAB_BYTES + 1024 * 6}
    s_mov_b32 s{sT1}, {TAB_BYTES + 1024 * 7}
    buffer_load_dwordx4 {vr(A1, 4)}, v{t[2]}, {sr(S_TAB, 4)}, s{sT0} offen
    buffer_load_dwordx4 {vr(A2, 4)}, v{t[2]}, {sr(S_TAB, 4)}, s{sT1} offen
    buffer_load_dwordx4 {vr(MP[6], 4)}, v{vMO}, {sr(S_M, 4)}, s{sJ} offen
    s_lshl_b32 s{sT0}, s{sW}, 9
    s_mov_b32 s{sT2}, {L_ACC0}
    v_and_b32 v{t[1]}, 31, v{vLANE}
    v_lshlrev_b32 v{t[1]}, 4, v{t[1]}
    v_add_u32 v{t[1]}, s{sT0}, v{t[1]}
    v_lshrrev_b32 v{t[0]}, 5, v{vLANE}
    v_mul_u32_u24 v{t[0]}, {EB * 16}, v{t[0]}
    v_add3_u32 v{t[0]}, v{t[0]}, v{t[1]}, s{sT2}
    s_waitcnt vmcnt(1) lgkmcnt(0)
    """)
    if OPT["stamp2"]:
        a("s_memrealtime s[64:65]\ns_waitcnt lgkmcnt(0)")
    a("s_barrier")
    if OPT["stamp2"]:
        a("s_memrealtime s[66:67]\ns_waitcnt lgkmcnt(0)")
    a.c("epilogue: out = m + (agg @ w_up) * (rbf @ w_rbf), 32 edges per pass, two passes at a time")
    OBX, OBY = GP[0], GQ[0]

    def epi(groups):
        regs = [(DX, AX, SX, OBX), (DY, AY, SY, OBY)]
        for (i, va), (Dd, Ac, Sb, Ob) in zip(groups, regs):
            a(f"ds_read_b128 {vr(Ac, 4)}, v{t[0]} offset:{8192 * i}")
            a(f"ds_read_b128 {vr(Sb, 4)}, v{t[1]} offset:{L_RBF + 8192 * i}")
        n = len(groups)
        for k, ((i, va), (Dd, Ac, Sb, Ob)) in enumerate(zip(groups, regs)):
            a(f"s_waitcnt lgkmcnt({2 * (n - 1 - k)})")
            a(f"v_mfma_f32_32x32x16_bf16 {vr(Dd, 16)}, {vr(A1, 4)}, {vr(Ac, 4)}, 0")
            a(f"v_mfma_f32_32x32x16_f16 {vr(Dd, 16)}, {vr(A2, 4)}, {vr(Sb, 4)}, {vr(Dd, 16)}")
        a("s_nop 11")
        for (i, va), (Dd, Ac, Sb, Ob) in zip(groups, regs):
            for j in range(8):
                a(f"v_mul_f32 v{Dd + j}, v{Dd + j}, v{Dd + 8 + j}")
        a("s_waitcnt vmcnt(6)" if groups[0][0] == 6 else "s_nop 0")
        a("s_nop 0")
        for (i, va), (Dd, Ac, Sb, Ob) in zip(groups, regs):
            a(f"v_mfma_f32_32x32x16_bf16 {vr(Dd, 16)}, {vr(A3, 4)}, {vr(MP[i], 4)}, {vr(Dd, 16)}")
        a("s_nop 11")
        for (i, va), (Dd, Ac, Sb, Ob) in zip(groups, regs):
            for j in range(4):
                a(f"v_cvt_pk_bf16_f32 v{Ob + j}, v{Dd + 2 * j}, v{Dd + 2 * j + 1}")
            a(f"buffer_store_dwordx4 {vr(Ob, 4)}, v{va}, {sr(S_OUT, 4)}, s{sCO} offen{nto}")
            a(f"s_add_u32 s{sCO}, s{sCO}, 16384")

    for i in (0, 2, 4):
        epi([(i, vMO), (i + 1, vMO)])
    if OPT["stamp2"]:
        a(f"""
        s_memrealtime s[84:85]
        s_waitcnt vmcnt(0) lgkmcnt(0)
        s_memrealtime s[86:87]
        s_lshl_b32 s98, s2, 4
        s_add_u32 s98, s98, s{sW}
        s_lshl_b32 s98, s98, 6
        s_add_u32 s6, s6, {16 << 20}
        s_addc_u32 s7, s7, 0
        s_waitcnt lgkmcnt(0)
        """)
        srd(a, S_TMP, 6, 1 << 20)
        a(f"v_mov_b32 v{t[5]}, 0")
        for i, r in enumerate([96, 60, 62, 64, 66, 84, 86, 72]):
            a(f"v_mov_b32 v{t[6]}, s{r}")
            a(f"buffer_store_dword v{t[6]}, v{t[5]}, {sr(S_TMP, 4)}, s98 offen offset:{4 * i}")
    a(f"""
    s_cmp_lt_u32 s{sW}, 2
    s_cbranch_scc0 P2_done
    v_cmp_gt_u32 vcc, {(EB - 6 * 512) * 32}, v{vMO}
    v_mov_b32 v{t[2]}, 0x7fffff00
    s_nop 0
    v_cndmask_b32 v{t[2]}, v{t[2]}, v{vMO}, vcc
    """)
    epi([(6, t[2])])
    a("P2_done:")
    a("s_endpgm")
    for buf in range(2):
        a.c(f"subroutine: pop up to 64 records into buffer {buf} and finish them")
        a(f"P2_pop{buf}:")
        if OPT["guard"]:
            a(f"s_sub_u32 s{sG}, s{sG}, 1\ns_cbranch_scc1 P2_done")
        a(pop_issue(buf))
        a("s_waitcnt lgkmcnt(0)")
        a(gathers(buf))
        a(coschain(buf))
        a(f"""
        {rbf_read(buf)}
        {cospack(buf)}
        s_mov_b64 {sr(sRET2, 2)}, {sr(sRET, 2)}
        s_waitcnt lgkmcnt(0)
        """)
        a(gate(buf))
        a("s_waitcnt vmcnt(0)")
        a(fixup(buf))
        core_a(buf, "s_nop 6")
        a(f"P2_rmw{buf}:")
        core_b(buf, False)
    for c in cold:
        a(c)
    kernel_desc(a, name, 128, 102)


def build():
    a = A()
    ref = open(f"cdna_kernels/{NAME}.s.ref").read().split("\n")
    for line in ref:
        if line.startswith("; Override"):
            break
        a.raw(line)
    a.raw(f"; @launch kernel=part_kernel grid=({NB},1,1) block=(1024,1,1) lds={P1_LDS}")
    a.raw(f"; @launch kernel={NAME}_kernel grid=({NB},1,1) block=(1024,1,1) lds={P2_LDS}")
    a.raw('.amdgcn_target "amdgcn-amd-amdhsa--gfx950"')
    gen_part(a, "part_kernel")
    gen_main(a, f"{NAME}_kernel")
    return a.text()


def main():
    out = f"cdna_kernels/{NAME}.s"
    for arg in sys.argv[1:]:
        if "=" in arg:
            k, v = arg.split("=")
            assert k in OPT, k
            OPT[k] = type(OPT[k])(int(v))
        else:
            out = arg
    open(out, "w").write(build())


if __name__ == "__main__":
    main()
```

```python
import sys

NAME = "gather_scatter__molecular_angular_gemnet__graph"
E = 800000
T = 12800000
NB = 256
EB = 3125
CH = 25000
NCH = 512
NS = 8
CHB = 150016
REC_BYTES = NCH * CHB
TAB_OFF = REC_BYTES
TAB_BYTES = NB * NCH * 32
OPS_OFF = TAB_OFF + TAB_BYTES

OPT = dict(
    nt_in=True,
    nt_rec=False,
    phase_bar=False,
    nt_out=False,
    x_nogather=False, x_normw=False, x_norec=False,
    aslot=1, rotl=0x6420, pfx=4, tabc=1, sleep=0, pfp1=0, peel=1, pfg=1, stm=1, stmb=1, outm=2, pfw=2, pfpos=1, pffirst=0, spf=0, pfs=1, pfn=0, mimic=1, pf0=0, valu_add=0, early=2, stpos=2, stag=3, pfm=0, slide=0, ns=7, bdelay=0, stamp1=0, stamp2=0, lag=1, lagoff=12, cntreq=0, rot=0, rotshift=2, stamp=False, pkf32=True, x_fake=0, x_nocore=0, x_recx4=0, x_nomfma=0, x_nopop=0, prio=True, lock_pos=2,
    guard=False,
)


class A:
    def __init__(self):
        self.l = []

    def __call__(self, s=""):
        for line in s.split("\n"):
            line = line.strip()
            if line:
                if line.endswith(":"):
                    self.l.append(line)
                else:
                    self.l.append("    " + line)

    def c(self, s):
        self.l.append("    ; " + s)

    def raw(self, s):
        self.l.append(s)

    def text(self):
        return "\n".join(self.l) + "\n"


def vr(a, n):
    return f"v[{a}:{a + n - 1}]"


def sr(a, n):
    return f"s[{a}:{a + n - 1}]"


def srd(a, dst, base, nbytes, stride=0):
    a(f"s_mov_b32 s{dst}, s{base}")
    a(f"s_and_b32 s{dst + 1}, s{base + 1}, 0xffff")
    if stride:
        a(f"s_or_b32 s{dst + 1}, s{dst + 1}, {stride << 16:#x}")
    a(f"s_mov_b32 s{dst + 2}, {nbytes}")
    a(f"s_mov_b32 s{dst + 3}, 0x20000")


def kernel_head(a, name):
    a.raw(".text")
    a.raw(f".globl {name}")
    a.raw(".p2align 8")
    a.raw(f".type {name},@function")
    a.raw(f"{name}:")


def kernel_desc(a, name, vgpr, sgpr):
    a.raw('.section .rodata,"a"')
    a.raw(".p2align 6")
    a.raw(f".amdhsa_kernel {name}")
    a.raw(f"  .amdhsa_next_free_vgpr {vgpr}")
    a.raw(f"  .amdhsa_next_free_sgpr {sgpr}")
    a.raw(f"  .amdhsa_accum_offset {(vgpr + 3) // 4 * 4}")
    a.raw("  .amdhsa_group_segment_fixed_size 0")
    a.raw("  .amdhsa_kernarg_size 112")
    a.raw("  .amdhsa_user_sgpr_count 2")
    a.raw("  .amdhsa_user_sgpr_kernarg_segment_ptr 1")
    a.raw("  .amdhsa_system_sgpr_workgroup_id_x 1")
    a.raw(".end_amdhsa_kernel")


P1_CNT = 16
P1_PART = P1_CNT + 8192
P1_REC = P1_PART + 64
P1_LDS = 158720


def gen_part(a, name):
    nt = " nt" if OPT["nt_in"] else ""
    STMS = {X: ["", " sc1", " nt", " sc0 sc1", " sc1 nt"][OPT[k]] for X, k in (("A", "stm"), ("B", "stmb"))}
    S_IN, S_OUT, S_ANG, S_REC, S_TAB = 8, 12, 16, 20, 24
    sMAG, sNEG, sMASK, sHI, sDIV6 = 28, 29, 30, 31, 32
    sOI, sOA = 33, 34
    sW, sT0, sT1, sCH = 35, 36, 37, 38
    sEX = 40
    stn = [0]

    def st1():
        if OPT["stamp1"]:
            a(f"s_memrealtime s[{48 + 2 * stn[0]}:{49 + 2 * stn[0]}]\ns_waitcnt lgkmcnt(0)")
            stn[0] += 1
    vT16, vT8, vSIX = 1, 2, 3
    tmp = list(range(4, 14))
    O = {"A": 14, "B": 62}
    I = {"A": 38, "B": 86}
    G = 110
    O6 = {"A": 122, "B": 124}
    I6 = {"A": 123, "B": 125}
    G6 = 126
    vX = 127

    kernel_head(a, name)
    a(f"""
    s_cmp_ge_u32 s2, {NB}
    s_cbranch_scc1 P1_done
    s_load_dwordx4 s[4:7], s[0:1], 8
    s_load_dwordx2 s[42:43], s[0:1], 32
    s_load_dwordx2 s[44:45], s[0:1], 104
    s_load_dwordx2 s[70:71], s[0:1], 0
    v_lshlrev_b32 v{vT16}, 4, v0
    v_lshlrev_b32 v{vT8}, 3, v0
    v_mov_b32 v{vSIX}, 6
    s_mov_b32 s{sMAG}, 1374390
    s_mov_b32 s{sNEG}, {-EB}
    s_mov_b32 s{sMASK}, 0x1c00
    s_mov_b32 s{sHI}, 0xffff0000
    s_mov_b32 s{sDIV6}, 0x2aaaaaab
    v_lshrrev_b32 v4, 6, v0
    v_mov_b32 v6, 0
    v_mov_b32 v7, 0
    v_readfirstlane_b32 s{sW}, v4
    ds_write_b64 v{vT8}, v[6:7] offset:{P1_CNT}
    v_mov_b32 v5, {P1_REC}
    ds_write_b32 v6, v5 offset:{P1_CNT - 4}
    s_waitcnt lgkmcnt(0)
    """)
    srd(a, S_IN, 4, T * 4)
    srd(a, S_OUT, 6, T * 4)
    srd(a, S_ANG, 42, T * 2)
    srd(a, S_REC, 44, REC_BYTES)
    a(f"s_add_u32 s44, s44, {TAB_OFF}")
    a("s_addc_u32 s45, s45, 0")
    srd(a, S_TAB, 44, TAB_BYTES + 8192)
    a(f"""
    s_lshr_b32 s39, s2, 1
    s_and_b32 s39, s39, 7
    s_lshr_b32 s46, s39, {1 if OPT["stag"] == 1 else 0}
    s_lshr_b32 s46, {0xf0 if OPT["stag"] == 1 else 0xff00}, s46
    s_and_b32 s46, s46, {0xf if OPT["stag"] == 1 else 0xff}
    s_mul_i32 s46, s46, {0x11 if OPT["stag"] == 1 else 1}
    """)
    if OPT["stag"] == 3:
        a(f"""
        s_lshr_b32 s46, s39, 1
        s_lshl_b32 s46, s46, 2
        s_sub_u32 s46, 16, s46
        s_lshr_b32 s47, 0x1111, s46
        s_lshl_b32 s46, s47, s46
        s_add_u32 s46, s46, {OPT["rotl"]:#x}
        s_mul_i32 s46, s46, 0x10001
        """)
    a(f"""
    s_lshl_b32 s39, s39, 21
    s_sub_u32 s39, {OPT['ns'] << 24}, s39
    s_mul_i32 s{sOI}, s2, {2 * CH * 4}
    s_mul_i32 s{sOA}, s2, {2 * CH * 2}
    """)

    vmq = []

    def vm_wait(tag):
        last = max(i for i, x in enumerate(vmq) if x == tag)
        a(f"s_waitcnt vmcnt({len(vmq) - 1 - last})")

    pend = []

    def slot(n=1):
        for _ in range(n):
            if pend:
                pend.pop(0)()

    def issue_round(X, r):
        vmq.extend([(X, r)] * 3)
        if r < 6:
            a(f"""
            buffer_load_dwordx4 {vr(O[X] + 4 * r, 4)}, v{vT16}, {sr(S_OUT, 4)}, s{sOI} offen{nt}
            buffer_load_dwordx4 {vr(I[X] + 4 * r, 4)}, v{vT16}, {sr(S_IN, 4)}, s{sOI} offen{nt}
            buffer_load_dwordx2 {vr(G + 2 * r, 2)}, v{vT8}, {sr(S_ANG, 4)}, s{sOA} offen{nt}
            s_add_u32 s{sOI}, s{sOI}, 16384
            s_add_u32 s{sOA}, s{sOA}, 8192
            """)
        else:
            a(f"""
            v_cmp_gt_u32 vcc, {CH - 6 * 4096}, v0
            v_lshlrev_b32 v{tmp[8]}, 2, v0
            v_lshlrev_b32 v{tmp[9]}, 1, v0
            v_cndmask_b32 v{tmp[8]}, v{vX}, v{tmp[8]}, vcc
            v_cndmask_b32 v{tmp[9]}, v{vX}, v{tmp[9]}, vcc
            buffer_load_dword v{O6[X]}, v{tmp[8]}, {sr(S_OUT, 4)}, s{sOI} offen{nt}
            buffer_load_dword v{I6[X]}, v{tmp[8]}, {sr(S_IN, 4)}, s{sOI} offen{nt}
            buffer_load_ushort v{G6}, v{tmp[9]}, {sr(S_ANG, 4)}, s{sOA} offen{nt}
            s_add_u32 s{sOI}, s{sOI}, {(CH - 6 * 4096) * 4}
            s_add_u32 s{sOA}, s{sOA}, {(CH - 6 * 4096) * 2}
            """)

    def pack(recs):
        n = len(recs)
        tb = tmp[0:n]
        tc = tmp[4:4 + n]
        for k, (o, i, g, hi) in enumerate(recs):
            a(f"v_mul_hi_u32_u24 v{tb[k]}, s{sMAG}, v{o}")
            a(f"v_mul_u32_u24 v{tc[k]}, {(OPT['ns'] << 24) // E}, v{i}")
        if OPT["slide"]:
            for k in range(n):
                a(f"v_add_u32 v{tc[k]}, s39, v{tc[k]}")
            if OPT["ns"] != 8:
                for k in range(n):
                    a(f"v_subrev_u32 v{tmp[8]}, {OPT['ns'] << 24}, v{tc[k]}")
                    a(f"v_min_u32 v{tc[k]}, v{tc[k]}, v{tmp[8]}")
        for k, (o, i, g, hi) in enumerate(recs):
            a(f"v_mad_i32_i24 v{o}, v{tb[k]}, s{sNEG}, v{o}")
            if OPT["stag"] == 3:
                u = tmp[8 + (k & 1)]
                a(f"v_lshrrev_b32 v{u}, 5, v{tb[k]}")
                a(f"v_lshrrev_b32 v{tc[k]}, 24, v{tc[k]}")
                a(f"v_lshlrev_b32 v{u}, 2, v{u}")
                a(f"v_lshlrev_b32 v{tb[k]}, 2, v{tb[k]}")
                a(f"v_bfe_u32 v{u}, s46, v{u}, 4")
                a(f"v_sub_u32 v{tc[k]}, v{tc[k]}, v{u}")
                a(f"v_add_u32 v{u}, {OPT['ns']}, v{tc[k]}")
                a(f"v_min_u32 v{tc[k]}, v{tc[k]}, v{u}")
                continue
            a(f"v_lshrrev_b32 v{tc[k]}, 14, v{tc[k]}")
            if OPT["stag"]:
                u = tmp[8 + (k & 1)]
                a(f"v_lshrrev_b32 v{u}, 5, v{tb[k]}")
                a(f"v_bfe_i32 v{u}, s46, v{u}, 1")
                a(f"v_lshl_add_u32 v{tc[k]}, v{u}, 10, v{tc[k]}")
                if OPT["ns"] != 8:
                    a(f"v_add_u32 v{u}, {OPT['ns'] << 10}, v{tc[k]}")
                    a(f"v_min_u32 v{tc[k]}, v{tc[k]}, v{u}")
            a(f"v_lshlrev_b32 v{tb[k]}, 2, v{tb[k]}")
        for k, (o, i, g, hi) in enumerate(recs):
            if OPT["stag"] == 3:
                a(f"v_lshl_or_b32 v{tc[k]}, v{tc[k]}, 10, v{tb[k]}")
            else:
                a(f"v_and_or_b32 v{tc[k]}, v{tc[k]}, s{sMASK}, v{tb[k]}")
            a(f"v_lshl_or_b32 v{i}, v{i}, 12, v{o}")
        for k, (o, i, g, hi) in enumerate(recs):
            a(f"ds_add_u32 v{tc[k]}, v{vSIX} offset:{P1_CNT}")
            if hi:
                a(f"v_and_or_b32 v{o}, v{g}, s{sHI}, v{tc[k]}")
            else:
                a(f"v_lshl_or_b32 v{o}, v{g}, 16, v{tc[k]}")

    def round_recs(X, r):
        if r < 6:
            return [(O[X] + 4 * r + k, I[X] + 4 * r + k, G + 2 * r + (k >> 1), k & 1) for k in range(4)]
        return [(O6[X], I6[X], G6, 0)]

    def tail_begin(lbl):
        a(f"""
        v_cmp_gt_u32 vcc, {CH - 6 * 4096}, v0
        s_and_saveexec_b64 {sr(sEX, 2)}, vcc
        s_cbranch_execz {lbl}
        """)

    def tail_end(lbl):
        a(f"{lbl}:")
        a(f"s_mov_b64 exec, {sr(sEX, 2)}")

    def wave_scan(v):
        a(f"""
        s_nop 1
        v_add_u32_dpp v{v}, v{v}, v{v} row_shr:1 row_mask:0xf bank_mask:0xf bound_ctrl:0
        s_nop 1
        v_add_u32_dpp v{v}, v{v}, v{v} row_shr:2 row_mask:0xf bank_mask:0xf bound_ctrl:0
        s_nop 1
        v_add_u32_dpp v{v}, v{v}, v{v} row_shr:4 row_mask:0xf bank_mask:0xf bound_ctrl:0
        s_nop 1
        v_add_u32_dpp v{v}, v{v}, v{v} row_shr:8 row_mask:0xf bank_mask:0xf bound_ctrl:0
        """)

    def sort_chunk(X):
        c01, s, inc, p, q = tmp[0], tmp[2], tmp[3], tmp[4], tmp[5]
        st1()
        a.c("exclusive scan of the 2048 counters (units: bytes, 6 per record)")
        a(f"""
        s_waitcnt lgkmcnt(0)
        s_barrier
        """)
        if X == 'A' or OPT['stpos'] < 3:
            slot()
        a(f"""
        ds_read_b64 {vr(c01, 2)}, v{vT8} offset:{P1_CNT}
        s_waitcnt lgkmcnt(0)
        v_add_u32 v{s}, v{c01}, v{c01 + 1}
        v_mov_b32 v{inc}, v{s}
        """)
        wave_scan(inc)
        a(f"""
        s_nop 1
        v_add_u32_dpp v{inc}, v{inc}, v{inc} row_bcast:15 row_mask:0xa bank_mask:0xf
        s_nop 1
        v_add_u32_dpp v{inc}, v{inc}, v{inc} row_bcast:31 row_mask:0xc bank_mask:0xf
        s_lshl_b32 s{sT1}, s{sW}, 2
        v_mov_b32 v{q}, s{sT1}
        v_readlane_b32 s{sT0}, v{inc}, 63
        s_nop 1
        v_mov_b32 v{p}, s{sT0}
        ds_write_b32 v{q}, v{p} offset:{P1_PART}
        v_and_b32 v{q}, 15, v0
        v_lshlrev_b32 v{p}, 2, v{q}
        s_waitcnt lgkmcnt(0)
        s_barrier
        """)
        if X == 'A' or OPT['stpos'] < 3:
            slot()
        a(f"""
        v_cmp_gt_u32 vcc, s{sW}, v{q}
        ds_read_b32 v{p}, v{p} offset:{P1_PART}
        s_waitcnt lgkmcnt(0)
        v_cndmask_b32 v{p}, 0, v{p}, vcc
        """)
        wave_scan(p)
        a(f"""
        v_sub_u32 v{inc}, v{inc}, v{s}
        v_readlane_b32 s{sT0}, v{p}, 15
        s_add_u32 s{sT0}, s{sT0}, {P1_REC}
        s_nop 0
        v_add_u32 v{q + 1}, s{sT0}, v{inc}
        v_add_u32 v{q + 2}, v{q + 1}, v{c01}
        ds_write_b64 v{vT8}, {vr(q + 1, 2)} offset:{P1_CNT}
        s_waitcnt lgkmcnt(0)
        s_barrier
        """)
        assert (q + 1) % 2 == 0
        st1()
        a.c("rank and scatter into the LDS image")
        m = [tmp[0:4], tmp[4:8]]
        u1, u2 = tmp[8], tmp[9]

        def rank_issue(recs, ms):
            for k, (o, i, g, hi) in enumerate(recs):
                a(f"v_and_b32 v{ms[k]}, 0xffff, v{o}")
            for k, (o, i, g, hi) in enumerate(recs):
                a(f"ds_add_rtn_u32 v{ms[k]}, v{ms[k]}, v{vSIX} offset:{P1_CNT}")

        def scatter(recs, ms):
            for k, (o, i, g, hi) in enumerate(recs):
                a(f"""
                v_and_b32 v{u1}, 2, v{ms[k]}
                v_add_u32 v{u2}, v{ms[k]}, v{u1}
                v_mad_i32_i24 v{ms[k]}, v{u1}, -2, v{ms[k]}
                ds_write_b32 v{u2}, v{i}
                ds_write_b16_d16_hi v{ms[k]}, v{o} offset:4
                """)

        rank_issue(round_recs(X, 0), m[0])
        for r in range(6):
            if r < 5:
                rank_issue(round_recs(X, r + 1), m[(r + 1) & 1])
                a("s_waitcnt lgkmcnt(4)")
            else:
                a("s_waitcnt lgkmcnt(0)")
            scatter(round_recs(X, r), m[r & 1])
            slot((2 if OPT["stpos"] < 4 or r >= 2 else 0) if X == "B" else OPT["aslot"])
        tail_begin(f"P1_sc6{X}")
        rank_issue(round_recs(X, 6), m[0])
        a("s_waitcnt lgkmcnt(0)")
        scatter(round_recs(X, 6), m[0])
        tail_end(f"P1_sc6{X}")
        slot(99)
        a("""
        s_waitcnt lgkmcnt(0)
        s_barrier
        """)
        st1()
        a.c("read the image back (into the dead record registers) and the counters (now segment ends)")
        dst = [O[X] + 4 * r for r in range(6)] + [I[X] + 4 * r for r in range(4)]
        ra, rb = tmp[8], tmp[9]
        a(f"v_add_u32 v{ra}, 0x10000, v{vT16}")
        a(f"v_add_u32 v{rb}, 0x20000, v{vT16}")
        for r in range(9):
            base = [vT16, ra, rb][r >> 2]
            a(f"ds_read_b128 {vr(dst[r], 4)}, v{base} offset:{P1_REC + (r & 3) * 16384}")
        nlast = CH * 6 // 16 - 9 * 1024
        a(f"""
        v_cmp_gt_u32 vcc, {nlast}, v0
        s_and_saveexec_b64 {sr(sEX, 2)}, vcc
        ds_read_b128 {vr(dst[9], 4)}, v{rb} offset:{P1_REC + 16384}
        s_mov_b64 exec, {sr(sEX, 2)}
        v_cndmask_b32 v{rb}, v{vX}, v{vT16}, vcc
        v_and_b32 v{ra}, 1, v0
        v_lshlrev_b32 v{ra}, 12, v{ra}
        v_lshrrev_b32 v{tmp[0]}, 1, v0
        v_lshl_add_u32 v{ra}, v{tmp[0]}, 2, v{ra}
        s_cmp_lt_u32 s{sW}, 8
        s_cbranch_scc0 P1_notab{X}
        """)
        for qq in range(4):
            if qq:
                a(f"v_add_u32 v{ra}, 1024, v{ra}")
            a(f"ds_read2_b32 {vr(tmp[2 * qq], 2)}, v{ra} offset0:{P1_CNT // 4 - 1} offset1:{P1_CNT // 4}")
        a("s_waitcnt lgkmcnt(0)")
        for qq in range(4):
            s_, e_ = tmp[2 * qq], tmp[2 * qq + 1]
            a(f"""
            v_sub_u32 v{e_}, v{e_}, v{s_}
            v_subrev_u32 v{s_}, {P1_REC}, v{s_}
            v_mul_hi_u32 v{e_}, v{e_}, s{sDIV6}
            v_mul_hi_u32 v{s_}, v{s_}, s{sDIV6}
            v_lshl_or_b32 v{tmp[qq]}, v{e_}, 16, v{s_}
            """)
        a(f"""
        v_lshrrev_b32 v{tmp[4]}, 1, v0
        v_and_b32 v{tmp[5]}, 1, v0
        v_lshlrev_b32 v{tmp[4]}, {5 if OPT["tabc"] else 14}, v{tmp[4]}
        v_lshl_or_b32 v{tmp[4]}, v{tmp[5]}, 4, v{tmp[4]}
        s_branch P1_tab{X}
        P1_notab{X}:
        v_mov_b32 v{tmp[4]}, v{vX}
        P1_tab{X}:
        s_lshl_b32 s{sT0}, s{sCH}, {13 if OPT['tabc'] else 5}
        s_mul_i32 s{sT1}, s{sCH}, {CHB}
        buffer_store_dwordx4 {vr(tmp[0], 4)}, v{tmp[4]}, {sr(S_TAB, 4)}, s{sT0} offen
        s_waitcnt lgkmcnt(0)
        """)
        vmq.append("st")
        a(f"s_add_u32 s{sT0}, s{sT1}, {9 * 16384}")
        a(f"buffer_store_dwordx4 {vr(dst[9], 4)}, v{rb}, {sr(S_REC, 4)}, s{sT0} offen{STMS[X]}")
        vmq.append("st")
        a(f"s_mov_b32 s47, s{sT1}")

        def mk(r):
            def f():
                a(f"buffer_store_dwordx4 {vr(dst[r], 4)}, v{vT16}, {sr(S_REC, 4)}, s47 offen{STMS[X]}")
                a(f"s_add_u32 s47, s47, 16384")
                vmq.append("st")
            return f
        pend.extend(mk(r) for r in range(9))
        if X == "B" or OPT["stpos"] == 0:
            slot(99)
        st1()

    st1()
    a(f"v_mov_b32 v{vX}, 0x7fffff00")
    a.c("one wave also prepares the matrix operands of the second kernel")
    W1, W2, W3, W4 = 62, 78, 94, 102
    lane, f2, e0, e1, x0, x1, x2 = 4, 5, 6, 7, 12, 13, 124
    OPR = 8
    a(f"""
    s_lshl_b32 s{sT0}, s2, 4
    s_add_u32 s68, s{sT0}, s{sW}
    s_cmp_eq_u32 s68, 15
    s_cbranch_scc0 P1_now
    s_load_dwordx4 s[72:75], s[0:1], 56
    s_load_dwordx4 s[76:79], s[0:1], 72
    v_and_b32 v{lane}, 63, v0
    v_and_b32 v{e0}, 3, v0
    v_bfe_u32 v{e1}, v0, 2, 1
    v_lshl_add_u32 v{e0}, v{e1}, 3, v{e0}
    v_bfe_u32 v{e1}, v0, 3, 1
    v_lshl_add_u32 v{e0}, v{e1}, 2, v{e0}
    v_lshlrev_b32 v{f2}, 1, v{e0}
    v_lshrrev_b32 v{e1}, 5, v{lane}
    v_lshl_add_u32 v{e1}, v{e1}, 8, v{f2}
    s_waitcnt lgkmcnt(0)
    """)
    for (W, n, p, nbytes, va) in ((W1, 16, 76, 512, f2), (W2, 16, 74, 512, f2), (W3, 8, 78, 512, e1), (W4, 8, 72, 256, f2)):
        srd(a, 80, p, nbytes)
        for j in range(n):
            a(f"buffer_load_ushort v{W + j}, v{va}, {sr(80, 4)}, 0 offen offset:{32 * j}")
    a("P1_now:")
    for r in range(7):
        issue_round("A", r)
    a(f"""
    s_cmp_eq_u32 s68, 15
    s_cbranch_scc0 P1_noop
    s_waitcnt vmcnt(21)
    """)

    def scale_exp(Wf, n):
        a(f"v_max3_f32 v{e0}, abs(v{Wf}), abs(v{Wf + 1}), abs(v{Wf + 2})")
        for j in range(3, n - 1, 2):
            a(f"v_max3_f32 v{e0}, v{e0}, abs(v{Wf + j}), abs(v{Wf + j + 1})")
        a(f"""
        v_max_f32 v{e0}, v{e0}, abs(v{Wf + n - 1})
        v_bfe_u32 v{e0}, v{e0}, 23, 8
        v_cmp_eq_u32 vcc, 0, v{e0}
        v_sub_u32 v{e0}, 141, v{e0}
        s_nop 0
        v_cndmask_b32 v{e0}, v{e0}, 0, vcc
        v_sub_u32 v{e1}, 0, v{e0}
        """)

    def put(k, cvt, srcs, mask):
        for j in range(4):
            a(f"{cvt} v{OPR + j}, v{srcs[2 * j]}, v{srcs[2 * j + 1]}")
        for j in range(4):
            a(f"v_cndmask_b32 v{OPR + j}, 0, v{OPR + j}, {sr(mask, 2)}")
        a(f"""
        s_mov_b32 s{sT0}, {TAB_BYTES + 1024 * k}
        buffer_store_dwordx4 {vr(OPR, 4)}, v{x2}, {sr(S_TAB, 4)}, s{sT0} offen
        s_nop 1
        """)

    for j in range(48):
        a(f"v_lshlrev_b32 v{W1 + j}, 16, v{W1 + j}")
    mDIAG, mLO, mHI, mRB = 72, 74, 76, 78
    a(f"""
    v_lshrrev_b32 v{x0}, 1, v{lane}
    v_xor_b32 v{x0}, v{x0}, v{lane}
    v_and_b32 v{x0}, 16, v{x0}
    v_cmp_eq_u32 {sr(mDIAG, 2)}, 0, v{x0}
    v_and_b32 v{x0}, 16, v{lane}
    v_cmp_eq_u32 {sr(mLO, 2)}, 0, v{x0}
    v_cmp_eq_u32 {sr(mHI, 2)}, 16, v{x0}
    v_and_b32 v{x0}, 48, v{lane}
    v_cmp_eq_u32 {sr(mRB, 2)}, 16, v{x0}
    v_lshlrev_b32 v{x2}, 4, v{lane}
    """)
    scale_exp(W2, 16)
    for j in range(16):
        a(f"v_ldexp_f32 v{W2 + j}, v{W2 + j}, v{e0}")
        a(f"v_ldexp_f32 v{W1 + j}, v{W1 + j}, v{e1}")
    scale_exp(W4, 8)
    for j in range(8):
        a(f"v_ldexp_f32 v{W4 + j}, v{W4 + j}, v{e0}")
        a(f"v_ldexp_f32 v{W3 + j}, v{W3 + j}, v{e1}")
    bf, hf = "v_cvt_pk_bf16_f32", "v_cvt_pk_f16_f32"
    a.c("block diagonal: rows < 16 act on lanes < 32, rows >= 16 on lanes >= 32")
    put(0, bf, [W1 + j for j in range(8)], mDIAG)
    put(1, bf, [W1 + 8 + j for j in range(8)], mDIAG)
    put(2, hf, [W2 + 2 * j for j in range(8)], mDIAG)
    put(3, hf, [W2 + 2 * j + 1 for j in range(8)], mDIAG)
    put(6, bf, [W3 + j for j in range(8)], mLO)
    put(7, hf, [W4 + j for j in range(8)], mRB)
    a.c("identity: row i has a one at k = f(i & 15)")
    a(f"""
    v_lshrrev_b32 v{e0}, 1, v{f2}
    v_lshrrev_b32 v{e1}, 5, v{lane}
    v_lshlrev_b32 v{e1}, 3, v{e1}
    v_sub_u32 v{e0}, v{e0}, v{e1}
    """)
    for j in range(8):
        a(f"""
        v_cmp_eq_u32 vcc, {j}, v{e0}
        s_nop 1
        v_cndmask_b32 v{W1 + j}, 0, 1.0, vcc
        """)
    put(4, bf, [W1 + j for j in range(8)], mLO)
    put(5, bf, [W1 + j for j in range(8)], mHI)
    a("P1_noop:")
    a("s_barrier")
    order = [6, 0, 1, 2, 3, 4, 5]
    nb = 0
    for r in range(7):
        vm_wait(("A", r))
        if r == 6:
            tail_begin("P1_pk6A")
        pack(round_recs("A", r))
        if r == 6:
            tail_end("P1_pk6A")
        if r < 6 and r >= 6 - OPT["early"]:
            issue_round("B", nb)
            nb += 1
    for r in range(nb, 6):
        pend.append(lambda r=r: issue_round("B", r))
    a(f"s_lshl_b32 s{sCH}, s2, 1")
    sort_chunk("A")
    a(f"""
    s_barrier
    v_mov_b32 v{tmp[8]}, 0
    v_mov_b32 v{tmp[9]}, 0
    ds_write_b64 v{vT8}, {vr(tmp[8], 2)} offset:{P1_CNT}
    s_add_u32 s{sCH}, s{sCH}, 1
    s_waitcnt lgkmcnt(0)
    """)
    issue_round("B", 6)
    a("s_barrier")
    for r in range(7):
        vm_wait(("B", r))
        if r == 6:
            tail_begin("P1_pk6B")
        pack(round_recs("B", r))
        if r == 6:
            tail_end("P1_pk6B")
        if OPT["stpos"] == 1:
            slot()
    def prefetch_m():
        a.c("touch this workgroup's share of m (one load per 128-byte line) so that the second kernel finds it on chip")
        srd(a, 80, 70, E * 32)
        a(f"""
        v_cmp_gt_u32 vcc, {OPT["pfp1"] or 782}, v0
        v_lshlrev_b32 v{G + 1}, 7, v0
        s_mul_i32 s{sT0}, s2, {OPT["pfp1"] * 128 or 100000}
        s_and_b32 s{sT0}, s{sT0}, 0xffffff80
        v_cndmask_b32 v{G + 1}, v{vX}, v{G + 1}, vcc
        buffer_load_dword v{G}, v{G + 1}, {sr(80, 4)}, s{sT0} offen
        """)
    if OPT["pfm"] or OPT["pfp1"]:
        prefetch_m()
    sort_chunk("B")
    if OPT["stamp1"]:
        a("s_waitcnt vmcnt(0)")
        st1()
        a(f"""
        s_lshl_b32 s3, s2, 4
        s_add_u32 s3, s3, s{sW}
        s_lshl_b32 s3, s3, 6
        s_add_u32 s44, s44, {17 << 20}
        s_addc_u32 s45, s45, 0
        """)
        srd(a, S_TAB, 44, 1 << 20)
        a("v_mov_b32 v4, 0")
        for i in range(stn[0]):
            a(f"v_mov_b32 v5, s{48 + 2 * i}")
            a(f"buffer_store_dword v5, v4, {sr(S_TAB, 4)}, s3 offen offset:{4 * i}")
    a("P1_done:")
    a("s_endpgm")
    kernel_desc(a, name, 128, 88)


L_LOCK = 0
L_RBF = 800
L_ACC0 = L_RBF + EB * 16
L_ACC1 = L_ACC0 + EB * 16
L_RING = L_ACC1 + EB * 16
RING_CAP = 101
RING_STRIDE = RING_CAP * 8
P2_LDS = 163840
assert L_RING + 16 * RING_STRIDE <= P2_LDS


def gen_main(a, name):
    ntr = " nt" if OPT["nt_rec"] else ""
    nto = ["", " sc1", " nt", " sc0 sc1", " sc1 nt"][OPT["outm"]]
    S_REC, S_M, S_TMP, S_OUT = 8, 12, 16, 20
    sB, sW = 24, 25
    sCNT, sTOP = 26, 27
    sM = [28, 30]
    sN, sT0, sT1, sT2 = 32, 33, 34, 35
    sACQ, sFAIL = 36, 38
    sM0, sM1 = 40, 42
    sRET, sRET2 = 44, 46
    sLONG = [48, 50]
    sEX = 52
    sCO = 54
    sCOB = [55, 56]
    sK, sJ, sPH = 57, 58, 59
    sP = 60
    sRB, sHI, sG, sKF0, sKF1, sN0 = 76, 77, 78, 79, 80, 81
    sCEN = 84
    sEVEN = 92
    sCAP = 94
    vLANE = 1
    A1a, A1b, A2a, A2b, A3a, A3b = 2, 6, 10, 14, 18, 22
    D1, D2 = 26, 42
    GP, GQ = [58, 66], [62, 70]
    TF = 74
    S0, S1 = 78, 82
    AX, AY = S0, S1
    WA = [86, 88]
    O = [90, 91]
    C = [92, 93]
    TT = 94
    RB = [98, 102]
    RD = [101, 105]
    RL = [106, 107]
    RA = [108, 109]
    vBP, vCB, vL2, vL8, vH16, vOOB, vE = range(110, 117)
    t = list(range(117, 128)) + [118]
    vDUM = GP[1]
    vPF = 0

    kernel_head(a, name)
    a(f"""
    s_cmp_ge_u32 s2, {NB}
    s_cbranch_scc1 P2_done
    {"s_memrealtime s[96:97]" if OPT["stamp2"] else ""}
    s_load_dwordx2 {sr(sP, 2)}, s[0:1], 0
    s_load_dwordx2 {sr(sP + 2, 2)}, s[0:1], 24
    s_load_dwordx4 {sr(sP + 4, 4)}, s[0:1], 40
    s_load_dwordx2 s[4:5], s[0:1], 88
    s_load_dwordx2 s[6:7], s[0:1], 104
    s_and_b32 s{sB}, s2, 7
    s_lshl_b32 s{sB}, s{sB}, 5
    s_lshr_b32 s{sT0}, s2, 3
    s_add_u32 s{sB}, s{sB}, s{sT0}
    v_lshrrev_b32 v{t[0]}, 6, v0
    v_and_b32 v{vLANE}, 63, v0
    s_mov_b32 s{sHI}, 0xffff0000
    v_readfirstlane_b32 s{sW}, v{t[0]}
    v_mov_b32 v{vOOB}, 0x7fffff00
    s_mov_b32 s{sEVEN}, 0x55555555
    s_mov_b32 s{sEVEN + 1}, 0x55555555
    s_waitcnt lgkmcnt(0)
    """)
    pM, pDIST, pCEN, pFREQ, pWRBF, pWSBF, pWDN, pWUP = [sP + 2 * k for k in range(8)]
    a(f"""
    s_load_dwordx4 {sr(sCEN, 4)}, {sr(pCEN, 2)}, 0
    s_load_dword s{sT2}, {sr(pFREQ, 2)}, 0
    """)
    sPM, sPFO, sPFD = 100, 99, 82
    a(f"s_mov_b64 {sr(sPM, 2)}, {sr(pM, 2)}")

    def spf():
        return f"""
        s_load_dword s{sPFD}, {sr(sPM, 2)}, s{sPFO}
        s_add_u32 s{sPFO}, s{sPFO}, {4096 * 128}
        s_min_u32 s{sPFO}, s{sPFO}, {E * 32 - 4}
        """
    srd(a, S_REC, 6, REC_BYTES)
    srd(a, S_M, pM, E * 32)
    srd(a, S_OUT, 4, E * 32)
    a(f"s_add_u32 s6, s6, {TAB_OFF}")
    a("s_addc_u32 s7, s7, 0")
    S_TAB = 68
    srd(a, S_TAB, 6, TAB_BYTES + 8192)
    a.c("this wave's 32 x 8 table entries: lane = chunk (l & 31), slices 4*(l >> 5) .. +3")
    a(f"""
    v_and_b32 v{t[0]}, 31, v{vLANE}
    v_lshrrev_b32 v{t[1]}, 5, v{vLANE}
    v_lshlrev_b32 v{vL8}, 3, v{vLANE}
    v_lshlrev_b32 v{t[2]}, 4, v{t[1]}
    v_lshl_add_u32 v{t[2]}, v{t[0]}, {13 if OPT["tabc"] else 5}, v{t[2]}
    s_lshl_b32 s{sT0}, s{sB}, {5 if OPT["tabc"] else 14}
    s_lshl_b32 s{sT1}, s{sW}, {18 if OPT["tabc"] else 10}
    s_add_u32 s{sT0}, s{sT0}, s{sT1}
    v_lshrrev_b32 v{t[3]}, 4, v{vLANE}
    v_lshlrev_b32 v{t[3]}, {13 if OPT["tabc"] else 5}, v{t[3]}
    s_add_u32 s{sT1}, s{sT0}, {4 << (13 if OPT["tabc"] else 5)}
    buffer_load_dword v{vE}, v{t[3]}, {sr(S_TAB, 4)}, s{sT0} offen
    buffer_load_dword v{C[0]}, v{t[3]}, {sr(S_TAB, 4)}, s{sT1} offen
    buffer_load_dwordx4 {vr(TT, 4)}, v{t[2]}, {sr(S_TAB, 4)}, s{sT0} offen
    """)
    srd(a, S_TMP, pDIST, E * 2)

    a.c("dist of the bucket's edges t, t+1024, t+2048, t+3072")
    a(f"""
    s_mul_i32 s{sT0}, s{sB}, {EB * 2}
    v_lshlrev_b32 v{t[2]}, 1, v0
    buffer_load_ushort v{t[4]}, v{t[2]}, {sr(S_TMP, 4)}, s{sT0} offen
    buffer_load_ushort v{t[5]}, v{t[2]}, {sr(S_TMP, 4)}, s{sT0} offen offset:2048
    s_add_u32 s{sT0}, s{sT0}, 4096
    buffer_load_ushort v{t[6]}, v{t[2]}, {sr(S_TMP, 4)}, s{sT0} offen
    buffer_load_ushort v{t[7]}, v{t[2]}, {sr(S_TMP, 4)}, s{sT0} offen offset:2048
    """)
    a.c("matrix operands prepared by the first kernel")
    a(f"v_lshlrev_b32 v{t[3]}, 4, v{vLANE}")
    for k in range(6):
        a(f"s_mov_b32 s{sT0}, {TAB_BYTES + 1024 * k}")
        a(f"buffer_load_dwordx4 {vr(A1a + 4 * k, 4)}, v{t[3]}, {sr(S_TAB, 4)}, s{sT0} offen")
    npf = 0
    if OPT["pf0"]:
        a.c("touch a share of the first slice of m, one load per 128-byte line")
        lines = (E // OPT["ns"] * 32 // 128 + 31) // 32
        a(f"""
        v_cmp_gt_u32 vcc, {min(lines, 1024)}, v0
        v_lshlrev_b32 v{t[8]}, 7, v0
        s_lshr_b32 s{sT0}, s2, 3
        s_mul_i32 s{sT0}, s{sT0}, {lines * 128}
        v_cndmask_b32 v{t[8]}, v{vOOB}, v{t[8]}, vcc
        buffer_load_dword v{vDUM}, v{t[8]}, {sr(S_M, 4)}, s{sT0} offen
        """)
        npf = 1
    a.c("zero the locks and the accumulators")
    D = D1
    a(f"""
    v_mov_b32 v{D}, 0
    v_mov_b32 v{D + 1}, 0
    v_mov_b32 v{D + 2}, 0
    v_mov_b32 v{D + 3}, 0
    v_lshlrev_b32 v{t[2]}, 4, v0
    v_add_u32 v{t[9]}, {L_ACC0}, v{t[2]}
    """)
    for r in range(4):
        a(f"ds_write_b128 v{t[9]}, {vr(D, 4)} offset:{r * 16384}")
    a(f"v_add_u32 v{t[9]}, 0x10000, v{t[9]}")
    for r in range(2):
        a(f"ds_write_b128 v{t[9]}, {vr(D, 4)} offset:{r * 16384}")
    a(f"""
    v_cmp_gt_u32 vcc, {2 * EB - 6 * 1024}, v0
    s_and_saveexec_b64 {sr(sEX, 2)}, vcc
    ds_write_b128 v{t[9]}, {vr(D, 4)} offset:{2 * 16384}
    s_mov_b64 exec, {sr(sEX, 2)}
    v_cmp_gt_u32 vcc, {L_RBF // 16}, v0
    s_and_saveexec_b64 {sr(sEX, 2)}, vcc
    ds_write_b128 v{t[2]}, {vr(D, 4)}
    s_mov_b64 exec, {sr(sEX, 2)}
    s_waitcnt lgkmcnt(0)
    """)
    if OPT["spf"]:
        a.c("scalar loads walk over m, one per 128-byte line chip-wide, ahead of the gathers")
        a(f"""
        s_lshl_b32 s{sPFO}, s2, 4
        s_add_u32 s{sPFO}, s{sPFO}, s{sW}
        s_lshl_b32 s{sPFO}, s{sPFO}, 7
        """)
        for k in range(OPT["spf"]):
            a(spf())
    a.c("centers and frequencies to f32")
    for k in (3, 2, 1, 0):
        a(f"s_and_b32 s{sCEN + 2 * k + 1}, s{sCEN + k}, 0xffff0000")
        a(f"s_lshl_b32 s{sCEN + 2 * k}, s{sCEN + k}, 16")
    a(f"""
    s_lshl_b32 s{sT0}, s{sT2}, 16
    s_and_b32 s{sT1}, s{sT2}, 0xffff0000
    v_mov_b32 v{t[8]}, 0.15915494
    v_mul_f32 v{t[9]}, s{sT0}, v{t[8]}
    v_mul_f32 v{t[8]}, s{sT1}, v{t[8]}
    v_and_b32 v{vH16}, 1, v{vLANE}
    v_lshlrev_b32 v{vH16}, 4, v{vH16}
    v_readfirstlane_b32 s{sKF0}, v{t[9]}
    v_readfirstlane_b32 s{sKF1}, v{t[8]}
    """)
    a.c("record-stream lane constants")
    a(f"""
    v_and_b32 v{t[8]}, 15, v{vLANE}
    v_lshrrev_b32 v{t[9]}, 4, v{vLANE}
    v_lshlrev_b32 v{vL2}, 1, v{t[8]}
    v_lshlrev_b32 v{vBP}, 2, v{t[9]}
    v_mul_u32_u24 v{t[9]}, {CHB}, v{t[9]}
    v_mad_u32_u24 v{vCB}, v{t[8]}, 12, v{t[9]}
    s_mul_i32 s{sCO}, s{sW}, {32 * CHB}
    s_mul_i32 s{sRB}, s{sW}, {RING_STRIDE}
    s_add_u32 s{sRB}, s{sRB}, {L_RING}
    s_mov_b32 s{sTOP}, s{sRB}
    s_mov_b32 s{sCNT}, 0
    s_mov_b64 {sr(sM[0], 2)}, 0
    s_mov_b64 {sr(sM[1], 2)}, 0
    s_mov_b32 s{sJ}, 0
    s_mov_b32 s{sPH}, 0
    s_mov_b32 s{sG}, 100000
    s_mov_b32 s{sCAP}, {RING_CAP}
    s_and_b32 s3, s2, {3 if OPT["stag"] == 1 else (6 if OPT["stag"] == 2 else 0)}
    s_lshl_b32 s3, s3, {1 if OPT["stag"] == 1 else 0}
    s_mov_b32 s83, {-16 * OPT["lag"] + OPT["lagoff"]}
    s_mov_b32 s95, 0
    """)

    uid = [0]
    kmul = (OPT["ns"] << 24) // E
    SLB = ((1 << 24) // kmul * 32) & ~127
    SHARE = (SLB // 128 + 64 * OPT['pfx']) // (64 * OPT['pfx'])

    PER = (SHARE + OPT["pfw"] - 1) // OPT["pfw"]

    def pf_share(sS, tmpv, vPF=vPF):
        return f"""
        s_mul_i32 s{sT0}, s{sS}, {SLB}
        s_mul_i32 s{sT1}, s82, {SHARE * 128}
        s_add_u32 s{sT0}, s{sT0}, s{sT1}
        s_mul_i32 s{sT1}, s{sW}, {PER}
        v_add_u32 v{tmpv}, s{sT1}, v{vLANE}
        v_cmp_gt_u32 vcc, {PER}, v{vLANE}
        v_lshlrev_b32 v{tmpv}, 7, v{tmpv}
        s_nop 0
        v_cndmask_b32 v{tmpv}, v{vOOB}, v{tmpv}, vcc
        buffer_load_dword v{vPF}, v{tmpv}, {sr(S_M, 4)}, s{sT0} offen
        """

    def prep(buf, mid=None, pf=True):
        uid[0] += 1
        u = uid[0]
        a(f"""
        v_lshrrev_b32 v{RL[buf]}, 16, v{vE}
        v_and_b32 v{t[0]}, 1, v{vE}
        v_and_b32 v{t[1]}, 0xfffe, v{vE}
        v_sub_u32 v{RD[buf]}, v{vL2}, v{t[0]}
        v_mad_u32_u24 v{RA[buf]}, v{t[1]}, 6, v{vCB}
        v_cmp_lt_i32 vcc, v{RD[buf]}, v{RL[buf]}
        v_cmp_lt_u32 {sr(sLONG[buf], 2)}, 31, v{RL[buf]}
        s_mov_b32 s{sCOB[buf]}, s{sCO}
        v_cndmask_b32 v{t[1]}, v{vOOB}, v{RA[buf]}, vcc
        v_add_u32 v{vBP}, 16, v{vBP}
        s_add_u32 s{sCO}, s{sCO}, {4 * CHB}
        s_add_u32 s{sJ}, s{sJ}, 1
        s_cmp_lt_u32 s{sJ}, 8
        s_cbranch_scc0 P2_adv{u}
        P2_advr{u}:
        {f"ds_bpermute_b32 v{vE}, v{vBP}, v{TT}" if mid else ""}
        """)
        if mid:
            a(mid)
        if OPT["x_fake"]:
            a(f"buffer_load_dword v{D2}, v{vOOB}, {sr(S_REC, 4)}, s{sCOB[buf]} offen{ntr}")
            sz = E // OPT['ns']
            a(f"""
            s_add_u32 s98, s{sK}, {2 + buf}
            s_lshr_b32 s98, s98, 3
            s_min_u32 s98, s98, {OPT['ns'] - 1}
            s_mul_i32 s98, s98, {sz}
            s_mov_b32 s99, {sz}
            s_mov_b32 s97, 0x9E3779B1
            """)
            for dd in (RB[buf], RB[buf] + 2):
                a(f"""
                v_mul_lo_u32 v{D1}, v{D1}, s97
                v_add_u32 v{D1}, 0x3c6ef35f, v{D1}
                v_lshrrev_b32 v{D1 + 1}, 15, v{D1}
                v_xor_b32 v{D1}, v{D1}, v{D1 + 1}
                v_mul_hi_u32 v{dd}, v{D1}, s99
                v_add_u32 v{dd}, s98, v{dd}
                v_lshlrev_b32 v{dd}, 12, v{dd}
                """)
        else:
            a(f"buffer_load_dwordx3 {vr(RB[buf], 3)}, v{t[1]}, {sr(S_REC, 4)}, s{sCOB[buf]} offen{ntr}")
        if OPT["pfn"] and mid and pf:
            a(f"""
            s_cmp_eq_u32 s{sJ}, s99
            s_cbranch_scc1 P2_pf{u}
            P2_pfr{u}:
            """)
            cold.append(f"""
            P2_pf{u}:
            s_cmp_eq_u32 s{sPH}, s98
            s_cbranch_scc0 P2_pfr{u}
            s_add_u32 s98, s98, {OPT["pfg"]}
            """ + "".join(f"s_add_u32 s{sT2}, s{sPH}, {OPT['pfn'] + g}\n" + pf_share(sT2, t[3]) for g in range(OPT["pfg"])) + f"""
            s_branch P2_pfr{u}
            """)
        cold.append(f"""
        P2_adv{u}:
        s_mov_b32 s{sJ}, 0
        s_sub_u32 s{sCO}, s{sCO}, {32 * CHB}
        s_add_u32 s{sPH}, s{sPH}, 1
        s_cmp_eq_u32 s{sPH}, 4
        s_cselect_b32 s{sT0}, 0, 128
        v_subrev_u32 v{vBP}, s{sT0}, v{vBP}
        v_mov_b32 v{t[0]}, v{TT}
        v_mov_b32 v{TT}, v{TT + 1}
        v_mov_b32 v{TT + 1}, v{TT + 2}
        v_mov_b32 v{TT + 2}, v{TT + 3}
        v_mov_b32 v{TT + 3}, v{t[0]}
        s_cmp_lt_u32 s{sPH}, 8
        s_cbranch_scc1 P2_advr{u}
        v_mov_b32 v{TT}, 0
        s_branch P2_advr{u}
        """)

    cold = []
    a(f"s_waitcnt vmcnt({11 + npf})")
    prep(0)
    a(f"v_mov_b32 v{vE}, v{C[0]}")
    prep(1)

    def pf_prologue():
        a(f"""
        s_bfe_u32 s99, s2, {(3 << 16) | 3 if OPT["pfs"] else 0}
        s_cmp_lt_u32 s99, {4 if OPT['peel'] else 3}
        s_cselect_b32 s98, {OPT["pfg"]}, 0
        s_lshr_b32 s82, s2, 2
        s_mul_i32 s82, s82, {OPT["pfx"]}
        s_and_b32 s{sT0}, s2, 3
        s_add_u32 s82, s82, s{sT0}
        s_cmp_lt_u32 s{sT0}, {OPT["pfx"]}
        s_cselect_b32 s{sT0}, s{sW}, 99
        s_cmp_lt_u32 s{sT0}, {OPT["pfw"]}
        s_cselect_b32 s99, s99, 99
        s_cbranch_scc0 P2_nopf
        """)
        for k in range(OPT["pffirst"], OPT["pfn"] + OPT["pfg"]):
            if k == OPT["pfn"]:
                a(f"s_cmp_lt_u32 s99, {4 if OPT['peel'] else 3}\ns_cbranch_scc0 P2_nopf")
            a(f"s_mov_b32 s{sT2}, {k}")
            a(pf_share(sT2, t[3], vDUM))
        a("P2_nopf:")
    if OPT["pfn"] and OPT["pfpos"] == 0:
        pf_prologue()
    a.c("radial basis table (same roundings as the reference), stored as f16")
    a(f"s_waitcnt vmcnt({8 + npf})")
    sTEN, sL2E = sRET, sRET + 1
    a(f"s_mov_b32 s{sTEN}, 0xc1200000")
    a(f"s_mov_b32 s{sL2E}, {0x3fb8aa3b if OPT['mimic'] else 0xc166d4ca:#x}")
    def rbf_round(r):
        dd = t[4 + r]
        if r == 3:
            a(f"""
            v_cmp_gt_u32 vcc, {EB - 3 * 1024}, v0
            s_and_saveexec_b64 {sr(sEX, 2)}, vcc
            s_cbranch_execz P2_rbf3
            """)
        a(f"v_lshlrev_b32 v{dd}, 16, v{dd}")
        x = [D + k for k in range(8)]
        for k in range(8):
            a(f"v_subrev_f32 v{x[k]}, s{sCEN + k}, v{dd}")

        def rnd():
            if not OPT["mimic"]:
                return
            for k in range(0, 8, 2):
                a(f"v_cvt_pk_bf16_f32 v{D + 8 + k // 2}, v{x[k]}, v{x[k + 1]}")
            for k in range(0, 8, 2):
                a(f"v_lshlrev_b32 v{x[k]}, 16, v{D + 8 + k // 2}")
                a(f"v_and_b32 v{x[k + 1]}, s{sHI}, v{D + 8 + k // 2}")
        rnd()
        for k in range(8):
            a(f"v_mul_f32 v{x[k]}, v{x[k]}, v{x[k]}")
        rnd()
        if OPT["mimic"]:
            for k in range(8):
                a(f"v_mul_f32 v{x[k]}, s{sRET}, v{x[k]}")
        rnd()
        for k in range(8):
            a(f"v_mul_f32 v{x[k]}, s{sRET + 1}, v{x[k]}")
        for k in range(8):
            a(f"v_exp_f32 v{x[k]}, v{x[k]}")
        a("s_nop 0")
        rnd()
        for k in range(0, 8, 2):
            a(f"v_cvt_pk_f16_f32 v{D + 8 + k // 2}, v{x[k]}, v{x[k + 1]}")
        a(f"ds_write_b128 v{t[8]}, {vr(D + 8, 4)} offset:{L_RBF + r * 16384}")
        if r == 3:
            a("P2_rbf3:")
            a(f"s_mov_b64 exec, {sr(sEX, 2)}")


    def rbf_consts():
        a(f"v_lshlrev_b32 v{t[8]}, 4, v0")
    rbf_consts()
    a(f"ds_bpermute_b32 v{vE}, v{vBP}, v{TT}")
    for r in range(2 if OPT["peel"] else 4):
        rbf_round(r)
    a(f"""
    v_mov_b32 v{O[1]}, 0
    v_mov_b32 v{WA[1]}, 0
    """)
    a(f"s_mov_b32 s{sK}, 0")

    def prologue_tail():
        if OPT["peel"]:
            rbf_round(2)
            rbf_round(3)
        if OPT["pfn"] and OPT["pfpos"] == 1:
            pf_prologue()
        a("s_waitcnt lgkmcnt(0)\ns_barrier")
    if not OPT["peel"]:
        a.c("two out-of-range loads stand in for the gathers of the steps before the first one")
        for k in range(2):
            a(f"buffer_load_dword v{vDUM}, v{vOOB}, {sr(S_REC, 4)}, 0 offen")
        prologue_tail()

    la, bit, aX, aY, old = t[5], t[6], t[7], t[8], t[9]
    STAMP = OPT["stamp"]

    def st(i):
        return f"s_memtime s[{60 + 2 * i}:{61 + 2 * i}]" if STAMP else ""

    def lg(n):
        return f"s_waitcnt lgkmcnt({0 if STAMP else n})"
    if STAMP:
        for i in range(10):
            a(f"s_mov_b32 s{84 + i}, 0")
        a("s_memtime s[74:75]")

    def pop_issue(buf):
        return f"""
        s_min_u32 s{sN}, s{sCNT}, 64
        s_sub_u32 s{sCNT}, s{sCNT}, s{sN}
        s_lshl3_add_u32 s{sTOP}, s{sCNT}, s{sRB}
        v_cmp_gt_u32 {sr(sM[buf], 2)}, s{sN}, v{vLANE}
        v_add_u32 v{t[2]}, s{sTOP}, v{vL8}
        v_mov_b32 v{WA[buf]}, 0xfffff000
        v_mov_b32 v{WA[buf] + 1}, 0
        s_mov_b64 exec, {sr(sM[buf], 2)}
        ds_read_b64 {vr(WA[buf], 2)}, v{t[2]}
        s_mov_b64 exec, -1
        """

    def gathers(buf):
        W = WA[buf]
        g0 = f"v_mov_b32 v{t[2]}, v{vOOB}" if OPT["x_nogather"] else f"v_and_b32 v{t[2]}, 0xffffffe0, v{t[2]}"
        return f"""
        v_lshrrev_b32 v{t[2]}, 7, v{W}
        {g0}
        v_lshlrev_b32 v{O[buf]}, 4, v{W}
        v_and_b32 v{t[4]}, s{sHI}, v{W + 1}
        v_or_b32_dpp v{t[3]}, v{t[2]}, v{vH16} quad_perm:[0,0,2,2] row_mask:0xf bank_mask:0xf
        v_or_b32_dpp v{t[2]}, v{t[2]}, v{vH16} quad_perm:[1,1,3,3] row_mask:0xf bank_mask:0xf
        buffer_load_dwordx4 {vr(GP[buf], 4)}, v{t[3]}, {sr(S_M, 4)}, 0 offen
        buffer_load_dwordx4 {vr(GQ[buf], 4)}, v{t[2]}, {sr(S_M, 4)}, 0 offen
        """

    def coschain(buf):
        return f"""
        v_and_b32 v{O[buf]}, 0xfff0, v{O[buf]}
        v_mul_f32 v{C[buf]}, s{sKF0}, v{t[4]}
        v_mul_f32 v{t[4]}, s{sKF1}, v{t[4]}
        v_fract_f32 v{C[buf]}, v{C[buf]}
        v_fract_f32 v{t[4]}, v{t[4]}
        v_cos_f32 v{C[buf]}, v{C[buf]}
        v_cos_f32 v{t[4]}, v{t[4]}
        """

    def cospack(buf):
        return f"v_cvt_pk_f16_f32 v{C[buf]}, v{C[buf]}, v{t[4]}"

    def rbf_read(buf):
        return f"ds_read_b128 {vr(S1, 4)}, v{O[buf]} offset:{L_RBF}"

    def gate(buf):
        s = ""
        for j in range(4):
            s += f"v_pk_mul_f16 v{S0 + j}, v{S1 + j}, v{C[buf]} op_sel_hi:[1,0]\n"
        for j in range(4):
            s += f"v_pk_mul_f16 v{S1 + j}, v{S1 + j}, v{C[buf]} op_sel:[0,1]\n"
        s += f"""
        v_mfma_f32_32x32x16_f16 {vr(D2, 16)}, {vr(A2a, 4)}, {vr(S0, 4)}, 0
        s_mov_b64 vcc, {sr(sEVEN, 2)}
        v_mfma_f32_32x32x16_f16 {vr(D2, 16)}, {vr(A2b, 4)}, {vr(S1, 4)}, {vr(D2, 16)}
        """
        return s

    def fixup(buf):
        s = ""
        for j in range(4):
            s += f"v_cndmask_b32_dpp v{TF + j}, v{GQ[buf] + j}, v{GP[buf] + j}, vcc quad_perm:[0,0,2,2] row_mask:0xf bank_mask:0xf\n"
        s += "s_not_b64 vcc, vcc\n"
        for j in range(4):
            s += f"v_cndmask_b32_dpp v{GQ[buf] + j}, v{GP[buf] + j}, v{GQ[buf] + j}, vcc quad_perm:[1,1,3,3] row_mask:0xf bank_mask:0xf\n"
        return s

    def muls():
        for j in range(0, 16, 2):
            a(f"v_pk_mul_f32 {vr(D1 + j, 2)}, {vr(D1 + j, 2)}, {vr(D2 + j, 2)}")

    def core_a(buf, fill, fill2=""):
        W = WA[buf]
        a(f"""
        v_mfma_f32_32x32x16_bf16 {vr(D1, 16)}, {vr(A1a, 4)}, {vr(TF, 4)}, 0
        v_add_u32 v{aX}, {L_ACC0}, v{O[buf]}
        v_mfma_f32_32x32x16_bf16 {vr(D1, 16)}, {vr(A1b, 4)}, {vr(GQ[buf], 4)}, {vr(D1, 16)}
        v_add_u32 v{aY}, {L_ACC1}, v{O[buf]}
        v_lshrrev_b32 v{la}, 2, v{W}
        v_lshlrev_b32_e64 v{bit}, v{W}, 1
        v_permlane32_swap_b32 v{aX}, v{aY}
        v_and_b32 v{la}, 0x3fc, v{la}
        """)
        a(fill)
        if not OPT["valu_add"]:
            muls()
        else:
            a("s_nop 0")
        a(fill2)

    def core_b(buf, inline):
        uid[0] += 1
        u = uid[0]
        W, M = WA[buf], sM[buf]
        nrm = OPT["x_normw"]
        va = OPT["valu_add"]
        guard = f"s_sub_u32 s{sG}, s{sG}, 1\ns_cbranch_scc1 P2_done" if OPT["guard"] else ""
        a(f"""
        {st(5) if inline else ""}
        {"s_setprio 2" if OPT["prio"] else ""}
        s_mov_b64 exec, {sr(M, 2)}
        {f"v_mov_b32 v{old}, 0" if nrm else f"ds_or_rtn_b32 v{old}, v{la}, v{bit}"}
        s_mov_b64 exec, -1
        {"" if nrm else f"ds_read_b128 {vr(AX, 4)}, v{aX}"}
        {"" if nrm else f"ds_read_b128 {vr(AY, 4)}, v{aY}"}
        {f"ds_read_b32 v{t[10]}, v{vH16} offset:784" if inline else ""}
        {lg(2 if inline else 1)}
        {st(6) if inline else ""}
        """)
        check = f"""
        v_cmp_eq_u32 vcc, 0, v{old}
        s_and_b64 {sr(sACQ, 2)}, vcc, {sr(M, 2)}
        s_andn2_b64 {sr(sFAIL, 2)}, {sr(M, 2)}, vcc
        s_bcnt1_i32_b64 s{sN}, {sr(sFAIL, 2)}
        {"s_add_u32 s95, s95, s%d" % sN if OPT["cntreq"] else ""}
        s_add_u32 s{sT0}, s{sCNT}, s{sN}
        v_mbcnt_lo_u32_b32 v{old}, s{sFAIL}, 0
        v_mbcnt_hi_u32_b32 v{old}, s{sFAIL + 1}, v{old}
        v_lshl_add_u32 v{old}, v{old}, 3, s{sTOP}
        s_mov_b32 exec_lo, s{sACQ}
        s_mov_b32 exec_hi, s{sACQ}
        s_cmp_gt_u32 s{sT0}, s{sCAP}
        """
        U = [TF, TF + 1, TF + 2, TF + 3, GP[buf], GP[buf] + 1, GP[buf] + 2, GP[buf] + 3]

        def addhalf(Ac, off):
            for j in range(4):
                a(f"v_lshlrev_b32 v{U[2 * j]}, 16, v{Ac + j}")
                a(f"v_and_b32 v{U[2 * j + 1]}, s{sHI}, v{Ac + j}")
            for j in range(4):
                a(f"v_pk_fma_f32 {vr(U[2 * j], 2)}, {vr(D1 + off + 2 * j, 2)}, {vr(D2 + off + 2 * j, 2)}, {vr(U[2 * j], 2)}")
            for j in range(4):
                a(f"v_cvt_pk_bf16_f32 v{Ac + j}, v{U[2 * j]}, v{U[2 * j + 1]}")
        if va:
            a(f"v_and_b32 v{old}, v{old}, v{bit}")
            a(check)
            addhalf(AX, 0)
        else:
            a(f"""
            v_mfma_f32_32x32x16_bf16 {vr(D2, 16)}, {vr(A3a, 4)}, {vr(AX, 4)}, {vr(D1, 16)}
            v_and_b32 v{old}, v{old}, v{bit}
            s_waitcnt lgkmcnt({1 if inline else 0})
            v_mfma_f32_32x32x16_bf16 {vr(D2, 16)}, {vr(A3b, 4)}, {vr(AY, 4)}, {vr(D2, 16)}
            """)
            a(check)
            a("s_nop 0")
            for j in range(4):
                a(f"v_cvt_pk_bf16_f32 v{AX + j}, v{D2 + 2 * j}, v{D2 + 2 * j + 1}")
        a(f"""
        {"" if nrm else f"ds_write_b128 v{aX}, {vr(AX, 4)}"}
        s_mov_b32 exec_lo, s{sACQ + 1}
        s_mov_b32 exec_hi, s{sACQ + 1}
        """)
        if va:
            a(f"s_waitcnt lgkmcnt({2 if inline else 1})")
            addhalf(AY, 8)
        else:
            for j in range(4):
                a(f"v_cvt_pk_bf16_f32 v{AY + j}, v{D2 + 8 + 2 * j}, v{D2 + 8 + 2 * j + 1}")
        a(f"""
        {"" if nrm else f"ds_write_b128 v{aY}, {vr(AY, 4)}"}
        s_mov_b64 exec, {sr(sACQ, 2)}
        {"" if nrm else f"ds_xor_b32 v{la}, v{bit}"}
        {"s_setprio 0" if OPT["prio"] else ""}
        s_cbranch_scc1 P2_full{u}
        s_mov_b64 exec, {sr(sFAIL, 2)}
        s_mov_b32 s{sCNT}, s{sT0}
        ds_write_b64 v{old}, {vr(W, 2)}
        s_mov_b64 exec, -1
        s_lshl3_add_u32 s{sTOP}, s{sN}, s{sTOP}
        """)
        if inline:
            a(f"P2_fullr{u}:")
            cold.append(f"""
            P2_full{u}:
            s_mov_b64 exec, -1
            s_cmp_eq_u32 s{sN}, 0
            s_cbranch_scc1 P2_fullr{u}
            s_mov_b64 {sr(M, 2)}, {sr(sFAIL, 2)}
            s_call_b64 {sr(sRET2, 2)}, P2_rmw{buf}
            s_branch P2_fullr{u}
            """)
        else:
            a(f"""
            P2_ret{u}:
            s_setpc_b64 {sr(sRET2, 2)}
            P2_full{u}:
            s_mov_b64 exec, -1
            s_cmp_eq_u32 s{sN}, 0
            s_cbranch_scc1 P2_ret{u}
            {guard}
            s_mov_b64 {sr(M, 2)}, {sr(sFAIL, 2)}
            s_branch P2_rmw{buf}
            """)

    def slow_push(buf, slot):
        uid[0] += 1
        u = uid[0]
        d0, d1, d2 = RB[buf], RB[buf] + 1, RB[buf] + 2
        if slot == 0:
            s = f"""
            v_cmp_lt_u32 {sr(sM0, 2)}, v{RD[buf]}, v{RL[buf]}
            v_lshlrev_b32 v{t[11]}, 16, v{d1}
            """
            w, an = d0, t[11]
        else:
            s = f"""
            v_add_u32 v{t[11]}, 1, v{RD[buf]}
            v_cmp_lt_u32 {sr(sM0, 2)}, v{t[11]}, v{RL[buf]}
            """
            w, an = d2, d1
        return s + f"""
        P2_push{u}:
        s_bcnt1_i32_b64 s{sN0}, {sr(sM0, 2)}
        s_add_u32 s{sT0}, s{sCNT}, s{sN0}
        s_cmp_le_u32 s{sT0}, {RING_CAP}
        s_cbranch_scc1 P2_pok{u}
        s_call_b64 {sr(sRET, 2)}, P2_pop{buf}
        s_branch P2_push{u}
        P2_pok{u}:
        v_mbcnt_lo_u32_b32 v{t[4]}, s{sM0}, 0
        v_mbcnt_hi_u32_b32 v{t[4]}, s{sM0 + 1}, v{t[4]}
        v_lshl_add_u32 v{t[4]}, v{t[4]}, 3, s{sTOP}
        s_mov_b64 exec, {sr(sM0, 2)}
        ds_write2_b32 v{t[4]}, v{w}, v{an} offset1:1
        s_mov_b64 exec, -1
        s_mov_b32 s{sCNT}, s{sT0}
        s_lshl3_add_u32 s{sTOP}, s{sN0}, s{sTOP}
        """

    def step(buf, peeled=False):
        uid[0] += 1
        u = uid[0]
        prev = buf ^ 1
        d0, d1, d2 = RB[buf], RB[buf] + 1, RB[buf] + 2
        a.c(f"---- step, buffer {buf}: compact the loaded records onto the stack")
        if OPT["rot"] and (OPT["rot"] == 1 or buf == 0):
            a(f"""
            s_add_u32 s82, s82, 1
            s_bitcmp1_b32 s82, 1
            s_cbranch_scc1 P2_prh{u}
            s_setprio 0
            s_bitcmp1_b32 s82, 0
            s_cbranch_scc0 P2_pre{u}
            s_setprio 1
            s_branch P2_pre{u}
            P2_prh{u}:
            s_setprio 2
            s_bitcmp1_b32 s82, 0
            s_cbranch_scc0 P2_pre{u}
            s_setprio 3
            P2_pre{u}:
            """)
        a(f"""
        {st(0)}
        s_waitcnt vmcnt({1 if peeled else 3})
        {st(1)}
        v_cmp_lt_u32 {sr(sM0, 2)}, v{RD[buf]}, v{RL[buf]}
        v_add_u32 v{t[1]}, 1, v{RD[buf]}
        v_lshlrev_b32 v{t[2]}, 16, v{d1}
        v_cmp_lt_u32 {sr(sM1, 2)}, v{t[1]}, v{RL[buf]}
        s_bcnt1_i32_b64 s{sN0}, {sr(sM0, 2)}
        v_mbcnt_lo_u32_b32 v{t[0]}, s{sM0}, 0
        s_bcnt1_i32_b64 s{sN}, {sr(sM1, 2)}
        v_mbcnt_hi_u32_b32 v{t[0]}, s{sM0 + 1}, v{t[0]}
        v_mbcnt_lo_u32_b32 v{t[1]}, s{sM1}, 0
        s_add_u32 s{sT0}, s{sCNT}, s{sN0}
        v_mbcnt_hi_u32_b32 v{t[1]}, s{sM1 + 1}, v{t[1]}
        s_add_u32 s{sT0}, s{sT0}, s{sN}
        s_lshl3_add_u32 s{sT1}, s{sN0}, s{sTOP}
        v_lshl_add_u32 v{t[0]}, v{t[0]}, 3, s{sTOP}
        s_cmp_lg_u64 {sr(sLONG[buf], 2)}, 0
        s_cselect_b32 s{sT2}, 0, {RING_CAP + 1}
        v_lshl_add_u32 v{t[1]}, v{t[1]}, 3, s{sT1}
        s_cmp_ge_u32 s{sT0}, s{sT2}
        s_cbranch_scc1 {"P2_alt" if peeled else f"P2_slow{u}"}
        s_mov_b64 exec, {sr(sM0, 2)}
        ds_write2_b32 v{t[0]}, v{d0}, v{t[2]} offset1:1
        s_mov_b64 exec, {sr(sM1, 2)}
        ds_write2_b32 v{t[1]}, v{d2}, v{d1} offset1:1
        s_mov_b64 exec, -1
        s_mov_b32 s{sCNT}, s{sT0}
        P2_slowr{u}:
        """)
        if peeled:
            a(pop_issue(buf))
            a("s_waitcnt lgkmcnt(0)")
            prep(buf, gathers(buf), False)
            a(coschain(buf))
            a("s_nop 0")
            a(cospack(buf))
            return
        cold.append(f"P2_slow{u}:\n" + slow_push(buf, 0) + slow_push(buf, 1) + f"""
        P2_long{u}:
        v_add_u32 v{RD[buf]}, 32, v{RD[buf]}
        v_add_u32 v{RA[buf]}, 192, v{RA[buf]}
        v_cmp_lt_i32 vcc, v{RD[buf]}, v{RL[buf]}
        s_cbranch_vccz P2_slowr{u}
        s_nop 0
        v_cndmask_b32 v{t[4]}, v{vOOB}, v{RA[buf]}, vcc
        buffer_load_dwordx3 {vr(RB[buf], 3)}, v{t[4]}, {sr(S_REC, 4)}, s{sCOB[buf]} offen
        s_waitcnt vmcnt(0)
        """ + slow_push(buf, 0) + slow_push(buf, 1) + f"s_branch P2_long{u}\n")
        if OPT["x_nopop"]:
            a(f"s_mov_b32 s{sCNT}, 0\ns_mov_b32 s{sTOP}, s{sRB}")
            prep(buf)
            for k in range(2):
                a(f"buffer_load_dword v{vDUM}, v{vOOB}, {sr(S_REC, 4)}, 0 offen")
            a("s_waitcnt lgkmcnt(0)")
            return
        a(pop_issue(buf))
        a(rbf_read(prev))
        prep(buf, lg(2) + "\n" + st(2) + "\n" + gathers(buf))
        a(st(3))
        a(lg(1))
        if OPT["x_nocore"]:
            a("s_waitcnt vmcnt(4) lgkmcnt(0)")
            a(f"s_mov_b64 {sr(sM[buf], 2)}, 0")
        else:
            a(gate(prev))
            a("s_waitcnt vmcnt(4)")
            a(st(4))
            a(fixup(prev))
            core_a(prev, coschain(buf), cospack(buf))
            core_b(prev, True)
        if OPT["lag"]:
            a(f"""
            s_waitcnt lgkmcnt(4)
            v_readfirstlane_b32 s{sT1}, v{t[10]}
            {spf() if OPT["spf"] else ""}
            s_mov_b64 exec, 1
            s_add_u32 s83, s83, 16
            ds_inc_u32 v{vH16}, v{vOOB} offset:784
            s_mov_b64 exec, -1
            s_cmp_lt_i32 s{sT1}, s83
            s_cbranch_scc1 P2_poll{u}
            P2_pollr{u}:
            """)
            cold.append(f"""
            P2_poll{u}:
            ds_read_b32 v{t[10]}, v{vH16} offset:784
            ds_read_b32 v{t[10]}, v{vH16} offset:784
            s_waitcnt lgkmcnt(1)
            v_readfirstlane_b32 s{sT1}, v{t[10]}
            s_cmp_ge_i32 s{sT1}, s83
            s_cbranch_scc1 P2_pollr{u}
            {'s_sleep 1' if OPT['sleep'] else ''}
            {f"s_sub_u32 s{sG}, s{sG}, 1" if OPT["guard"] else ""}
            {"s_cbranch_scc1 P2_done" if OPT["guard"] else ""}
            s_branch P2_poll{u}
            """)
        if STAMP:
            a("s_waitcnt lgkmcnt(0)")
            a("s_sub_u32 s94, s60, s74\ns_add_u32 s84, s84, s94")
            a("s_memtime s[74:75]\ns_waitcnt lgkmcnt(0)")
            for i in range(7):
                a(f"s_sub_u32 s94, s{62 + 2 * i}, s{60 + 2 * i}\ns_add_u32 s{85 + i}, s{85 + i}, s94")

    if OPT["peel"]:
        a.c("first half of step 0 runs before the rest of the setup, so that its gathers are under way")
        step(0, True)
        a(f"s_call_b64 {sr(sRET2, 2)}, P2_tail")
        if OPT["stamp2"]:
            a("s_memrealtime s[60:61]\ns_memtime s[72:73]\ns_waitcnt lgkmcnt(0)")
        if OPT["lag"]:
            a(f"""
            s_mov_b64 exec, 1
            s_add_u32 s83, s83, 16
            ds_inc_u32 v{vH16}, v{vOOB} offset:784
            s_mov_b64 exec, -1
            """)
        a(f"""
        s_branch P2_step1
        P2_tail:
        """)
        prologue_tail()
        a(f"""
        s_setpc_b64 {sr(sRET2, 2)}
        P2_alt:
        s_call_b64 {sr(sRET2, 2)}, P2_tail
        """)
    if OPT["stamp2"]:
        a("s_memrealtime s[60:61]\ns_memtime s[72:73]\ns_waitcnt lgkmcnt(0)")
    if OPT["x_fake"]:
        a(f"s_lshl_b32 s98, s2, 10\nv_add_u32 v{D1}, s98, v0\nv_mul_lo_u32 v{D1}, v{D1}, v{D1}\nv_add_u32 v{D1}, v{D1}, v0")
    a("P2_loop:")
    if OPT["phase_bar"]:
        a(f"""
        s_add_u32 s{sT0}, s{sK}, s3
        s_and_b32 s{sT0}, s{sT0}, 7
        s_cbranch_scc1 P2_nobar
        s_barrier
        P2_nobar:
        """)
    a(f"""
    s_cmp_lt_u32 s{sK}, {8 * OPT['ns'] - 2}
    s_cselect_b32 s{sCAP}, {RING_CAP}, 0
    """)
    step(0)
    a("P2_step1:")
    step(1)
    a(f"""
    s_add_u32 s{sK}, s{sK}, 2
    s_cmp_lt_u32 s{sK}, {8 * OPT['ns']}
    s_cbranch_scc1 P2_loop
    """)
    if STAMP:
        a(f"""
        s_lshl_b32 s94, s2, 4
        s_add_u32 s94, s94, s{sW}
        s_lshl_b32 s94, s94, 6
        s_add_u32 s6, s6, {16 << 20}
        s_addc_u32 s7, s7, 0
        """)
        srd(a, S_TMP, 6, 1 << 20)
        a(f"v_mov_b32 v{t[0]}, 0")
        for i in range(8):
            a(f"v_mov_b32 v{t[1]}, s{84 + i}")
            a(f"buffer_store_dword v{t[1]}, v{t[0]}, {sr(S_TMP, 4)}, s94 offen offset:{4 * i}")
        a("s_waitcnt vmcnt(0)")
    if OPT["stamp2"]:
        a("s_memrealtime s[62:63]\ns_memtime s[74:75]\ns_waitcnt lgkmcnt(0)\ns_sub_u32 s72, s74, s72")
    a.c("fetch the epilogue's operands and the bucket's own m rows; finish the last pop; empty the stack")
    MP = [TT, RB[0], RB[1], RL[0], GP[1], GQ[1], WA[0]]
    A1, A2, A3, DX, DY, SX, SY = GP[0], GQ[0], A3a, D1, D2, A2a, A2b
    vMO = vE
    a(f"""
    v_and_b32 v{t[0]}, 31, v{vLANE}
    v_lshrrev_b32 v{t[1]}, 5, v{vLANE}
    v_lshlrev_b32 v{t[1]}, 4, v{t[1]}
    s_lshl_b32 s{sT0}, s{sW}, 10
    v_lshl_add_u32 v{vMO}, v{t[0]}, 5, v{t[1]}
    v_add_u32 v{vMO}, s{sT0}, v{vMO}
    s_mul_i32 s{sCO}, s{sB}, {EB * 32}
    s_mov_b32 s{sJ}, s{sCO}
    v_lshlrev_b32 v{t[2]}, 4, v{vLANE}
    s_mov_b32 s{sT0}, {TAB_BYTES + 1024 * 6}
    s_mov_b32 s{sT1}, {TAB_BYTES + 1024 * 7}
    {rbf_read(1)}
    buffer_load_dwordx4 {vr(A1, 4)}, v{t[2]}, {sr(S_TAB, 4)}, s{sT0} offen
    buffer_load_dwordx4 {vr(A2, 4)}, v{t[2]}, {sr(S_TAB, 4)}, s{sT1} offen
    buffer_load_dwordx4 {vr(MP[0], 4)}, v{vMO}, {sr(S_M, 4)}, s{sJ} offen
    s_add_u32 s{sJ}, s{sJ}, 16384
    s_waitcnt lgkmcnt(0)
    """)
    a(gate(1))
    a("s_waitcnt vmcnt(3)")
    for i in range(1, 4):
        a(f"buffer_load_dwordx4 {vr(MP[i], 4)}, v{vMO}, {sr(S_M, 4)}, s{sJ} offen")
        a(f"s_add_u32 s{sJ}, s{sJ}, 16384")
    a(fixup(1))
    core_a(1, "s_nop 6")
    a(f"""
    s_call_b64 {sr(sRET2, 2)}, P2_rmw1
    P2_drain:
    s_cmp_eq_u32 s{sCNT}, 0
    s_cbranch_scc1 P2_epi
    s_call_b64 {sr(sRET, 2)}, P2_pop1
    s_branch P2_drain
    P2_epi:
    """)
    for i in range(4, 7):
        a(f"buffer_load_dwordx4 {vr(MP[i], 4)}, v{vMO}, {sr(S_M, 4)}, s{sJ} offen")
        a(f"s_add_u32 s{sJ}, s{sJ}, 16384")
    if OPT["cntreq"]:
        a(f"""
        s_load_dwordx2 s[60:61], s[0:1], 96
        s_waitcnt lgkmcnt(0)
        v_mov_b32 v{t[0]}, s95
        v_mov_b32 v{t[1]}, 0
        s_mov_b64 exec, 1
        global_atomic_add v{t[1]}, v{t[0]}, s[60:61]
        s_mov_b64 exec, -1
        s_waitcnt vmcnt(0)
        """)
    a(f"""
    s_lshl_b32 s{sT0}, s{sW}, 9
    s_mov_b32 s{sT2}, {L_ACC0}
    v_and_b32 v{t[1]}, 31, v{vLANE}
    v_lshlrev_b32 v{t[1]}, 4, v{t[1]}
    v_add_u32 v{t[1]}, s{sT0}, v{t[1]}
    v_lshrrev_b32 v{t[0]}, 5, v{vLANE}
    v_mul_u32_u24 v{t[0]}, {EB * 16}, v{t[0]}
    v_add3_u32 v{t[0]}, v{t[0]}, v{t[1]}, s{sT2}
    s_waitcnt vmcnt(3) lgkmcnt(0)
    """)
    if OPT["stamp2"]:
        a("s_memrealtime s[64:65]\ns_waitcnt lgkmcnt(0)")
    a("s_barrier")
    if OPT["stamp2"]:
        a("s_memrealtime s[66:67]\ns_waitcnt lgkmcnt(0)")
    a.c("epilogue: out = m + (agg @ w_up) * (rbf @ w_rbf), 32 edges per pass, two passes at a time")
    OBX, OBY = TF, A3b

    def epi(groups):
        regs = [(DX, AX, SX, OBX), (DY, AY, SY, OBY)]
        for (i, va), (Dd, Ac, Sb, Ob) in zip(groups, regs):
            a(f"ds_read_b128 {vr(Ac, 4)}, v{t[0]} offset:{8192 * i}")
            a(f"ds_read_b128 {vr(Sb, 4)}, v{t[1]} offset:{L_RBF + 8192 * i}")
        n = len(groups)
        for k, ((i, va), (Dd, Ac, Sb, Ob)) in enumerate(zip(groups, regs)):
            a(f"s_waitcnt lgkmcnt({2 * (n - 1 - k)})")
            a(f"v_mfma_f32_32x32x16_bf16 {vr(Dd, 16)}, {vr(A1, 4)}, {vr(Ac, 4)}, 0")
            a(f"v_mfma_f32_32x32x16_f16 {vr(Dd, 16)}, {vr(A2, 4)}, {vr(Sb, 4)}, {vr(Dd, 16)}")
        a("s_nop 11")
        for (i, va), (Dd, Ac, Sb, Ob) in zip(groups, regs):
            for j in range(0, 8, 2):
                a(f"v_pk_mul_f32 {vr(Dd + j, 2)}, {vr(Dd + j, 2)}, {vr(Dd + 8 + j, 2)}")
        a({4: "s_waitcnt vmcnt(5)", 6: "s_waitcnt vmcnt(6)"}.get(groups[0][0], "s_nop 0"))
        a("s_nop 0")
        for (i, va), (Dd, Ac, Sb, Ob) in zip(groups, regs):
            a(f"v_mfma_f32_32x32x16_bf16 {vr(Dd, 16)}, {vr(A3, 4)}, {vr(MP[i], 4)}, {vr(Dd, 16)}")
        a("s_nop 11")
        for (i, va), (Dd, Ac, Sb, Ob) in zip(groups, regs):
            for j in range(4):
                a(f"v_cvt_pk_bf16_f32 v{Ob + j}, v{Dd + 2 * j}, v{Dd + 2 * j + 1}")
            a(f"buffer_store_dwordx4 {vr(Ob, 4)}, v{va}, {sr(S_OUT, 4)}, s{sCO} offen{nto}")
            a(f"s_add_u32 s{sCO}, s{sCO}, 16384")

    for i in (0, 2, 4):
        epi([(i, vMO), (i + 1, vMO)])
    if OPT["stamp2"]:
        a(f"""
        s_memrealtime s[84:85]
        s_waitcnt vmcnt(0) lgkmcnt(0)
        s_memrealtime s[86:87]
        s_lshl_b32 s98, s2, 4
        s_add_u32 s98, s98, s{sW}
        s_lshl_b32 s98, s98, 6
        s_add_u32 s6, s6, {16 << 20}
        s_addc_u32 s7, s7, 0
        s_waitcnt lgkmcnt(0)
        """)
        srd(a, S_TMP, 6, 1 << 20)
        a(f"v_mov_b32 v{t[5]}, 0")
        for i, r in enumerate([96, 60, 62, 64, 66, 84, 86, 72]):
            a(f"v_mov_b32 v{t[6]}, s{r}")
            a(f"buffer_store_dword v{t[6]}, v{t[5]}, {sr(S_TMP, 4)}, s98 offen offset:{4 * i}")
    a(f"""
    s_cmp_lt_u32 s{sW}, 2
    s_cbranch_scc0 P2_done
    v_cmp_gt_u32 vcc, {(EB - 6 * 512) * 32}, v{vMO}
    v_mov_b32 v{t[2]}, 0x7fffff00
    s_nop 0
    v_cndmask_b32 v{t[2]}, v{t[2]}, v{vMO}, vcc
    """)
    epi([(6, t[2])])
    a("P2_done:")
    a("s_endpgm")
    for buf in range(2):
        a.c(f"subroutine: pop up to 64 records into buffer {buf} and finish them")
        a(f"P2_pop{buf}:")
        if OPT["guard"]:
            a(f"s_sub_u32 s{sG}, s{sG}, 1\ns_cbranch_scc1 P2_done")
        a(pop_issue(buf))
        a("s_waitcnt lgkmcnt(0)")
        a(gathers(buf))
        a(coschain(buf))
        a(f"""
        {rbf_read(buf)}
        {cospack(buf)}
        s_mov_b64 {sr(sRET2, 2)}, {sr(sRET, 2)}
        s_waitcnt lgkmcnt(0)
        """)
        a(gate(buf))
        a("s_waitcnt vmcnt(0)")
        a(fixup(buf))
        core_a(buf, "s_nop 6")
        a(f"P2_rmw{buf}:")
        core_b(buf, False)
    for c in cold:
        a(c)
    kernel_desc(a, name, 128, 102)


def build():
    a = A()
    ref = open(f"cdna_kernels/{NAME}.s.ref").read().split("\n")
    for line in ref:
        if line.startswith("; Override"):
            break
        a.raw(line)
    a.raw(f"; @launch kernel=part_kernel grid=({NB},1,1) block=(1024,1,1) lds={P1_LDS}")
    a.raw(f"; @launch kernel={NAME}_kernel grid=({NB},1,1) block=(1024,1,1) lds={P2_LDS}")
    a.raw('.amdgcn_target "amdgcn-amd-amdhsa--gfx950"')
    gen_part(a, "part_kernel")
    gen_main(a, f"{NAME}_kernel")
    return a.text()


def main():
    out = f"cdna_kernels/{NAME}.s"
    for arg in sys.argv[1:]:
        if "=" in arg:
            k, v = arg.split("=")
            assert k in OPT, k
            OPT[k] = type(OPT[k])(int(v))
        else:
            out = arg
    open(out, "w").write(build())


if __name__ == "__main__":
    main()
```

```python
import sys

NAME = "gather_scatter__molecular_angular_gemnet__graph"
E = 800000
T = 12800000
NB = 256
EB = 3125
CH = 25000
NCH = 512
NS = 8
CHB = 150016
REC_BYTES = NCH * CHB
TAB_OFF = REC_BYTES
TAB_BYTES = NB * NCH * 32
OPS_OFF = TAB_OFF + TAB_BYTES

OPT = dict(
    nt_in=True,
    nt_rec=False,
    phase_bar=False,
    nt_out=False,
    x_nogather=False, x_normw=False, x_norec=False,
    lim=24, x_lin=0, pbase=1, dynp=8, rexec=0, gexec=0, aslot=1, rotl=0x6420, pfx=4, tabc=1, sleep=0, pfp1=0, peel=1, pfg=1, stm=1, stmb=1, outm=2, pfw=2, pfpos=1, pffirst=0, spf=0, pfs=1, pfn=0, mimic=1, pf0=0, valu_add=0, early=2, stpos=2, stag=3, pfm=0, slide=0, ns=7, bdelay=0, stamp1=0, stamp2=0, lag=1, lagoff=6, cntreq=0, rot=0, rotshift=2, stamp=False, pkf32=True, x_fake=0, x_nocore=0, x_recx4=0, x_nomfma=0, x_nopop=0, prio=True, lock_pos=2,
    guard=False,
)


class A:
    def __init__(self):
        self.l = []

    def __call__(self, s=""):
        for line in s.split("\n"):
            line = line.strip()
            if line:
                if line.endswith(":"):
                    self.l.append(line)
                else:
                    self.l.append("    " + line)

    def c(self, s):
        self.l.append("    ; " + s)

    def raw(self, s):
        self.l.append(s)

    def text(self):
        return "\n".join(self.l) + "\n"


def vr(a, n):
    return f"v[{a}:{a + n - 1}]"


def sr(a, n):
    return f"s[{a}:{a + n - 1}]"


def srd(a, dst, base, nbytes, stride=0):
    a(f"s_mov_b32 s{dst}, s{base}")
    a(f"s_and_b32 s{dst + 1}, s{base + 1}, 0xffff")
    if stride:
        a(f"s_or_b32 s{dst + 1}, s{dst + 1}, {stride << 16:#x}")
    a(f"s_mov_b32 s{dst + 2}, {nbytes}")
    a(f"s_mov_b32 s{dst + 3}, 0x20000")


def kernel_head(a, name):
    a.raw(".text")
    a.raw(f".globl {name}")
    a.raw(".p2align 8")
    a.raw(f".type {name},@function")
    a.raw(f"{name}:")


def kernel_desc(a, name, vgpr, sgpr):
    a.raw('.section .rodata,"a"')
    a.raw(".p2align 6")
    a.raw(f".amdhsa_kernel {name}")
    a.raw(f"  .amdhsa_next_free_vgpr {vgpr}")
    a.raw(f"  .amdhsa_next_free_sgpr {sgpr}")
    a.raw(f"  .amdhsa_accum_offset {(vgpr + 3) // 4 * 4}")
    a.raw("  .amdhsa_group_segment_fixed_size 0")
    a.raw("  .amdhsa_kernarg_size 112")
    a.raw("  .amdhsa_user_sgpr_count 2")
    a.raw("  .amdhsa_user_sgpr_kernarg_segment_ptr 1")
    a.raw("  .amdhsa_system_sgpr_workgroup_id_x 1")
    a.raw(".end_amdhsa_kernel")


P1_CNT = 16
P1_PART = P1_CNT + 8192
P1_REC = P1_PART + 64
P1_LDS = 158720


def gen_part(a, name):
    nt = " nt" if OPT["nt_in"] else ""
    STMS = {X: ["", " sc1", " nt", " sc0 sc1", " sc1 nt"][OPT[k]] for X, k in (("A", "stm"), ("B", "stmb"))}
    S_IN, S_OUT, S_ANG, S_REC, S_TAB = 8, 12, 16, 20, 24
    sMAG, sNEG, sMASK, sHI, sDIV6 = 28, 29, 30, 31, 32
    sOI, sOA = 33, 34
    sW, sT0, sT1, sCH = 35, 36, 37, 38
    sEX = 40
    stn = [0]

    def st1():
        if OPT["stamp1"]:
            a(f"s_memrealtime s[{48 + 2 * stn[0]}:{49 + 2 * stn[0]}]\ns_waitcnt lgkmcnt(0)")
            stn[0] += 1
    vT16, vT8, vSIX = 1, 2, 3
    tmp = list(range(4, 14))
    O = {"A": 14, "B": 62}
    I = {"A": 38, "B": 86}
    G = 110
    O6 = {"A": 122, "B": 124}
    I6 = {"A": 123, "B": 125}
    G6 = 126
    vX = 127

    kernel_head(a, name)
    a(f"""
    s_cmp_ge_u32 s2, {NB}
    s_cbranch_scc1 P1_done
    s_load_dwordx4 s[4:7], s[0:1], 8
    s_load_dwordx2 s[42:43], s[0:1], 32
    s_load_dwordx2 s[44:45], s[0:1], 104
    s_load_dwordx2 s[70:71], s[0:1], 0
    v_lshlrev_b32 v{vT16}, 4, v0
    v_lshlrev_b32 v{vT8}, 3, v0
    v_mov_b32 v{vSIX}, 6
    s_mov_b32 s{sMAG}, 1374390
    s_mov_b32 s{sNEG}, {-EB}
    s_mov_b32 s{sMASK}, 0x1c00
    s_mov_b32 s{sHI}, 0xffff0000
    s_mov_b32 s{sDIV6}, 0x2aaaaaab
    v_lshrrev_b32 v4, 6, v0
    v_mov_b32 v6, 0
    v_mov_b32 v7, 0
    v_readfirstlane_b32 s{sW}, v4
    ds_write_b64 v{vT8}, v[6:7] offset:{P1_CNT}
    v_mov_b32 v5, {P1_REC}
    ds_write_b32 v6, v5 offset:{P1_CNT - 4}
    s_waitcnt lgkmcnt(0)
    """)
    srd(a, S_IN, 4, T * 4)
    srd(a, S_OUT, 6, T * 4)
    srd(a, S_ANG, 42, T * 2)
    srd(a, S_REC, 44, REC_BYTES)
    a(f"s_add_u32 s44, s44, {TAB_OFF}")
    a("s_addc_u32 s45, s45, 0")
    srd(a, S_TAB, 44, TAB_BYTES + 8192)
    a(f"""
    s_lshr_b32 s39, s2, 1
    s_and_b32 s39, s39, 7
    s_lshr_b32 s46, s39, {1 if OPT["stag"] == 1 else 0}
    s_lshr_b32 s46, {0xf0 if OPT["stag"] == 1 else 0xff00}, s46
    s_and_b32 s46, s46, {0xf if OPT["stag"] == 1 else 0xff}
    s_mul_i32 s46, s46, {0x11 if OPT["stag"] == 1 else 1}
    """)
    if OPT["stag"] == 3:
        a(f"""
        s_lshr_b32 s46, s39, 1
        s_lshl_b32 s46, s46, 2
        s_sub_u32 s46, 16, s46
        s_lshr_b32 s47, 0x1111, s46
        s_lshl_b32 s46, s47, s46
        s_add_u32 s46, s46, {OPT["rotl"]:#x}
        s_mul_i32 s46, s46, 0x10001
        """)
    a(f"""
    s_lshl_b32 s39, s39, 21
    s_sub_u32 s39, {OPT['ns'] << 24}, s39
    s_mul_i32 s{sOI}, s2, {2 * CH * 4}
    s_mul_i32 s{sOA}, s2, {2 * CH * 2}
    """)

    vmq = []

    def vm_wait(tag):
        last = max(i for i, x in enumerate(vmq) if x == tag)
        a(f"s_waitcnt vmcnt({len(vmq) - 1 - last})")

    pend = []

    def slot(n=1):
        for _ in range(n):
            if pend:
                pend.pop(0)()

    def issue_round(X, r):
        vmq.extend([(X, r)] * 3)
        if r < 6:
            a(f"""
            buffer_load_dwordx4 {vr(O[X] + 4 * r, 4)}, v{vT16}, {sr(S_OUT, 4)}, s{sOI} offen{nt}
            buffer_load_dwordx4 {vr(I[X] + 4 * r, 4)}, v{vT16}, {sr(S_IN, 4)}, s{sOI} offen{nt}
            buffer_load_dwordx2 {vr(G + 2 * r, 2)}, v{vT8}, {sr(S_ANG, 4)}, s{sOA} offen{nt}
            s_add_u32 s{sOI}, s{sOI}, 16384
            s_add_u32 s{sOA}, s{sOA}, 8192
            """)
        else:
            a(f"""
            v_cmp_gt_u32 vcc, {CH - 6 * 4096}, v0
            v_lshlrev_b32 v{tmp[8]}, 2, v0
            v_lshlrev_b32 v{tmp[9]}, 1, v0
            v_cndmask_b32 v{tmp[8]}, v{vX}, v{tmp[8]}, vcc
            v_cndmask_b32 v{tmp[9]}, v{vX}, v{tmp[9]}, vcc
            buffer_load_dword v{O6[X]}, v{tmp[8]}, {sr(S_OUT, 4)}, s{sOI} offen{nt}
            buffer_load_dword v{I6[X]}, v{tmp[8]}, {sr(S_IN, 4)}, s{sOI} offen{nt}
            buffer_load_ushort v{G6}, v{tmp[9]}, {sr(S_ANG, 4)}, s{sOA} offen{nt}
            s_add_u32 s{sOI}, s{sOI}, {(CH - 6 * 4096) * 4}
            s_add_u32 s{sOA}, s{sOA}, {(CH - 6 * 4096) * 2}
            """)

    def pack(recs):
        n = len(recs)
        tb = tmp[0:n]
        tc = tmp[4:4 + n]
        for k, (o, i, g, hi) in enumerate(recs):
            a(f"v_mul_hi_u32_u24 v{tb[k]}, s{sMAG}, v{o}")
            a(f"v_mul_u32_u24 v{tc[k]}, {(OPT['ns'] << 24) // E}, v{i}")
        if OPT["slide"]:
            for k in range(n):
                a(f"v_add_u32 v{tc[k]}, s39, v{tc[k]}")
            if OPT["ns"] != 8:
                for k in range(n):
                    a(f"v_subrev_u32 v{tmp[8]}, {OPT['ns'] << 24}, v{tc[k]}")
                    a(f"v_min_u32 v{tc[k]}, v{tc[k]}, v{tmp[8]}")
        for k, (o, i, g, hi) in enumerate(recs):
            a(f"v_mad_i32_i24 v{o}, v{tb[k]}, s{sNEG}, v{o}")
            if OPT["stag"] == 3:
                u = tmp[8 + (k & 1)]
                a(f"v_lshrrev_b32 v{u}, 5, v{tb[k]}")
                a(f"v_lshrrev_b32 v{tc[k]}, 24, v{tc[k]}")
                a(f"v_lshlrev_b32 v{u}, 2, v{u}")
                a(f"v_lshlrev_b32 v{tb[k]}, 2, v{tb[k]}")
                a(f"v_bfe_u32 v{u}, s46, v{u}, 4")
                a(f"v_sub_u32 v{tc[k]}, v{tc[k]}, v{u}")
                a(f"v_add_u32 v{u}, {OPT['ns']}, v{tc[k]}")
                a(f"v_min_u32 v{tc[k]}, v{tc[k]}, v{u}")
                continue
            a(f"v_lshrrev_b32 v{tc[k]}, 14, v{tc[k]}")
            if OPT["stag"]:
                u = tmp[8 + (k & 1)]
                a(f"v_lshrrev_b32 v{u}, 5, v{tb[k]}")
                a(f"v_bfe_i32 v{u}, s46, v{u}, 1")
                a(f"v_lshl_add_u32 v{tc[k]}, v{u}, 10, v{tc[k]}")
                if OPT["ns"] != 8:
                    a(f"v_add_u32 v{u}, {OPT['ns'] << 10}, v{tc[k]}")
                    a(f"v_min_u32 v{tc[k]}, v{tc[k]}, v{u}")
            a(f"v_lshlrev_b32 v{tb[k]}, 2, v{tb[k]}")
        for k, (o, i, g, hi) in enumerate(recs):
            if OPT["stag"] == 3:
                a(f"v_lshl_or_b32 v{tc[k]}, v{tc[k]}, 10, v{tb[k]}")
            else:
                a(f"v_and_or_b32 v{tc[k]}, v{tc[k]}, s{sMASK}, v{tb[k]}")
            a(f"v_lshl_or_b32 v{i}, v{i}, 12, v{o}")
        for k, (o, i, g, hi) in enumerate(recs):
            a(f"ds_add_u32 v{tc[k]}, v{vSIX} offset:{P1_CNT}")
            if hi:
                a(f"v_and_or_b32 v{o}, v{g}, s{sHI}, v{tc[k]}")
            else:
                a(f"v_lshl_or_b32 v{o}, v{g}, 16, v{tc[k]}")

    def round_recs(X, r):
        if r < 6:
            return [(O[X] + 4 * r + k, I[X] + 4 * r + k, G + 2 * r + (k >> 1), k & 1) for k in range(4)]
        return [(O6[X], I6[X], G6, 0)]

    def tail_begin(lbl):
        a(f"""
        v_cmp_gt_u32 vcc, {CH - 6 * 4096}, v0
        s_and_saveexec_b64 {sr(sEX, 2)}, vcc
        s_cbranch_execz {lbl}
        """)

    def tail_end(lbl):
        a(f"{lbl}:")
        a(f"s_mov_b64 exec, {sr(sEX, 2)}")

    def wave_scan(v):
        a(f"""
        s_nop 1
        v_add_u32_dpp v{v}, v{v}, v{v} row_shr:1 row_mask:0xf bank_mask:0xf bound_ctrl:0
        s_nop 1
        v_add_u32_dpp v{v}, v{v}, v{v} row_shr:2 row_mask:0xf bank_mask:0xf bound_ctrl:0
        s_nop 1
        v_add_u32_dpp v{v}, v{v}, v{v} row_shr:4 row_mask:0xf bank_mask:0xf bound_ctrl:0
        s_nop 1
        v_add_u32_dpp v{v}, v{v}, v{v} row_shr:8 row_mask:0xf bank_mask:0xf bound_ctrl:0
        """)

    def sort_chunk(X):
        c01, s, inc, p, q = tmp[0], tmp[2], tmp[3], tmp[4], tmp[5]
        st1()
        a.c("exclusive scan of the 2048 counters (units: bytes, 6 per record)")
        a(f"""
        s_waitcnt lgkmcnt(0)
        s_barrier
        """)
        if X == 'A' or OPT['stpos'] < 3:
            slot()
        a(f"""
        ds_read_b64 {vr(c01, 2)}, v{vT8} offset:{P1_CNT}
        s_waitcnt lgkmcnt(0)
        v_add_u32 v{s}, v{c01}, v{c01 + 1}
        v_mov_b32 v{inc}, v{s}
        """)
        wave_scan(inc)
        a(f"""
        s_nop 1
        v_add_u32_dpp v{inc}, v{inc}, v{inc} row_bcast:15 row_mask:0xa bank_mask:0xf
        s_nop 1
        v_add_u32_dpp v{inc}, v{inc}, v{inc} row_bcast:31 row_mask:0xc bank_mask:0xf
        s_lshl_b32 s{sT1}, s{sW}, 2
        v_mov_b32 v{q}, s{sT1}
        v_readlane_b32 s{sT0}, v{inc}, 63
        s_nop 1
        v_mov_b32 v{p}, s{sT0}
        ds_write_b32 v{q}, v{p} offset:{P1_PART}
        v_and_b32 v{q}, 15, v0
        v_lshlrev_b32 v{p}, 2, v{q}
        s_waitcnt lgkmcnt(0)
        s_barrier
        """)
        if X == 'A' or OPT['stpos'] < 3:
            slot()
        a(f"""
        v_cmp_gt_u32 vcc, s{sW}, v{q}
        ds_read_b32 v{p}, v{p} offset:{P1_PART}
        s_waitcnt lgkmcnt(0)
        v_cndmask_b32 v{p}, 0, v{p}, vcc
        """)
        wave_scan(p)
        a(f"""
        v_sub_u32 v{inc}, v{inc}, v{s}
        v_readlane_b32 s{sT0}, v{p}, 15
        s_add_u32 s{sT0}, s{sT0}, {P1_REC}
        s_nop 0
        v_add_u32 v{q + 1}, s{sT0}, v{inc}
        v_add_u32 v{q + 2}, v{q + 1}, v{c01}
        ds_write_b64 v{vT8}, {vr(q + 1, 2)} offset:{P1_CNT}
        s_waitcnt lgkmcnt(0)
        s_barrier
        """)
        assert (q + 1) % 2 == 0
        st1()
        a.c("rank and scatter into the LDS image")
        m = [tmp[0:4], tmp[4:8]]
        u1, u2 = tmp[8], tmp[9]

        def rank_issue(recs, ms):
            for k, (o, i, g, hi) in enumerate(recs):
                a(f"v_and_b32 v{ms[k]}, 0xffff, v{o}")
            for k, (o, i, g, hi) in enumerate(recs):
                a(f"ds_add_rtn_u32 v{ms[k]}, v{ms[k]}, v{vSIX} offset:{P1_CNT}")

        def scatter(recs, ms):
            for k, (o, i, g, hi) in enumerate(recs):
                a(f"""
                v_and_b32 v{u1}, 2, v{ms[k]}
                v_add_u32 v{u2}, v{ms[k]}, v{u1}
                v_mad_i32_i24 v{ms[k]}, v{u1}, -2, v{ms[k]}
                ds_write_b32 v{u2}, v{i}
                ds_write_b16_d16_hi v{ms[k]}, v{o} offset:4
                """)

        rank_issue(round_recs(X, 0), m[0])
        for r in range(6):
            if r < 5:
                rank_issue(round_recs(X, r + 1), m[(r + 1) & 1])
                a("s_waitcnt lgkmcnt(4)")
            else:
                a("s_waitcnt lgkmcnt(0)")
            scatter(round_recs(X, r), m[r & 1])
            slot((2 if OPT["stpos"] < 4 or r >= 2 else 0) if X == "B" else OPT["aslot"])
        tail_begin(f"P1_sc6{X}")
        rank_issue(round_recs(X, 6), m[0])
        a("s_waitcnt lgkmcnt(0)")
        scatter(round_recs(X, 6), m[0])
        tail_end(f"P1_sc6{X}")
        slot(99)
        a("""
        s_waitcnt lgkmcnt(0)
        s_barrier
        """)
        st1()
        a.c("read the image back (into the dead record registers) and the counters (now segment ends)")
        dst = [O[X] + 4 * r for r in range(6)] + [I[X] + 4 * r for r in range(4)]
        ra, rb = tmp[8], tmp[9]
        a(f"v_add_u32 v{ra}, 0x10000, v{vT16}")
        a(f"v_add_u32 v{rb}, 0x20000, v{vT16}")
        for r in range(9):
            base = [vT16, ra, rb][r >> 2]
            a(f"ds_read_b128 {vr(dst[r], 4)}, v{base} offset:{P1_REC + (r & 3) * 16384}")
        nlast = CH * 6 // 16 - 9 * 1024
        a(f"""
        v_cmp_gt_u32 vcc, {nlast}, v0
        s_and_saveexec_b64 {sr(sEX, 2)}, vcc
        ds_read_b128 {vr(dst[9], 4)}, v{rb} offset:{P1_REC + 16384}
        s_mov_b64 exec, {sr(sEX, 2)}
        v_cndmask_b32 v{rb}, v{vX}, v{vT16}, vcc
        v_and_b32 v{ra}, 1, v0
        v_lshlrev_b32 v{ra}, 12, v{ra}
        v_lshrrev_b32 v{tmp[0]}, 1, v0
        v_lshl_add_u32 v{ra}, v{tmp[0]}, 2, v{ra}
        s_cmp_lt_u32 s{sW}, 8
        s_cbranch_scc0 P1_notab{X}
        """)
        for qq in range(4):
            if qq:
                a(f"v_add_u32 v{ra}, 1024, v{ra}")
            a(f"ds_read2_b32 {vr(tmp[2 * qq], 2)}, v{ra} offset0:{P1_CNT // 4 - 1} offset1:{P1_CNT // 4}")
        a("s_waitcnt lgkmcnt(0)")
        for qq in range(4):
            s_, e_ = tmp[2 * qq], tmp[2 * qq + 1]
            a(f"""
            v_sub_u32 v{e_}, v{e_}, v{s_}
            v_subrev_u32 v{s_}, {P1_REC}, v{s_}
            v_mul_hi_u32 v{e_}, v{e_}, s{sDIV6}
            v_mul_hi_u32 v{s_}, v{s_}, s{sDIV6}
            v_lshl_or_b32 v{tmp[qq]}, v{e_}, 16, v{s_}
            """)
        a(f"""
        v_lshrrev_b32 v{tmp[4]}, 1, v0
        v_and_b32 v{tmp[5]}, 1, v0
        v_lshlrev_b32 v{tmp[4]}, {5 if OPT["tabc"] else 14}, v{tmp[4]}
        v_lshl_or_b32 v{tmp[4]}, v{tmp[5]}, 4, v{tmp[4]}
        s_branch P1_tab{X}
        P1_notab{X}:
        v_mov_b32 v{tmp[4]}, v{vX}
        P1_tab{X}:
        s_lshl_b32 s{sT0}, s{sCH}, {13 if OPT['tabc'] else 5}
        s_mul_i32 s{sT1}, s{sCH}, {CHB}
        buffer_store_dwordx4 {vr(tmp[0], 4)}, v{tmp[4]}, {sr(S_TAB, 4)}, s{sT0} offen
        s_waitcnt lgkmcnt(0)
        """)
        vmq.append("st")
        a(f"s_add_u32 s{sT0}, s{sT1}, {9 * 16384}")
        a(f"buffer_store_dwordx4 {vr(dst[9], 4)}, v{rb}, {sr(S_REC, 4)}, s{sT0} offen{STMS[X]}")
        vmq.append("st")
        a(f"s_mov_b32 s47, s{sT1}")

        def mk(r):
            def f():
                a(f"buffer_store_dwordx4 {vr(dst[r], 4)}, v{vT16}, {sr(S_REC, 4)}, s47 offen{STMS[X]}")
                a(f"s_add_u32 s47, s47, 16384")
                vmq.append("st")
            return f
        pend.extend(mk(r) for r in range(9))
        if X == "B" or OPT["stpos"] == 0:
            slot(99)
        st1()

    st1()
    a(f"v_mov_b32 v{vX}, 0x7fffff00")
    a.c("one wave also prepares the matrix operands of the second kernel")
    W1, W2, W3, W4 = 62, 78, 94, 102
    lane, f2, e0, e1, x0, x1, x2 = 4, 5, 6, 7, 12, 13, 124
    OPR = 8
    a(f"""
    s_lshl_b32 s{sT0}, s2, 4
    s_add_u32 s68, s{sT0}, s{sW}
    s_cmp_eq_u32 s68, 15
    s_cbranch_scc0 P1_now
    s_load_dwordx4 s[72:75], s[0:1], 56
    s_load_dwordx4 s[76:79], s[0:1], 72
    v_and_b32 v{lane}, 63, v0
    v_and_b32 v{e0}, 3, v0
    v_bfe_u32 v{e1}, v0, 2, 1
    v_lshl_add_u32 v{e0}, v{e1}, 3, v{e0}
    v_bfe_u32 v{e1}, v0, 3, 1
    v_lshl_add_u32 v{e0}, v{e1}, 2, v{e0}
    v_lshlrev_b32 v{f2}, 1, v{e0}
    v_lshrrev_b32 v{e1}, 5, v{lane}
    v_lshl_add_u32 v{e1}, v{e1}, 8, v{f2}
    s_waitcnt lgkmcnt(0)
    """)
    for (W, n, p, nbytes, va) in ((W1, 16, 76, 512, f2), (W2, 16, 74, 512, f2), (W3, 8, 78, 512, e1), (W4, 8, 72, 256, f2)):
        srd(a, 80, p, nbytes)
        for j in range(n):
            a(f"buffer_load_ushort v{W + j}, v{va}, {sr(80, 4)}, 0 offen offset:{32 * j}")
    a("P1_now:")
    for r in range(7):
        issue_round("A", r)
    a(f"""
    s_cmp_eq_u32 s68, 15
    s_cbranch_scc0 P1_noop
    s_waitcnt vmcnt(21)
    """)

    def scale_exp(Wf, n):
        a(f"v_max3_f32 v{e0}, abs(v{Wf}), abs(v{Wf + 1}), abs(v{Wf + 2})")
        for j in range(3, n - 1, 2):
            a(f"v_max3_f32 v{e0}, v{e0}, abs(v{Wf + j}), abs(v{Wf + j + 1})")
        a(f"""
        v_max_f32 v{e0}, v{e0}, abs(v{Wf + n - 1})
        v_bfe_u32 v{e0}, v{e0}, 23, 8
        v_cmp_eq_u32 vcc, 0, v{e0}
        v_sub_u32 v{e0}, 141, v{e0}
        s_nop 0
        v_cndmask_b32 v{e0}, v{e0}, 0, vcc
        v_sub_u32 v{e1}, 0, v{e0}
        """)

    def put(k, cvt, srcs, mask):
        for j in range(4):
            a(f"{cvt} v{OPR + j}, v{srcs[2 * j]}, v{srcs[2 * j + 1]}")
        for j in range(4):
            a(f"v_cndmask_b32 v{OPR + j}, 0, v{OPR + j}, {sr(mask, 2)}")
        a(f"""
        s_mov_b32 s{sT0}, {TAB_BYTES + 1024 * k}
        buffer_store_dwordx4 {vr(OPR, 4)}, v{x2}, {sr(S_TAB, 4)}, s{sT0} offen
        s_nop 1
        """)

    for j in range(48):
        a(f"v_lshlrev_b32 v{W1 + j}, 16, v{W1 + j}")
    mDIAG, mLO, mHI, mRB = 72, 74, 76, 78
    a(f"""
    v_lshrrev_b32 v{x0}, 1, v{lane}
    v_xor_b32 v{x0}, v{x0}, v{lane}
    v_and_b32 v{x0}, 16, v{x0}
    v_cmp_eq_u32 {sr(mDIAG, 2)}, 0, v{x0}
    v_and_b32 v{x0}, 16, v{lane}
    v_cmp_eq_u32 {sr(mLO, 2)}, 0, v{x0}
    v_cmp_eq_u32 {sr(mHI, 2)}, 16, v{x0}
    v_and_b32 v{x0}, 48, v{lane}
    v_cmp_eq_u32 {sr(mRB, 2)}, 16, v{x0}
    v_lshlrev_b32 v{x2}, 4, v{lane}
    """)
    scale_exp(W2, 16)
    for j in range(16):
        a(f"v_ldexp_f32 v{W2 + j}, v{W2 + j}, v{e0}")
        a(f"v_ldexp_f32 v{W1 + j}, v{W1 + j}, v{e1}")
    scale_exp(W4, 8)
    for j in range(8):
        a(f"v_ldexp_f32 v{W4 + j}, v{W4 + j}, v{e0}")
        a(f"v_ldexp_f32 v{W3 + j}, v{W3 + j}, v{e1}")
    bf, hf = "v_cvt_pk_bf16_f32", "v_cvt_pk_f16_f32"
    a.c("block diagonal: rows < 16 act on lanes < 32, rows >= 16 on lanes >= 32")
    put(0, bf, [W1 + j for j in range(8)], mDIAG)
    put(1, bf, [W1 + 8 + j for j in range(8)], mDIAG)
    put(2, hf, [W2 + 2 * j for j in range(8)], mDIAG)
    put(3, hf, [W2 + 2 * j + 1 for j in range(8)], mDIAG)
    put(6, bf, [W3 + j for j in range(8)], mLO)
    put(7, hf, [W4 + j for j in range(8)], mRB)
    a.c("identity: row i has a one at k = f(i & 15)")
    a(f"""
    v_lshrrev_b32 v{e0}, 1, v{f2}
    v_lshrrev_b32 v{e1}, 5, v{lane}
    v_lshlrev_b32 v{e1}, 3, v{e1}
    v_sub_u32 v{e0}, v{e0}, v{e1}
    """)
    for j in range(8):
        a(f"""
        v_cmp_eq_u32 vcc, {j}, v{e0}
        s_nop 1
        v_cndmask_b32 v{W1 + j}, 0, 1.0, vcc
        """)
    put(4, bf, [W1 + j for j in range(8)], mLO)
    put(5, bf, [W1 + j for j in range(8)], mHI)
    a("P1_noop:")
    a("s_barrier")
    order = [6, 0, 1, 2, 3, 4, 5]
    nb = 0
    for r in range(7):
        vm_wait(("A", r))
        if r == 6:
            tail_begin("P1_pk6A")
        pack(round_recs("A", r))
        if r == 6:
            tail_end("P1_pk6A")
        if r < 6 and r >= 6 - OPT["early"]:
            issue_round("B", nb)
            nb += 1
    for r in range(nb, 6):
        pend.append(lambda r=r: issue_round("B", r))
    a(f"s_lshl_b32 s{sCH}, s2, 1")
    sort_chunk("A")
    a(f"""
    s_barrier
    v_mov_b32 v{tmp[8]}, 0
    v_mov_b32 v{tmp[9]}, 0
    ds_write_b64 v{vT8}, {vr(tmp[8], 2)} offset:{P1_CNT}
    s_add_u32 s{sCH}, s{sCH}, 1
    s_waitcnt lgkmcnt(0)
    """)
    issue_round("B", 6)
    a("s_barrier")
    for r in range(7):
        vm_wait(("B", r))
        if r == 6:
            tail_begin("P1_pk6B")
        pack(round_recs("B", r))
        if r == 6:
            tail_end("P1_pk6B")
        if OPT["stpos"] == 1:
            slot()
    def prefetch_m():
        a.c("touch this workgroup's share of m (one load per 128-byte line) so that the second kernel finds it on chip")
        srd(a, 80, 70, E * 32)
        a(f"""
        v_cmp_gt_u32 vcc, {OPT["pfp1"] or 782}, v0
        v_lshlrev_b32 v{G + 1}, 7, v0
        s_mul_i32 s{sT0}, s2, {OPT["pfp1"] * 128 or 100000}
        s_and_b32 s{sT0}, s{sT0}, 0xffffff80
        v_cndmask_b32 v{G + 1}, v{vX}, v{G + 1}, vcc
        buffer_load_dword v{G}, v{G + 1}, {sr(80, 4)}, s{sT0} offen
        """)
    if OPT["pfm"] or OPT["pfp1"]:
        prefetch_m()
    sort_chunk("B")
    if OPT["stamp1"]:
        a("s_waitcnt vmcnt(0)")
        st1()
        a(f"""
        s_lshl_b32 s3, s2, 4
        s_add_u32 s3, s3, s{sW}
        s_lshl_b32 s3, s3, 6
        s_add_u32 s44, s44, {17 << 20}
        s_addc_u32 s45, s45, 0
        """)
        srd(a, S_TAB, 44, 1 << 20)
        a("v_mov_b32 v4, 0")
        for i in range(stn[0]):
            a(f"v_mov_b32 v5, s{48 + 2 * i}")
            a(f"buffer_store_dword v5, v4, {sr(S_TAB, 4)}, s3 offen offset:{4 * i}")
    a("P1_done:")
    a("s_endpgm")
    kernel_desc(a, name, 128, 88)


L_LOCK = 0
L_RBF = 800
L_ACC0 = L_RBF + EB * 16
L_ACC1 = L_ACC0 + EB * 16
L_RING = L_ACC1 + EB * 16
RING_CAP = 101
RING_STRIDE = RING_CAP * 8
P2_LDS = 163840
assert L_RING + 16 * RING_STRIDE <= P2_LDS


def gen_main(a, name):
    ntr = " nt" if OPT["nt_rec"] else ""
    nto = ["", " sc1", " nt", " sc0 sc1", " sc1 nt"][OPT["outm"]]
    S_REC, S_M, S_TMP, S_OUT = 8, 12, 16, 20
    sB, sW = 24, 25
    sCNT, sTOP = 26, 27
    sM = [28, 30]
    sN, sT0, sT1, sT2 = 32, 33, 34, 35
    sACQ, sFAIL = 36, 38
    sM0, sM1 = 40, 42
    sRET, sRET2 = 44, 46
    sLONG = [48, 50]
    sEX = 52
    sCO = 54
    sCOB = [55, 56]
    sK, sJ, sPH = 57, 58, 59
    sP = 60
    sRB, sHI, sG, sKF0, sKF1, sN0 = 76, 77, 78, 79, 80, 81
    sCEN = 84
    sEVEN = 92
    sCAP = 97
    sF = [98, 100]
    assert not (OPT['pfn'] or OPT['spf'] or OPT['x_fake'] or OPT['gexec'])
    vLANE = 1
    A1a, A1b, A2a, A2b, A3a, A3b = 2, 6, 10, 14, 18, 22
    D1, D2 = 26, 42
    GP, GQ = [58, 66], [62, 70]
    TF = 74
    S0, S1 = 78, 82
    AX, AY = S0, S1
    WA = [86, 88]
    O = [90, 91]
    C = [92, 93]
    TT = 94
    RB = [98, 102]
    RD = [101, 105]
    RL = [106, 107]
    RA = [108, 109]
    vBP, vCB, vL2, vL8, vH16, vOOB, vE = range(110, 117)
    t = list(range(117, 128)) + [118]
    vDUM = GP[1]
    vPF = 0

    kernel_head(a, name)
    a(f"""
    s_cmp_ge_u32 s2, {NB}
    s_cbranch_scc1 P2_done
    {"s_memrealtime s[94:95]" if OPT["stamp2"] else ""}
    s_load_dwordx2 {sr(sP, 2)}, s[0:1], 0
    s_load_dwordx2 {sr(sP + 2, 2)}, s[0:1], 24
    s_load_dwordx4 {sr(sP + 4, 4)}, s[0:1], 40
    s_load_dwordx2 s[4:5], s[0:1], 88
    s_load_dwordx2 s[6:7], s[0:1], 104
    s_and_b32 s{sB}, s2, 7
    s_lshl_b32 s{sB}, s{sB}, 5
    s_lshr_b32 s{sT0}, s2, 3
    s_add_u32 s{sB}, s{sB}, s{sT0}
    v_lshrrev_b32 v{t[0]}, 6, v0
    v_and_b32 v{vLANE}, 63, v0
    s_mov_b32 s{sHI}, 0xffff0000
    v_readfirstlane_b32 s{sW}, v{t[0]}
    v_mov_b32 v{vOOB}, 0x7fffff00
    s_mov_b32 s{sEVEN}, 0x55555555
    s_mov_b32 s{sEVEN + 1}, 0x55555555
    s_waitcnt lgkmcnt(0)
    """)
    pM, pDIST, pCEN, pFREQ, pWRBF, pWSBF, pWDN, pWUP = [sP + 2 * k for k in range(8)]
    a(f"""
    s_load_dwordx4 {sr(sCEN, 4)}, {sr(pCEN, 2)}, 0
    s_load_dword s{sT2}, {sr(pFREQ, 2)}, 0
    """)
    sPM, sPFO, sPFD = 100, 99, 82

    def spf():
        return f"""
        s_load_dword s{sPFD}, {sr(sPM, 2)}, s{sPFO}
        s_add_u32 s{sPFO}, s{sPFO}, {4096 * 128}
        s_min_u32 s{sPFO}, s{sPFO}, {E * 32 - 4}
        """
    srd(a, S_REC, 6, REC_BYTES)
    srd(a, S_M, pM, E * 32)
    srd(a, S_OUT, 4, E * 32)
    a(f"s_add_u32 s6, s6, {TAB_OFF}")
    a("s_addc_u32 s7, s7, 0")
    S_TAB = S_TMP
    S_DST = 68
    srd(a, S_TAB, 6, TAB_BYTES + 8192)
    a.c("this wave's 32 x 8 table entries: lane = chunk (l & 31), slices 4*(l >> 5) .. +3")
    a(f"""
    v_and_b32 v{t[0]}, 31, v{vLANE}
    v_lshrrev_b32 v{t[1]}, 5, v{vLANE}
    v_lshlrev_b32 v{vL8}, 3, v{vLANE}
    v_lshlrev_b32 v{t[2]}, 4, v{t[1]}
    v_lshl_add_u32 v{t[2]}, v{t[0]}, {13 if OPT["tabc"] else 5}, v{t[2]}
    s_lshl_b32 s{sT0}, s{sB}, {5 if OPT["tabc"] else 14}
    s_lshl_b32 s{sT1}, s{sW}, {18 if OPT["tabc"] else 10}
    s_add_u32 s{sT0}, s{sT0}, s{sT1}
    v_lshrrev_b32 v{t[3]}, 4, v{vLANE}
    v_lshlrev_b32 v{t[3]}, {13 if OPT["tabc"] else 5}, v{t[3]}
    s_add_u32 s{sT1}, s{sT0}, {4 << (13 if OPT["tabc"] else 5)}
    buffer_load_dword v{vE}, v{t[3]}, {sr(S_TAB, 4)}, s{sT0} offen
    buffer_load_dword v{C[0]}, v{t[3]}, {sr(S_TAB, 4)}, s{sT1} offen
    buffer_load_dwordx4 {vr(TT, 4)}, v{t[2]}, {sr(S_TAB, 4)}, s{sT0} offen
    """)
    srd(a, S_DST, pDIST, E * 2)

    a.c("dist of the bucket's edges t, t+1024, t+2048, t+3072")
    a(f"""
    s_mul_i32 s{sT0}, s{sB}, {EB * 2}
    v_lshlrev_b32 v{t[2]}, 1, v0
    buffer_load_ushort v{t[4]}, v{t[2]}, {sr(S_DST, 4)}, s{sT0} offen
    buffer_load_ushort v{t[5]}, v{t[2]}, {sr(S_DST, 4)}, s{sT0} offen offset:2048
    s_add_u32 s{sT0}, s{sT0}, 4096
    buffer_load_ushort v{t[6]}, v{t[2]}, {sr(S_DST, 4)}, s{sT0} offen
    buffer_load_ushort v{t[7]}, v{t[2]}, {sr(S_DST, 4)}, s{sT0} offen offset:2048
    """)
    a.c("matrix operands prepared by the first kernel")
    a(f"v_lshlrev_b32 v{t[3]}, 4, v{vLANE}")
    for k in range(6):
        a(f"s_mov_b32 s{sT0}, {TAB_BYTES + 1024 * k}")
        a(f"buffer_load_dwordx4 {vr(A1a + 4 * k, 4)}, v{t[3]}, {sr(S_TAB, 4)}, s{sT0} offen")
    npf = 0
    if OPT["pf0"]:
        a.c("touch a share of the first slice of m, one load per 128-byte line")
        lines = (E // OPT["ns"] * 32 // 128 + 31) // 32
        a(f"""
        v_cmp_gt_u32 vcc, {min(lines, 1024)}, v0
        v_lshlrev_b32 v{t[8]}, 7, v0
        s_lshr_b32 s{sT0}, s2, 3
        s_mul_i32 s{sT0}, s{sT0}, {lines * 128}
        v_cndmask_b32 v{t[8]}, v{vOOB}, v{t[8]}, vcc
        buffer_load_dword v{vDUM}, v{t[8]}, {sr(S_M, 4)}, s{sT0} offen
        """)
        npf = 1
    a.c("zero the locks and the accumulators")
    D = D1
    a(f"""
    v_mov_b32 v{D}, 0
    v_mov_b32 v{D + 1}, 0
    v_mov_b32 v{D + 2}, 0
    v_mov_b32 v{D + 3}, 0
    v_lshlrev_b32 v{t[2]}, 4, v0
    v_add_u32 v{t[9]}, {L_ACC0}, v{t[2]}
    """)
    for r in range(4):
        a(f"ds_write_b128 v{t[9]}, {vr(D, 4)} offset:{r * 16384}")
    a(f"v_add_u32 v{t[9]}, 0x10000, v{t[9]}")
    for r in range(2):
        a(f"ds_write_b128 v{t[9]}, {vr(D, 4)} offset:{r * 16384}")
    a(f"""
    v_cmp_gt_u32 vcc, {2 * EB - 6 * 1024}, v0
    s_and_saveexec_b64 {sr(sEX, 2)}, vcc
    ds_write_b128 v{t[9]}, {vr(D, 4)} offset:{2 * 16384}
    s_mov_b64 exec, {sr(sEX, 2)}
    v_cmp_gt_u32 vcc, {L_RBF // 16}, v0
    s_and_saveexec_b64 {sr(sEX, 2)}, vcc
    ds_write_b128 v{t[2]}, {vr(D, 4)}
    s_mov_b64 exec, {sr(sEX, 2)}
    s_waitcnt lgkmcnt(0)
    """)
    if OPT["spf"]:
        a.c("scalar loads walk over m, one per 128-byte line chip-wide, ahead of the gathers")
        a(f"""
        s_lshl_b32 s{sPFO}, s2, 4
        s_add_u32 s{sPFO}, s{sPFO}, s{sW}
        s_lshl_b32 s{sPFO}, s{sPFO}, 7
        """)
        for k in range(OPT["spf"]):
            a(spf())
    a.c("centers and frequencies to f32")
    for k in (3, 2, 1, 0):
        a(f"s_and_b32 s{sCEN + 2 * k + 1}, s{sCEN + k}, 0xffff0000")
        a(f"s_lshl_b32 s{sCEN + 2 * k}, s{sCEN + k}, 16")
    a(f"""
    s_lshl_b32 s{sT0}, s{sT2}, 16
    s_and_b32 s{sT1}, s{sT2}, 0xffff0000
    v_mov_b32 v{t[8]}, 0.15915494
    v_mul_f32 v{t[9]}, s{sT0}, v{t[8]}
    v_mul_f32 v{t[8]}, s{sT1}, v{t[8]}
    v_and_b32 v{vH16}, 1, v{vLANE}
    v_lshlrev_b32 v{vH16}, 4, v{vH16}
    v_readfirstlane_b32 s{sKF0}, v{t[9]}
    v_readfirstlane_b32 s{sKF1}, v{t[8]}
    """)
    a.c("record-stream lane constants")
    a(f"""
    v_and_b32 v{t[8]}, 15, v{vLANE}
    v_lshrrev_b32 v{t[9]}, 4, v{vLANE}
    v_lshlrev_b32 v{vL2}, 1, v{t[8]}
    v_lshlrev_b32 v{vBP}, 2, v{t[9]}
    v_mul_u32_u24 v{t[9]}, {CHB}, v{t[9]}
    v_mad_u32_u24 v{vCB}, v{t[8]}, 12, v{t[9]}
    s_mul_i32 s{sCO}, s{sW}, {32 * CHB}
    s_mul_i32 s{sRB}, s{sW}, {RING_STRIDE}
    s_add_u32 s{sRB}, s{sRB}, {L_RING}
    s_mov_b32 s{sTOP}, s{sRB}
    s_mov_b32 s{sCNT}, 0
    s_mov_b64 {sr(sM[0], 2)}, 0
    s_mov_b64 {sr(sM[1], 2)}, 0
    s_mov_b32 s{sJ}, 0
    s_mov_b32 s{sPH}, 0
    s_mov_b32 s{sG}, 100000
    s_mov_b32 s{sCAP}, {OPT['lim']}
    s_mov_b64 {sr(sF[0], 2)}, 0
    s_mov_b64 {sr(sF[1], 2)}, 0
    s_and_b32 s3, s2, {3 if OPT["stag"] == 1 else (6 if OPT["stag"] == 2 else 0)}
    s_lshl_b32 s3, s3, {1 if OPT["stag"] == 1 else 0}
    s_mov_b32 s83, {-16 * OPT["lag"] + OPT["lagoff"]}
    {'s_mov_b32 s95, 0' if OPT['cntreq'] else ''}
    """)

    uid = [0]
    kmul = (OPT["ns"] << 24) // E
    SLB = ((1 << 24) // kmul * 32) & ~127
    SHARE = (SLB // 128 + 64 * OPT['pfx']) // (64 * OPT['pfx'])

    PER = (SHARE + OPT["pfw"] - 1) // OPT["pfw"]

    def pf_share(sS, tmpv, vPF=vPF):
        return f"""
        s_mul_i32 s{sT0}, s{sS}, {SLB}
        s_mul_i32 s{sT1}, s82, {SHARE * 128}
        s_add_u32 s{sT0}, s{sT0}, s{sT1}
        s_mul_i32 s{sT1}, s{sW}, {PER}
        v_add_u32 v{tmpv}, s{sT1}, v{vLANE}
        v_cmp_gt_u32 vcc, {PER}, v{vLANE}
        v_lshlrev_b32 v{tmpv}, 7, v{tmpv}
        s_nop 0
        v_cndmask_b32 v{tmpv}, v{vOOB}, v{tmpv}, vcc
        buffer_load_dword v{vPF}, v{tmpv}, {sr(S_M, 4)}, s{sT0} offen
        """

    def prep(buf, mid=None, pf=True):
        uid[0] += 1
        u = uid[0]
        a(f"""
        v_lshrrev_b32 v{RL[buf]}, 16, v{vE}
        v_and_b32 v{t[0]}, 1, v{vE}
        v_and_b32 v{t[1]}, 0xfffe, v{vE}
        v_sub_u32 v{RD[buf]}, v{vL2}, v{t[0]}
        v_mad_u32_u24 v{RA[buf]}, v{t[1]}, 6, v{vCB}
        v_cmp_lt_i32 vcc, v{RD[buf]}, v{RL[buf]}
        v_cmp_lt_u32 {sr(sLONG[buf], 2)}, 31, v{RL[buf]}
        s_mov_b32 s{sCOB[buf]}, s{sCO}
        {"s_or_b32 vcc_lo, vcc_lo, 1" if OPT["rexec"] else f"v_cndmask_b32 v{t[1]}, v{vOOB}, v{RA[buf]}, vcc"}
        v_add_u32 v{vBP}, 16, v{vBP}
        s_add_u32 s{sCO}, s{sCO}, {4 * CHB}
        s_add_u32 s{sJ}, s{sJ}, 1
        s_cmp_lt_u32 s{sJ}, 8
        s_cbranch_scc0 P2_adv{u}
        P2_advr{u}:
        {f"ds_bpermute_b32 v{vE}, v{vBP}, v{TT}" if mid else ""}
        """)
        if mid:
            a(mid)
        if OPT["x_fake"]:
            a(f"buffer_load_dword v{D2}, v{vOOB}, {sr(S_REC, 4)}, s{sCOB[buf]} offen{ntr}")
            sz = E // OPT['ns']
            a(f"""
            s_add_u32 s98, s{sK}, {2 + buf}
            s_lshr_b32 s98, s98, 3
            s_min_u32 s98, s98, {OPT['ns'] - 1}
            s_mul_i32 s98, s98, {sz}
            s_mov_b32 s99, {sz}
            s_mov_b32 s97, 0x9E3779B1
            """)
            for dd in (RB[buf], RB[buf] + 2):
                a(f"""
                v_mul_lo_u32 v{D1}, v{D1}, s97
                v_add_u32 v{D1}, 0x3c6ef35f, v{D1}
                v_lshrrev_b32 v{D1 + 1}, 15, v{D1}
                v_xor_b32 v{D1}, v{D1}, v{D1 + 1}
                v_mul_hi_u32 v{dd}, v{D1}, s99
                v_add_u32 v{dd}, s98, v{dd}
                v_lshlrev_b32 v{dd}, 12, v{dd}
                """)
        else:
            if OPT["rexec"]:
                a(f"""
                s_mov_b64 exec, vcc
                buffer_load_dwordx3 {vr(RB[buf], 3)}, v{RA[buf]}, {sr(S_REC, 4)}, s{sCOB[buf]} offen{ntr}
                s_mov_b64 exec, -1
                """)
            else:
                a(f"buffer_load_dwordx3 {vr(RB[buf], 3)}, v{t[1]}, {sr(S_REC, 4)}, s{sCOB[buf]} offen{ntr}")
        if OPT["pfn"] and mid and pf:
            a(f"""
            s_cmp_eq_u32 s{sJ}, s99
            s_cbranch_scc1 P2_pf{u}
            P2_pfr{u}:
            """)
            cold.append(f"""
            P2_pf{u}:
            s_cmp_eq_u32 s{sPH}, s98
            s_cbranch_scc0 P2_pfr{u}
            s_add_u32 s98, s98, {OPT["pfg"]}
            """ + "".join(f"s_add_u32 s{sT2}, s{sPH}, {OPT['pfn'] + g}\n" + pf_share(sT2, t[3]) for g in range(OPT["pfg"])) + f"""
            s_branch P2_pfr{u}
            """)
        cold.append(f"""
        P2_adv{u}:
        s_mov_b32 s{sJ}, 0
        s_sub_u32 s{sCO}, s{sCO}, {32 * CHB}
        s_add_u32 s{sPH}, s{sPH}, 1
        s_cmp_eq_u32 s{sPH}, 4
        s_cselect_b32 s{sT0}, 0, 128
        v_subrev_u32 v{vBP}, s{sT0}, v{vBP}
        v_mov_b32 v{t[0]}, v{TT}
        v_mov_b32 v{TT}, v{TT + 1}
        v_mov_b32 v{TT + 1}, v{TT + 2}
        v_mov_b32 v{TT + 2}, v{TT + 3}
        v_mov_b32 v{TT + 3}, v{t[0]}
        s_cmp_lt_u32 s{sPH}, 8
        s_cbranch_scc1 P2_advr{u}
        v_mov_b32 v{TT}, 0
        s_branch P2_advr{u}
        """)

    cold = []
    a(f"s_waitcnt vmcnt({11 + npf})")
    prep(0)
    a(f"v_mov_b32 v{vE}, v{C[0]}")
    prep(1)

    def pf_prologue():
        a(f"""
        s_bfe_u32 s99, s2, {(3 << 16) | 3 if OPT["pfs"] else 0}
        s_cmp_lt_u32 s99, {4 if OPT['peel'] else 3}
        s_cselect_b32 s98, {OPT["pfg"]}, 0
        s_lshr_b32 s82, s2, 2
        s_mul_i32 s82, s82, {OPT["pfx"]}
        s_and_b32 s{sT0}, s2, 3
        s_add_u32 s82, s82, s{sT0}
        s_cmp_lt_u32 s{sT0}, {OPT["pfx"]}
        s_cselect_b32 s{sT0}, s{sW}, 99
        s_cmp_lt_u32 s{sT0}, {OPT["pfw"]}
        s_cselect_b32 s99, s99, 99
        s_cbranch_scc0 P2_nopf
        """)
        for k in range(OPT["pffirst"], OPT["pfn"] + OPT["pfg"]):
            if k == OPT["pfn"]:
                a(f"s_cmp_lt_u32 s99, {4 if OPT['peel'] else 3}\ns_cbranch_scc0 P2_nopf")
            a(f"s_mov_b32 s{sT2}, {k}")
            a(pf_share(sT2, t[3], vDUM))
        a("P2_nopf:")
    if OPT["pfn"] and OPT["pfpos"] == 0:
        pf_prologue()
    a.c("radial basis table (same roundings as the reference), stored as f16")
    a(f"s_waitcnt vmcnt({8 + npf})")
    sTEN, sL2E = sRET, sRET + 1
    a(f"s_mov_b32 s{sTEN}, 0xc1200000")
    a(f"s_mov_b32 s{sL2E}, {0x3fb8aa3b if OPT['mimic'] else 0xc166d4ca:#x}")
    def rbf_round(r):
        dd = t[4 + r]
        if r == 3:
            a(f"""
            v_cmp_gt_u32 vcc, {EB - 3 * 1024}, v0
            s_and_saveexec_b64 {sr(sEX, 2)}, vcc
            s_cbranch_execz P2_rbf3
            """)
        a(f"v_lshlrev_b32 v{dd}, 16, v{dd}")
        x = [D + k for k in range(8)]
        for k in range(8):
            a(f"v_subrev_f32 v{x[k]}, s{sCEN + k}, v{dd}")

        def rnd():
            if not OPT["mimic"]:
                return
            for k in range(0, 8, 2):
                a(f"v_cvt_pk_bf16_f32 v{D + 8 + k // 2}, v{x[k]}, v{x[k + 1]}")
            for k in range(0, 8, 2):
                a(f"v_lshlrev_b32 v{x[k]}, 16, v{D + 8 + k // 2}")
                a(f"v_and_b32 v{x[k + 1]}, s{sHI}, v{D + 8 + k // 2}")
        rnd()
        for k in range(8):
            a(f"v_mul_f32 v{x[k]}, v{x[k]}, v{x[k]}")
        rnd()
        if OPT["mimic"]:
            for k in range(8):
                a(f"v_mul_f32 v{x[k]}, s{sRET}, v{x[k]}")
        rnd()
        for k in range(8):
            a(f"v_mul_f32 v{x[k]}, s{sRET + 1}, v{x[k]}")
        for k in range(8):
            a(f"v_exp_f32 v{x[k]}, v{x[k]}")
        a("s_nop 0")
        rnd()
        for k in range(0, 8, 2):
            a(f"v_cvt_pk_f16_f32 v{D + 8 + k // 2}, v{x[k]}, v{x[k + 1]}")
        a(f"ds_write_b128 v{t[8]}, {vr(D + 8, 4)} offset:{L_RBF + r * 16384}")
        if r == 3:
            a("P2_rbf3:")
            a(f"s_mov_b64 exec, {sr(sEX, 2)}")


    def rbf_consts():
        a(f"v_lshlrev_b32 v{t[8]}, 4, v0")
    rbf_consts()
    a(f"ds_bpermute_b32 v{vE}, v{vBP}, v{TT}")
    for r in range(2 if OPT["peel"] else 4):
        rbf_round(r)
    a(f"""
    v_mov_b32 v{O[1]}, 0
    v_mov_b32 v{WA[1]}, 0
    """)
    a(f"s_mov_b32 s{sK}, 0")
    if OPT["gexec"]:
        for j in range(16):
            a(f"v_mov_b32 v{GP[0] + j}, 0")

    def prologue_tail():
        if OPT["peel"]:
            rbf_round(2)
            rbf_round(3)
        if OPT["pfn"] and OPT["pfpos"] == 1:
            pf_prologue()
        a("s_waitcnt lgkmcnt(0)\ns_barrier")
    if not OPT["peel"]:
        a.c("two out-of-range loads stand in for the gathers of the steps before the first one")
        for k in range(2):
            a(f"buffer_load_dword v{vDUM}, v{vOOB}, {sr(S_REC, 4)}, 0 offen")
        prologue_tail()

    la, bit, aX, aY, old = t[5], t[6], t[7], t[8], t[9]
    STAMP = OPT["stamp"]

    def st(i):
        return f"s_memtime s[{60 + 2 * i}:{61 + 2 * i}]" if STAMP else ""

    def lg(n):
        return f"s_waitcnt lgkmcnt({0 if STAMP else n})"

    def pop_issue(buf):
        F, NF = sF[buf], sACQ
        return f"""
        s_bcnt0_i32_b64 s{sN}, {sr(F, 2)}
        s_not_b64 {sr(NF, 2)}, {sr(F, 2)}
        s_min_u32 s{sN}, s{sCNT}, s{sN}
        v_mbcnt_lo_u32_b32 v{t[2]}, s{NF}, 0
        s_sub_u32 s{sCNT}, s{sCNT}, s{sN}
        v_mbcnt_hi_u32_b32 v{t[2]}, s{NF + 1}, v{t[2]}
        s_lshl3_add_u32 s{sTOP}, s{sCNT}, s{sRB}
        v_cmp_gt_u32 vcc, s{sN}, v{t[2]}
        v_lshl_add_u32 v{t[2]}, v{t[2]}, 3, s{sTOP}
        s_mov_b64 exec, {sr(NF, 2)}
        v_mov_b32 v{WA[buf]}, 0xfffff000
        v_mov_b32 v{WA[buf] + 1}, 0
        s_and_b64 exec, vcc, {sr(NF, 2)}
        ds_read_b64 {vr(WA[buf], 2)}, v{t[2]}
        s_or_b64 {sr(sM[buf], 2)}, exec, {sr(F, 2)}
        s_mov_b64 exec, -1
        """

    def gathers(buf):
        W, F, X, Y = WA[buf], sF[buf], sACQ, sFAIL
        g0 = f"v_mov_b32 v{t[2]}, v{vOOB}" if OPT["x_nogather"] else f"v_and_b32 v{t[2]}, 0xffffffe0, v{t[2]}"
        return f"""
        v_lshrrev_b32 v{t[2]}, 7, v{W}
        s_and_b64 {sr(X, 2)}, {sr(F, 2)}, {sr(sEVEN, 2)}
        {g0}
        s_lshl_b64 {sr(Y, 2)}, {sr(X, 2)}, 1
        v_lshlrev_b32 v{O[buf]}, 4, v{W}
        v_and_b32 v{t[4]}, s{sHI}, v{W + 1}
        v_or_b32_dpp v{t[3]}, v{t[2]}, v{vH16} quad_perm:[0,0,2,2] row_mask:0xf bank_mask:0xf
        v_or_b32_dpp v{t[2]}, v{t[2]}, v{vH16} quad_perm:[1,1,3,3] row_mask:0xf bank_mask:0xf
        s_nor_b64 exec, {sr(X, 2)}, {sr(Y, 2)}
        s_andn2_b64 {sr(X, 2)}, {sr(F, 2)}, {sr(sEVEN, 2)}
        buffer_load_dwordx4 {vr(GP[buf], 4)}, v{t[3]}, {sr(S_M, 4)}, 0 offen
        s_lshr_b64 {sr(Y, 2)}, {sr(X, 2)}, 1
        s_nor_b64 exec, {sr(X, 2)}, {sr(Y, 2)}
        buffer_load_dwordx4 {vr(GQ[buf], 4)}, v{t[2]}, {sr(S_M, 4)}, 0 offen
        s_mov_b64 exec, -1
        """

    def coschain(buf):
        return f"""
        {f"v_lshlrev_b32 v{O[buf]}, 4, v{vLANE}" if OPT["x_lin"] else f"v_and_b32 v{O[buf]}, 0xfff0, v{O[buf]}"}
        v_mul_f32 v{C[buf]}, s{sKF0}, v{t[4]}
        v_mul_f32 v{t[4]}, s{sKF1}, v{t[4]}
        v_fract_f32 v{C[buf]}, v{C[buf]}
        v_fract_f32 v{t[4]}, v{t[4]}
        v_cos_f32 v{C[buf]}, v{C[buf]}
        v_cos_f32 v{t[4]}, v{t[4]}
        """

    def cospack(buf):
        return f"v_cvt_pk_f16_f32 v{C[buf]}, v{C[buf]}, v{t[4]}"

    def rbf_read(buf):
        return f"ds_read_b128 {vr(S1, 4)}, v{O[buf]} offset:{L_RBF}"

    def gate(buf):
        s = ""
        for j in range(4):
            s += f"v_pk_mul_f16 v{S0 + j}, v{S1 + j}, v{C[buf]} op_sel_hi:[1,0]\n"
        for j in range(4):
            s += f"v_pk_mul_f16 v{S1 + j}, v{S1 + j}, v{C[buf]} op_sel:[0,1]\n"
        s += f"""
        v_mfma_f32_32x32x16_f16 {vr(D2, 16)}, {vr(A2a, 4)}, {vr(S0, 4)}, 0
        s_mov_b64 vcc, {sr(sEVEN, 2)}
        v_mfma_f32_32x32x16_f16 {vr(D2, 16)}, {vr(A2b, 4)}, {vr(S1, 4)}, {vr(D2, 16)}
        """
        return s

    def fixup(buf):
        s = ""
        for j in range(4):
            s += f"v_cndmask_b32_dpp v{S0 + j}, v{GQ[buf] + j}, v{GP[buf] + j}, vcc quad_perm:[0,0,2,2] row_mask:0xf bank_mask:0xf\n"
        s += "s_not_b64 vcc, vcc\n"
        for j in range(4):
            s += f"v_cndmask_b32_dpp v{S1 + j}, v{GP[buf] + j}, v{GQ[buf] + j}, vcc quad_perm:[1,1,3,3] row_mask:0xf bank_mask:0xf\n"
        return s

    def muls():
        for j in range(0, 16, 2):
            a(f"v_pk_mul_f32 {vr(D1 + j, 2)}, {vr(D1 + j, 2)}, {vr(D2 + j, 2)}")

    def core_a(buf, fill, fill2=""):
        W = WA[buf]
        a(f"""
        v_mfma_f32_32x32x16_bf16 {vr(D1, 16)}, {vr(A1a, 4)}, {vr(S0, 4)}, 0
        v_add_u32 v{aX}, {L_ACC0}, v{O[buf]}
        v_mfma_f32_32x32x16_bf16 {vr(D1, 16)}, {vr(A1b, 4)}, {vr(S1, 4)}, {vr(D1, 16)}
        v_add_u32 v{aY}, {L_ACC1}, v{O[buf]}
        v_lshrrev_b32 v{la}, 2, v{W}
        v_lshlrev_b32_e64 v{bit}, v{W}, 1
        v_permlane32_swap_b32 v{aX}, v{aY}
        v_and_b32 v{la}, 0x3fc, v{la}
        """)
        a(fill)
        if not OPT["valu_add"]:
            muls()
        else:
            a("s_nop 0")
        a(fill2)

    def core_b(buf, inline):
        uid[0] += 1
        u = uid[0]
        W, M = WA[buf], sM[buf]
        nrm = OPT["x_normw"]
        va = OPT["valu_add"]
        guard = f"s_sub_u32 s{sG}, s{sG}, 1\ns_cbranch_scc1 P2_done" if OPT["guard"] else ""
        a(f"""
        {st(5) if inline else ""}
        {"s_setprio 3" if OPT["prio"] else ""}
        s_mov_b64 exec, {sr(M, 2)}
        {f"v_mov_b32 v{old}, 0" if nrm else f"ds_or_rtn_b32 v{old}, v{la}, v{bit}"}
        s_mov_b64 exec, -1
        {"" if nrm else f"ds_read_b128 {vr(AX, 4)}, v{aX}"}
        {"" if nrm else f"ds_read_b128 {vr(AY, 4)}, v{aY}"}
        {f"ds_read_b32 v{t[10]}, v{vH16} offset:784" if inline else ""}
        {lg(2 if inline else 1)}
        {st(6) if inline else ""}
        """)
        check = f"""
        v_cmp_eq_u32 vcc, 0, v{old}
        s_and_b64 {sr(sACQ, 2)}, vcc, {sr(M, 2)}
        s_andn2_b64 {sr(sF[buf], 2)}, {sr(M, 2)}, vcc
        s_bcnt1_i32_b64 s{sN}, {sr(sF[buf], 2)}
        {"s_add_u32 s95, s95, s%d" % sN if OPT["cntreq"] else ""}
        s_mov_b32 exec_lo, s{sACQ}
        s_mov_b32 exec_hi, s{sACQ}
        s_cmp_gt_u32 s{sN}, s{sCAP}
        """
        U = [TF, TF + 1, TF + 2, TF + 3, GP[buf], GP[buf] + 1, GP[buf] + 2, GP[buf] + 3]

        def addhalf(Ac, off):
            for j in range(4):
                a(f"v_lshlrev_b32 v{U[2 * j]}, 16, v{Ac + j}")
                a(f"v_and_b32 v{U[2 * j + 1]}, s{sHI}, v{Ac + j}")
            for j in range(4):
                a(f"v_pk_fma_f32 {vr(U[2 * j], 2)}, {vr(D1 + off + 2 * j, 2)}, {vr(D2 + off + 2 * j, 2)}, {vr(U[2 * j], 2)}")
            for j in range(4):
                a(f"v_cvt_pk_bf16_f32 v{Ac + j}, v{U[2 * j]}, v{U[2 * j + 1]}")
        if va:
            a(f"v_and_b32 v{old}, v{old}, v{bit}")
            a(check)
            addhalf(AX, 0)
        else:
            a(f"""
            v_mfma_f32_32x32x16_bf16 {vr(D2, 16)}, {vr(A3a, 4)}, {vr(AX, 4)}, {vr(D1, 16)}
            v_and_b32 v{old}, v{old}, v{bit}
            s_waitcnt lgkmcnt({1 if inline else 0})
            v_mfma_f32_32x32x16_bf16 {vr(D2, 16)}, {vr(A3b, 4)}, {vr(AY, 4)}, {vr(D2, 16)}
            """)
            a(check)
            a("s_nop 4")
            for j in range(4):
                a(f"v_cvt_pk_bf16_f32 v{AX + j}, v{D2 + 2 * j}, v{D2 + 2 * j + 1}")
        a(f"""
        {"" if nrm else f"ds_write_b128 v{aX}, {vr(AX, 4)}"}
        s_mov_b32 exec_lo, s{sACQ + 1}
        s_mov_b32 exec_hi, s{sACQ + 1}
        """)
        if va:
            a(f"s_waitcnt lgkmcnt({2 if inline else 1})")
            addhalf(AY, 8)
        else:
            for j in range(4):
                a(f"v_cvt_pk_bf16_f32 v{AY + j}, v{D2 + 8 + 2 * j}, v{D2 + 8 + 2 * j + 1}")
        a(f"""
        {"" if nrm else f"ds_write_b128 v{aY}, {vr(AY, 4)}"}
        s_mov_b64 exec, {sr(sACQ, 2)}
        {"" if nrm else f"ds_xor_b32 v{la}, v{bit}"}
        {f"s_setprio {OPT['pbase']}" if OPT["prio"] else ""}
        s_mov_b64 exec, -1
        s_cbranch_scc1 P2_full{u}
        """)
        if inline:
            a(f"P2_fullr{u}:")
            cold.append(f"""
            P2_full{u}:
            s_mov_b64 {sr(M, 2)}, {sr(sF[buf], 2)}
            s_call_b64 {sr(sRET2, 2)}, P2_rmw{buf}
            s_branch P2_fullr{u}
            """)
        else:
            a(f"""
            s_setpc_b64 {sr(sRET2, 2)}
            P2_full{u}:
            {guard}
            s_mov_b64 {sr(M, 2)}, {sr(sF[buf], 2)}
            s_branch P2_rmw{buf}
            """)

    def slow_push(buf, slot):
        uid[0] += 1
        u = uid[0]
        d0, d1, d2 = RB[buf], RB[buf] + 1, RB[buf] + 2
        if slot == 0:
            s = f"""
            v_cmp_lt_u32 {sr(sM0, 2)}, v{RD[buf]}, v{RL[buf]}
            v_lshlrev_b32 v{t[11]}, 16, v{d1}
            """
            w, an = d0, t[11]
        else:
            s = f"""
            v_add_u32 v{t[11]}, 1, v{RD[buf]}
            v_cmp_lt_u32 {sr(sM0, 2)}, v{t[11]}, v{RL[buf]}
            """
            w, an = d2, d1
        return s + f"""
        P2_push{u}:
        s_bcnt1_i32_b64 s{sN0}, {sr(sM0, 2)}
        s_add_u32 s{sT0}, s{sCNT}, s{sN0}
        s_cmp_le_u32 s{sT0}, {RING_CAP}
        s_cbranch_scc1 P2_pok{u}
        s_call_b64 {sr(sRET, 2)}, P2_pop{buf}
        s_branch P2_push{u}
        P2_pok{u}:
        v_mbcnt_lo_u32_b32 v{t[4]}, s{sM0}, 0
        v_mbcnt_hi_u32_b32 v{t[4]}, s{sM0 + 1}, v{t[4]}
        v_lshl_add_u32 v{t[4]}, v{t[4]}, 3, s{sTOP}
        s_mov_b64 exec, {sr(sM0, 2)}
        ds_write2_b32 v{t[4]}, v{w}, v{an} offset1:1
        s_mov_b64 exec, -1
        s_mov_b32 s{sCNT}, s{sT0}
        s_lshl3_add_u32 s{sTOP}, s{sN0}, s{sTOP}
        """

    def step(buf, peeled=False):
        uid[0] += 1
        u = uid[0]
        prev = buf ^ 1
        d0, d1, d2 = RB[buf], RB[buf] + 1, RB[buf] + 2
        a.c(f"---- step, buffer {buf}: compact the loaded records onto the stack")
        if OPT["rot"] and (OPT["rot"] == 1 or buf == 0):
            a(f"""
            s_add_u32 s82, s82, 1
            s_bitcmp1_b32 s82, 1
            s_cbranch_scc1 P2_prh{u}
            s_setprio 0
            s_bitcmp1_b32 s82, 0
            s_cbranch_scc0 P2_pre{u}
            s_setprio 1
            s_branch P2_pre{u}
            P2_prh{u}:
            s_setprio 2
            s_bitcmp1_b32 s82, 0
            s_cbranch_scc0 P2_pre{u}
            s_setprio 3
            P2_pre{u}:
            """)
        a(f"""
        {st(0)}
        s_waitcnt vmcnt({1 if peeled else 3})
        {st(1)}
        v_cmp_lt_u32 {sr(sM0, 2)}, v{RD[buf]}, v{RL[buf]}
        v_add_u32 v{t[1]}, 1, v{RD[buf]}
        v_lshlrev_b32 v{t[2]}, 16, v{d1}
        v_cmp_lt_u32 {sr(sM1, 2)}, v{t[1]}, v{RL[buf]}
        s_bcnt1_i32_b64 s{sN0}, {sr(sM0, 2)}
        v_mbcnt_lo_u32_b32 v{t[0]}, s{sM0}, 0
        s_bcnt1_i32_b64 s{sN}, {sr(sM1, 2)}
        v_mbcnt_hi_u32_b32 v{t[0]}, s{sM0 + 1}, v{t[0]}
        v_mbcnt_lo_u32_b32 v{t[1]}, s{sM1}, 0
        s_add_u32 s{sT0}, s{sCNT}, s{sN0}
        v_mbcnt_hi_u32_b32 v{t[1]}, s{sM1 + 1}, v{t[1]}
        s_add_u32 s{sT0}, s{sT0}, s{sN}
        s_lshl3_add_u32 s{sT1}, s{sN0}, s{sTOP}
        v_lshl_add_u32 v{t[0]}, v{t[0]}, 3, s{sTOP}
        s_cmp_lg_u64 {sr(sLONG[buf], 2)}, 0
        s_cselect_b32 s{sT2}, 0, {RING_CAP + 1}
        v_lshl_add_u32 v{t[1]}, v{t[1]}, 3, s{sT1}
        s_cmp_ge_u32 s{sT0}, s{sT2}
        s_cbranch_scc1 {"P2_alt" if peeled else f"P2_slow{u}"}
        s_mov_b64 exec, {sr(sM0, 2)}
        ds_write2_b32 v{t[0]}, v{d0}, v{t[2]} offset1:1
        s_mov_b64 exec, {sr(sM1, 2)}
        ds_write2_b32 v{t[1]}, v{d2}, v{d1} offset1:1
        s_mov_b64 exec, -1
        s_mov_b32 s{sCNT}, s{sT0}
        P2_slowr{u}:
        """)
        if peeled:
            a(pop_issue(buf))
            a("s_waitcnt lgkmcnt(0)")
            prep(buf, gathers(buf), False)
            a(coschain(buf))
            a("s_nop 0")
            a(cospack(buf))
            return
        cold.append(f"P2_slow{u}:\n" + slow_push(buf, 0) + slow_push(buf, 1) + f"""
        P2_long{u}:
        v_add_u32 v{RD[buf]}, 32, v{RD[buf]}
        v_add_u32 v{RA[buf]}, 192, v{RA[buf]}
        v_cmp_lt_i32 vcc, v{RD[buf]}, v{RL[buf]}
        s_cbranch_vccz P2_slowr{u}
        s_nop 0
        v_cndmask_b32 v{t[4]}, v{vOOB}, v{RA[buf]}, vcc
        buffer_load_dwordx3 {vr(RB[buf], 3)}, v{t[4]}, {sr(S_REC, 4)}, s{sCOB[buf]} offen
        s_waitcnt vmcnt(0)
        """ + slow_push(buf, 0) + slow_push(buf, 1) + f"s_branch P2_long{u}\n")
        if OPT["x_nopop"]:
            a(f"s_mov_b32 s{sCNT}, 0\ns_mov_b32 s{sTOP}, s{sRB}")
            prep(buf)
            for k in range(2):
                a(f"buffer_load_dword v{vDUM}, v{vOOB}, {sr(S_REC, 4)}, 0 offen")
            a("s_waitcnt lgkmcnt(0)")
            return
        a(pop_issue(buf))
        a(rbf_read(prev))
        prep(buf, lg(2) + "\n" + st(2) + "\n" + gathers(buf))
        a(st(3))
        a(lg(1))
        if OPT["x_nocore"]:
            a("s_waitcnt vmcnt(4) lgkmcnt(0)")
            a(f"s_mov_b64 {sr(sM[buf], 2)}, 0")
        else:
            a(gate(prev))
            a("s_waitcnt vmcnt(4)")
            a(st(4))
            a(fixup(prev))
            core_a(prev, coschain(buf), cospack(buf))
            core_b(prev, True)
        if OPT["lag"]:
            a(f"""
            s_waitcnt lgkmcnt(3)
            v_readfirstlane_b32 s{sT1}, v{t[10]}
            {spf() if OPT["spf"] else ""}
            s_mov_b64 exec, 1
            s_add_u32 s83, s83, 16
            ds_inc_u32 v{vH16}, v{vOOB} offset:784
            s_mov_b64 exec, -1
            s_cmp_lt_i32 s{sT1}, s83
            s_cbranch_scc1 P2_poll{u}
            """)
            if OPT["dynp"]:
                a(f"""
                s_sub_u32 s{sT1}, s{sT1}, {OPT["dynp"]}
                s_cmp_lt_i32 s{sT1}, s83
                s_cbranch_scc1 P2_pollr{u}
                s_setprio 2
                """)
            a(f"P2_pollr{u}:")
            cold.append(f"""
            P2_poll{u}:
            s_setprio 0
            s_mov_b64 exec, 1
            ds_read_b32 v{t[10]}, v{vH16} offset:784
            s_mov_b64 exec, -1
            s_waitcnt lgkmcnt(0)
            v_readfirstlane_b32 s{sT1}, v{t[10]}
            s_cmp_ge_i32 s{sT1}, s83
            s_setprio {OPT['pbase']}
            s_cbranch_scc1 P2_pollr{u}
            {f"s_sleep {OPT['sleep']}" if OPT['sleep'] else ''}
            {f"s_sub_u32 s{sG}, s{sG}, 1" if OPT["guard"] else ""}
            {"s_cbranch_scc1 P2_done" if OPT["guard"] else ""}
            s_branch P2_poll{u}
            """)
        if STAMP:
            a("s_waitcnt lgkmcnt(0)")
            a("s_sub_u32 s96, s60, s74\ns_add_u32 s84, s84, s96")
            a("s_memtime s[74:75]\ns_waitcnt lgkmcnt(0)")
            for i in range(7):
                a(f"s_sub_u32 s96, s{62 + 2 * i}, s{60 + 2 * i}\ns_add_u32 s{85 + i}, s{85 + i}, s96")

    if OPT["peel"]:
        a.c("first half of step 0 runs before the rest of the setup, so that its gathers are under way")
        step(0, True)
        a(f"s_call_b64 {sr(sRET2, 2)}, P2_tail")
        if OPT["stamp2"]:
            a("s_memrealtime s[60:61]\ns_memtime s[72:73]\ns_waitcnt lgkmcnt(0)")
        if OPT["lag"]:
            a(f"""
            s_mov_b64 exec, 1
            s_add_u32 s83, s83, 16
            ds_inc_u32 v{vH16}, v{vOOB} offset:784
            s_mov_b64 exec, -1
            """)
        a(f"""
        s_branch P2_step1
        P2_tail:
        """)
        prologue_tail()
        a(f"""
        s_setpc_b64 {sr(sRET2, 2)}
        P2_alt:
        s_call_b64 {sr(sRET2, 2)}, P2_tail
        """)
    if OPT["stamp2"]:
        a("s_memrealtime s[60:61]\ns_memtime s[72:73]\ns_waitcnt lgkmcnt(0)")
    if STAMP:
        for i in range(8):
            a(f"s_mov_b32 s{84 + i}, 0")
        a("s_memtime s[74:75]")
    if OPT["x_fake"]:
        a(f"s_lshl_b32 s98, s2, 10\nv_add_u32 v{D1}, s98, v0\nv_mul_lo_u32 v{D1}, v{D1}, v{D1}\nv_add_u32 v{D1}, v{D1}, v0")
    a("P2_loop:")
    if OPT["phase_bar"]:
        a(f"""
        s_add_u32 s{sT0}, s{sK}, s3
        s_and_b32 s{sT0}, s{sT0}, 7
        s_cbranch_scc1 P2_nobar
        s_barrier
        P2_nobar:
        """)
    a(f"""
    s_cmp_lt_u32 s{sK}, {8 * OPT['ns'] - 2}
    s_cselect_b32 s{sCAP}, {OPT['lim']}, 0
    """)
    step(0)
    a("P2_step1:")
    step(1)
    a(f"""
    s_add_u32 s{sK}, s{sK}, 2
    s_cmp_lt_u32 s{sK}, {8 * OPT['ns']}
    s_cbranch_scc1 P2_loop
    """)
    if STAMP:
        a(f"""
        s_lshl_b32 s96, s2, 4
        s_add_u32 s96, s96, s{sW}
        s_lshl_b32 s96, s96, 6
        s_add_u32 s6, s6, {16 << 20}
        s_addc_u32 s7, s7, 0
        """)
        srd(a, S_DST, 6, 1 << 20)
        a(f"v_mov_b32 v{t[0]}, 0")
        for i in range(8):
            a(f"v_mov_b32 v{t[1]}, s{84 + i}")
            a(f"buffer_store_dword v{t[1]}, v{t[0]}, {sr(S_DST, 4)}, s96 offen offset:{4 * i}")
        a("s_waitcnt vmcnt(0)")
    if OPT["stamp2"]:
        a("s_memrealtime s[62:63]\ns_memtime s[74:75]\ns_waitcnt lgkmcnt(0)\ns_sub_u32 s72, s74, s72")
    a.c("fetch the epilogue's operands and the bucket's own m rows; finish the last pop; empty the stack")
    MP = [TT, RB[0], RB[1], RL[0], GP[1], GQ[1], WA[0]]
    A1, A2, A3, DX, DY, SX, SY = GP[0], GQ[0], A3a, D1, D2, A2a, A2b
    vMO = vE
    a(f"""
    v_and_b32 v{t[0]}, 31, v{vLANE}
    v_lshrrev_b32 v{t[1]}, 5, v{vLANE}
    v_lshlrev_b32 v{t[1]}, 4, v{t[1]}
    s_lshl_b32 s{sT0}, s{sW}, 10
    v_lshl_add_u32 v{vMO}, v{t[0]}, 5, v{t[1]}
    v_add_u32 v{vMO}, s{sT0}, v{vMO}
    s_mul_i32 s{sCO}, s{sB}, {EB * 32}
    s_mov_b32 s{sJ}, s{sCO}
    v_lshlrev_b32 v{t[2]}, 4, v{vLANE}
    s_mov_b32 s{sT0}, {TAB_BYTES + 1024 * 6}
    s_mov_b32 s{sT1}, {TAB_BYTES + 1024 * 7}
    {rbf_read(1)}
    buffer_load_dwordx4 {vr(A1, 4)}, v{t[2]}, {sr(S_TAB, 4)}, s{sT0} offen
    buffer_load_dwordx4 {vr(A2, 4)}, v{t[2]}, {sr(S_TAB, 4)}, s{sT1} offen
    buffer_load_dwordx4 {vr(MP[0], 4)}, v{vMO}, {sr(S_M, 4)}, s{sJ} offen
    s_add_u32 s{sJ}, s{sJ}, 16384
    s_waitcnt lgkmcnt(0)
    """)
    a(gate(1))
    a("s_waitcnt vmcnt(3)")
    for i in range(1, 4):
        a(f"buffer_load_dwordx4 {vr(MP[i], 4)}, v{vMO}, {sr(S_M, 4)}, s{sJ} offen")
        a(f"s_add_u32 s{sJ}, s{sJ}, 16384")
    a(fixup(1))
    core_a(1, "s_nop 6")
    a(f"""
    s_call_b64 {sr(sRET2, 2)}, P2_rmw1
    P2_drain:
    s_cmp_eq_u32 s{sCNT}, 0
    s_cbranch_scc1 P2_epi
    s_call_b64 {sr(sRET, 2)}, P2_pop1
    s_branch P2_drain
    P2_epi:
    """)
    for i in range(4, 7):
        a(f"buffer_load_dwordx4 {vr(MP[i], 4)}, v{vMO}, {sr(S_M, 4)}, s{sJ} offen")
        a(f"s_add_u32 s{sJ}, s{sJ}, 16384")
    if OPT["cntreq"]:
        a(f"""
        s_load_dwordx2 s[60:61], s[0:1], 96
        s_waitcnt lgkmcnt(0)
        v_mov_b32 v{t[0]}, s95
        v_mov_b32 v{t[1]}, 0
        s_mov_b64 exec, 1
        global_atomic_add v{t[1]}, v{t[0]}, s[60:61]
        s_mov_b64 exec, -1
        s_waitcnt vmcnt(0)
        """)
    a(f"""
    s_lshl_b32 s{sT0}, s{sW}, 9
    s_mov_b32 s{sT2}, {L_ACC0}
    v_and_b32 v{t[1]}, 31, v{vLANE}
    v_lshlrev_b32 v{t[1]}, 4, v{t[1]}
    v_add_u32 v{t[1]}, s{sT0}, v{t[1]}
    v_lshrrev_b32 v{t[0]}, 5, v{vLANE}
    v_mul_u32_u24 v{t[0]}, {EB * 16}, v{t[0]}
    v_add3_u32 v{t[0]}, v{t[0]}, v{t[1]}, s{sT2}
    s_waitcnt vmcnt(3) lgkmcnt(0)
    """)
    if OPT["stamp2"]:
        a("s_memrealtime s[64:65]\ns_waitcnt lgkmcnt(0)")
    a("s_barrier")
    if OPT["stamp2"]:
        a("s_memrealtime s[66:67]\ns_waitcnt lgkmcnt(0)")
    a.c("epilogue: out = m + (agg @ w_up) * (rbf @ w_rbf), 32 edges per pass, two passes at a time")
    OBX, OBY = TF, A3b

    def epi(groups):
        regs = [(DX, AX, SX, OBX), (DY, AY, SY, OBY)]
        for (i, va), (Dd, Ac, Sb, Ob) in zip(groups, regs):
            a(f"ds_read_b128 {vr(Ac, 4)}, v{t[0]} offset:{8192 * i}")
            a(f"ds_read_b128 {vr(Sb, 4)}, v{t[1]} offset:{L_RBF + 8192 * i}")
        n = len(groups)
        for k, ((i, va), (Dd, Ac, Sb, Ob)) in enumerate(zip(groups, regs)):
            a(f"s_waitcnt lgkmcnt({2 * (n - 1 - k)})")
            a(f"v_mfma_f32_32x32x16_bf16 {vr(Dd, 16)}, {vr(A1, 4)}, {vr(Ac, 4)}, 0")
            a(f"v_mfma_f32_32x32x16_f16 {vr(Dd, 16)}, {vr(A2, 4)}, {vr(Sb, 4)}, {vr(Dd, 16)}")
        a("s_nop 11")
        for (i, va), (Dd, Ac, Sb, Ob) in zip(groups, regs):
            for j in range(0, 8, 2):
                a(f"v_pk_mul_f32 {vr(Dd + j, 2)}, {vr(Dd + j, 2)}, {vr(Dd + 8 + j, 2)}")
        a({4: "s_waitcnt vmcnt(5)", 6: "s_waitcnt vmcnt(6)"}.get(groups[0][0], "s_nop 0"))
        a("s_nop 0")
        for (i, va), (Dd, Ac, Sb, Ob) in zip(groups, regs):
            a(f"v_mfma_f32_32x32x16_bf16 {vr(Dd, 16)}, {vr(A3, 4)}, {vr(MP[i], 4)}, {vr(Dd, 16)}")
        a("s_nop 11")
        for (i, va), (Dd, Ac, Sb, Ob) in zip(groups, regs):
            for j in range(4):
                a(f"v_cvt_pk_bf16_f32 v{Ob + j}, v{Dd + 2 * j}, v{Dd + 2 * j + 1}")
            a(f"buffer_store_dwordx4 {vr(Ob, 4)}, v{va}, {sr(S_OUT, 4)}, s{sCO} offen{nto}")
            a(f"s_add_u32 s{sCO}, s{sCO}, 16384")

    for i in (0, 2, 4):
        epi([(i, vMO), (i + 1, vMO)])
    if OPT["stamp2"]:
        a(f"""
        s_memrealtime s[84:85]
        s_waitcnt vmcnt(0) lgkmcnt(0)
        s_memrealtime s[86:87]
        s_lshl_b32 s98, s2, 4
        s_add_u32 s98, s98, s{sW}
        s_lshl_b32 s98, s98, 6
        s_add_u32 s6, s6, {16 << 20}
        s_addc_u32 s7, s7, 0
        s_waitcnt lgkmcnt(0)
        """)
        srd(a, S_TMP, 6, 1 << 20)
        a(f"v_mov_b32 v{t[5]}, 0")
        for i, r in enumerate([94, 60, 62, 64, 66, 84, 86, 72]):
            a(f"v_mov_b32 v{t[6]}, s{r}")
            a(f"buffer_store_dword v{t[6]}, v{t[5]}, {sr(S_TMP, 4)}, s98 offen offset:{4 * i}")
    a(f"""
    s_cmp_lt_u32 s{sW}, 2
    s_cbranch_scc0 P2_done
    v_cmp_gt_u32 vcc, {(EB - 6 * 512) * 32}, v{vMO}
    v_mov_b32 v{t[2]}, 0x7fffff00
    s_nop 0
    v_cndmask_b32 v{t[2]}, v{t[2]}, v{vMO}, vcc
    """)
    epi([(6, t[2])])
    a("P2_done:")
    a("s_endpgm")
    for buf in range(2):
        a.c(f"subroutine: pop up to 64 records into buffer {buf} and finish them")
        a(f"P2_pop{buf}:")
        if OPT["guard"]:
            a(f"s_sub_u32 s{sG}, s{sG}, 1\ns_cbranch_scc1 P2_done")
        a(pop_issue(buf))
        a("s_waitcnt lgkmcnt(0)")
        a(gathers(buf))
        a(coschain(buf))
        a(f"""
        {rbf_read(buf)}
        {cospack(buf)}
        s_mov_b64 {sr(sRET2, 2)}, {sr(sRET, 2)}
        s_waitcnt lgkmcnt(0)
        """)
        a(gate(buf))
        a("s_waitcnt vmcnt(0)")
        a(fixup(buf))
        core_a(buf, "s_nop 6")
        a(f"P2_rmw{buf}:")
        core_b(buf, False)
    for c in cold:
        a(c)
    kernel_desc(a, name, 128, 102)


def build():
    assert OPT['stag'] != 3 or max((OPT['rotl'] >> (4 * q)) & 15 for q in range(4)) < OPT['ns']
    assert not OPT['valu_add']
    a = A()
    ref = open(f"cdna_kernels/{NAME}.s.ref").read().split("\n")
    for line in ref:
        if line.startswith("; Override"):
            break
        a.raw(line)
    a.raw(f"; @launch kernel=part_kernel grid=({NB},1,1) block=(1024,1,1) lds={P1_LDS}")
    a.raw(f"; @launch kernel={NAME}_kernel grid=({NB},1,1) block=(1024,1,1) lds={P2_LDS}")
    a.raw('.amdgcn_target "amdgcn-amd-amdhsa--gfx950"')
    gen_part(a, "part_kernel")
    gen_main(a, f"{NAME}_kernel")
    return a.text()


def main():
    out = f"cdna_kernels/{NAME}.s"
    for arg in sys.argv[1:]:
        if "=" in arg:
            k, v = arg.split("=")
            assert k in OPT, k
            OPT[k] = type(OPT[k])(int(v))
        else:
            out = arg
    open(out, "w").write(build())


if __name__ == "__main__":
    main()
```

```python
import sys

NAME = "gather_scatter__molecular_angular_gemnet__graph"
E = 800000
T = 12800000
NB = 256
EB = 3125
CH = 25000
NCH = 512
NS = 8
CHB = 150016
REC_BYTES = NCH * CHB
TAB_OFF = REC_BYTES
TAB_BYTES = NB * NCH * 32
OPS_OFF = TAB_OFF + TAB_BYTES

OPT = dict(
    nt_in=True,
    nt_rec=False,
    phase_bar=False,
    nt_out=False,
    x_nogather=False, x_normw=False, x_norec=False,
    angl=1, bang=1, lim=24, x_lin=0, pbase=1, dynp=8, rexec=0, gexec=0, aslot=1, rotl=0x3615, pfx=4, tabc=1, sleep=0, pfp1=0, peel=1, pfg=1, stm=1, stmb=1, outm=2, pfw=2, pfpos=1, pffirst=0, spf=0, pfs=1, pfn=0, mimic=1, pf0=0, valu_add=1, early=1, stpos=2, stag=3, pfm=0, slide=0, ns=7, bdelay=0, stamp1=0, stamp2=0, lag=1, lagoff=6, cntreq=0, rot=0, rotshift=2, stamp=False, pkf32=True, x_fake=0, x_nocore=0, x_recx4=0, x_nomfma=0, x_nopop=0, prio=True, lock_pos=2,
    guard=False,
)


class A:
    def __init__(self):
        self.l = []

    def __call__(self, s=""):
        for line in s.split("\n"):
            line = line.strip()
            if line:
                if line.endswith(":"):
                    self.l.append(line)
                else:
                    self.l.append("    " + line)

    def c(self, s):
        self.l.append("    ; " + s)

    def raw(self, s):
        self.l.append(s)

    def text(self):
        return "\n".join(self.l) + "\n"


def vr(a, n):
    return f"v[{a}:{a + n - 1}]"


def sr(a, n):
    return f"s[{a}:{a + n - 1}]"


def srd(a, dst, base, nbytes, stride=0):
    a(f"s_mov_b32 s{dst}, s{base}")
    a(f"s_and_b32 s{dst + 1}, s{base + 1}, 0xffff")
    if stride:
        a(f"s_or_b32 s{dst + 1}, s{dst + 1}, {stride << 16:#x}")
    a(f"s_mov_b32 s{dst + 2}, {nbytes}")
    a(f"s_mov_b32 s{dst + 3}, 0x20000")


def kernel_head(a, name):
    a.raw(".text")
    a.raw(f".globl {name}")
    a.raw(".p2align 8")
    a.raw(f".type {name},@function")
    a.raw(f"{name}:")


def kernel_desc(a, name, vgpr, sgpr):
    a.raw('.section .rodata,"a"')
    a.raw(".p2align 6")
    a.raw(f".amdhsa_kernel {name}")
    a.raw(f"  .amdhsa_next_free_vgpr {vgpr}")
    a.raw(f"  .amdhsa_next_free_sgpr {sgpr}")
    a.raw(f"  .amdhsa_accum_offset {(vgpr + 3) // 4 * 4}")
    a.raw("  .amdhsa_group_segment_fixed_size 0")
    a.raw("  .amdhsa_kernarg_size 112")
    a.raw("  .amdhsa_user_sgpr_count 2")
    a.raw("  .amdhsa_user_sgpr_kernarg_segment_ptr 1")
    a.raw("  .amdhsa_system_sgpr_workgroup_id_x 1")
    a.raw(".end_amdhsa_kernel")


P1_CNT = 16
P1_PART = P1_CNT + 8192
P1_REC = P1_PART + 64
P1_LDS = 158720


def gen_part(a, name):
    nt = " nt" if OPT["nt_in"] else ""
    STMS = {X: ["", " sc1", " nt", " sc0 sc1", " sc1 nt"][OPT[k]] for X, k in (("A", "stm"), ("B", "stmb"))}
    S_IN, S_OUT, S_ANG, S_REC, S_TAB = 8, 12, 16, 20, 24
    sMAG, sNEG, sMASK, sHI, sDIV6 = 28, 29, 30, 31, 32
    sOI, sOA = 33, 34
    sW, sT0, sT1, sCH = 35, 36, 37, 38
    sEX = 40
    stn = [0]

    def st1():
        if OPT["stamp1"]:
            a(f"s_memrealtime s[{48 + 2 * stn[0]}:{49 + 2 * stn[0]}]\ns_waitcnt lgkmcnt(0)")
            stn[0] += 1
    vT16, vT8, vSIX = 1, 2, 3
    tmp = list(range(4, 14))
    O = {"A": 14, "B": 62}
    I = {"A": 38, "B": 86}
    G = 110
    O6 = {"A": 122, "B": 124}
    I6 = {"A": 123, "B": 125}
    G6 = 126
    vX = 127

    kernel_head(a, name)
    a(f"""
    s_cmp_ge_u32 s2, {NB}
    s_cbranch_scc1 P1_done
    s_load_dwordx4 s[4:7], s[0:1], 8
    s_load_dwordx2 s[42:43], s[0:1], 32
    s_load_dwordx2 s[44:45], s[0:1], 104
    s_load_dwordx2 s[70:71], s[0:1], 0
    v_lshlrev_b32 v{vT16}, 4, v0
    v_lshlrev_b32 v{vT8}, 3, v0
    v_mov_b32 v{vSIX}, 6
    s_mov_b32 s{sMAG}, 1374390
    s_mov_b32 s{sNEG}, {-EB}
    s_mov_b32 s{sMASK}, 0x1c00
    s_mov_b32 s{sHI}, 0xffff0000
    s_mov_b32 s{sDIV6}, 0x2aaaaaab
    v_lshrrev_b32 v4, 6, v0
    v_mov_b32 v6, 0
    v_mov_b32 v7, 0
    v_readfirstlane_b32 s{sW}, v4
    ds_write_b64 v{vT8}, v[6:7] offset:{P1_CNT}
    v_mov_b32 v5, {P1_REC}
    ds_write_b32 v6, v5 offset:{P1_CNT - 4}
    s_waitcnt lgkmcnt(0)
    """)
    srd(a, S_IN, 4, T * 4)
    srd(a, S_OUT, 6, T * 4)
    srd(a, S_ANG, 42, T * 2)
    srd(a, S_REC, 44, REC_BYTES)
    a(f"s_add_u32 s44, s44, {TAB_OFF}")
    a("s_addc_u32 s45, s45, 0")
    srd(a, S_TAB, 44, TAB_BYTES + 8192)
    a(f"""
    s_lshr_b32 s39, s2, 1
    s_and_b32 s39, s39, 7
    s_lshr_b32 s46, s39, {1 if OPT["stag"] == 1 else 0}
    s_lshr_b32 s46, {0xf0 if OPT["stag"] == 1 else 0xff00}, s46
    s_and_b32 s46, s46, {0xf if OPT["stag"] == 1 else 0xff}
    s_mul_i32 s46, s46, {0x11 if OPT["stag"] == 1 else 1}
    """)
    if OPT["stag"] == 3:
        a(f"""
        s_lshr_b32 s46, s39, 1
        s_lshl_b32 s46, s46, 2
        s_sub_u32 s46, 16, s46
        s_lshr_b32 s47, 0x1111, s46
        s_lshl_b32 s46, s47, s46
        s_add_u32 s46, s46, {OPT["rotl"]:#x}
        s_mul_i32 s46, s46, 0x10001
        """)
    a(f"""
    s_lshl_b32 s39, s39, 21
    s_sub_u32 s39, {OPT['ns'] << 24}, s39
    s_mul_i32 s{sOI}, s2, {2 * CH * 4}
    s_mul_i32 s{sOA}, s2, {2 * CH * 2}
    """)

    vmq = []

    def vm_wait(tag):
        last = max(i for i, x in enumerate(vmq) if x == tag)
        a(f"s_waitcnt vmcnt({len(vmq) - 1 - last})")

    pend = []

    def slot(n=1):
        for _ in range(n):
            if pend:
                pend.pop(0)()

    def issue_idx(X, r):
        vmq.extend([(X, r)] * 2)
        if r < 6:
            a(f"""
            buffer_load_dwordx4 {vr(O[X] + 4 * r, 4)}, v{vT16}, {sr(S_OUT, 4)}, s{sOI} offen{nt}
            buffer_load_dwordx4 {vr(I[X] + 4 * r, 4)}, v{vT16}, {sr(S_IN, 4)}, s{sOI} offen{nt}
            s_add_u32 s{sOI}, s{sOI}, 16384
            """)
        else:
            a(f"""
            v_cmp_gt_u32 vcc, {CH - 6 * 4096}, v0
            v_lshlrev_b32 v{tmp[9]}, 2, v0
            s_nop 0
            v_cndmask_b32 v{tmp[9]}, v{vX}, v{tmp[9]}, vcc
            buffer_load_dword v{O6[X]}, v{tmp[9]}, {sr(S_OUT, 4)}, s{sOI} offen{nt}
            buffer_load_dword v{I6[X]}, v{tmp[9]}, {sr(S_IN, 4)}, s{sOI} offen{nt}
            s_add_u32 s{sOI}, s{sOI}, {(CH - 6 * 4096) * 4}
            """)

    def issue_ang(X, r):
        vmq.append((X, "a", r))
        if r < 6:
            a(f"""
            buffer_load_dwordx2 {vr(G + 2 * r, 2)}, v{vT8}, {sr(S_ANG, 4)}, s{sOA} offen{nt}
            s_add_u32 s{sOA}, s{sOA}, 8192
            """)
        else:
            a(f"""
            v_cmp_gt_u32 vcc, {CH - 6 * 4096}, v0
            v_lshlrev_b32 v{tmp[9]}, 1, v0
            s_nop 0
            v_cndmask_b32 v{tmp[9]}, v{vX}, v{tmp[9]}, vcc
            buffer_load_ushort v{G6}, v{tmp[9]}, {sr(S_ANG, 4)}, s{sOA} offen{nt}
            s_add_u32 s{sOA}, s{sOA}, {(CH - 6 * 4096) * 2}
            """)

    def pack(recs):
        n = len(recs)
        tb = tmp[0:n]
        tc = tmp[4:4 + n]
        for k, (o, i, g, hi) in enumerate(recs):
            a(f"v_mul_hi_u32_u24 v{tb[k]}, s{sMAG}, v{o}")
            a(f"v_mul_u32_u24 v{tc[k]}, {(OPT['ns'] << 24) // E}, v{i}")
        if OPT["slide"]:
            for k in range(n):
                a(f"v_add_u32 v{tc[k]}, s39, v{tc[k]}")
            if OPT["ns"] != 8:
                for k in range(n):
                    a(f"v_subrev_u32 v{tmp[8]}, {OPT['ns'] << 24}, v{tc[k]}")
                    a(f"v_min_u32 v{tc[k]}, v{tc[k]}, v{tmp[8]}")
        for k, (o, i, g, hi) in enumerate(recs):
            a(f"v_mad_i32_i24 v{o}, v{tb[k]}, s{sNEG}, v{o}")
            if OPT["stag"] == 3:
                u = tmp[8 + (k & 1)]
                a(f"v_lshrrev_b32 v{u}, 5, v{tb[k]}")
                a(f"v_lshrrev_b32 v{tc[k]}, 24, v{tc[k]}")
                a(f"v_lshlrev_b32 v{u}, 2, v{u}")
                a(f"v_lshlrev_b32 v{tb[k]}, 2, v{tb[k]}")
                a(f"v_bfe_u32 v{u}, s46, v{u}, 4")
                a(f"v_sub_u32 v{tc[k]}, v{tc[k]}, v{u}")
                a(f"v_add_u32 v{u}, {OPT['ns']}, v{tc[k]}")
                a(f"v_min_u32 v{tc[k]}, v{tc[k]}, v{u}")
                continue
            a(f"v_lshrrev_b32 v{tc[k]}, 14, v{tc[k]}")
            if OPT["stag"]:
                u = tmp[8 + (k & 1)]
                a(f"v_lshrrev_b32 v{u}, 5, v{tb[k]}")
                a(f"v_bfe_i32 v{u}, s46, v{u}, 1")
                a(f"v_lshl_add_u32 v{tc[k]}, v{u}, 10, v{tc[k]}")
                if OPT["ns"] != 8:
                    a(f"v_add_u32 v{u}, {OPT['ns'] << 10}, v{tc[k]}")
                    a(f"v_min_u32 v{tc[k]}, v{tc[k]}, v{u}")
            a(f"v_lshlrev_b32 v{tb[k]}, 2, v{tb[k]}")
        for k, (o, i, g, hi) in enumerate(recs):
            a(f"v_lshl_or_b32 v{i}, v{i}, 12, v{o}")
            if OPT["stag"] == 3:
                a(f"v_lshl_or_b32 v{o}, v{tc[k]}, 10, v{tb[k]}")
            else:
                a(f"v_and_or_b32 v{o}, v{tc[k]}, s{sMASK}, v{tb[k]}")
        for k, (o, i, g, hi) in enumerate(recs):
            a(f"ds_add_u32 v{o}, v{vSIX} offset:{P1_CNT}")

    def round_recs(X, r):
        if r < 6:
            return [(O[X] + 4 * r + k, I[X] + 4 * r + k, G + 2 * r + (k >> 1), k & 1) for k in range(4)]
        return [(O6[X], I6[X], G6, 0)]

    def tail_begin(lbl):
        a(f"""
        v_cmp_gt_u32 vcc, {CH - 6 * 4096}, v0
        s_and_saveexec_b64 {sr(sEX, 2)}, vcc
        s_cbranch_execz {lbl}
        """)

    def tail_end(lbl):
        a(f"{lbl}:")
        a(f"s_mov_b64 exec, {sr(sEX, 2)}")

    def wave_scan(v):
        a(f"""
        s_nop 1
        v_add_u32_dpp v{v}, v{v}, v{v} row_shr:1 row_mask:0xf bank_mask:0xf bound_ctrl:0
        s_nop 1
        v_add_u32_dpp v{v}, v{v}, v{v} row_shr:2 row_mask:0xf bank_mask:0xf bound_ctrl:0
        s_nop 1
        v_add_u32_dpp v{v}, v{v}, v{v} row_shr:4 row_mask:0xf bank_mask:0xf bound_ctrl:0
        s_nop 1
        v_add_u32_dpp v{v}, v{v}, v{v} row_shr:8 row_mask:0xf bank_mask:0xf bound_ctrl:0
        """)

    def sort_chunk(X):
        c01, s, inc, p, q = tmp[0], tmp[2], tmp[3], tmp[4], tmp[5]
        st1()
        a.c("exclusive scan of the 2048 counters (units: bytes, 6 per record)")
        a(f"""
        s_waitcnt lgkmcnt(0)
        s_barrier
        """)
        if X == 'A' or OPT['stpos'] < 3:
            slot()
        a(f"""
        ds_read_b64 {vr(c01, 2)}, v{vT8} offset:{P1_CNT}
        s_waitcnt lgkmcnt(0)
        v_add_u32 v{s}, v{c01}, v{c01 + 1}
        v_mov_b32 v{inc}, v{s}
        """)
        wave_scan(inc)
        a(f"""
        s_nop 1
        v_add_u32_dpp v{inc}, v{inc}, v{inc} row_bcast:15 row_mask:0xa bank_mask:0xf
        s_nop 1
        v_add_u32_dpp v{inc}, v{inc}, v{inc} row_bcast:31 row_mask:0xc bank_mask:0xf
        s_lshl_b32 s{sT1}, s{sW}, 2
        v_mov_b32 v{q}, s{sT1}
        v_readlane_b32 s{sT0}, v{inc}, 63
        s_nop 1
        v_mov_b32 v{p}, s{sT0}
        ds_write_b32 v{q}, v{p} offset:{P1_PART}
        v_and_b32 v{q}, 15, v0
        v_lshlrev_b32 v{p}, 2, v{q}
        s_waitcnt lgkmcnt(0)
        s_barrier
        """)
        if X == 'A' or OPT['stpos'] < 3:
            slot()
        a(f"""
        v_cmp_gt_u32 vcc, s{sW}, v{q}
        ds_read_b32 v{p}, v{p} offset:{P1_PART}
        s_waitcnt lgkmcnt(0)
        v_cndmask_b32 v{p}, 0, v{p}, vcc
        """)
        wave_scan(p)
        a(f"""
        v_sub_u32 v{inc}, v{inc}, v{s}
        v_readlane_b32 s{sT0}, v{p}, 15
        s_add_u32 s{sT0}, s{sT0}, {P1_REC}
        s_nop 0
        v_add_u32 v{q + 1}, s{sT0}, v{inc}
        v_add_u32 v{q + 2}, v{q + 1}, v{c01}
        ds_write_b64 v{vT8}, {vr(q + 1, 2)} offset:{P1_CNT}
        s_waitcnt lgkmcnt(0)
        s_barrier
        """)
        assert (q + 1) % 2 == 0
        st1()
        a.c("rank and scatter into the LDS image")
        def rank_issue(recs):
            for k, (o, i, g, hi) in enumerate(recs):
                a(f"ds_add_rtn_u32 v{o}, v{o}, v{vSIX} offset:{P1_CNT}")

        def put_words(recs):
            for k, (o, i, g, hi) in enumerate(recs):
                a(f"v_and_b32 v{tmp[k]}, 2, v{o}")
            for k, (o, i, g, hi) in enumerate(recs):
                a(f"v_add_u32 v{tmp[k]}, v{o}, v{tmp[k]}")
            for k, (o, i, g, hi) in enumerate(recs):
                a(f"ds_write_b32 v{tmp[k]}, v{i}")

        def put_angles(recs):
            for k, (o, i, g, hi) in enumerate(recs):
                a(f"v_and_b32 v{tmp[4 + k]}, 2, v{o}")
            for k, (o, i, g, hi) in enumerate(recs):
                a(f"v_mad_i32_i24 v{tmp[4 + k]}, v{tmp[4 + k]}, -2, v{o}")
            for k, (o, i, g, hi) in enumerate(recs):
                a(f"ds_write_b16{'_d16_hi' if hi else ''} v{tmp[4 + k]}, v{g} offset:4")

        nslot = lambda r: (2 if OPT["stpos"] < 4 or r >= 2 else 0) if X == "B" else OPT["aslot"]
        rank_issue(round_recs(X, 0))
        rank_issue(round_recs(X, 1))
        for r in range(6):
            if r < 4:
                rank_issue(round_recs(X, r + 2))
            a(f"s_waitcnt lgkmcnt({[8, 12, 12, 12, 8, 4][r]})")
            put_words(round_recs(X, r))
            slot(nslot(r))
        tail_begin(f"P1_sc6{X}")
        rank_issue(round_recs(X, 6))
        a("s_waitcnt lgkmcnt(0)")
        put_words(round_recs(X, 6))
        tail_end(f"P1_sc6{X}")
        slot(99)
        for r in range(7):
            vm_wait((X, "a", r))
            if r == 6:
                tail_begin(f"P1_an6{X}")
            put_angles(round_recs(X, r))
            if r == 6:
                tail_end(f"P1_an6{X}")
            if X == "A" and OPT["bang"] == 1 and r < 6:
                issue_ang("B", r)
        slot(99)
        a("""
        s_waitcnt lgkmcnt(0)
        s_barrier
        """)
        st1()
        a.c("read the image back (into the dead record registers) and the counters (now segment ends)")
        dst = [O[X] + 4 * r for r in range(6)] + [I[X] + 4 * r for r in range(4)]
        ra, rb = tmp[8], tmp[9]
        a(f"v_add_u32 v{ra}, 0x10000, v{vT16}")
        a(f"v_add_u32 v{rb}, 0x20000, v{vT16}")
        for r in range(9):
            base = [vT16, ra, rb][r >> 2]
            a(f"ds_read_b128 {vr(dst[r], 4)}, v{base} offset:{P1_REC + (r & 3) * 16384}")
        nlast = CH * 6 // 16 - 9 * 1024
        a(f"""
        v_cmp_gt_u32 vcc, {nlast}, v0
        s_and_saveexec_b64 {sr(sEX, 2)}, vcc
        ds_read_b128 {vr(dst[9], 4)}, v{rb} offset:{P1_REC + 16384}
        s_mov_b64 exec, {sr(sEX, 2)}
        v_cndmask_b32 v{rb}, v{vX}, v{vT16}, vcc
        v_and_b32 v{ra}, 1, v0
        v_lshlrev_b32 v{ra}, 12, v{ra}
        v_lshrrev_b32 v{tmp[0]}, 1, v0
        v_lshl_add_u32 v{ra}, v{tmp[0]}, 2, v{ra}
        s_cmp_lt_u32 s{sW}, 8
        s_cbranch_scc0 P1_notab{X}
        """)
        for qq in range(4):
            if qq:
                a(f"v_add_u32 v{ra}, 1024, v{ra}")
            a(f"ds_read2_b32 {vr(tmp[2 * qq], 2)}, v{ra} offset0:{P1_CNT // 4 - 1} offset1:{P1_CNT // 4}")
        a("s_waitcnt lgkmcnt(0)")
        for qq in range(4):
            s_, e_ = tmp[2 * qq], tmp[2 * qq + 1]
            a(f"""
            v_sub_u32 v{e_}, v{e_}, v{s_}
            v_subrev_u32 v{s_}, {P1_REC}, v{s_}
            v_mul_hi_u32 v{e_}, v{e_}, s{sDIV6}
            v_mul_hi_u32 v{s_}, v{s_}, s{sDIV6}
            v_lshl_or_b32 v{tmp[qq]}, v{e_}, 16, v{s_}
            """)
        a(f"""
        v_lshrrev_b32 v{tmp[4]}, 1, v0
        v_and_b32 v{tmp[5]}, 1, v0
        v_lshlrev_b32 v{tmp[4]}, {5 if OPT["tabc"] else 14}, v{tmp[4]}
        v_lshl_or_b32 v{tmp[4]}, v{tmp[5]}, 4, v{tmp[4]}
        s_branch P1_tab{X}
        P1_notab{X}:
        v_mov_b32 v{tmp[4]}, v{vX}
        P1_tab{X}:
        s_lshl_b32 s{sT0}, s{sCH}, {13 if OPT['tabc'] else 5}
        s_mul_i32 s{sT1}, s{sCH}, {CHB}
        buffer_store_dwordx4 {vr(tmp[0], 4)}, v{tmp[4]}, {sr(S_TAB, 4)}, s{sT0} offen
        s_waitcnt lgkmcnt(0)
        """)
        vmq.append("st")
        a(f"s_add_u32 s{sT0}, s{sT1}, {9 * 16384}")
        a(f"buffer_store_dwordx4 {vr(dst[9], 4)}, v{rb}, {sr(S_REC, 4)}, s{sT0} offen{STMS[X]}")
        vmq.append("st")
        a(f"s_mov_b32 s47, s{sT1}")

        def mk(r):
            def f():
                a(f"buffer_store_dwordx4 {vr(dst[r], 4)}, v{vT16}, {sr(S_REC, 4)}, s47 offen{STMS[X]}")
                a(f"s_add_u32 s47, s47, 16384")
                vmq.append("st")
            return f
        pend.extend(mk(r) for r in range(9))
        if X == "B" or OPT["stpos"] == 0:
            slot(99)
        st1()

    st1()
    a(f"v_mov_b32 v{vX}, 0x7fffff00")
    a.c("one wave also prepares the matrix operands of the second kernel")
    W1, W2, W3, W4 = 62, 78, 94, 102
    lane, f2, e0, e1, x0, x1, x2 = 4, 5, 6, 7, 12, 13, 124
    OPR = 8
    a(f"""
    s_lshl_b32 s{sT0}, s2, 4
    s_add_u32 s68, s{sT0}, s{sW}
    s_cmp_eq_u32 s68, 15
    s_cbranch_scc0 P1_now
    s_load_dwordx4 s[72:75], s[0:1], 56
    s_load_dwordx4 s[76:79], s[0:1], 72
    v_and_b32 v{lane}, 63, v0
    v_and_b32 v{e0}, 3, v0
    v_bfe_u32 v{e1}, v0, 2, 1
    v_lshl_add_u32 v{e0}, v{e1}, 3, v{e0}
    v_bfe_u32 v{e1}, v0, 3, 1
    v_lshl_add_u32 v{e0}, v{e1}, 2, v{e0}
    v_lshlrev_b32 v{f2}, 1, v{e0}
    v_lshrrev_b32 v{e1}, 5, v{lane}
    v_lshl_add_u32 v{e1}, v{e1}, 8, v{f2}
    s_waitcnt lgkmcnt(0)
    """)
    for (W, n, p, nbytes, va) in ((W1, 16, 76, 512, f2), (W2, 16, 74, 512, f2), (W3, 8, 78, 512, e1), (W4, 8, 72, 256, f2)):
        srd(a, 80, p, nbytes)
        for j in range(n):
            a(f"buffer_load_ushort v{W + j}, v{va}, {sr(80, 4)}, 0 offen offset:{32 * j}")
    a("P1_now:")
    for r in range(7):
        issue_idx("A", r)
        if not OPT["angl"]:
            issue_ang("A", r)
    if OPT["angl"]:
        for r in range(7):
            issue_ang("A", r)
    a(f"""
    s_cmp_eq_u32 s68, 15
    s_cbranch_scc0 P1_noop
    s_waitcnt vmcnt(21)
    """)

    def scale_exp(Wf, n):
        a(f"v_max3_f32 v{e0}, abs(v{Wf}), abs(v{Wf + 1}), abs(v{Wf + 2})")
        for j in range(3, n - 1, 2):
            a(f"v_max3_f32 v{e0}, v{e0}, abs(v{Wf + j}), abs(v{Wf + j + 1})")
        a(f"""
        v_max_f32 v{e0}, v{e0}, abs(v{Wf + n - 1})
        v_bfe_u32 v{e0}, v{e0}, 23, 8
        v_cmp_eq_u32 vcc, 0, v{e0}
        v_sub_u32 v{e0}, 141, v{e0}
        s_nop 0
        v_cndmask_b32 v{e0}, v{e0}, 0, vcc
        v_sub_u32 v{e1}, 0, v{e0}
        """)

    def put(k, cvt, srcs, mask):
        for j in range(4):
            a(f"{cvt} v{OPR + j}, v{srcs[2 * j]}, v{srcs[2 * j + 1]}")
        for j in range(4):
            a(f"v_cndmask_b32 v{OPR + j}, 0, v{OPR + j}, {sr(mask, 2)}")
        a(f"""
        s_mov_b32 s{sT0}, {TAB_BYTES + 1024 * k}
        buffer_store_dwordx4 {vr(OPR, 4)}, v{x2}, {sr(S_TAB, 4)}, s{sT0} offen
        s_nop 1
        """)

    for j in range(48):
        a(f"v_lshlrev_b32 v{W1 + j}, 16, v{W1 + j}")
    mDIAG, mLO, mHI, mRB = 72, 74, 76, 78
    a(f"""
    v_lshrrev_b32 v{x0}, 1, v{lane}
    v_xor_b32 v{x0}, v{x0}, v{lane}
    v_and_b32 v{x0}, 16, v{x0}
    v_cmp_eq_u32 {sr(mDIAG, 2)}, 0, v{x0}
    v_and_b32 v{x0}, 16, v{lane}
    v_cmp_eq_u32 {sr(mLO, 2)}, 0, v{x0}
    v_cmp_eq_u32 {sr(mHI, 2)}, 16, v{x0}
    v_and_b32 v{x0}, 48, v{lane}
    v_cmp_eq_u32 {sr(mRB, 2)}, 16, v{x0}
    v_lshlrev_b32 v{x2}, 4, v{lane}
    """)
    scale_exp(W2, 16)
    for j in range(16):
        a(f"v_ldexp_f32 v{W2 + j}, v{W2 + j}, v{e0}")
        a(f"v_ldexp_f32 v{W1 + j}, v{W1 + j}, v{e1}")
    scale_exp(W4, 8)
    for j in range(8):
        a(f"v_ldexp_f32 v{W4 + j}, v{W4 + j}, v{e0}")
        a(f"v_ldexp_f32 v{W3 + j}, v{W3 + j}, v{e1}")
    bf, hf = "v_cvt_pk_bf16_f32", "v_cvt_pk_f16_f32"
    a.c("block diagonal: rows < 16 act on lanes < 32, rows >= 16 on lanes >= 32")
    put(0, bf, [W1 + j for j in range(8)], mDIAG)
    put(1, bf, [W1 + 8 + j for j in range(8)], mDIAG)
    put(2, hf, [W2 + 2 * j for j in range(8)], mDIAG)
    put(3, hf, [W2 + 2 * j + 1 for j in range(8)], mDIAG)
    put(6, bf, [W3 + j for j in range(8)], mLO)
    put(7, hf, [W4 + j for j in range(8)], mRB)
    a.c("identity: row i has a one at k = f(i & 15)")
    a(f"""
    v_lshrrev_b32 v{e0}, 1, v{f2}
    v_lshrrev_b32 v{e1}, 5, v{lane}
    v_lshlrev_b32 v{e1}, 3, v{e1}
    v_sub_u32 v{e0}, v{e0}, v{e1}
    """)
    for j in range(8):
        a(f"""
        v_cmp_eq_u32 vcc, {j}, v{e0}
        s_nop 1
        v_cndmask_b32 v{W1 + j}, 0, 1.0, vcc
        """)
    put(4, bf, [W1 + j for j in range(8)], mLO)
    put(5, bf, [W1 + j for j in range(8)], mHI)
    a("P1_noop:")
    a("s_barrier")
    order = [6, 0, 1, 2, 3, 4, 5]
    nb = 0
    for r in range(7):
        vm_wait(("A", r))
        if r == 6:
            tail_begin("P1_pk6A")
        pack(round_recs("A", r))
        if r == 6:
            tail_end("P1_pk6A")
        if r < 6 and r >= 6 - OPT["early"]:
            issue_idx("B", nb)
            nb += 1
    for r in range(nb, 6):
        pend.append(lambda r=r: issue_idx("B", r))
    a(f"s_lshl_b32 s{sCH}, s2, 1")
    sort_chunk("A")
    a(f"""
    s_barrier
    v_mov_b32 v{tmp[8]}, 0
    v_mov_b32 v{tmp[9]}, 0
    ds_write_b64 v{vT8}, {vr(tmp[8], 2)} offset:{P1_CNT}
    s_add_u32 s{sCH}, s{sCH}, 1
    s_waitcnt lgkmcnt(0)
    """)
    issue_idx("B", 6)
    if OPT["bang"] == 2:
        for r in range(6):
            issue_ang("B", r)
    issue_ang("B", 6)
    a("s_barrier")
    for r in range(7):
        vm_wait(("B", r))
        if r == 6:
            tail_begin("P1_pk6B")
        pack(round_recs("B", r))
        if r == 6:
            tail_end("P1_pk6B")
        if OPT["stpos"] == 1:
            slot()
    def prefetch_m():
        a.c("touch this workgroup's share of m (one load per 128-byte line) so that the second kernel finds it on chip")
        srd(a, 80, 70, E * 32)
        a(f"""
        v_cmp_gt_u32 vcc, {OPT["pfp1"] or 782}, v0
        v_lshlrev_b32 v{G + 1}, 7, v0
        s_mul_i32 s{sT0}, s2, {OPT["pfp1"] * 128 or 100000}
        s_and_b32 s{sT0}, s{sT0}, 0xffffff80
        v_cndmask_b32 v{G + 1}, v{vX}, v{G + 1}, vcc
        buffer_load_dword v{G}, v{G + 1}, {sr(80, 4)}, s{sT0} offen
        """)
    if OPT["pfm"] or OPT["pfp1"]:
        prefetch_m()
    sort_chunk("B")
    if OPT["stamp1"]:
        a("s_waitcnt vmcnt(0)")
        st1()
        a(f"""
        s_lshl_b32 s3, s2, 4
        s_add_u32 s3, s3, s{sW}
        s_lshl_b32 s3, s3, 6
        s_add_u32 s44, s44, {17 << 20}
        s_addc_u32 s45, s45, 0
        """)
        srd(a, S_TAB, 44, 1 << 20)
        a("v_mov_b32 v4, 0")
        for i in range(stn[0]):
            a(f"v_mov_b32 v5, s{48 + 2 * i}")
            a(f"buffer_store_dword v5, v4, {sr(S_TAB, 4)}, s3 offen offset:{4 * i}")
    a("P1_done:")
    a("s_endpgm")
    kernel_desc(a, name, 128, 88)


L_LOCK = 0
L_RBF = 800
L_ACC0 = L_RBF + EB * 16
L_ACC1 = L_ACC0 + EB * 16
L_RING = L_ACC1 + EB * 16
RING_CAP = 101
RING_STRIDE = RING_CAP * 8
P2_LDS = 163840
assert L_RING + 16 * RING_STRIDE <= P2_LDS


def gen_main(a, name):
    ntr = " nt" if OPT["nt_rec"] else ""
    nto = ["", " sc1", " nt", " sc0 sc1", " sc1 nt"][OPT["outm"]]
    S_REC, S_M, S_TMP, S_OUT = 8, 12, 16, 20
    sB, sW = 24, 25
    sCNT, sTOP = 26, 27
    sM = [28, 30]
    sN, sT0, sT1, sT2 = 32, 33, 34, 35
    sACQ, sFAIL = 36, 38
    sM0, sM1 = 40, 42
    sRET, sRET2 = 44, 46
    sLONG = [48, 50]
    sEX = 52
    sCO = 54
    sCOB = [55, 56]
    sK, sJ, sPH = 57, 58, 59
    sP = 60
    sRB, sHI, sG, sKF0, sKF1, sN0 = 76, 77, 78, 79, 80, 81
    sCEN = 84
    sEVEN = 92
    sCAP = 97
    sF = [98, 100]
    assert not (OPT['pfn'] or OPT['spf'] or OPT['x_fake'] or OPT['gexec'])
    vLANE = 1
    A1a, A1b, A2a, A2b, A3a, A3b = 2, 6, 10, 14, 18, 22
    D1, D2 = 26, 42
    GP, GQ = [58, 66], [62, 70]
    TF = 74
    S0, S1 = 78, 82
    AX, AY = S0, S1
    WA = [86, 88]
    O = [90, 91]
    C = [92, 93]
    TT = 94
    RB = [98, 102]
    RD = [101, 105]
    RL = [106, 107]
    RA = [108, 109]
    vBP, vCB, vL2, vL8, vH16, vOOB, vE = range(110, 117)
    t = list(range(117, 128)) + [0]
    vDUM = GP[1]
    vPF = 0

    kernel_head(a, name)
    a(f"""
    s_cmp_ge_u32 s2, {NB}
    s_cbranch_scc1 P2_done
    {"s_memrealtime s[94:95]" if OPT["stamp2"] else ""}
    s_load_dwordx2 {sr(sP, 2)}, s[0:1], 0
    s_load_dwordx2 {sr(sP + 2, 2)}, s[0:1], 24
    s_load_dwordx4 {sr(sP + 4, 4)}, s[0:1], 40
    s_load_dwordx2 s[4:5], s[0:1], 88
    s_load_dwordx2 s[6:7], s[0:1], 104
    s_and_b32 s{sB}, s2, 7
    s_lshl_b32 s{sB}, s{sB}, 5
    s_lshr_b32 s{sT0}, s2, 3
    s_add_u32 s{sB}, s{sB}, s{sT0}
    v_lshrrev_b32 v{t[0]}, 6, v0
    v_and_b32 v{vLANE}, 63, v0
    s_mov_b32 s{sHI}, 0xffff0000
    v_readfirstlane_b32 s{sW}, v{t[0]}
    v_mov_b32 v{vOOB}, 0x7fffff00
    s_mov_b32 s{sEVEN}, 0x55555555
    s_mov_b32 s{sEVEN + 1}, 0x55555555
    s_waitcnt lgkmcnt(0)
    """)
    pM, pDIST, pCEN, pFREQ, pWRBF, pWSBF, pWDN, pWUP = [sP + 2 * k for k in range(8)]
    a(f"""
    s_load_dwordx4 {sr(sCEN, 4)}, {sr(pCEN, 2)}, 0
    s_load_dword s{sT2}, {sr(pFREQ, 2)}, 0
    """)
    sPM, sPFO, sPFD = 100, 99, 82

    def spf():
        return f"""
        s_load_dword s{sPFD}, {sr(sPM, 2)}, s{sPFO}
        s_add_u32 s{sPFO}, s{sPFO}, {4096 * 128}
        s_min_u32 s{sPFO}, s{sPFO}, {E * 32 - 4}
        """
    srd(a, S_REC, 6, REC_BYTES)
    srd(a, S_M, pM, E * 32)
    srd(a, S_OUT, 4, E * 32)
    a(f"s_add_u32 s6, s6, {TAB_OFF}")
    a("s_addc_u32 s7, s7, 0")
    S_TAB = S_TMP
    S_DST = 68
    srd(a, S_TAB, 6, TAB_BYTES + 8192)
    a.c("this wave's 32 x 8 table entries: lane = chunk (l & 31), slices 4*(l >> 5) .. +3")
    a(f"""
    v_and_b32 v{t[0]}, 31, v{vLANE}
    v_lshrrev_b32 v{t[1]}, 5, v{vLANE}
    v_lshlrev_b32 v{vL8}, 3, v{vLANE}
    v_lshlrev_b32 v{t[2]}, 4, v{t[1]}
    v_lshl_add_u32 v{t[2]}, v{t[0]}, {13 if OPT["tabc"] else 5}, v{t[2]}
    s_lshl_b32 s{sT0}, s{sB}, {5 if OPT["tabc"] else 14}
    s_lshl_b32 s{sT1}, s{sW}, {18 if OPT["tabc"] else 10}
    s_add_u32 s{sT0}, s{sT0}, s{sT1}
    v_lshrrev_b32 v{t[3]}, 4, v{vLANE}
    v_lshlrev_b32 v{t[3]}, {13 if OPT["tabc"] else 5}, v{t[3]}
    s_add_u32 s{sT1}, s{sT0}, {4 << (13 if OPT["tabc"] else 5)}
    buffer_load_dword v{vE}, v{t[3]}, {sr(S_TAB, 4)}, s{sT0} offen
    buffer_load_dword v{C[0]}, v{t[3]}, {sr(S_TAB, 4)}, s{sT1} offen
    buffer_load_dwordx4 {vr(TT, 4)}, v{t[2]}, {sr(S_TAB, 4)}, s{sT0} offen
    """)
    srd(a, S_DST, pDIST, E * 2)

    a.c("dist of the bucket's edges t, t+1024, t+2048, t+3072")
    a(f"""
    s_mul_i32 s{sT0}, s{sB}, {EB * 2}
    v_lshlrev_b32 v{t[2]}, 1, v0
    buffer_load_ushort v{t[4]}, v{t[2]}, {sr(S_DST, 4)}, s{sT0} offen
    buffer_load_ushort v{t[5]}, v{t[2]}, {sr(S_DST, 4)}, s{sT0} offen offset:2048
    s_add_u32 s{sT0}, s{sT0}, 4096
    buffer_load_ushort v{t[6]}, v{t[2]}, {sr(S_DST, 4)}, s{sT0} offen
    buffer_load_ushort v{t[7]}, v{t[2]}, {sr(S_DST, 4)}, s{sT0} offen offset:2048
    """)
    a.c("matrix operands prepared by the first kernel")
    a(f"v_lshlrev_b32 v{t[3]}, 4, v{vLANE}")
    for k in range(6):
        a(f"s_mov_b32 s{sT0}, {TAB_BYTES + 1024 * k}")
        a(f"buffer_load_dwordx4 {vr(A1a + 4 * k, 4)}, v{t[3]}, {sr(S_TAB, 4)}, s{sT0} offen")
    npf = 0
    if OPT["pf0"]:
        a.c("touch a share of the first slice of m, one load per 128-byte line")
        lines = (E // OPT["ns"] * 32 // 128 + 31) // 32
        a(f"""
        v_cmp_gt_u32 vcc, {min(lines, 1024)}, v0
        v_lshlrev_b32 v{t[8]}, 7, v0
        s_lshr_b32 s{sT0}, s2, 3
        s_mul_i32 s{sT0}, s{sT0}, {lines * 128}
        v_cndmask_b32 v{t[8]}, v{vOOB}, v{t[8]}, vcc
        buffer_load_dword v{vDUM}, v{t[8]}, {sr(S_M, 4)}, s{sT0} offen
        """)
        npf = 1
    a.c("zero the locks and the accumulators")
    D = D1
    a(f"""
    v_mov_b32 v{D}, 0
    v_mov_b32 v{D + 1}, 0
    v_mov_b32 v{D + 2}, 0
    v_mov_b32 v{D + 3}, 0
    v_lshlrev_b32 v{t[2]}, 4, v0
    v_add_u32 v{t[9]}, {L_ACC0}, v{t[2]}
    """)
    for r in range(4):
        a(f"ds_write_b128 v{t[9]}, {vr(D, 4)} offset:{r * 16384}")
    a(f"v_add_u32 v{t[9]}, 0x10000, v{t[9]}")
    for r in range(2):
        a(f"ds_write_b128 v{t[9]}, {vr(D, 4)} offset:{r * 16384}")
    a(f"""
    v_cmp_gt_u32 vcc, {2 * EB - 6 * 1024}, v0
    s_and_saveexec_b64 {sr(sEX, 2)}, vcc
    ds_write_b128 v{t[9]}, {vr(D, 4)} offset:{2 * 16384}
    s_mov_b64 exec, {sr(sEX, 2)}
    v_cmp_gt_u32 vcc, {L_RBF // 16}, v0
    s_and_saveexec_b64 {sr(sEX, 2)}, vcc
    ds_write_b128 v{t[2]}, {vr(D, 4)}
    s_mov_b64 exec, {sr(sEX, 2)}
    s_waitcnt lgkmcnt(0)
    """)
    if OPT["spf"]:
        a.c("scalar loads walk over m, one per 128-byte line chip-wide, ahead of the gathers")
        a(f"""
        s_lshl_b32 s{sPFO}, s2, 4
        s_add_u32 s{sPFO}, s{sPFO}, s{sW}
        s_lshl_b32 s{sPFO}, s{sPFO}, 7
        """)
        for k in range(OPT["spf"]):
            a(spf())
    a.c("centers and frequencies to f32")
    for k in (3, 2, 1, 0):
        a(f"s_and_b32 s{sCEN + 2 * k + 1}, s{sCEN + k}, 0xffff0000")
        a(f"s_lshl_b32 s{sCEN + 2 * k}, s{sCEN + k}, 16")
    a(f"""
    s_lshl_b32 s{sT0}, s{sT2}, 16
    s_and_b32 s{sT1}, s{sT2}, 0xffff0000
    v_mov_b32 v{t[8]}, 0.15915494
    v_mul_f32 v{t[9]}, s{sT0}, v{t[8]}
    v_mul_f32 v{t[8]}, s{sT1}, v{t[8]}
    v_and_b32 v{vH16}, 1, v{vLANE}
    v_lshlrev_b32 v{vH16}, 4, v{vH16}
    v_readfirstlane_b32 s{sKF0}, v{t[9]}
    v_readfirstlane_b32 s{sKF1}, v{t[8]}
    """)
    a.c("record-stream lane constants")
    a(f"""
    v_and_b32 v{t[8]}, 15, v{vLANE}
    v_lshrrev_b32 v{t[9]}, 4, v{vLANE}
    v_lshlrev_b32 v{vL2}, 1, v{t[8]}
    v_lshlrev_b32 v{vBP}, 2, v{t[9]}
    v_mul_u32_u24 v{t[9]}, {CHB}, v{t[9]}
    v_mad_u32_u24 v{vCB}, v{t[8]}, 12, v{t[9]}
    s_mul_i32 s{sCO}, s{sW}, {32 * CHB}
    s_mul_i32 s{sRB}, s{sW}, {RING_STRIDE}
    s_add_u32 s{sRB}, s{sRB}, {L_RING}
    s_mov_b32 s{sTOP}, s{sRB}
    s_mov_b32 s{sCNT}, 0
    s_mov_b64 {sr(sM[0], 2)}, 0
    s_mov_b64 {sr(sM[1], 2)}, 0
    s_mov_b32 s{sJ}, 0
    s_mov_b32 s{sPH}, 0
    s_mov_b32 s{sG}, 100000
    s_mov_b32 s{sCAP}, {OPT['lim']}
    s_mov_b64 {sr(sF[0], 2)}, 0
    s_mov_b64 {sr(sF[1], 2)}, 0
    s_and_b32 s3, s2, {3 if OPT["stag"] == 1 else (6 if OPT["stag"] == 2 else 0)}
    s_lshl_b32 s3, s3, {1 if OPT["stag"] == 1 else 0}
    s_mov_b32 s83, {-16 * OPT["lag"] + OPT["lagoff"]}
    {'s_mov_b32 s95, 0' if OPT['cntreq'] else ''}
    """)

    uid = [0]
    kmul = (OPT["ns"] << 24) // E
    SLB = ((1 << 24) // kmul * 32) & ~127
    SHARE = (SLB // 128 + 64 * OPT['pfx']) // (64 * OPT['pfx'])

    PER = (SHARE + OPT["pfw"] - 1) // OPT["pfw"]

    def pf_share(sS, tmpv, vPF=vPF):
        return f"""
        s_mul_i32 s{sT0}, s{sS}, {SLB}
        s_mul_i32 s{sT1}, s82, {SHARE * 128}
        s_add_u32 s{sT0}, s{sT0}, s{sT1}
        s_mul_i32 s{sT1}, s{sW}, {PER}
        v_add_u32 v{tmpv}, s{sT1}, v{vLANE}
        v_cmp_gt_u32 vcc, {PER}, v{vLANE}
        v_lshlrev_b32 v{tmpv}, 7, v{tmpv}
        s_nop 0
        v_cndmask_b32 v{tmpv}, v{vOOB}, v{tmpv}, vcc
        buffer_load_dword v{vPF}, v{tmpv}, {sr(S_M, 4)}, s{sT0} offen
        """

    def prep(buf, mid=None, pf=True):
        uid[0] += 1
        u = uid[0]
        a(f"""
        v_lshrrev_b32 v{RL[buf]}, 16, v{vE}
        v_and_b32 v{t[0]}, 1, v{vE}
        v_and_b32 v{t[1]}, 0xfffe, v{vE}
        v_sub_u32 v{RD[buf]}, v{vL2}, v{t[0]}
        v_mad_u32_u24 v{RA[buf]}, v{t[1]}, 6, v{vCB}
        v_cmp_lt_i32 vcc, v{RD[buf]}, v{RL[buf]}
        v_cmp_lt_u32 {sr(sLONG[buf], 2)}, 31, v{RL[buf]}
        s_mov_b32 s{sCOB[buf]}, s{sCO}
        {"s_or_b32 vcc_lo, vcc_lo, 1" if OPT["rexec"] else f"v_cndmask_b32 v{t[1]}, v{vOOB}, v{RA[buf]}, vcc"}
        v_add_u32 v{vBP}, 16, v{vBP}
        s_add_u32 s{sCO}, s{sCO}, {4 * CHB}
        s_add_u32 s{sJ}, s{sJ}, 1
        s_cmp_lt_u32 s{sJ}, 8
        s_cbranch_scc0 P2_adv{u}
        P2_advr{u}:
        {f"ds_bpermute_b32 v{vE}, v{vBP}, v{TT}" if mid else ""}
        """)
        if mid:
            a(mid)
        if OPT["x_fake"]:
            a(f"buffer_load_dword v{D2}, v{vOOB}, {sr(S_REC, 4)}, s{sCOB[buf]} offen{ntr}")
            sz = E // OPT['ns']
            a(f"""
            s_add_u32 s98, s{sK}, {2 + buf}
            s_lshr_b32 s98, s98, 3
            s_min_u32 s98, s98, {OPT['ns'] - 1}
            s_mul_i32 s98, s98, {sz}
            s_mov_b32 s99, {sz}
            s_mov_b32 s97, 0x9E3779B1
            """)
            for dd in (RB[buf], RB[buf] + 2):
                a(f"""
                v_mul_lo_u32 v{D1}, v{D1}, s97
                v_add_u32 v{D1}, 0x3c6ef35f, v{D1}
                v_lshrrev_b32 v{D1 + 1}, 15, v{D1}
                v_xor_b32 v{D1}, v{D1}, v{D1 + 1}
                v_mul_hi_u32 v{dd}, v{D1}, s99
                v_add_u32 v{dd}, s98, v{dd}
                v_lshlrev_b32 v{dd}, 12, v{dd}
                """)
        else:
            if OPT["rexec"]:
                a(f"""
                s_mov_b64 exec, vcc
                buffer_load_dwordx3 {vr(RB[buf], 3)}, v{RA[buf]}, {sr(S_REC, 4)}, s{sCOB[buf]} offen{ntr}
                s_mov_b64 exec, -1
                """)
            else:
                a(f"buffer_load_dwordx3 {vr(RB[buf], 3)}, v{t[1]}, {sr(S_REC, 4)}, s{sCOB[buf]} offen{ntr}")
        if OPT["pfn"] and mid and pf:
            a(f"""
            s_cmp_eq_u32 s{sJ}, s99
            s_cbranch_scc1 P2_pf{u}
            P2_pfr{u}:
            """)
            cold.append(f"""
            P2_pf{u}:
            s_cmp_eq_u32 s{sPH}, s98
            s_cbranch_scc0 P2_pfr{u}
            s_add_u32 s98, s98, {OPT["pfg"]}
            """ + "".join(f"s_add_u32 s{sT2}, s{sPH}, {OPT['pfn'] + g}\n" + pf_share(sT2, t[3]) for g in range(OPT["pfg"])) + f"""
            s_branch P2_pfr{u}
            """)
        cold.append(f"""
        P2_adv{u}:
        s_mov_b32 s{sJ}, 0
        s_sub_u32 s{sCO}, s{sCO}, {32 * CHB}
        s_add_u32 s{sPH}, s{sPH}, 1
        s_cmp_eq_u32 s{sPH}, 4
        s_cselect_b32 s{sT0}, 0, 128
        v_subrev_u32 v{vBP}, s{sT0}, v{vBP}
        v_mov_b32 v{t[0]}, v{TT}
        v_mov_b32 v{TT}, v{TT + 1}
        v_mov_b32 v{TT + 1}, v{TT + 2}
        v_mov_b32 v{TT + 2}, v{TT + 3}
        v_mov_b32 v{TT + 3}, v{t[0]}
        s_cmp_lt_u32 s{sPH}, 8
        s_cbranch_scc1 P2_advr{u}
        v_mov_b32 v{TT}, 0
        s_branch P2_advr{u}
        """)

    cold = []
    a(f"s_waitcnt vmcnt({11 + npf})")
    prep(0)
    a(f"v_mov_b32 v{vE}, v{C[0]}")
    prep(1)

    def pf_prologue():
        a(f"""
        s_bfe_u32 s99, s2, {(3 << 16) | 3 if OPT["pfs"] else 0}
        s_cmp_lt_u32 s99, {4 if OPT['peel'] else 3}
        s_cselect_b32 s98, {OPT["pfg"]}, 0
        s_lshr_b32 s82, s2, 2
        s_mul_i32 s82, s82, {OPT["pfx"]}
        s_and_b32 s{sT0}, s2, 3
        s_add_u32 s82, s82, s{sT0}
        s_cmp_lt_u32 s{sT0}, {OPT["pfx"]}
        s_cselect_b32 s{sT0}, s{sW}, 99
        s_cmp_lt_u32 s{sT0}, {OPT["pfw"]}
        s_cselect_b32 s99, s99, 99
        s_cbranch_scc0 P2_nopf
        """)
        for k in range(OPT["pffirst"], OPT["pfn"] + OPT["pfg"]):
            if k == OPT["pfn"]:
                a(f"s_cmp_lt_u32 s99, {4 if OPT['peel'] else 3}\ns_cbranch_scc0 P2_nopf")
            a(f"s_mov_b32 s{sT2}, {k}")
            a(pf_share(sT2, t[3], vDUM))
        a("P2_nopf:")
    if OPT["pfn"] and OPT["pfpos"] == 0:
        pf_prologue()
    a.c("radial basis table (same roundings as the reference), stored as f16")
    a(f"s_waitcnt vmcnt({8 + npf})")
    sTEN, sL2E = sRET, sRET + 1
    a(f"s_mov_b32 s{sTEN}, 0xc1200000")
    a(f"s_mov_b32 s{sL2E}, {0x3fb8aa3b if OPT['mimic'] else 0xc166d4ca:#x}")
    def rbf_round(r):
        dd = t[4 + r]
        if r == 3:
            a(f"""
            v_cmp_gt_u32 vcc, {EB - 3 * 1024}, v0
            s_and_saveexec_b64 {sr(sEX, 2)}, vcc
            s_cbranch_execz P2_rbf3
            """)
        a(f"v_lshlrev_b32 v{dd}, 16, v{dd}")
        x = [D + k for k in range(8)]
        for k in range(8):
            a(f"v_subrev_f32 v{x[k]}, s{sCEN + k}, v{dd}")

        def rnd():
            if not OPT["mimic"]:
                return
            for k in range(0, 8, 2):
                a(f"v_cvt_pk_bf16_f32 v{D + 8 + k // 2}, v{x[k]}, v{x[k + 1]}")
            for k in range(0, 8, 2):
                a(f"v_lshlrev_b32 v{x[k]}, 16, v{D + 8 + k // 2}")
                a(f"v_and_b32 v{x[k + 1]}, s{sHI}, v{D + 8 + k // 2}")
        rnd()
        for k in range(8):
            a(f"v_mul_f32 v{x[k]}, v{x[k]}, v{x[k]}")
        rnd()
        if OPT["mimic"]:
            for k in range(8):
                a(f"v_mul_f32 v{x[k]}, s{sRET}, v{x[k]}")
        rnd()
        for k in range(8):
            a(f"v_mul_f32 v{x[k]}, s{sRET + 1}, v{x[k]}")
        for k in range(8):
            a(f"v_exp_f32 v{x[k]}, v{x[k]}")
        a("s_nop 0")
        rnd()
        for k in range(0, 8, 2):
            a(f"v_cvt_pk_f16_f32 v{D + 8 + k // 2}, v{x[k]}, v{x[k + 1]}")
        a(f"ds_write_b128 v{t[8]}, {vr(D + 8, 4)} offset:{L_RBF + r * 16384}")
        if r == 3:
            a("P2_rbf3:")
            a(f"s_mov_b64 exec, {sr(sEX, 2)}")


    def rbf_consts():
        a(f"v_lshlrev_b32 v{t[8]}, 4, v0")
    rbf_consts()
    a(f"ds_bpermute_b32 v{vE}, v{vBP}, v{TT}")
    for r in range(2 if OPT["peel"] else 4):
        rbf_round(r)
    a(f"""
    v_mov_b32 v{O[1]}, 0
    v_mov_b32 v{WA[1]}, 0
    """)
    a(f"s_mov_b32 s{sK}, 0")
    if OPT["gexec"]:
        for j in range(16):
            a(f"v_mov_b32 v{GP[0] + j}, 0")

    def prologue_tail():
        if OPT["peel"]:
            rbf_round(2)
            rbf_round(3)
        if OPT["pfn"] and OPT["pfpos"] == 1:
            pf_prologue()
        a("s_waitcnt lgkmcnt(0)\ns_barrier")
    if not OPT["peel"]:
        a.c("two out-of-range loads stand in for the gathers of the steps before the first one")
        for k in range(2):
            a(f"buffer_load_dword v{vDUM}, v{vOOB}, {sr(S_REC, 4)}, 0 offen")
        prologue_tail()

    la, bit, aX, aY, old = t[5], t[6], t[7], t[8], t[9]
    STAMP = OPT["stamp"]

    def st(i):
        return f"s_memtime s[{60 + 2 * i}:{61 + 2 * i}]" if STAMP else ""

    def lg(n):
        return f"s_waitcnt lgkmcnt({0 if STAMP else n})"

    def pop_issue(buf):
        F, NF = sF[buf], sACQ
        return f"""
        s_bcnt0_i32_b64 s{sN}, {sr(F, 2)}
        s_not_b64 {sr(NF, 2)}, {sr(F, 2)}
        s_min_u32 s{sN}, s{sCNT}, s{sN}
        v_mbcnt_lo_u32_b32 v{t[2]}, s{NF}, 0
        s_sub_u32 s{sCNT}, s{sCNT}, s{sN}
        v_mbcnt_hi_u32_b32 v{t[2]}, s{NF + 1}, v{t[2]}
        s_lshl3_add_u32 s{sTOP}, s{sCNT}, s{sRB}
        v_cmp_gt_u32 vcc, s{sN}, v{t[2]}
        v_lshl_add_u32 v{t[2]}, v{t[2]}, 3, s{sTOP}
        s_mov_b64 exec, {sr(NF, 2)}
        v_mov_b32 v{WA[buf]}, 0xfffff000
        v_mov_b32 v{WA[buf] + 1}, 0
        s_and_b64 exec, vcc, {sr(NF, 2)}
        ds_read_b64 {vr(WA[buf], 2)}, v{t[2]}
        s_or_b64 {sr(sM[buf], 2)}, exec, {sr(F, 2)}
        s_mov_b64 exec, -1
        """

    def gathers(buf):
        W, F, X, Y = WA[buf], sF[buf], sACQ, sFAIL
        g0 = f"v_mov_b32 v{t[2]}, v{vOOB}" if OPT["x_nogather"] else f"v_and_b32 v{t[2]}, 0xffffffe0, v{t[2]}"
        return f"""
        v_lshrrev_b32 v{t[2]}, 7, v{W}
        s_and_b64 {sr(X, 2)}, {sr(F, 2)}, {sr(sEVEN, 2)}
        {g0}
        s_lshl_b64 {sr(Y, 2)}, {sr(X, 2)}, 1
        v_lshlrev_b32 v{O[buf]}, 4, v{W}
        v_and_b32 v{t[4]}, s{sHI}, v{W + 1}
        v_or_b32_dpp v{t[3]}, v{t[2]}, v{vH16} quad_perm:[0,0,2,2] row_mask:0xf bank_mask:0xf
        v_or_b32_dpp v{t[2]}, v{t[2]}, v{vH16} quad_perm:[1,1,3,3] row_mask:0xf bank_mask:0xf
        s_nor_b64 exec, {sr(X, 2)}, {sr(Y, 2)}
        s_andn2_b64 {sr(X, 2)}, {sr(F, 2)}, {sr(sEVEN, 2)}
        buffer_load_dwordx4 {vr(GP[buf], 4)}, v{t[3]}, {sr(S_M, 4)}, 0 offen
        s_lshr_b64 {sr(Y, 2)}, {sr(X, 2)}, 1
        s_nor_b64 exec, {sr(X, 2)}, {sr(Y, 2)}
        buffer_load_dwordx4 {vr(GQ[buf], 4)}, v{t[2]}, {sr(S_M, 4)}, 0 offen
        s_mov_b64 exec, -1
        """

    def coschain(buf):
        return f"""
        {f"v_lshlrev_b32 v{O[buf]}, 4, v{vLANE}" if OPT["x_lin"] else f"v_and_b32 v{O[buf]}, 0xfff0, v{O[buf]}"}
        v_mul_f32 v{C[buf]}, s{sKF0}, v{t[4]}
        v_mul_f32 v{t[4]}, s{sKF1}, v{t[4]}
        v_fract_f32 v{C[buf]}, v{C[buf]}
        v_fract_f32 v{t[4]}, v{t[4]}
        v_cos_f32 v{C[buf]}, v{C[buf]}
        v_cos_f32 v{t[4]}, v{t[4]}
        """

    def cospack(buf):
        return f"v_cvt_pk_f16_f32 v{C[buf]}, v{C[buf]}, v{t[4]}"

    def rbf_read(buf):
        return f"ds_read_b128 {vr(S1, 4)}, v{O[buf]} offset:{L_RBF}"

    def gate(buf):
        s = ""
        for j in range(4):
            s += f"v_pk_mul_f16 v{S0 + j}, v{S1 + j}, v{C[buf]} op_sel_hi:[1,0]\n"
        for j in range(4):
            s += f"v_pk_mul_f16 v{S1 + j}, v{S1 + j}, v{C[buf]} op_sel:[0,1]\n"
        s += f"""
        v_mfma_f32_32x32x16_f16 {vr(D2, 16)}, {vr(A2a, 4)}, {vr(S0, 4)}, 0
        s_mov_b64 vcc, {sr(sEVEN, 2)}
        v_mfma_f32_32x32x16_f16 {vr(D2, 16)}, {vr(A2b, 4)}, {vr(S1, 4)}, {vr(D2, 16)}
        """
        return s

    def fixup(buf):
        s = ""
        for j in range(4):
            s += f"v_cndmask_b32_dpp v{S0 + j}, v{GQ[buf] + j}, v{GP[buf] + j}, vcc quad_perm:[0,0,2,2] row_mask:0xf bank_mask:0xf\n"
        s += "s_not_b64 vcc, vcc\n"
        for j in range(4):
            s += f"v_cndmask_b32_dpp v{S1 + j}, v{GP[buf] + j}, v{GQ[buf] + j}, vcc quad_perm:[1,1,3,3] row_mask:0xf bank_mask:0xf\n"
        return s

    def muls():
        for j in range(0, 16, 2):
            a(f"v_pk_mul_f32 {vr(D1 + j, 2)}, {vr(D1 + j, 2)}, {vr(D2 + j, 2)}")

    def core_a(buf, fill, fill2=""):
        W = WA[buf]
        a(f"""
        v_mfma_f32_32x32x16_bf16 {vr(D1, 16)}, {vr(A1a, 4)}, {vr(S0, 4)}, 0
        v_add_u32 v{aX}, {L_ACC0}, v{O[buf]}
        v_mfma_f32_32x32x16_bf16 {vr(D1, 16)}, {vr(A1b, 4)}, {vr(S1, 4)}, {vr(D1, 16)}
        v_add_u32 v{aY}, {L_ACC1}, v{O[buf]}
        v_lshrrev_b32 v{la}, 2, v{W}
        v_lshlrev_b32_e64 v{bit}, v{W}, 1
        v_permlane32_swap_b32 v{aX}, v{aY}
        """)
        a(fill)
        a(f"v_and_b32 v{la}, 0x3fc, v{la}")
        if not OPT["valu_add"]:
            muls()
        a(fill2)

    def core_b(buf, inline):
        uid[0] += 1
        u = uid[0]
        W, M = WA[buf], sM[buf]
        nrm = OPT["x_normw"]
        va = OPT["valu_add"]
        guard = f"s_sub_u32 s{sG}, s{sG}, 1\ns_cbranch_scc1 P2_done" if OPT["guard"] else ""
        a(f"""
        {st(5) if inline else ""}
        {"s_setprio 3" if OPT["prio"] else ""}
        s_mov_b64 exec, {sr(M, 2)}
        {f"v_mov_b32 v{old}, 0" if nrm else f"ds_or_rtn_b32 v{old}, v{la}, v{bit}"}
        s_mov_b64 exec, -1
        {"" if nrm else f"ds_read_b128 {vr(AX, 4)}, v{aX}"}
        {"" if nrm else f"ds_read_b128 {vr(AY, 4)}, v{aY}"}
        {f"ds_read_b32 v{t[10]}, v{vH16} offset:784" if inline else ""}
        {lg(2 if inline else 1)}
        {st(6) if inline else ""}
        """)
        check = f"""
        v_cmp_eq_u32 vcc, 0, v{old}
        s_and_b64 {sr(sACQ, 2)}, vcc, {sr(M, 2)}
        s_andn2_b64 {sr(sF[buf], 2)}, {sr(M, 2)}, vcc
        s_bcnt1_i32_b64 s{sN}, {sr(sF[buf], 2)}
        {"s_add_u32 s95, s95, s%d" % sN if OPT["cntreq"] else ""}
        s_mov_b32 exec_lo, s{sACQ}
        s_mov_b32 exec_hi, s{sACQ}
        s_cmp_gt_u32 s{sN}, s{sCAP}
        """
        U = [TF, TF + 1, TF + 2, TF + 3, t[1], t[2], t[3], t[4]]
        assert t[1] % 2 == 0

        def addhalf(Ac, off):
            for j in range(4):
                a(f"v_lshlrev_b32 v{U[2 * j]}, 16, v{Ac + j}")
                a(f"v_and_b32 v{U[2 * j + 1]}, s{sHI}, v{Ac + j}")
            for j in range(4):
                a(f"v_pk_fma_f32 {vr(U[2 * j], 2)}, {vr(D1 + off + 2 * j, 2)}, {vr(D2 + off + 2 * j, 2)}, {vr(U[2 * j], 2)}")
            for j in range(4):
                a(f"v_cvt_pk_bf16_f32 v{Ac + j}, v{U[2 * j]}, v{U[2 * j + 1]}")
        if va:
            a(f"v_and_b32 v{old}, v{old}, v{bit}")
            a(check)
            addhalf(AX, 0)
            a(f"s_waitcnt lgkmcnt({1 if inline else 0})")
        else:
            a(f"""
            v_mfma_f32_32x32x16_bf16 {vr(D2, 16)}, {vr(A3a, 4)}, {vr(AX, 4)}, {vr(D1, 16)}
            v_and_b32 v{old}, v{old}, v{bit}
            s_waitcnt lgkmcnt({1 if inline else 0})
            v_mfma_f32_32x32x16_bf16 {vr(D2, 16)}, {vr(A3b, 4)}, {vr(AY, 4)}, {vr(D2, 16)}
            """)
            a(check)
            a("s_nop 4")
            for j in range(4):
                a(f"v_cvt_pk_bf16_f32 v{AX + j}, v{D2 + 2 * j}, v{D2 + 2 * j + 1}")
        a(f"""
        {"" if nrm else f"ds_write_b128 v{aX}, {vr(AX, 4)}"}
        s_mov_b32 exec_lo, s{sACQ + 1}
        s_mov_b32 exec_hi, s{sACQ + 1}
        """)
        if va:
            addhalf(AY, 8)
        else:
            for j in range(4):
                a(f"v_cvt_pk_bf16_f32 v{AY + j}, v{D2 + 8 + 2 * j}, v{D2 + 8 + 2 * j + 1}")
        a(f"""
        {"" if nrm else f"ds_write_b128 v{aY}, {vr(AY, 4)}"}
        s_mov_b64 exec, {sr(sACQ, 2)}
        {"" if nrm else f"ds_xor_b32 v{la}, v{bit}"}
        {f"s_setprio {OPT['pbase']}" if OPT["prio"] else ""}
        s_mov_b64 exec, -1
        s_cbranch_scc1 P2_full{u}
        """)
        if inline:
            a(f"P2_fullr{u}:")
            cold.append(f"""
            P2_full{u}:
            s_mov_b64 {sr(M, 2)}, {sr(sF[buf], 2)}
            s_call_b64 {sr(sRET2, 2)}, P2_rmw{buf}
            s_branch P2_fullr{u}
            """)
        else:
            a(f"""
            s_setpc_b64 {sr(sRET2, 2)}
            P2_full{u}:
            {guard}
            s_mov_b64 {sr(M, 2)}, {sr(sF[buf], 2)}
            s_branch P2_rmw{buf}
            """)

    def slow_push(buf, slot):
        uid[0] += 1
        u = uid[0]
        d0, d1, d2 = RB[buf], RB[buf] + 1, RB[buf] + 2
        if slot == 0:
            s = f"""
            v_cmp_lt_u32 {sr(sM0, 2)}, v{RD[buf]}, v{RL[buf]}
            v_lshlrev_b32 v{t[11]}, 16, v{d1}
            """
            w, an = d0, t[11]
        else:
            s = f"""
            v_add_u32 v{t[11]}, 1, v{RD[buf]}
            v_cmp_lt_u32 {sr(sM0, 2)}, v{t[11]}, v{RL[buf]}
            """
            w, an = d2, d1
        return s + f"""
        P2_push{u}:
        s_bcnt1_i32_b64 s{sN0}, {sr(sM0, 2)}
        s_add_u32 s{sT0}, s{sCNT}, s{sN0}
        s_cmp_le_u32 s{sT0}, {RING_CAP}
        s_cbranch_scc1 P2_pok{u}
        s_call_b64 {sr(sRET, 2)}, P2_pop{buf}
        s_branch P2_push{u}
        P2_pok{u}:
        v_mbcnt_lo_u32_b32 v{t[4]}, s{sM0}, 0
        v_mbcnt_hi_u32_b32 v{t[4]}, s{sM0 + 1}, v{t[4]}
        v_lshl_add_u32 v{t[4]}, v{t[4]}, 3, s{sTOP}
        s_mov_b64 exec, {sr(sM0, 2)}
        ds_write2_b32 v{t[4]}, v{w}, v{an} offset1:1
        s_mov_b64 exec, -1
        s_mov_b32 s{sCNT}, s{sT0}
        s_lshl3_add_u32 s{sTOP}, s{sN0}, s{sTOP}
        """

    def step(buf, peeled=False):
        uid[0] += 1
        u = uid[0]
        prev = buf ^ 1
        d0, d1, d2 = RB[buf], RB[buf] + 1, RB[buf] + 2
        a.c(f"---- step, buffer {buf}: compact the loaded records onto the stack")
        if OPT["rot"] and (OPT["rot"] == 1 or buf == 0):
            a(f"""
            s_add_u32 s82, s82, 1
            s_bitcmp1_b32 s82, 1
            s_cbranch_scc1 P2_prh{u}
            s_setprio 0
            s_bitcmp1_b32 s82, 0
            s_cbranch_scc0 P2_pre{u}
            s_setprio 1
            s_branch P2_pre{u}
            P2_prh{u}:
            s_setprio 2
            s_bitcmp1_b32 s82, 0
            s_cbranch_scc0 P2_pre{u}
            s_setprio 3
            P2_pre{u}:
            """)
        a(f"""
        {st(0)}
        s_waitcnt vmcnt({1 if peeled else 3})
        {st(1)}
        v_cmp_lt_u32 {sr(sM0, 2)}, v{RD[buf]}, v{RL[buf]}
        v_add_u32 v{t[1]}, 1, v{RD[buf]}
        v_lshlrev_b32 v{t[2]}, 16, v{d1}
        v_cmp_lt_u32 {sr(sM1, 2)}, v{t[1]}, v{RL[buf]}
        s_bcnt1_i32_b64 s{sN0}, {sr(sM0, 2)}
        v_mbcnt_lo_u32_b32 v{t[0]}, s{sM0}, 0
        s_bcnt1_i32_b64 s{sN}, {sr(sM1, 2)}
        v_mbcnt_hi_u32_b32 v{t[0]}, s{sM0 + 1}, v{t[0]}
        v_mbcnt_lo_u32_b32 v{t[1]}, s{sM1}, 0
        s_add_u32 s{sT0}, s{sCNT}, s{sN0}
        v_mbcnt_hi_u32_b32 v{t[1]}, s{sM1 + 1}, v{t[1]}
        s_add_u32 s{sT0}, s{sT0}, s{sN}
        s_lshl3_add_u32 s{sT1}, s{sN0}, s{sTOP}
        v_lshl_add_u32 v{t[0]}, v{t[0]}, 3, s{sTOP}
        s_cmp_lg_u64 {sr(sLONG[buf], 2)}, 0
        s_cselect_b32 s{sT2}, 0, {RING_CAP + 1}
        v_lshl_add_u32 v{t[1]}, v{t[1]}, 3, s{sT1}
        s_cmp_ge_u32 s{sT0}, s{sT2}
        s_cbranch_scc1 {"P2_alt" if peeled else f"P2_slow{u}"}
        s_mov_b64 exec, {sr(sM0, 2)}
        ds_write2_b32 v{t[0]}, v{d0}, v{t[2]} offset1:1
        s_mov_b64 exec, {sr(sM1, 2)}
        ds_write2_b32 v{t[1]}, v{d2}, v{d1} offset1:1
        s_mov_b64 exec, -1
        s_mov_b32 s{sCNT}, s{sT0}
        P2_slowr{u}:
        """)
        if peeled:
            a(pop_issue(buf))
            a("s_waitcnt lgkmcnt(0)")
            prep(buf, gathers(buf), False)
            a(coschain(buf))
            a("s_nop 0")
            a(cospack(buf))
            return
        cold.append(f"P2_slow{u}:\n" + slow_push(buf, 0) + slow_push(buf, 1) + f"""
        P2_long{u}:
        v_add_u32 v{RD[buf]}, 32, v{RD[buf]}
        v_add_u32 v{RA[buf]}, 192, v{RA[buf]}
        v_cmp_lt_i32 vcc, v{RD[buf]}, v{RL[buf]}
        s_cbranch_vccz P2_slowr{u}
        s_nop 0
        v_cndmask_b32 v{t[4]}, v{vOOB}, v{RA[buf]}, vcc
        buffer_load_dwordx3 {vr(RB[buf], 3)}, v{t[4]}, {sr(S_REC, 4)}, s{sCOB[buf]} offen
        s_waitcnt vmcnt(0)
        """ + slow_push(buf, 0) + slow_push(buf, 1) + f"s_branch P2_long{u}\n")
        if OPT["x_nopop"]:
            a(f"s_mov_b32 s{sCNT}, 0\ns_mov_b32 s{sTOP}, s{sRB}")
            prep(buf)
            for k in range(2):
                a(f"buffer_load_dword v{vDUM}, v{vOOB}, {sr(S_REC, 4)}, 0 offen")
            a("s_waitcnt lgkmcnt(0)")
            return
        a(pop_issue(buf))
        a(rbf_read(prev))
        prep(buf, lg(2) + "\n" + st(2) + "\n" + gathers(buf))
        a(st(3))
        a(lg(1))
        if OPT["x_nocore"]:
            a("s_waitcnt vmcnt(4) lgkmcnt(0)")
            a(f"s_mov_b64 {sr(sM[buf], 2)}, 0")
        else:
            a(gate(prev))
            a("s_waitcnt vmcnt(4)")
            a(st(4))
            a(fixup(prev))
            core_a(prev, coschain(buf), cospack(buf))
            core_b(prev, True)
        if OPT["lag"]:
            a(f"""
            s_waitcnt lgkmcnt(3)
            v_readfirstlane_b32 s{sT1}, v{t[10]}
            {spf() if OPT["spf"] else ""}
            s_mov_b64 exec, 1
            s_add_u32 s83, s83, 16
            ds_inc_u32 v{vH16}, v{vOOB} offset:784
            s_mov_b64 exec, -1
            s_cmp_lt_i32 s{sT1}, s83
            s_cbranch_scc1 P2_poll{u}
            """)
            if OPT["dynp"]:
                a(f"""
                s_sub_u32 s{sT1}, s{sT1}, {OPT["dynp"]}
                s_cmp_lt_i32 s{sT1}, s83
                s_cbranch_scc1 P2_pollr{u}
                s_setprio 2
                """)
            a(f"P2_pollr{u}:")
            cold.append(f"""
            P2_poll{u}:
            s_setprio 0
            s_mov_b64 exec, 1
            ds_read_b32 v{t[10]}, v{vH16} offset:784
            s_mov_b64 exec, -1
            s_waitcnt lgkmcnt(0)
            v_readfirstlane_b32 s{sT1}, v{t[10]}
            s_cmp_ge_i32 s{sT1}, s83
            s_setprio {OPT['pbase']}
            s_cbranch_scc1 P2_pollr{u}
            {f"s_sleep {OPT['sleep']}" if OPT['sleep'] else ''}
            {f"s_sub_u32 s{sG}, s{sG}, 1" if OPT["guard"] else ""}
            {"s_cbranch_scc1 P2_done" if OPT["guard"] else ""}
            s_branch P2_poll{u}
            """)
        if STAMP:
            a("s_waitcnt lgkmcnt(0)")
            a("s_sub_u32 s96, s60, s74\ns_add_u32 s84, s84, s96")
            a("s_memtime s[74:75]\ns_waitcnt lgkmcnt(0)")
            for i in range(7):
                a(f"s_sub_u32 s96, s{62 + 2 * i}, s{60 + 2 * i}\ns_add_u32 s{85 + i}, s{85 + i}, s96")

    if OPT["peel"]:
        a.c("first half of step 0 runs before the rest of the setup, so that its gathers are under way")
        step(0, True)
        a(f"s_call_b64 {sr(sRET2, 2)}, P2_tail")
        if OPT["stamp2"]:
            a("s_memrealtime s[60:61]\ns_memtime s[72:73]\ns_waitcnt lgkmcnt(0)")
        if OPT["lag"]:
            a(f"""
            s_mov_b64 exec, 1
            s_add_u32 s83, s83, 16
            ds_inc_u32 v{vH16}, v{vOOB} offset:784
            s_mov_b64 exec, -1
            """)
        a(f"""
        s_branch P2_step1
        P2_tail:
        """)
        prologue_tail()
        a(f"""
        s_setpc_b64 {sr(sRET2, 2)}
        P2_alt:
        s_call_b64 {sr(sRET2, 2)}, P2_tail
        """)
    if OPT["stamp2"]:
        a("s_memrealtime s[60:61]\ns_memtime s[72:73]\ns_waitcnt lgkmcnt(0)")
    if STAMP:
        for i in range(8):
            a(f"s_mov_b32 s{84 + i}, 0")
        a("s_memtime s[74:75]")
    if OPT["x_fake"]:
        a(f"s_lshl_b32 s98, s2, 10\nv_add_u32 v{D1}, s98, v0\nv_mul_lo_u32 v{D1}, v{D1}, v{D1}\nv_add_u32 v{D1}, v{D1}, v0")
    a("P2_loop:")
    if OPT["phase_bar"]:
        a(f"""
        s_add_u32 s{sT0}, s{sK}, s3
        s_and_b32 s{sT0}, s{sT0}, 7
        s_cbranch_scc1 P2_nobar
        s_barrier
        P2_nobar:
        """)
    a(f"""
    s_cmp_lt_u32 s{sK}, {8 * OPT['ns'] - 2}
    s_cselect_b32 s{sCAP}, {OPT['lim']}, 0
    """)
    step(0)
    a("P2_step1:")
    step(1)
    a(f"""
    s_add_u32 s{sK}, s{sK}, 2
    s_cmp_lt_u32 s{sK}, {8 * OPT['ns']}
    s_cbranch_scc1 P2_loop
    """)
    if STAMP:
        a(f"""
        s_lshl_b32 s96, s2, 4
        s_add_u32 s96, s96, s{sW}
        s_lshl_b32 s96, s96, 6
        s_add_u32 s6, s6, {16 << 20}
        s_addc_u32 s7, s7, 0
        """)
        srd(a, S_DST, 6, 1 << 20)
        a(f"v_mov_b32 v{t[0]}, 0")
        for i in range(8):
            a(f"v_mov_b32 v{t[1]}, s{84 + i}")
            a(f"buffer_store_dword v{t[1]}, v{t[0]}, {sr(S_DST, 4)}, s96 offen offset:{4 * i}")
        a("s_waitcnt vmcnt(0)")
    if OPT["stamp2"]:
        a("s_memrealtime s[62:63]\ns_memtime s[74:75]\ns_waitcnt lgkmcnt(0)\ns_sub_u32 s72, s74, s72")
    a.c("fetch the epilogue's operands and the bucket's own m rows; finish the last pop; empty the stack")
    MP = [TT, RB[0], RB[1], RL[0], GP[1], GQ[1], WA[0]]
    A1, A2, A3, DX, DY, SX, SY = GP[0], GQ[0], A3a, D1, D2, A2a, A2b
    vMO = vE
    a(f"""
    v_and_b32 v{t[0]}, 31, v{vLANE}
    v_lshrrev_b32 v{t[1]}, 5, v{vLANE}
    v_lshlrev_b32 v{t[1]}, 4, v{t[1]}
    s_lshl_b32 s{sT0}, s{sW}, 10
    v_lshl_add_u32 v{vMO}, v{t[0]}, 5, v{t[1]}
    v_add_u32 v{vMO}, s{sT0}, v{vMO}
    s_mul_i32 s{sCO}, s{sB}, {EB * 32}
    s_mov_b32 s{sJ}, s{sCO}
    v_lshlrev_b32 v{t[2]}, 4, v{vLANE}
    s_mov_b32 s{sT0}, {TAB_BYTES + 1024 * 6}
    s_mov_b32 s{sT1}, {TAB_BYTES + 1024 * 7}
    {rbf_read(1)}
    buffer_load_dwordx4 {vr(A1, 4)}, v{t[2]}, {sr(S_TAB, 4)}, s{sT0} offen
    buffer_load_dwordx4 {vr(A2, 4)}, v{t[2]}, {sr(S_TAB, 4)}, s{sT1} offen
    buffer_load_dwordx4 {vr(MP[0], 4)}, v{vMO}, {sr(S_M, 4)}, s{sJ} offen
    s_add_u32 s{sJ}, s{sJ}, 16384
    s_waitcnt lgkmcnt(0)
    """)
    a(gate(1))
    a("s_waitcnt vmcnt(3)")
    for i in range(1, 4):
        a(f"buffer_load_dwordx4 {vr(MP[i], 4)}, v{vMO}, {sr(S_M, 4)}, s{sJ} offen")
        a(f"s_add_u32 s{sJ}, s{sJ}, 16384")
    a(fixup(1))
    core_a(1, "s_nop 6")
    a(f"""
    s_call_b64 {sr(sRET2, 2)}, P2_rmw1
    P2_drain:
    s_cmp_eq_u32 s{sCNT}, 0
    s_cbranch_scc1 P2_epi
    s_call_b64 {sr(sRET, 2)}, P2_pop1
    s_branch P2_drain
    P2_epi:
    """)
    for i in range(4, 7):
        a(f"buffer_load_dwordx4 {vr(MP[i], 4)}, v{vMO}, {sr(S_M, 4)}, s{sJ} offen")
        a(f"s_add_u32 s{sJ}, s{sJ}, 16384")
    if OPT["cntreq"]:
        a(f"""
        s_load_dwordx2 s[60:61], s[0:1], 96
        s_waitcnt lgkmcnt(0)
        v_mov_b32 v{t[0]}, s95
        v_mov_b32 v{t[1]}, 0
        s_mov_b64 exec, 1
        global_atomic_add v{t[1]}, v{t[0]}, s[60:61]
        s_mov_b64 exec, -1
        s_waitcnt vmcnt(0)
        """)
    a(f"""
    s_lshl_b32 s{sT0}, s{sW}, 9
    s_mov_b32 s{sT2}, {L_ACC0}
    v_and_b32 v{t[1]}, 31, v{vLANE}
    v_lshlrev_b32 v{t[1]}, 4, v{t[1]}
    v_add_u32 v{t[1]}, s{sT0}, v{t[1]}
    v_lshrrev_b32 v{t[0]}, 5, v{vLANE}
    v_mul_u32_u24 v{t[0]}, {EB * 16}, v{t[0]}
    v_add3_u32 v{t[0]}, v{t[0]}, v{t[1]}, s{sT2}
    s_waitcnt vmcnt(3) lgkmcnt(0)
    """)
    if OPT["stamp2"]:
        a("s_memrealtime s[64:65]\ns_waitcnt lgkmcnt(0)")
    a("s_barrier")
    if OPT["stamp2"]:
        a("s_memrealtime s[66:67]\ns_waitcnt lgkmcnt(0)")
    a.c("epilogue: out = m + (agg @ w_up) * (rbf @ w_rbf), 32 edges per pass, two passes at a time")
    OBX, OBY = TF, A3b

    EB_ = [(AX, SX, AY, SY), (A1a, A1b, vBP, t[5])]
    assert t[5] % 2 == 0

    def epi_reads(groups, st_):
        for (i, va), (Ac, Sb) in zip(groups, (EB_[st_][0:2], EB_[st_][2:4])):
            a(f"ds_read_b128 {vr(Ac, 4)}, v{t[0]} offset:{8192 * i}")
            a(f"ds_read_b128 {vr(Sb, 4)}, v{t[1]} offset:{L_RBF + 8192 * i}")

    def epi(groups, st_, nxt):
        regs = [(DX,) + EB_[st_][0:2] + (OBX,), (DY,) + EB_[st_][2:4] + (OBY,)]
        n = len(groups)
        for k, ((i, va), (Dd, Ac, Sb, Ob)) in enumerate(zip(groups, regs)):
            a(f"s_waitcnt lgkmcnt({2 * (n - 1 - k)})")
            a(f"v_mfma_f32_32x32x16_bf16 {vr(Dd, 16)}, {vr(A1, 4)}, {vr(Ac, 4)}, 0")
            a(f"v_mfma_f32_32x32x16_f16 {vr(Dd, 16)}, {vr(A2, 4)}, {vr(Sb, 4)}, {vr(Dd, 16)}")
        if nxt:
            epi_reads(nxt, st_ ^ 1)
        done = 2 * len(nxt) if nxt else 0
        a(f"s_nop {11 - done - (3 if n == 2 else 0)}")
        for k, ((i, va), (Dd, Ac, Sb, Ob)) in enumerate(zip(groups, regs)):
            for j in range(0, 8, 2):
                a(f"v_pk_mul_f32 {vr(Dd + j, 2)}, {vr(Dd + j, 2)}, {vr(Dd + 8 + j, 2)}")
        a({4: "s_waitcnt vmcnt(5)", 6: "s_waitcnt vmcnt(6)"}.get(groups[0][0], "s_nop 0"))
        if n == 1:
            a("s_nop 0")
        for (i, va), (Dd, Ac, Sb, Ob) in zip(groups, regs):
            a(f"v_mfma_f32_32x32x16_bf16 {vr(Dd, 16)}, {vr(A3, 4)}, {vr(MP[i], 4)}, {vr(Dd, 16)}")
        a(f"s_nop {11 - (n - 1)}")
        for (i, va), (Dd, Ac, Sb, Ob) in zip(groups, regs):
            for j in range(4):
                a(f"v_cvt_pk_bf16_f32 v{Ob + j}, v{Dd + 2 * j}, v{Dd + 2 * j + 1}")
            a(f"buffer_store_dwordx4 {vr(Ob, 4)}, v{va}, {sr(S_OUT, 4)}, s{sCO} offen{nto}")
            a(f"s_add_u32 s{sCO}, s{sCO}, 16384")

    gl = [[(i, vMO), (i + 1, vMO)] for i in (0, 2, 4)] + [[(6, t[2])]]
    epi_reads(gl[0], 0)
    for q in range(3):
        epi(gl[q], q & 1, gl[q + 1])
    if OPT["stamp2"]:
        a(f"""
        s_memrealtime s[84:85]
        s_waitcnt vmcnt(0) lgkmcnt(0)
        s_memrealtime s[86:87]
        s_lshl_b32 s98, s2, 4
        s_add_u32 s98, s98, s{sW}
        s_lshl_b32 s98, s98, 6
        s_add_u32 s6, s6, {16 << 20}
        s_addc_u32 s7, s7, 0
        s_waitcnt lgkmcnt(0)
        """)
        srd(a, S_TMP, 6, 1 << 20)
        a(f"v_mov_b32 v{t[5]}, 0")
        for i, r in enumerate([94, 60, 62, 64, 66, 84, 86, 72]):
            a(f"v_mov_b32 v{t[6]}, s{r}")
            a(f"buffer_store_dword v{t[6]}, v{t[5]}, {sr(S_TMP, 4)}, s98 offen offset:{4 * i}")
    a(f"""
    s_cmp_lt_u32 s{sW}, 2
    s_cbranch_scc0 P2_done
    v_cmp_gt_u32 vcc, {(EB - 6 * 512) * 32}, v{vMO}
    v_mov_b32 v{t[2]}, 0x7fffff00
    s_nop 0
    v_cndmask_b32 v{t[2]}, v{t[2]}, v{vMO}, vcc
    """)
    epi(gl[3], 1, None)
    a("P2_done:")
    a("s_endpgm")
    for buf in range(2):
        a.c(f"subroutine: pop up to 64 records into buffer {buf} and finish them")
        a(f"P2_pop{buf}:")
        if OPT["guard"]:
            a(f"s_sub_u32 s{sG}, s{sG}, 1\ns_cbranch_scc1 P2_done")
        a(pop_issue(buf))
        a("s_waitcnt lgkmcnt(0)")
        a(gathers(buf))
        a(coschain(buf))
        a(f"""
        {rbf_read(buf)}
        {cospack(buf)}
        s_mov_b64 {sr(sRET2, 2)}, {sr(sRET, 2)}
        s_waitcnt lgkmcnt(0)
        """)
        a(gate(buf))
        a("s_waitcnt vmcnt(0)")
        a(fixup(buf))
        core_a(buf, "s_nop 6")
        a(f"P2_rmw{buf}:")
        core_b(buf, False)
    for c in cold:
        a(c)
    kernel_desc(a, name, 128, 102)


def build():
    assert OPT['stag'] != 3 or max((OPT['rotl'] >> (4 * q)) & 15 for q in range(4)) < OPT['ns']
    a = A()
    ref = open(f"cdna_kernels/{NAME}.s.ref").read().split("\n")
    for line in ref:
        if line.startswith("; Override"):
            break
        a.raw(line)
    a.raw(f"; @launch kernel=part_kernel grid=({NB},1,1) block=(1024,1,1) lds={P1_LDS}")
    a.raw(f"; @launch kernel={NAME}_kernel grid=({NB},1,1) block=(1024,1,1) lds={P2_LDS}")
    a.raw('.amdgcn_target "amdgcn-amd-amdhsa--gfx950"')
    gen_part(a, "part_kernel")
    gen_main(a, f"{NAME}_kernel")
    return a.text()


def main():
    out = f"cdna_kernels/{NAME}.s"
    for arg in sys.argv[1:]:
        if "=" in arg:
            k, v = arg.split("=")
            assert k in OPT, k
            OPT[k] = type(OPT[k])(int(v))
        else:
            out = arg
    open(out, "w").write(build())


if __name__ == "__main__":
    main()
```

```python
import sys

NAME = "gather_scatter__molecular_angular_gemnet__graph"
E = 800000
T = 12800000
NB = 256
EB = 3125
CH = 25000
NCH = 512
NS = 8
CHB = 150016
REC_BYTES = NCH * CHB
TAB_OFF = REC_BYTES
TAB_BYTES = NB * NCH * 32
OPS_OFF = TAB_OFF + TAB_BYTES

OPT = dict(
    nt_in=True,
    nt_rec=False,
    phase_bar=False,
    nt_out=False,
    x_nogather=False, x_normw=False, x_norec=False,
    bfair=0, adepth=1, h0=25000, depth=4, aearly=0, spl=4, big=0, only2=0, angl=1, bang=1, lim=24, x_lin=0, pbase=1, dynp=10, rexec=0, gexec=0, aslot=1, rotl=0x3615, pfx=4, tabc=1, sleep=0, pfp1=0, peel=1, pfg=1, stm=1, stmb=1, outm=2, pfw=2, pfpos=1, pffirst=0, spf=0, pfs=1, pfn=0, mimic=1, pf0=0, valu_add=1, early=1, stpos=2, stag=3, pfm=0, slide=0, ns=7, bdelay=0, stamp1=0, stamp2=0, lag=1, lagoff=3, cntreq=0, rot=0, rotshift=2, stamp=False, pkf32=True, x_fake=0, x_nocore=0, x_recx4=0, x_nomfma=0, x_nopop=0, prio=True, lock_pos=2,
    guard=False,
)


class A:
    def __init__(self):
        self.l = []

    def __call__(self, s=""):
        for line in s.split("\n"):
            line = line.strip()
            if line:
                if line.endswith(":"):
                    self.l.append(line)
                else:
                    self.l.append("    " + line)

    def c(self, s):
        self.l.append("    ; " + s)

    def raw(self, s):
        self.l.append(s)

    def text(self):
        return "\n".join(self.l) + "\n"


def vr(a, n):
    return f"v[{a}:{a + n - 1}]"


def sr(a, n):
    return f"s[{a}:{a + n - 1}]"


def srd(a, dst, base, nbytes, stride=0):
    a(f"s_mov_b32 s{dst}, s{base}")
    a(f"s_and_b32 s{dst + 1}, s{base + 1}, 0xffff")
    if stride:
        a(f"s_or_b32 s{dst + 1}, s{dst + 1}, {stride << 16:#x}")
    a(f"s_mov_b32 s{dst + 2}, {nbytes}")
    a(f"s_mov_b32 s{dst + 3}, 0x20000")


def kernel_head(a, name):
    a.raw(".text")
    a.raw(f".globl {name}")
    a.raw(".p2align 8")
    a.raw(f".type {name},@function")
    a.raw(f"{name}:")


def kernel_desc(a, name, vgpr, sgpr):
    a.raw('.section .rodata,"a"')
    a.raw(".p2align 6")
    a.raw(f".amdhsa_kernel {name}")
    a.raw(f"  .amdhsa_next_free_vgpr {vgpr}")
    a.raw(f"  .amdhsa_next_free_sgpr {sgpr}")
    a.raw(f"  .amdhsa_accum_offset {(vgpr + 3) // 4 * 4}")
    a.raw("  .amdhsa_group_segment_fixed_size 0")
    a.raw("  .amdhsa_kernarg_size 112")
    a.raw("  .amdhsa_user_sgpr_count 2")
    a.raw("  .amdhsa_user_sgpr_kernarg_segment_ptr 1")
    a.raw("  .amdhsa_system_sgpr_workgroup_id_x 1")
    a.raw(".end_amdhsa_kernel")


P1_CNT = 16
P1_PART = P1_CNT + 8192
P1_REC = P1_PART + 64
P1_LDS = 158720


def builder(a, W, lane, f2, e0, e1, x0, x2, OPR, sW, sT0, S_TAB, first_loads, nyoung):
    a.c("one wave also prepares the matrix operands of the second kernel")
    W1, W2, W3, W4 = W
    a(f"""
    s_lshl_b32 s{sT0}, s2, 4
    s_add_u32 s68, s{sT0}, s{sW}
    s_cmp_eq_u32 s68, 15
    s_cbranch_scc0 P1_now
    s_load_dwordx4 s[72:75], s[0:1], 56
    s_load_dwordx4 s[76:79], s[0:1], 72
    v_and_b32 v{lane}, 63, v0
    v_and_b32 v{e0}, 3, v0
    v_bfe_u32 v{e1}, v0, 2, 1
    v_lshl_add_u32 v{e0}, v{e1}, 3, v{e0}
    v_bfe_u32 v{e1}, v0, 3, 1
    v_lshl_add_u32 v{e0}, v{e1}, 2, v{e0}
    v_lshlrev_b32 v{f2}, 1, v{e0}
    v_lshrrev_b32 v{e1}, 5, v{lane}
    v_lshl_add_u32 v{e1}, v{e1}, 8, v{f2}
    s_waitcnt lgkmcnt(0)
    """)
    for (Wx, n, p, nbytes, va) in ((W1, 16, 76, 512, f2), (W2, 16, 74, 512, f2), (W3, 8, 78, 512, e1), (W4, 8, 72, 256, f2)):
        srd(a, 80, p, nbytes)
        for j in range(n):
            a(f"buffer_load_ushort v{Wx + j}, v{va}, {sr(80, 4)}, 0 offen offset:{32 * j}")
    a("P1_now:")
    first_loads()
    a(f"""
    s_cmp_eq_u32 s68, 15
    s_cbranch_scc0 P1_noop
    s_waitcnt vmcnt({nyoung})
    """)

    def scale_exp(Wf, n):
        a(f"v_max3_f32 v{e0}, abs(v{Wf}), abs(v{Wf + 1}), abs(v{Wf + 2})")
        for j in range(3, n - 1, 2):
            a(f"v_max3_f32 v{e0}, v{e0}, abs(v{Wf + j}), abs(v{Wf + j + 1})")
        a(f"""
        v_max_f32 v{e0}, v{e0}, abs(v{Wf + n - 1})
        v_bfe_u32 v{e0}, v{e0}, 23, 8
        v_cmp_eq_u32 vcc, 0, v{e0}
        v_sub_u32 v{e0}, 141, v{e0}
        s_nop 0
        v_cndmask_b32 v{e0}, v{e0}, 0, vcc
        v_sub_u32 v{e1}, 0, v{e0}
        """)

    def put(k, cvt, srcs, mask):
        for j in range(4):
            a(f"{cvt} v{OPR + j}, v{srcs[2 * j]}, v{srcs[2 * j + 1]}")
        for j in range(4):
            a(f"v_cndmask_b32 v{OPR + j}, 0, v{OPR + j}, {sr(mask, 2)}")
        a(f"""
        s_mov_b32 s{sT0}, {TAB_BYTES + 1024 * k}
        buffer_store_dwordx4 {vr(OPR, 4)}, v{x2}, {sr(S_TAB, 4)}, s{sT0} offen
        s_nop 1
        """)

    for Wx, n in zip(W, (16, 16, 8, 8)):
        for j in range(n):
            a(f"v_lshlrev_b32 v{Wx + j}, 16, v{Wx + j}")
    mDIAG, mLO, mHI, mRB = 72, 74, 76, 78
    a(f"""
    v_lshrrev_b32 v{x0}, 1, v{lane}
    v_xor_b32 v{x0}, v{x0}, v{lane}
    v_and_b32 v{x0}, 16, v{x0}
    v_cmp_eq_u32 {sr(mDIAG, 2)}, 0, v{x0}
    v_and_b32 v{x0}, 16, v{lane}
    v_cmp_eq_u32 {sr(mLO, 2)}, 0, v{x0}
    v_cmp_eq_u32 {sr(mHI, 2)}, 16, v{x0}
    v_and_b32 v{x0}, 48, v{lane}
    v_cmp_eq_u32 {sr(mRB, 2)}, 16, v{x0}
    v_lshlrev_b32 v{x2}, 4, v{lane}
    """)
    scale_exp(W2, 16)
    for j in range(16):
        a(f"v_ldexp_f32 v{W2 + j}, v{W2 + j}, v{e0}")
        a(f"v_ldexp_f32 v{W1 + j}, v{W1 + j}, v{e1}")
    scale_exp(W4, 8)
    for j in range(8):
        a(f"v_ldexp_f32 v{W4 + j}, v{W4 + j}, v{e0}")
        a(f"v_ldexp_f32 v{W3 + j}, v{W3 + j}, v{e1}")
    bf, hf = "v_cvt_pk_bf16_f32", "v_cvt_pk_f16_f32"
    a.c("block diagonal: rows < 16 act on lanes < 32, rows >= 16 on lanes >= 32")
    put(0, bf, [W1 + j for j in range(8)], mDIAG)
    put(1, bf, [W1 + 8 + j for j in range(8)], mDIAG)
    put(2, hf, [W2 + 2 * j for j in range(8)], mDIAG)
    put(3, hf, [W2 + 2 * j + 1 for j in range(8)], mDIAG)
    put(6, bf, [W3 + j for j in range(8)], mLO)
    put(7, hf, [W4 + j for j in range(8)], mRB)
    a.c("identity: row i has a one at k = f(i & 15)")
    a(f"""
    v_lshrrev_b32 v{e0}, 1, v{f2}
    v_lshrrev_b32 v{e1}, 5, v{lane}
    v_lshlrev_b32 v{e1}, 3, v{e1}
    v_sub_u32 v{e0}, v{e0}, v{e1}
    """)
    for j in range(8):
        a(f"""
        v_cmp_eq_u32 vcc, {j}, v{e0}
        s_nop 1
        v_cndmask_b32 v{W1 + j}, 0, 1.0, vcc
        """)
    put(4, bf, [W1 + j for j in range(8)], mLO)
    put(5, bf, [W1 + j for j in range(8)], mHI)
    a("P1_noop:")


CH2 = 50000
B_CNT = 16
B_PART = B_CNT + 16384
B_LDS = 163840


def gen_part_big(a, name):
    nt = " nt" if OPT["nt_in"] else ""
    STM = [["", " sc1", " nt", " sc0 sc1", " sc1 nt"][OPT[k]] for k in ("stm", "stmb")]
    NS_ = OPT["ns"]
    NT = CH2 - 12 * 4096
    H0 = OPT['h0']
    assert H0 % 8 == 0 and H0 * 6 <= B_LDS and (CH2 - H0) * 6 > 8 * 16384
    HALF = H0 * 6
    NQ = [H0 * 6 // 16, (CH2 - H0) * 6 // 16]
    S_IN, S_OUT, S_ANG, S_REC, S_TAB = 8, 12, 16, 20, 24
    sMAG, sNEG, sHI, sOFF = 28, 29, 31, 32
    sOI, sOA = 33, 34
    sW, sT0, sT1 = 35, 36, 37
    sEX = 40
    sLUT, sST = 46, 47
    stn = [0]

    def st1():
        if OPT["stamp1"]:
            a(f"s_memrealtime s[{48 + 2 * stn[0]}:{49 + 2 * stn[0]}]\ns_waitcnt lgkmcnt(0)")
            stn[0] += 1
    vT16, vONE, vX = 1, 2, 3
    tmp = list(range(4, 12))
    G, G6, O6, I6, vT8 = 12, 28, 29, 30, 31
    O, I = 32, 80

    kernel_head(a, name)
    a(f"""
    s_cmp_ge_u32 s2, {NB}
    s_cbranch_scc1 P1_done
    s_load_dwordx4 s[4:7], s[0:1], 8
    s_load_dwordx2 s[42:43], s[0:1], 32
    s_load_dwordx2 s[44:45], s[0:1], 104
    v_lshlrev_b32 v{vT16}, 4, v0
    v_lshlrev_b32 v{vT8}, 3, v0
    v_mov_b32 v{vONE}, 1
    v_mov_b32 v{vX}, 0x7fffff00
    s_mov_b32 s{sMAG}, 1374390
    s_mov_b32 s{sNEG}, {-EB}
    s_mov_b32 s{sHI}, 0xffff0000
    s_mov_b32 s{sOFF}, {-HALF}
    v_lshrrev_b32 v8, 6, v0
    v_mov_b32 v4, 0
    v_mov_b32 v5, 0
    v_mov_b32 v6, 0
    v_mov_b32 v7, 0
    v_readfirstlane_b32 s{sW}, v8
    ds_write_b128 v{vT16}, v[4:7] offset:{B_CNT}
    ds_write_b32 v4, v4 offset:{B_CNT - 4}
    s_waitcnt lgkmcnt(0)
    """)
    srd(a, S_IN, 4, T * 4)
    srd(a, S_OUT, 6, T * 4)
    srd(a, S_ANG, 42, T * 2)
    srd(a, S_REC, 44, REC_BYTES)
    a(f"s_add_u32 s44, s44, {TAB_OFF}")
    a("s_addc_u32 s45, s45, 0")
    srd(a, S_TAB, 44, TAB_BYTES + 8192)
    a.c("slice rotation per group of 32 buckets (one nibble each); depends on the step that will read this chunk")
    a(f"""
    s_bfe_u32 s{sT0}, s2, {(2 << 16) | 2}
    s_lshl_b32 s{sT0}, s{sT0}, 2
    s_sub_u32 s{sT0}, 16, s{sT0}
    s_lshr_b32 s{sT1}, 0x1111, s{sT0}
    s_lshl_b32 s{sLUT}, s{sT1}, s{sT0}
    s_add_u32 s{sLUT}, s{sLUT}, {OPT["rotl"]:#x}
    s_mul_i32 s{sLUT}, s{sLUT}, 0x10001
    s_mul_i32 s{sOI}, s2, {CH2 * 4}
    s_mul_i32 s{sOA}, s2, {CH2 * 2}
    """)
    vmq = []

    def vm_wait(tag):
        last = max(i for i, x in enumerate(vmq) if x == tag)
        a(f"s_waitcnt vmcnt({len(vmq) - 1 - last})")

    def tail_addr(sh):
        a(f"""
        v_cmp_gt_u32 vcc, {NT}, v0
        v_lshlrev_b32 v{tmp[7]}, {sh}, v0
        s_nop 0
        v_cndmask_b32 v{tmp[7]}, v{vX}, v{tmp[7]}, vcc
        """)

    def issue_idx(r):
        vmq.extend([("i", r)] * 2)
        if r < 12:
            a(f"""
            buffer_load_dwordx4 {vr(O + 4 * r, 4)}, v{vT16}, {sr(S_OUT, 4)}, s{sOI} offen{nt}
            buffer_load_dwordx4 {vr(I + 4 * r, 4)}, v{vT16}, {sr(S_IN, 4)}, s{sOI} offen{nt}
            s_add_u32 s{sOI}, s{sOI}, 16384
            """)
        else:
            tail_addr(2)
            a(f"""
            buffer_load_dword v{O6}, v{tmp[7]}, {sr(S_OUT, 4)}, s{sOI} offen{nt}
            buffer_load_dword v{I6}, v{tmp[7]}, {sr(S_IN, 4)}, s{sOI} offen{nt}
            """)

    def issue_ang(r):
        vmq.append(("a", r))
        if r < 12:
            a(f"""
            buffer_load_dwordx2 {vr(G + 2 * (r & 7), 2)}, v{vT8}, {sr(S_ANG, 4)}, s{sOA} offen{nt}
            s_add_u32 s{sOA}, s{sOA}, 8192
            """)
        else:
            tail_addr(1)
            a(f"""
            s_mul_i32 s{sT0}, s2, {CH2 * 2}
            s_add_u32 s{sT0}, s{sT0}, {12 * 8192}
            buffer_load_ushort v{G6}, v{tmp[7]}, {sr(S_ANG, 4)}, s{sT0} offen{nt}
            """)

    def recs(r):
        if r < 12:
            return [(O + 4 * r + k, I + 4 * r + k, G + 2 * (r & 7) + (k >> 1), k & 1) for k in range(4)]
        return [(O6, I6, G6, 0)]

    def tail(r, lbl, body):
        if r < 12:
            body()
            return
        a(f"""
        v_cmp_gt_u32 vcc, {NT}, v0
        s_and_saveexec_b64 {sr(sEX, 2)}, vcc
        s_cbranch_execz {lbl}
        """)
        body()
        a(f"{lbl}:\ns_mov_b64 exec, {sr(sEX, 2)}")

    def pack(rs):
        for h in range(0, len(rs), 2):
            pr = rs[h:h + 2]
            for k, (o, i, g, hi) in enumerate(pr):
                a(f"v_mul_hi_u32_u24 v{tmp[k]}, s{sMAG}, v{o}")
                a(f"v_mul_u32_u24 v{tmp[2 + k]}, {(NS_ << 24) // E}, v{i}")
            for k, (o, i, g, hi) in enumerate(pr):
                tb, tc, u = tmp[k], tmp[2 + k], tmp[4 + k]
                a(f"""
                v_mad_i32_i24 v{o}, v{tb}, s{sNEG}, v{o}
                v_lshrrev_b32 v{u}, 5, v{tb}
                v_lshrrev_b32 v{tc}, 24, v{tc}
                v_lshlrev_b32 v{u}, 2, v{u}
                v_lshlrev_b32 v{tb}, 2, v{tb}
                v_bfe_u32 v{u}, s{sLUT}, v{u}, 4
                v_lshl_or_b32 v{i}, v{i}, 12, v{o}
                v_sub_u32 v{tc}, v{tc}, v{u}
                v_add_u32 v{u}, {NS_}, v{tc}
                v_min_u32 v{tc}, v{tc}, v{u}
                v_lshl_or_b32 v{o}, v{tc}, 10, v{tb}
                ds_add_u32 v{o}, v{vONE} offset:{B_CNT}
                """)

    def wave_scan(v):
        for sh in (1, 2, 4, 8):
            a(f"s_nop 1\nv_add_u32_dpp v{v}, v{v}, v{v} row_shr:{sh} row_mask:0xf bank_mask:0xf bound_ctrl:0")

    st1()
    D_ = OPT["depth"]
    assert D_ <= 4
    builder(a, (I + 16, I + 32, O + 16, O + 24), 4, 5, 6, 7, G, G + 1, 8, sW, sT0, S_TAB,
            lambda: [issue_idx(r) for r in range(D_)], 2 * D_)
    a("s_barrier")
    na = 0
    for r in range(13):
        vm_wait(("i", r))
        tail(r, "P1_pk", lambda: pack(recs(r)))
        if r + D_ < 13:
            issue_idx(r + D_)
        elif r < 12 and na < OPT["aearly"]:
            issue_ang(na)
            na += 1
    st1()
    c0, s_, inc, p, q = tmp[0], tmp[4], tmp[5], tmp[6], tmp[7]
    a.c("exclusive scan of the counters")
    a("s_waitcnt lgkmcnt(0)\ns_barrier")
    a(f"ds_read_b128 {vr(c0, 4)}, v{vT16} offset:{B_CNT}")
    while na < 4:
        issue_ang(na)
        na += 1
    a(f"""
    s_waitcnt lgkmcnt(0)
    v_add_u32 v{s_}, v{c0}, v{c0 + 1}
    v_add3_u32 v{s_}, v{s_}, v{c0 + 2}, v{c0 + 3}
    v_mov_b32 v{inc}, v{s_}
    """)
    wave_scan(inc)
    a(f"""
    s_nop 1
    v_add_u32_dpp v{inc}, v{inc}, v{inc} row_bcast:15 row_mask:0xa bank_mask:0xf
    s_nop 1
    v_add_u32_dpp v{inc}, v{inc}, v{inc} row_bcast:31 row_mask:0xc bank_mask:0xf
    s_lshl_b32 s{sT1}, s{sW}, 2
    v_mov_b32 v{q}, s{sT1}
    v_readlane_b32 s{sT0}, v{inc}, 63
    s_nop 1
    v_mov_b32 v{p}, s{sT0}
    ds_write_b32 v{q}, v{p} offset:{B_PART}
    v_and_b32 v{q}, 15, v0
    v_lshlrev_b32 v{p}, 2, v{q}
    s_waitcnt lgkmcnt(0)
    s_barrier
    v_cmp_gt_u32 vcc, s{sW}, v{q}
    ds_read_b32 v{p}, v{p} offset:{B_PART}
    """)
    while na < 8:
        issue_ang(na)
        na += 1
    a(f"""
    s_waitcnt lgkmcnt(0)
    v_cndmask_b32 v{p}, 0, v{p}, vcc
    """)
    wave_scan(p)
    a(f"""
    v_sub_u32 v{inc}, v{inc}, v{s_}
    v_readlane_b32 s{sT0}, v{p}, 15
    s_nop 1
    v_add_u32 v{s_}, s{sT0}, v{inc}
    v_add_u32 v{s_ + 1}, v{s_}, v{c0}
    v_add_u32 v{s_ + 2}, v{s_ + 1}, v{c0 + 1}
    v_add_u32 v{s_ + 3}, v{s_ + 2}, v{c0 + 2}
    ds_write_b128 v{vT16}, {vr(s_, 4)} offset:{B_CNT}
    s_waitcnt lgkmcnt(0)
    """)
    issue_ang(12)
    a("s_barrier")
    st1()
    a.c("position of every record; the angle joins it in the upper half of the register")

    def rank(rs):
        for (o, i, g, hi) in rs:
            a(f"ds_add_rtn_u32 v{o}, v{o}, v{vONE} offset:{B_CNT}")

    def merge(rs):
        for (o, i, g, hi) in rs:
            a(f"v_and_or_b32 v{o}, v{g}, s{sHI}, v{o}" if hi else f"v_lshl_or_b32 v{o}, v{g}, 16, v{o}")
    rank(recs(0))
    rank(recs(1))
    for r in range(12):
        if r < 10:
            rank(recs(r + 2))
        a(f"s_waitcnt lgkmcnt({8 if r < 10 else (4 if r == 10 else 0)})")
        vm_wait(("a", r))
        merge(recs(r))
        if r + 8 < 12:
            issue_ang(r + 8)
    vm_wait(("a", 12))
    tail(12, "P1_rk", lambda: (rank(recs(12)), a("s_waitcnt lgkmcnt(0)"), merge(recs(12))))
    a("s_barrier")
    a.c("table of (start, length): the counters now hold the segment ends")
    ra = G
    a(f"""
    v_and_b32 v{ra}, 3, v0
    v_lshlrev_b32 v{ra}, 12, v{ra}
    v_and_b32 v{ra + 1}, 0x3fc, v0
    v_add_u32 v{ra}, v{ra}, v{ra + 1}
    """)
    for qq in range(4):
        if qq:
            a(f"v_add_u32 v{ra}, 1024, v{ra}")
        a(f"ds_read2_b32 {vr(tmp[2 * qq], 2)}, v{ra} offset0:{B_CNT // 4 - 1} offset1:{B_CNT // 4}")
    a("s_waitcnt lgkmcnt(0)\ns_barrier")
    for qq in range(4):
        s0, e0 = tmp[2 * qq], tmp[2 * qq + 1]
        a(f"v_sub_u32 v{e0}, v{e0}, v{s0}\nv_lshl_or_b32 v{G + qq}, v{e0}, 16, v{s0}")
    a(f"""
    s_lshl_b32 s{sT0}, s2, 14
    s_mul_i32 s{sST}, s2, {2 * CHB}
    buffer_store_dwordx4 {vr(G, 4)}, v{vT16}, {sr(S_TAB, 4)}, s{sT0} offen{STM[0]}
    """)
    st1()
    pend = []

    def scatter(h):
        sets = [(tmp[4], tmp[5], tmp[6]), (tmp[7], G6, vT8)]

        def put(rs):
            for k, (o, i, g, hi) in enumerate(rs):
                x, y, z = sets[k & 1]
                if h == 0:
                    a(f"v_mul_u32_u24_sdwa v{x}, v{o}, v{vONE} dst_sel:DWORD dst_unused:UNUSED_PAD src0_sel:WORD_0 src1_sel:DWORD")
                else:
                    a(f"v_and_b32 v{x}, 0xffff, v{o}\nv_mad_u32_u24 v{x}, v{x}, 6, s{sOFF}")
                a(f"""
                v_and_b32 v{y}, 2, v{x}
                v_add_u32 v{z}, v{x}, v{y}
                v_mad_i32_i24 v{x}, v{y}, -2, v{x}
                ds_write_b32 v{z}, v{i}
                ds_write_b16_d16_hi v{x}, v{o} offset:4
                """)
        for r in range(13):
            tail(r, f"P1_sc{h}", lambda: put(recs(r)))
            if pend:
                pend.pop(0)()
        while pend:
            pend.pop(0)()
        a("s_waitcnt lgkmcnt(0)\ns_barrier")

    LAST = [(n - 1) // 1024 for n in NQ]

    def reads(dst, rs, ra, rb, h):
        for r in rs:
            base = [vT16, ra, rb][r >> 2]
            if r == LAST[h]:
                a(f"v_cmp_gt_u32 vcc, {NQ[h] - 1024 * r}, v0\ns_and_saveexec_b64 {sr(sEX, 2)}, vcc")
            a(f"ds_read_b128 {vr(dst[r], 4)}, v{base} offset:{(r & 3) * 16384}")
            if r == LAST[h]:
                a(f"s_mov_b64 exec, {sr(sEX, 2)}\nv_cndmask_b32 v{rb}, v{vX}, v{vT16}, vcc")

    def store(dst, r, rb, h):
        a(f"s_add_u32 s{sT0}, s{sST}, {h * HALF + r * 16384}")
        a(f"buffer_store_dwordx4 {vr(dst[r], 4)}, v{vT16 if r < LAST[h] else rb}, {sr(S_REC, 4)}, s{sT0} offen{STM[h]}")

    a(f"v_mov_b32 v{vONE}, 6")
    scatter(0)
    st1()
    ra, rb = tmp[4], tmp[5]
    q5 = [G, G + 4, G + 8, G + 12, tmp[0]]
    dst = q5 + q5
    a(f"v_add_u32 v{ra}, 0x10000, v{vT16}\nv_add_u32 v{rb}, 0x20000, v{vT16}")
    assert LAST[0] == 9
    reads(dst, range(5), ra, rb, 0)
    for r in range(5):
        a(f"s_waitcnt lgkmcnt({4 - r})")
        store(dst, r, rb, 0)
    reads(dst, range(5, 10), ra, rb, 0)
    a("s_waitcnt lgkmcnt(0)")
    store(dst, 9, rb, 0)
    a("s_barrier")
    pend.extend((lambda r=r: store(dst, r, rb, 0)) for r in range(5, 9))
    if OPT["stpos"] == 0:
        while pend:
            pend.pop(0)()
    st1()
    scatter(1)
    st1()
    dst = [O + 4 * r for r in range(10)]
    a(f"v_add_u32 v{ra}, 0x10000, v{vT16}\nv_add_u32 v{rb}, 0x20000, v{vT16}")
    reads(dst, range(LAST[1] + 1), ra, rb, 1)
    for r in range(LAST[1]):
        a(f"s_waitcnt lgkmcnt({LAST[1] - 1 - r})")
        store(dst, r, rb, 1)
    a("s_waitcnt lgkmcnt(0)")
    store(dst, LAST[1], rb, 1)
    st1()
    if OPT["stamp1"]:
        st1()
        a("s_waitcnt vmcnt(0)")
        st1()
        a(f"""
        s_lshl_b32 s3, s2, 4
        s_add_u32 s3, s3, s{sW}
        s_lshl_b32 s3, s3, 6
        s_add_u32 s44, s44, {17 << 20}
        s_addc_u32 s45, s45, 0
        """)
        srd(a, S_TAB, 44, 1 << 20)
        a("v_mov_b32 v4, 0")
        for i in range(stn[0]):
            a(f"v_mov_b32 v5, s{48 + 2 * i}")
            a(f"buffer_store_dword v5, v4, {sr(S_TAB, 4)}, s3 offen offset:{4 * i}")
    a("P1_done:")
    a("s_endpgm")
    kernel_desc(a, name, 128, 88)


def gen_part(a, name):
    nt = " nt" if OPT["nt_in"] else ""
    STMS = {X: ["", " sc1", " nt", " sc0 sc1", " sc1 nt"][OPT[k]] for X, k in (("A", "stm"), ("B", "stmb"))}
    S_IN, S_OUT, S_ANG, S_REC, S_TAB = 8, 12, 16, 20, 24
    sMAG, sNEG, sMASK, sHI, sDIV6 = 28, 29, 30, 31, 32
    sOI, sOA = 33, 34
    sW, sT0, sT1, sCH = 35, 36, 37, 38
    sEX = 40
    stn = [0]

    def st1():
        if OPT["stamp1"]:
            a(f"s_memrealtime s[{48 + 2 * stn[0]}:{49 + 2 * stn[0]}]\ns_waitcnt lgkmcnt(0)")
            stn[0] += 1
    vT16, vT8, vSIX = 1, 2, 3
    tmp = list(range(4, 14))
    O = {"A": 14, "B": 62}
    I = {"A": 38, "B": 86}
    G = 110
    O6 = {"A": 122, "B": 124}
    I6 = {"A": 123, "B": 125}
    G6 = 126
    vX = 127

    kernel_head(a, name)
    a(f"""
    s_cmp_ge_u32 s2, {NB}
    s_cbranch_scc1 P1_done
    s_load_dwordx4 s[4:7], s[0:1], 8
    s_load_dwordx2 s[42:43], s[0:1], 32
    s_load_dwordx2 s[44:45], s[0:1], 104
    s_load_dwordx2 s[70:71], s[0:1], 0
    v_lshlrev_b32 v{vT16}, 4, v0
    v_lshlrev_b32 v{vT8}, 3, v0
    v_mov_b32 v{vSIX}, 6
    s_mov_b32 s{sMAG}, 1374390
    s_mov_b32 s{sNEG}, {-EB}
    s_mov_b32 s{sMASK}, 0x1c00
    s_mov_b32 s{sHI}, 0xffff0000
    s_mov_b32 s{sDIV6}, 0x2aaaaaab
    v_lshrrev_b32 v4, 6, v0
    v_mov_b32 v6, 0
    v_mov_b32 v7, 0
    v_readfirstlane_b32 s{sW}, v4
    ds_write_b64 v{vT8}, v[6:7] offset:{P1_CNT}
    v_mov_b32 v5, {P1_REC}
    ds_write_b32 v6, v5 offset:{P1_CNT - 4}
    s_waitcnt lgkmcnt(0)
    """)
    srd(a, S_IN, 4, T * 4)
    srd(a, S_OUT, 6, T * 4)
    srd(a, S_ANG, 42, T * 2)
    srd(a, S_REC, 44, REC_BYTES)
    a(f"s_add_u32 s44, s44, {TAB_OFF}")
    a("s_addc_u32 s45, s45, 0")
    srd(a, S_TAB, 44, TAB_BYTES + 8192)
    a(f"""
    s_lshr_b32 s39, s2, 1
    s_and_b32 s39, s39, 7
    s_lshr_b32 s46, s39, {1 if OPT["stag"] == 1 else 0}
    s_lshr_b32 s46, {0xf0 if OPT["stag"] == 1 else 0xff00}, s46
    s_and_b32 s46, s46, {0xf if OPT["stag"] == 1 else 0xff}
    s_mul_i32 s46, s46, {0x11 if OPT["stag"] == 1 else 1}
    """)
    if OPT["stag"] == 3:
        a(f"""
        s_lshr_b32 s46, s39, 1
        s_lshl_b32 s46, s46, 2
        s_sub_u32 s46, 16, s46
        s_lshr_b32 s47, 0x1111, s46
        s_lshl_b32 s46, s47, s46
        s_add_u32 s46, s46, {OPT["rotl"]:#x}
        s_mul_i32 s46, s46, 0x10001
        """)
    a(f"""
    s_lshl_b32 s39, s39, 21
    s_sub_u32 s39, {OPT['ns'] << 24}, s39
    s_mul_i32 s{sOI}, s2, {2 * CH * 4}
    s_mul_i32 s{sOA}, s2, {2 * CH * 2}
    """)

    vmq = []

    def vm_wait(tag):
        last = max(i for i, x in enumerate(vmq) if x == tag)
        a(f"s_waitcnt vmcnt({len(vmq) - 1 - last})")

    pend = []

    def slot(n=1):
        for _ in range(n):
            if pend:
                pend.pop(0)()

    def issue_idx(X, r):
        vmq.extend([(X, r)] * 2)
        if r < 6:
            a(f"""
            buffer_load_dwordx4 {vr(O[X] + 4 * r, 4)}, v{vT16}, {sr(S_OUT, 4)}, s{sOI} offen{nt}
            buffer_load_dwordx4 {vr(I[X] + 4 * r, 4)}, v{vT16}, {sr(S_IN, 4)}, s{sOI} offen{nt}
            s_add_u32 s{sOI}, s{sOI}, 16384
            """)
        else:
            a(f"""
            v_cmp_gt_u32 vcc, {CH - 6 * 4096}, v0
            v_lshlrev_b32 v{tmp[9]}, 2, v0
            s_nop 0
            v_cndmask_b32 v{tmp[9]}, v{vX}, v{tmp[9]}, vcc
            buffer_load_dword v{O6[X]}, v{tmp[9]}, {sr(S_OUT, 4)}, s{sOI} offen{nt}
            buffer_load_dword v{I6[X]}, v{tmp[9]}, {sr(S_IN, 4)}, s{sOI} offen{nt}
            s_add_u32 s{sOI}, s{sOI}, {(CH - 6 * 4096) * 4}
            """)

    def issue_ang(X, r):
        vmq.append((X, "a", r))
        if r < 6:
            a(f"""
            buffer_load_dwordx2 {vr(G + 2 * r, 2)}, v{vT8}, {sr(S_ANG, 4)}, s{sOA} offen{nt}
            s_add_u32 s{sOA}, s{sOA}, 8192
            """)
        else:
            a(f"""
            v_cmp_gt_u32 vcc, {CH - 6 * 4096}, v0
            v_lshlrev_b32 v{tmp[9]}, 1, v0
            s_nop 0
            v_cndmask_b32 v{tmp[9]}, v{vX}, v{tmp[9]}, vcc
            buffer_load_ushort v{G6}, v{tmp[9]}, {sr(S_ANG, 4)}, s{sOA} offen{nt}
            s_add_u32 s{sOA}, s{sOA}, {(CH - 6 * 4096) * 2}
            """)

    def pack(recs):
        n = len(recs)
        tb = tmp[0:n]
        tc = tmp[4:4 + n]
        for k, (o, i, g, hi) in enumerate(recs):
            a(f"v_mul_hi_u32_u24 v{tb[k]}, s{sMAG}, v{o}")
            a(f"v_mul_u32_u24 v{tc[k]}, {(OPT['ns'] << 24) // E}, v{i}")
        if OPT["slide"]:
            for k in range(n):
                a(f"v_add_u32 v{tc[k]}, s39, v{tc[k]}")
            if OPT["ns"] != 8:
                for k in range(n):
                    a(f"v_subrev_u32 v{tmp[8]}, {OPT['ns'] << 24}, v{tc[k]}")
                    a(f"v_min_u32 v{tc[k]}, v{tc[k]}, v{tmp[8]}")
        for k, (o, i, g, hi) in enumerate(recs):
            a(f"v_mad_i32_i24 v{o}, v{tb[k]}, s{sNEG}, v{o}")
            if OPT["stag"] == 3:
                u = tmp[8 + (k & 1)]
                a(f"v_lshrrev_b32 v{u}, 5, v{tb[k]}")
                a(f"v_lshrrev_b32 v{tc[k]}, 24, v{tc[k]}")
                a(f"v_lshlrev_b32 v{u}, 2, v{u}")
                a(f"v_lshlrev_b32 v{tb[k]}, 2, v{tb[k]}")
                a(f"v_bfe_u32 v{u}, s46, v{u}, 4")
                a(f"v_sub_u32 v{tc[k]}, v{tc[k]}, v{u}")
                a(f"v_add_u32 v{u}, {OPT['ns']}, v{tc[k]}")
                a(f"v_min_u32 v{tc[k]}, v{tc[k]}, v{u}")
                continue
            a(f"v_lshrrev_b32 v{tc[k]}, 14, v{tc[k]}")
            if OPT["stag"]:
                u = tmp[8 + (k & 1)]
                a(f"v_lshrrev_b32 v{u}, 5, v{tb[k]}")
                a(f"v_bfe_i32 v{u}, s46, v{u}, 1")
                a(f"v_lshl_add_u32 v{tc[k]}, v{u}, 10, v{tc[k]}")
                if OPT["ns"] != 8:
                    a(f"v_add_u32 v{u}, {OPT['ns'] << 10}, v{tc[k]}")
                    a(f"v_min_u32 v{tc[k]}, v{tc[k]}, v{u}")
            a(f"v_lshlrev_b32 v{tb[k]}, 2, v{tb[k]}")
        for k, (o, i, g, hi) in enumerate(recs):
            a(f"v_lshl_or_b32 v{i}, v{i}, 12, v{o}")
            if OPT["stag"] == 3:
                a(f"v_lshl_or_b32 v{o}, v{tc[k]}, 10, v{tb[k]}")
            else:
                a(f"v_and_or_b32 v{o}, v{tc[k]}, s{sMASK}, v{tb[k]}")
        for k, (o, i, g, hi) in enumerate(recs):
            a(f"ds_add_u32 v{o}, v{vSIX} offset:{P1_CNT}")

    def round_recs(X, r):
        if r < 6:
            return [(O[X] + 4 * r + k, I[X] + 4 * r + k, G + 2 * r + (k >> 1), k & 1) for k in range(4)]
        return [(O6[X], I6[X], G6, 0)]

    def tail_begin(lbl):
        a(f"""
        v_cmp_gt_u32 vcc, {CH - 6 * 4096}, v0
        s_and_saveexec_b64 {sr(sEX, 2)}, vcc
        s_cbranch_execz {lbl}
        """)

    def tail_end(lbl):
        a(f"{lbl}:")
        a(f"s_mov_b64 exec, {sr(sEX, 2)}")

    def wave_scan(v):
        a(f"""
        s_nop 1
        v_add_u32_dpp v{v}, v{v}, v{v} row_shr:1 row_mask:0xf bank_mask:0xf bound_ctrl:0
        s_nop 1
        v_add_u32_dpp v{v}, v{v}, v{v} row_shr:2 row_mask:0xf bank_mask:0xf bound_ctrl:0
        s_nop 1
        v_add_u32_dpp v{v}, v{v}, v{v} row_shr:4 row_mask:0xf bank_mask:0xf bound_ctrl:0
        s_nop 1
        v_add_u32_dpp v{v}, v{v}, v{v} row_shr:8 row_mask:0xf bank_mask:0xf bound_ctrl:0
        """)

    def sort_chunk(X):
        c01, s, inc, p, q = tmp[0], tmp[2], tmp[3], tmp[4], tmp[5]
        st1()
        a.c("exclusive scan of the 2048 counters (units: bytes, 6 per record)")
        a(f"""
        s_waitcnt lgkmcnt(0)
        s_barrier
        """)
        if X == 'A' or OPT['stpos'] < 3:
            slot()
        a(f"""
        ds_read_b64 {vr(c01, 2)}, v{vT8} offset:{P1_CNT}
        s_waitcnt lgkmcnt(0)
        v_add_u32 v{s}, v{c01}, v{c01 + 1}
        v_mov_b32 v{inc}, v{s}
        """)
        wave_scan(inc)
        a(f"""
        s_nop 1
        v_add_u32_dpp v{inc}, v{inc}, v{inc} row_bcast:15 row_mask:0xa bank_mask:0xf
        s_nop 1
        v_add_u32_dpp v{inc}, v{inc}, v{inc} row_bcast:31 row_mask:0xc bank_mask:0xf
        s_lshl_b32 s{sT1}, s{sW}, 2
        v_mov_b32 v{q}, s{sT1}
        v_readlane_b32 s{sT0}, v{inc}, 63
        s_nop 1
        v_mov_b32 v{p}, s{sT0}
        ds_write_b32 v{q}, v{p} offset:{P1_PART}
        v_and_b32 v{q}, 15, v0
        v_lshlrev_b32 v{p}, 2, v{q}
        s_waitcnt lgkmcnt(0)
        s_barrier
        """)
        if X == 'A' or OPT['stpos'] < 3:
            slot()
        a(f"""
        v_cmp_gt_u32 vcc, s{sW}, v{q}
        ds_read_b32 v{p}, v{p} offset:{P1_PART}
        s_waitcnt lgkmcnt(0)
        v_cndmask_b32 v{p}, 0, v{p}, vcc
        """)
        wave_scan(p)
        a(f"""
        v_sub_u32 v{inc}, v{inc}, v{s}
        v_readlane_b32 s{sT0}, v{p}, 15
        s_add_u32 s{sT0}, s{sT0}, {P1_REC}
        s_nop 0
        v_add_u32 v{q + 1}, s{sT0}, v{inc}
        v_add_u32 v{q + 2}, v{q + 1}, v{c01}
        ds_write_b64 v{vT8}, {vr(q + 1, 2)} offset:{P1_CNT}
        s_waitcnt lgkmcnt(0)
        s_barrier
        """)
        assert (q + 1) % 2 == 0
        st1()
        a.c("rank and scatter into the LDS image")
        def rank_issue(recs):
            for k, (o, i, g, hi) in enumerate(recs):
                a(f"ds_add_rtn_u32 v{o}, v{o}, v{vSIX} offset:{P1_CNT}")

        def put_words(recs):
            for k, (o, i, g, hi) in enumerate(recs):
                a(f"v_and_b32 v{tmp[k]}, 2, v{o}")
            for k, (o, i, g, hi) in enumerate(recs):
                a(f"v_add_u32 v{tmp[k]}, v{o}, v{tmp[k]}")
            for k, (o, i, g, hi) in enumerate(recs):
                a(f"ds_write_b32 v{tmp[k]}, v{i}")

        def put_angles(recs):
            for k, (o, i, g, hi) in enumerate(recs):
                a(f"v_and_b32 v{tmp[4 + k]}, 2, v{o}")
            for k, (o, i, g, hi) in enumerate(recs):
                a(f"v_mad_i32_i24 v{tmp[4 + k]}, v{tmp[4 + k]}, -2, v{o}")
            for k, (o, i, g, hi) in enumerate(recs):
                a(f"ds_write_b16{'_d16_hi' if hi else ''} v{tmp[4 + k]}, v{g} offset:4")

        nslot = lambda r: (2 if OPT["stpos"] < 4 or r >= 2 else 0) if X == "B" else OPT["aslot"]
        rank_issue(round_recs(X, 0))
        rank_issue(round_recs(X, 1))
        for r in range(6):
            if r < 4:
                rank_issue(round_recs(X, r + 2))
            a(f"s_waitcnt lgkmcnt({[8, 12, 12, 12, 8, 4][r]})")
            put_words(round_recs(X, r))
            slot(nslot(r))
        tail_begin(f"P1_sc6{X}")
        rank_issue(round_recs(X, 6))
        a("s_waitcnt lgkmcnt(0)")
        put_words(round_recs(X, 6))
        tail_end(f"P1_sc6{X}")
        slot(99)
        for r in range(7):
            vm_wait((X, "a", r))
            if r == 6:
                tail_begin(f"P1_an6{X}")
            put_angles(round_recs(X, r))
            if r == 6:
                tail_end(f"P1_an6{X}")
            if X == "A" and OPT["bang"] == 1 and r < 6:
                issue_ang("B", r)
        slot(99)
        a("""
        s_waitcnt lgkmcnt(0)
        s_barrier
        """)
        st1()
        a.c("read the image back (into the dead record registers) and the counters (now segment ends)")
        dst = [O[X] + 4 * r for r in range(6)] + [I[X] + 4 * r for r in range(4)]
        ra, rb = tmp[8], tmp[9]
        a(f"v_add_u32 v{ra}, 0x10000, v{vT16}")
        a(f"v_add_u32 v{rb}, 0x20000, v{vT16}")
        for r in range(9):
            base = [vT16, ra, rb][r >> 2]
            a(f"ds_read_b128 {vr(dst[r], 4)}, v{base} offset:{P1_REC + (r & 3) * 16384}")
        nlast = CH * 6 // 16 - 9 * 1024
        a(f"""
        v_cmp_gt_u32 vcc, {nlast}, v0
        s_and_saveexec_b64 {sr(sEX, 2)}, vcc
        ds_read_b128 {vr(dst[9], 4)}, v{rb} offset:{P1_REC + 16384}
        s_mov_b64 exec, {sr(sEX, 2)}
        v_cndmask_b32 v{rb}, v{vX}, v{vT16}, vcc
        v_and_b32 v{ra}, 1, v0
        v_lshlrev_b32 v{ra}, 12, v{ra}
        v_lshrrev_b32 v{tmp[0]}, 1, v0
        v_lshl_add_u32 v{ra}, v{tmp[0]}, 2, v{ra}
        s_cmp_lt_u32 s{sW}, 8
        s_cbranch_scc0 P1_notab{X}
        """)
        for qq in range(4):
            if qq:
                a(f"v_add_u32 v{ra}, 1024, v{ra}")
            a(f"ds_read2_b32 {vr(tmp[2 * qq], 2)}, v{ra} offset0:{P1_CNT // 4 - 1} offset1:{P1_CNT // 4}")
        a("s_waitcnt lgkmcnt(0)")
        for qq in range(4):
            s_, e_ = tmp[2 * qq], tmp[2 * qq + 1]
            a(f"""
            v_sub_u32 v{e_}, v{e_}, v{s_}
            v_subrev_u32 v{s_}, {P1_REC}, v{s_}
            v_mul_hi_u32 v{e_}, v{e_}, s{sDIV6}
            v_mul_hi_u32 v{s_}, v{s_}, s{sDIV6}
            v_lshl_or_b32 v{tmp[qq]}, v{e_}, 16, v{s_}
            """)
        a(f"""
        v_lshrrev_b32 v{tmp[4]}, 1, v0
        v_and_b32 v{tmp[5]}, 1, v0
        v_lshlrev_b32 v{tmp[4]}, {5 if OPT["tabc"] else 14}, v{tmp[4]}
        v_lshl_or_b32 v{tmp[4]}, v{tmp[5]}, 4, v{tmp[4]}
        s_branch P1_tab{X}
        P1_notab{X}:
        v_mov_b32 v{tmp[4]}, v{vX}
        P1_tab{X}:
        s_lshl_b32 s{sT0}, s{sCH}, {13 if OPT['tabc'] else 5}
        s_mul_i32 s{sT1}, s{sCH}, {CHB}
        buffer_store_dwordx4 {vr(tmp[0], 4)}, v{tmp[4]}, {sr(S_TAB, 4)}, s{sT0} offen
        s_waitcnt lgkmcnt(0)
        """)
        vmq.append("st")
        a(f"s_add_u32 s{sT0}, s{sT1}, {9 * 16384}")
        a(f"buffer_store_dwordx4 {vr(dst[9], 4)}, v{rb}, {sr(S_REC, 4)}, s{sT0} offen{STMS[X]}")
        vmq.append("st")
        a(f"s_mov_b32 s47, s{sT1}")

        def mk(r):
            def f():
                a(f"buffer_store_dwordx4 {vr(dst[r], 4)}, v{vT16}, {sr(S_REC, 4)}, s47 offen{STMS[X]}")
                a(f"s_add_u32 s47, s47, 16384")
                vmq.append("st")
            return f
        pend.extend(mk(r) for r in range(9))
        if X == "B" or OPT["stpos"] == 0:
            slot(99)
        st1()

    st1()
    a(f"v_mov_b32 v{vX}, 0x7fffff00")
    AD = OPT["adepth"]
    aq = [lambda r=r: issue_idx("A", r) for r in range(7)] + [lambda: [issue_ang("A", r) for r in range(0, 2)], lambda: [issue_ang("A", r) for r in range(2, 4)], lambda: [issue_ang("A", r) for r in range(4, 7)]]

    def first_loads():
        if AD:
            for _ in range(AD):
                aq.pop(0)()
            return
        for r in range(7):
            issue_idx("A", r)
            if not OPT["angl"]:
                issue_ang("A", r)
        if OPT["angl"]:
            for r in range(7):
                issue_ang("A", r)
    builder(a, (62, 78, 94, 102), 4, 5, 6, 7, 12, 124, 8, sW, sT0, S_TAB, first_loads, 2 * AD if AD else 21)
    a("s_barrier")
    order = [6, 0, 1, 2, 3, 4, 5]
    nb = 0
    for r in range(7):
        vm_wait(("A", r))
        if r == 6:
            tail_begin("P1_pk6A")
        pack(round_recs("A", r))
        if r == 6:
            tail_end("P1_pk6A")
        if AD and aq:
            aq.pop(0)()
            if r == 6:
                while aq:
                    aq.pop(0)()
        elif r < 6 and r >= 6 - OPT["early"]:
            issue_idx("B", nb)
            nb += 1
    for r in range(nb, 6):
        pend.append(lambda r=r: (vm_wait(("B", r - OPT["bfair"])) if OPT["bfair"] and r >= OPT["bfair"] else None, issue_idx("B", r)))
    a(f"s_lshl_b32 s{sCH}, s2, 1")
    sort_chunk("A")
    a(f"""
    s_barrier
    v_mov_b32 v{tmp[8]}, 0
    v_mov_b32 v{tmp[9]}, 0
    ds_write_b64 v{vT8}, {vr(tmp[8], 2)} offset:{P1_CNT}
    s_add_u32 s{sCH}, s{sCH}, 1
    s_waitcnt lgkmcnt(0)
    """)
    issue_idx("B", 6)
    if OPT["bang"] == 2:
        for r in range(6):
            issue_ang("B", r)
    issue_ang("B", 6)
    a("s_barrier")
    for r in range(7):
        vm_wait(("B", r))
        if r == 6:
            tail_begin("P1_pk6B")
        pack(round_recs("B", r))
        if r == 6:
            tail_end("P1_pk6B")
        if OPT["stpos"] == 1:
            slot()
    def prefetch_m():
        a.c("touch this workgroup's share of m (one load per 128-byte line) so that the second kernel finds it on chip")
        srd(a, 80, 70, E * 32)
        a(f"""
        v_cmp_gt_u32 vcc, {OPT["pfp1"] or 782}, v0
        v_lshlrev_b32 v{G + 1}, 7, v0
        s_mul_i32 s{sT0}, s2, {OPT["pfp1"] * 128 or 100000}
        s_and_b32 s{sT0}, s{sT0}, 0xffffff80
        v_cndmask_b32 v{G + 1}, v{vX}, v{G + 1}, vcc
        buffer_load_dword v{G}, v{G + 1}, {sr(80, 4)}, s{sT0} offen
        """)
    if OPT["pfm"] or OPT["pfp1"]:
        prefetch_m()
    sort_chunk("B")
    if OPT["stamp1"]:
        a("s_waitcnt vmcnt(0)")
        st1()
        a(f"""
        s_lshl_b32 s3, s2, 4
        s_add_u32 s3, s3, s{sW}
        s_lshl_b32 s3, s3, 6
        s_add_u32 s44, s44, {17 << 20}
        s_addc_u32 s45, s45, 0
        """)
        srd(a, S_TAB, 44, 1 << 20)
        a("v_mov_b32 v4, 0")
        for i in range(stn[0]):
            a(f"v_mov_b32 v5, s{48 + 2 * i}")
            a(f"buffer_store_dword v5, v4, {sr(S_TAB, 4)}, s3 offen offset:{4 * i}")
    a("P1_done:")
    a("s_endpgm")
    kernel_desc(a, name, 128, 88)


L_LOCK = 0
L_RBF = 800
L_ACC0 = L_RBF + EB * 16
L_ACC1 = L_ACC0 + EB * 16
L_RING = L_ACC1 + EB * 16
RING_CAP = 101
RING_STRIDE = RING_CAP * 8
P2_LDS = 163840
assert L_RING + 16 * RING_STRIDE <= P2_LDS


def gen_main(a, name):
    BIG = OPT["big"]
    CB = 2 * CHB if BIG else CHB
    NCW = 16 if BIG else 32
    SPL = OPT['spl']
    LPS = 64 // SPL
    LSH = LPS.bit_length() - 1
    SPP = NCW // SPL
    TSH = 14 if BIG else 13
    NSTEP = SPP * OPT["ns"]
    ntr = " nt" if OPT["nt_rec"] else ""
    nto = ["", " sc1", " nt", " sc0 sc1", " sc1 nt"][OPT["outm"]]
    S_REC, S_M, S_TMP, S_OUT = 8, 12, 16, 20
    sB, sW = 24, 25
    sCNT, sTOP = 26, 27
    sM = [28, 30]
    sN, sT0, sT1, sT2 = 32, 33, 34, 35
    sACQ, sFAIL = 36, 38
    sM0, sM1 = 40, 42
    sRET, sRET2 = 44, 46
    sLONG = [48, 50]
    sEX = 52
    sCO = 54
    sCOB = [55, 56]
    sK, sJ, sPH = 57, 58, 59
    sP = 60
    sRB, sHI, sG, sKF0, sKF1, sN0 = 76, 77, 78, 79, 80, 81
    sCEN = 84
    sEVEN = 92
    sCAP = 97
    sF = [98, 100]
    assert not (OPT['pfn'] or OPT['spf'] or OPT['x_fake'] or OPT['gexec'])
    vLANE = 1
    A1a, A1b, A2a, A2b, A3a, A3b = 2, 6, 10, 14, 18, 22
    D1, D2 = 26, 42
    GP, GQ = [58, 66], [62, 70]
    TF = 74
    S0, S1 = 78, 82
    AX, AY = S0, S1
    WA = [86, 88]
    O = [90, 91]
    C = [92, 93]
    TT = 94
    RB = [98, 102]
    RD = [101, 105]
    RL = [106, 107]
    RA = [108, 109]
    vBP, vCB, vL2, vL8, vH16, vOOB, vE = range(110, 117)
    t = list(range(117, 128)) + [0]
    vDUM = GP[1]
    vPF = 0

    kernel_head(a, name)
    a(f"""
    s_cmp_ge_u32 s2, {NB}
    s_cbranch_scc1 P2_done
    {"s_memrealtime s[94:95]" if OPT["stamp2"] else ""}
    s_load_dwordx2 {sr(sP, 2)}, s[0:1], 0
    s_load_dwordx2 {sr(sP + 2, 2)}, s[0:1], 24
    s_load_dwordx4 {sr(sP + 4, 4)}, s[0:1], 40
    s_load_dwordx2 s[4:5], s[0:1], 88
    s_load_dwordx2 s[6:7], s[0:1], 104
    s_and_b32 s{sB}, s2, 7
    s_lshl_b32 s{sB}, s{sB}, 5
    s_lshr_b32 s{sT0}, s2, 3
    s_add_u32 s{sB}, s{sB}, s{sT0}
    v_lshrrev_b32 v{t[0]}, 6, v0
    v_and_b32 v{vLANE}, 63, v0
    s_mov_b32 s{sHI}, 0xffff0000
    v_readfirstlane_b32 s{sW}, v{t[0]}
    v_mov_b32 v{vOOB}, 0x7fffff00
    s_mov_b32 s{sEVEN}, 0x55555555
    s_mov_b32 s{sEVEN + 1}, 0x55555555
    s_waitcnt lgkmcnt(0)
    """)
    pM, pDIST, pCEN, pFREQ, pWRBF, pWSBF, pWDN, pWUP = [sP + 2 * k for k in range(8)]
    a(f"""
    s_load_dwordx4 {sr(sCEN, 4)}, {sr(pCEN, 2)}, 0
    s_load_dword s{sT2}, {sr(pFREQ, 2)}, 0
    """)
    sPM, sPFO, sPFD = 100, 99, 82

    def spf():
        return f"""
        s_load_dword s{sPFD}, {sr(sPM, 2)}, s{sPFO}
        s_add_u32 s{sPFO}, s{sPFO}, {4096 * 128}
        s_min_u32 s{sPFO}, s{sPFO}, {E * 32 - 4}
        """
    srd(a, S_REC, 6, REC_BYTES)
    srd(a, S_M, pM, E * 32)
    srd(a, S_OUT, 4, E * 32)
    a(f"s_add_u32 s6, s6, {TAB_OFF}")
    a("s_addc_u32 s7, s7, 0")
    S_TAB = S_TMP
    S_DST = 68
    srd(a, S_TAB, 6, TAB_BYTES + 8192)
    a.c("this wave's 32 x 8 table entries: lane = chunk (l & 31), slices 4*(l >> 5) .. +3")
    a(f"""
    v_and_b32 v{t[0]}, {NCW - 1}, v{vLANE}
    v_lshrrev_b32 v{t[1]}, {4 if BIG else 5}, v{vLANE}
    v_lshlrev_b32 v{vL8}, 3, v{vLANE}
    v_lshlrev_b32 v{t[2]}, 4, v{t[1]}
    v_lshl_add_u32 v{t[2]}, v{t[0]}, {TSH}, v{t[2]}
    s_lshl_b32 s{sT0}, s{sB}, {TSH - 8}
    s_lshl_b32 s{sT1}, s{sW}, 18
    s_add_u32 s{sT0}, s{sT0}, s{sT1}
    v_lshrrev_b32 v{t[3]}, {LSH}, v{vLANE}
    v_lshlrev_b32 v{t[3]}, {TSH}, v{t[3]}
    s_add_u32 s{sT1}, s{sT0}, {SPL << TSH}
    buffer_load_dword v{vE}, v{t[3]}, {sr(S_TAB, 4)}, s{sT0} offen
    buffer_load_dword v{C[0]}, v{t[3]}, {sr(S_TAB, 4)}, s{sT1} offen
    buffer_load_dwordx4 {vr(TT, 4)}, v{t[2]}, {sr(S_TAB, 4)}, s{sT0} offen
    """)
    srd(a, S_DST, pDIST, E * 2)

    a.c("dist of the bucket's edges t, t+1024, t+2048, t+3072")
    a(f"""
    s_mul_i32 s{sT0}, s{sB}, {EB * 2}
    v_lshlrev_b32 v{t[2]}, 1, v0
    buffer_load_ushort v{t[4]}, v{t[2]}, {sr(S_DST, 4)}, s{sT0} offen
    buffer_load_ushort v{t[5]}, v{t[2]}, {sr(S_DST, 4)}, s{sT0} offen offset:2048
    s_add_u32 s{sT0}, s{sT0}, 4096
    buffer_load_ushort v{t[6]}, v{t[2]}, {sr(S_DST, 4)}, s{sT0} offen
    buffer_load_ushort v{t[7]}, v{t[2]}, {sr(S_DST, 4)}, s{sT0} offen offset:2048
    """)
    a.c("matrix operands prepared by the first kernel")
    a(f"v_lshlrev_b32 v{t[3]}, 4, v{vLANE}")
    for k in range(6):
        a(f"s_mov_b32 s{sT0}, {TAB_BYTES + 1024 * k}")
        a(f"buffer_load_dwordx4 {vr(A1a + 4 * k, 4)}, v{t[3]}, {sr(S_TAB, 4)}, s{sT0} offen")
    npf = 0
    if OPT["pf0"]:
        a.c("touch a share of the first slice of m, one load per 128-byte line")
        lines = (E // OPT["ns"] * 32 // 128 + 31) // 32
        a(f"""
        v_cmp_gt_u32 vcc, {min(lines, 1024)}, v0
        v_lshlrev_b32 v{t[8]}, 7, v0
        s_lshr_b32 s{sT0}, s2, 3
        s_mul_i32 s{sT0}, s{sT0}, {lines * 128}
        v_cndmask_b32 v{t[8]}, v{vOOB}, v{t[8]}, vcc
        buffer_load_dword v{vDUM}, v{t[8]}, {sr(S_M, 4)}, s{sT0} offen
        """)
        npf = 1
    a.c("zero the locks and the accumulators")
    D = D1
    a(f"""
    v_mov_b32 v{D}, 0
    v_mov_b32 v{D + 1}, 0
    v_mov_b32 v{D + 2}, 0
    v_mov_b32 v{D + 3}, 0
    v_lshlrev_b32 v{t[2]}, 4, v0
    v_add_u32 v{t[9]}, {L_ACC0}, v{t[2]}
    """)
    for r in range(4):
        a(f"ds_write_b128 v{t[9]}, {vr(D, 4)} offset:{r * 16384}")
    a(f"v_add_u32 v{t[9]}, 0x10000, v{t[9]}")
    for r in range(2):
        a(f"ds_write_b128 v{t[9]}, {vr(D, 4)} offset:{r * 16384}")
    a(f"""
    v_cmp_gt_u32 vcc, {2 * EB - 6 * 1024}, v0
    s_and_saveexec_b64 {sr(sEX, 2)}, vcc
    ds_write_b128 v{t[9]}, {vr(D, 4)} offset:{2 * 16384}
    s_mov_b64 exec, {sr(sEX, 2)}
    v_cmp_gt_u32 vcc, {L_RBF // 16}, v0
    s_and_saveexec_b64 {sr(sEX, 2)}, vcc
    ds_write_b128 v{t[2]}, {vr(D, 4)}
    s_mov_b64 exec, {sr(sEX, 2)}
    s_waitcnt lgkmcnt(0)
    """)
    if OPT["spf"]:
        a.c("scalar loads walk over m, one per 128-byte line chip-wide, ahead of the gathers")
        a(f"""
        s_lshl_b32 s{sPFO}, s2, 4
        s_add_u32 s{sPFO}, s{sPFO}, s{sW}
        s_lshl_b32 s{sPFO}, s{sPFO}, 7
        """)
        for k in range(OPT["spf"]):
            a(spf())
    a.c("centers and frequencies to f32")
    for k in (3, 2, 1, 0):
        a(f"s_and_b32 s{sCEN + 2 * k + 1}, s{sCEN + k}, 0xffff0000")
        a(f"s_lshl_b32 s{sCEN + 2 * k}, s{sCEN + k}, 16")
    a(f"""
    s_lshl_b32 s{sT0}, s{sT2}, 16
    s_and_b32 s{sT1}, s{sT2}, 0xffff0000
    v_mov_b32 v{t[8]}, 0.15915494
    v_mul_f32 v{t[9]}, s{sT0}, v{t[8]}
    v_mul_f32 v{t[8]}, s{sT1}, v{t[8]}
    v_and_b32 v{vH16}, 1, v{vLANE}
    v_lshlrev_b32 v{vH16}, 4, v{vH16}
    v_readfirstlane_b32 s{sKF0}, v{t[9]}
    v_readfirstlane_b32 s{sKF1}, v{t[8]}
    """)
    a.c("record-stream lane constants")
    a(f"""
    v_and_b32 v{t[8]}, {LPS - 1}, v{vLANE}
    v_lshrrev_b32 v{t[9]}, {LSH}, v{vLANE}
    v_lshlrev_b32 v{vL2}, 1, v{t[8]}
    v_lshlrev_b32 v{vBP}, 2, v{t[9]}
    v_mul_u32_u24 v{t[9]}, {CB}, v{t[9]}
    v_mad_u32_u24 v{vCB}, v{t[8]}, 12, v{t[9]}
    s_mul_i32 s{sCO}, s{sW}, {32 * CHB}
    s_mul_i32 s{sRB}, s{sW}, {RING_STRIDE}
    s_add_u32 s{sRB}, s{sRB}, {L_RING}
    s_mov_b32 s{sTOP}, s{sRB}
    s_mov_b32 s{sCNT}, 0
    s_mov_b64 {sr(sM[0], 2)}, 0
    s_mov_b64 {sr(sM[1], 2)}, 0
    s_mov_b32 s{sJ}, 0
    s_mov_b32 s{sPH}, 0
    s_mov_b32 s{sG}, 100000
    s_mov_b32 s{sCAP}, {OPT['lim']}
    s_mov_b64 {sr(sF[0], 2)}, 0
    s_mov_b64 {sr(sF[1], 2)}, 0
    s_and_b32 s3, s2, {3 if OPT["stag"] == 1 else (6 if OPT["stag"] == 2 else 0)}
    s_lshl_b32 s3, s3, {1 if OPT["stag"] == 1 else 0}
    s_mov_b32 s83, {-16 * OPT["lag"] + OPT["lagoff"]}
    {'s_mov_b32 s95, 0' if OPT['cntreq'] else ''}
    """)

    uid = [0]
    kmul = (OPT["ns"] << 24) // E
    SLB = ((1 << 24) // kmul * 32) & ~127
    SHARE = (SLB // 128 + 64 * OPT['pfx']) // (64 * OPT['pfx'])

    PER = (SHARE + OPT["pfw"] - 1) // OPT["pfw"]

    def pf_share(sS, tmpv, vPF=vPF):
        return f"""
        s_mul_i32 s{sT0}, s{sS}, {SLB}
        s_mul_i32 s{sT1}, s82, {SHARE * 128}
        s_add_u32 s{sT0}, s{sT0}, s{sT1}
        s_mul_i32 s{sT1}, s{sW}, {PER}
        v_add_u32 v{tmpv}, s{sT1}, v{vLANE}
        v_cmp_gt_u32 vcc, {PER}, v{vLANE}
        v_lshlrev_b32 v{tmpv}, 7, v{tmpv}
        s_nop 0
        v_cndmask_b32 v{tmpv}, v{vOOB}, v{tmpv}, vcc
        buffer_load_dword v{vPF}, v{tmpv}, {sr(S_M, 4)}, s{sT0} offen
        """

    def prep(buf, mid=None, pf=True):
        uid[0] += 1
        u = uid[0]
        a(f"""
        v_lshrrev_b32 v{RL[buf]}, 16, v{vE}
        v_and_b32 v{t[0]}, 1, v{vE}
        v_and_b32 v{t[1]}, 0xfffe, v{vE}
        v_sub_u32 v{RD[buf]}, v{vL2}, v{t[0]}
        v_mad_u32_u24 v{RA[buf]}, v{t[1]}, 6, v{vCB}
        v_cmp_lt_i32 vcc, v{RD[buf]}, v{RL[buf]}
        v_cmp_lt_u32 {sr(sLONG[buf], 2)}, {2 * LPS - 1}, v{RL[buf]}
        s_mov_b32 s{sCOB[buf]}, s{sCO}
        {"s_or_b32 vcc_lo, vcc_lo, 1" if OPT["rexec"] else f"v_cndmask_b32 v{t[1]}, v{vOOB}, v{RA[buf]}, vcc"}
        v_add_u32 v{vBP}, {4 * SPL}, v{vBP}
        s_add_u32 s{sCO}, s{sCO}, {SPL * CB}
        s_add_u32 s{sJ}, s{sJ}, 1
        s_cmp_lt_u32 s{sJ}, {SPP}
        s_cbranch_scc0 P2_adv{u}
        P2_advr{u}:
        {f"ds_bpermute_b32 v{vE}, v{vBP}, v{TT}" if mid else ""}
        """)
        if mid:
            a(mid)
        if OPT["x_fake"]:
            a(f"buffer_load_dword v{D2}, v{vOOB}, {sr(S_REC, 4)}, s{sCOB[buf]} offen{ntr}")
            sz = E // OPT['ns']
            a(f"""
            s_add_u32 s98, s{sK}, {2 + buf}
            s_lshr_b32 s98, s98, 3
            s_min_u32 s98, s98, {OPT['ns'] - 1}
            s_mul_i32 s98, s98, {sz}
            s_mov_b32 s99, {sz}
            s_mov_b32 s97, 0x9E3779B1
            """)
            for dd in (RB[buf], RB[buf] + 2):
                a(f"""
                v_mul_lo_u32 v{D1}, v{D1}, s97
                v_add_u32 v{D1}, 0x3c6ef35f, v{D1}
                v_lshrrev_b32 v{D1 + 1}, 15, v{D1}
                v_xor_b32 v{D1}, v{D1}, v{D1 + 1}
                v_mul_hi_u32 v{dd}, v{D1}, s99
                v_add_u32 v{dd}, s98, v{dd}
                v_lshlrev_b32 v{dd}, 12, v{dd}
                """)
        else:
            if OPT["rexec"]:
                a(f"""
                s_mov_b64 exec, vcc
                buffer_load_dwordx3 {vr(RB[buf], 3)}, v{RA[buf]}, {sr(S_REC, 4)}, s{sCOB[buf]} offen{ntr}
                s_mov_b64 exec, -1
                """)
            else:
                a(f"buffer_load_dwordx3 {vr(RB[buf], 3)}, v{t[1]}, {sr(S_REC, 4)}, s{sCOB[buf]} offen{ntr}")
        if OPT["pfn"] and mid and pf:
            a(f"""
            s_cmp_eq_u32 s{sJ}, s99
            s_cbranch_scc1 P2_pf{u}
            P2_pfr{u}:
            """)
            cold.append(f"""
            P2_pf{u}:
            s_cmp_eq_u32 s{sPH}, s98
            s_cbranch_scc0 P2_pfr{u}
            s_add_u32 s98, s98, {OPT["pfg"]}
            """ + "".join(f"s_add_u32 s{sT2}, s{sPH}, {OPT['pfn'] + g}\n" + pf_share(sT2, t[3]) for g in range(OPT["pfg"])) + f"""
            s_branch P2_pfr{u}
            """)
        cold.append(f"""
        P2_adv{u}:
        s_mov_b32 s{sJ}, 0
        s_sub_u32 s{sCO}, s{sCO}, {32 * CHB}
        s_add_u32 s{sPH}, s{sPH}, 1
        s_and_b32 s{sT0}, s{sPH}, 3
        s_cselect_b32 s{sT0}, {4 * NCW}, 0
        v_subrev_u32 v{vBP}, s{sT0}, v{vBP}
        v_mov_b32 v{t[0]}, v{TT}
        v_mov_b32 v{TT}, v{TT + 1}
        v_mov_b32 v{TT + 1}, v{TT + 2}
        v_mov_b32 v{TT + 2}, v{TT + 3}
        v_mov_b32 v{TT + 3}, v{t[0]}
        s_cmp_lt_u32 s{sPH}, {16 if BIG else 8}
        s_cbranch_scc1 P2_advr{u}
        v_mov_b32 v{TT}, 0
        s_branch P2_advr{u}
        """)

    cold = []
    a(f"s_waitcnt vmcnt({11 + npf})")
    prep(0)
    a(f"v_mov_b32 v{vE}, v{C[0]}")
    prep(1)

    def pf_prologue():
        a(f"""
        s_bfe_u32 s99, s2, {(3 << 16) | 3 if OPT["pfs"] else 0}
        s_cmp_lt_u32 s99, {4 if OPT['peel'] else 3}
        s_cselect_b32 s98, {OPT["pfg"]}, 0
        s_lshr_b32 s82, s2, 2
        s_mul_i32 s82, s82, {OPT["pfx"]}
        s_and_b32 s{sT0}, s2, 3
        s_add_u32 s82, s82, s{sT0}
        s_cmp_lt_u32 s{sT0}, {OPT["pfx"]}
        s_cselect_b32 s{sT0}, s{sW}, 99
        s_cmp_lt_u32 s{sT0}, {OPT["pfw"]}
        s_cselect_b32 s99, s99, 99
        s_cbranch_scc0 P2_nopf
        """)
        for k in range(OPT["pffirst"], OPT["pfn"] + OPT["pfg"]):
            if k == OPT["pfn"]:
                a(f"s_cmp_lt_u32 s99, {4 if OPT['peel'] else 3}\ns_cbranch_scc0 P2_nopf")
            a(f"s_mov_b32 s{sT2}, {k}")
            a(pf_share(sT2, t[3], vDUM))
        a("P2_nopf:")
    if OPT["pfn"] and OPT["pfpos"] == 0:
        pf_prologue()
    a.c("radial basis table (same roundings as the reference), stored as f16")
    a(f"s_waitcnt vmcnt({8 + npf})")
    sTEN, sL2E = sRET, sRET + 1
    a(f"s_mov_b32 s{sTEN}, 0xc1200000")
    a(f"s_mov_b32 s{sL2E}, {0x3fb8aa3b if OPT['mimic'] else 0xc166d4ca:#x}")
    def rbf_round(r):
        dd = t[4 + r]
        if r == 3:
            a(f"""
            v_cmp_gt_u32 vcc, {EB - 3 * 1024}, v0
            s_and_saveexec_b64 {sr(sEX, 2)}, vcc
            s_cbranch_execz P2_rbf3
            """)
        a(f"v_lshlrev_b32 v{dd}, 16, v{dd}")
        x = [D + k for k in range(8)]
        for k in range(8):
            a(f"v_subrev_f32 v{x[k]}, s{sCEN + k}, v{dd}")

        def rnd():
            if not OPT["mimic"]:
                return
            for k in range(0, 8, 2):
                a(f"v_cvt_pk_bf16_f32 v{D + 8 + k // 2}, v{x[k]}, v{x[k + 1]}")
            for k in range(0, 8, 2):
                a(f"v_lshlrev_b32 v{x[k]}, 16, v{D + 8 + k // 2}")
                a(f"v_and_b32 v{x[k + 1]}, s{sHI}, v{D + 8 + k // 2}")
        rnd()
        for k in range(8):
            a(f"v_mul_f32 v{x[k]}, v{x[k]}, v{x[k]}")
        rnd()
        if OPT["mimic"]:
            for k in range(8):
                a(f"v_mul_f32 v{x[k]}, s{sRET}, v{x[k]}")
        rnd()
        for k in range(8):
            a(f"v_mul_f32 v{x[k]}, s{sRET + 1}, v{x[k]}")
        for k in range(8):
            a(f"v_exp_f32 v{x[k]}, v{x[k]}")
        a("s_nop 0")
        rnd()
        for k in range(0, 8, 2):
            a(f"v_cvt_pk_f16_f32 v{D + 8 + k // 2}, v{x[k]}, v{x[k + 1]}")
        a(f"ds_write_b128 v{t[8]}, {vr(D + 8, 4)} offset:{L_RBF + r * 16384}")
        if r == 3:
            a("P2_rbf3:")
            a(f"s_mov_b64 exec, {sr(sEX, 2)}")


    def rbf_consts():
        a(f"v_lshlrev_b32 v{t[8]}, 4, v0")
    rbf_consts()
    a(f"ds_bpermute_b32 v{vE}, v{vBP}, v{TT}")
    for r in range(2 if OPT["peel"] else 4):
        rbf_round(r)
    a(f"""
    v_mov_b32 v{O[1]}, 0
    v_mov_b32 v{WA[1]}, 0
    """)
    a(f"s_mov_b32 s{sK}, 0")
    if OPT["gexec"]:
        for j in range(16):
            a(f"v_mov_b32 v{GP[0] + j}, 0")

    def prologue_tail():
        if OPT["peel"]:
            rbf_round(2)
            rbf_round(3)
        if OPT["pfn"] and OPT["pfpos"] == 1:
            pf_prologue()
        a("s_waitcnt lgkmcnt(0)\ns_barrier")
    if not OPT["peel"]:
        a.c("two out-of-range loads stand in for the gathers of the steps before the first one")
        for k in range(2):
            a(f"buffer_load_dword v{vDUM}, v{vOOB}, {sr(S_REC, 4)}, 0 offen")
        prologue_tail()

    la, bit, aX, aY, old = t[5], t[6], t[7], t[8], t[9]
    STAMP = OPT["stamp"]

    def st(i):
        return f"s_memtime s[{60 + 2 * i}:{61 + 2 * i}]" if STAMP else ""

    def lg(n):
        return f"s_waitcnt lgkmcnt({0 if STAMP else n})"

    def pop_issue(buf):
        F, NF = sF[buf], sACQ
        return f"""
        s_bcnt0_i32_b64 s{sN}, {sr(F, 2)}
        s_not_b64 {sr(NF, 2)}, {sr(F, 2)}
        s_min_u32 s{sN}, s{sCNT}, s{sN}
        v_mbcnt_lo_u32_b32 v{t[2]}, s{NF}, 0
        s_sub_u32 s{sCNT}, s{sCNT}, s{sN}
        v_mbcnt_hi_u32_b32 v{t[2]}, s{NF + 1}, v{t[2]}
        s_lshl3_add_u32 s{sTOP}, s{sCNT}, s{sRB}
        v_cmp_gt_u32 vcc, s{sN}, v{t[2]}
        v_lshl_add_u32 v{t[2]}, v{t[2]}, 3, s{sTOP}
        s_mov_b64 exec, {sr(NF, 2)}
        v_mov_b32 v{WA[buf]}, 0xfffff000
        v_mov_b32 v{WA[buf] + 1}, 0
        s_and_b64 exec, vcc, {sr(NF, 2)}
        ds_read_b64 {vr(WA[buf], 2)}, v{t[2]}
        s_or_b64 {sr(sM[buf], 2)}, exec, {sr(F, 2)}
        s_mov_b64 exec, -1
        """

    def gathers(buf):
        W, F, X, Y = WA[buf], sF[buf], sACQ, sFAIL
        g0 = f"v_mov_b32 v{t[2]}, v{vOOB}" if OPT["x_nogather"] else f"v_and_b32 v{t[2]}, 0xffffffe0, v{t[2]}"
        return f"""
        v_lshrrev_b32 v{t[2]}, 7, v{W}
        s_and_b64 {sr(X, 2)}, {sr(F, 2)}, {sr(sEVEN, 2)}
        {g0}
        s_lshl_b64 {sr(Y, 2)}, {sr(X, 2)}, 1
        v_lshlrev_b32 v{O[buf]}, 4, v{W}
        v_and_b32 v{t[4]}, s{sHI}, v{W + 1}
        v_or_b32_dpp v{t[3]}, v{t[2]}, v{vH16} quad_perm:[0,0,2,2] row_mask:0xf bank_mask:0xf
        v_or_b32_dpp v{t[2]}, v{t[2]}, v{vH16} quad_perm:[1,1,3,3] row_mask:0xf bank_mask:0xf
        s_nor_b64 exec, {sr(X, 2)}, {sr(Y, 2)}
        s_andn2_b64 {sr(X, 2)}, {sr(F, 2)}, {sr(sEVEN, 2)}
        buffer_load_dwordx4 {vr(GP[buf], 4)}, v{t[3]}, {sr(S_M, 4)}, 0 offen
        s_lshr_b64 {sr(Y, 2)}, {sr(X, 2)}, 1
        s_nor_b64 exec, {sr(X, 2)}, {sr(Y, 2)}
        buffer_load_dwordx4 {vr(GQ[buf], 4)}, v{t[2]}, {sr(S_M, 4)}, 0 offen
        s_mov_b64 exec, -1
        """

    def coschain(buf):
        return f"""
        {f"v_lshlrev_b32 v{O[buf]}, 4, v{vLANE}" if OPT["x_lin"] else f"v_and_b32 v{O[buf]}, 0xfff0, v{O[buf]}"}
        v_mul_f32 v{C[buf]}, s{sKF0}, v{t[4]}
        v_mul_f32 v{t[4]}, s{sKF1}, v{t[4]}
        v_fract_f32 v{C[buf]}, v{C[buf]}
        v_fract_f32 v{t[4]}, v{t[4]}
        v_cos_f32 v{C[buf]}, v{C[buf]}
        v_cos_f32 v{t[4]}, v{t[4]}
        """

    def cospack(buf):
        return f"v_cvt_pk_f16_f32 v{C[buf]}, v{C[buf]}, v{t[4]}"

    def rbf_read(buf):
        return f"ds_read_b128 {vr(S1, 4)}, v{O[buf]} offset:{L_RBF}"

    def gate(buf):
        s = ""
        for j in range(4):
            s += f"v_pk_mul_f16 v{S0 + j}, v{S1 + j}, v{C[buf]} op_sel_hi:[1,0]\n"
        for j in range(4):
            s += f"v_pk_mul_f16 v{S1 + j}, v{S1 + j}, v{C[buf]} op_sel:[0,1]\n"
        s += f"""
        v_mfma_f32_32x32x16_f16 {vr(D2, 16)}, {vr(A2a, 4)}, {vr(S0, 4)}, 0
        s_mov_b64 vcc, {sr(sEVEN, 2)}
        v_mfma_f32_32x32x16_f16 {vr(D2, 16)}, {vr(A2b, 4)}, {vr(S1, 4)}, {vr(D2, 16)}
        """
        return s

    def fixup(buf):
        s = ""
        for j in range(4):
            s += f"v_cndmask_b32_dpp v{S0 + j}, v{GQ[buf] + j}, v{GP[buf] + j}, vcc quad_perm:[0,0,2,2] row_mask:0xf bank_mask:0xf\n"
        s += "s_not_b64 vcc, vcc\n"
        for j in range(4):
            s += f"v_cndmask_b32_dpp v{S1 + j}, v{GP[buf] + j}, v{GQ[buf] + j}, vcc quad_perm:[1,1,3,3] row_mask:0xf bank_mask:0xf\n"
        return s

    def muls():
        for j in range(0, 16, 2):
            a(f"v_pk_mul_f32 {vr(D1 + j, 2)}, {vr(D1 + j, 2)}, {vr(D2 + j, 2)}")

    def core_a(buf, fill, fill2=""):
        W = WA[buf]
        a(f"""
        v_mfma_f32_32x32x16_bf16 {vr(D1, 16)}, {vr(A1a, 4)}, {vr(S0, 4)}, 0
        v_add_u32 v{aX}, {L_ACC0}, v{O[buf]}
        v_mfma_f32_32x32x16_bf16 {vr(D1, 16)}, {vr(A1b, 4)}, {vr(S1, 4)}, {vr(D1, 16)}
        v_add_u32 v{aY}, {L_ACC1}, v{O[buf]}
        v_lshrrev_b32 v{la}, 2, v{W}
        v_lshlrev_b32_e64 v{bit}, v{W}, 1
        v_permlane32_swap_b32 v{aX}, v{aY}
        """)
        a(fill)
        a(f"v_and_b32 v{la}, 0x3fc, v{la}")
        if not OPT["valu_add"]:
            muls()
        a(fill2)

    def core_b(buf, inline):
        uid[0] += 1
        u = uid[0]
        W, M = WA[buf], sM[buf]
        nrm = OPT["x_normw"]
        va = OPT["valu_add"]
        guard = f"s_sub_u32 s{sG}, s{sG}, 1\ns_cbranch_scc1 P2_done" if OPT["guard"] else ""
        a(f"""
        {st(5) if inline else ""}
        {"s_setprio 3" if OPT["prio"] else ""}
        s_mov_b64 exec, {sr(M, 2)}
        {f"v_mov_b32 v{old}, 0" if nrm else f"ds_or_rtn_b32 v{old}, v{la}, v{bit}"}
        s_mov_b64 exec, -1
        {"" if nrm else f"ds_read_b128 {vr(AX, 4)}, v{aX}"}
        {"" if nrm else f"ds_read_b128 {vr(AY, 4)}, v{aY}"}
        {f"ds_read_b32 v{t[10]}, v{vH16} offset:784" if inline else ""}
        {lg(2 if inline else 1)}
        {st(6) if inline else ""}
        """)
        check = f"""
        v_cmp_eq_u32 vcc, 0, v{old}
        s_and_b64 {sr(sACQ, 2)}, vcc, {sr(M, 2)}
        s_andn2_b64 {sr(sF[buf], 2)}, {sr(M, 2)}, vcc
        s_bcnt1_i32_b64 s{sN}, {sr(sF[buf], 2)}
        {"s_add_u32 s95, s95, s%d" % sN if OPT["cntreq"] else ""}
        s_mov_b32 exec_lo, s{sACQ}
        s_mov_b32 exec_hi, s{sACQ}
        s_cmp_gt_u32 s{sN}, s{sCAP}
        """
        U = [TF, TF + 1, TF + 2, TF + 3, t[1], t[2], t[3], t[4]]
        assert t[1] % 2 == 0

        def addhalf(Ac, off):
            for j in range(4):
                a(f"v_lshlrev_b32 v{U[2 * j]}, 16, v{Ac + j}")
                a(f"v_and_b32 v{U[2 * j + 1]}, s{sHI}, v{Ac + j}")
            for j in range(4):
                a(f"v_pk_fma_f32 {vr(U[2 * j], 2)}, {vr(D1 + off + 2 * j, 2)}, {vr(D2 + off + 2 * j, 2)}, {vr(U[2 * j], 2)}")
            for j in range(4):
                a(f"v_cvt_pk_bf16_f32 v{Ac + j}, v{U[2 * j]}, v{U[2 * j + 1]}")
        if va:
            a(f"v_and_b32 v{old}, v{old}, v{bit}")
            a(check)
            addhalf(AX, 0)
            a(f"s_waitcnt lgkmcnt({1 if inline else 0})")
        else:
            a(f"""
            v_mfma_f32_32x32x16_bf16 {vr(D2, 16)}, {vr(A3a, 4)}, {vr(AX, 4)}, {vr(D1, 16)}
            v_and_b32 v{old}, v{old}, v{bit}
            s_waitcnt lgkmcnt({1 if inline else 0})
            v_mfma_f32_32x32x16_bf16 {vr(D2, 16)}, {vr(A3b, 4)}, {vr(AY, 4)}, {vr(D2, 16)}
            """)
            a(check)
            a("s_nop 4")
            for j in range(4):
                a(f"v_cvt_pk_bf16_f32 v{AX + j}, v{D2 + 2 * j}, v{D2 + 2 * j + 1}")
        a(f"""
        {"" if nrm else f"ds_write_b128 v{aX}, {vr(AX, 4)}"}
        s_mov_b32 exec_lo, s{sACQ + 1}
        s_mov_b32 exec_hi, s{sACQ + 1}
        """)
        if va:
            addhalf(AY, 8)
        else:
            for j in range(4):
                a(f"v_cvt_pk_bf16_f32 v{AY + j}, v{D2 + 8 + 2 * j}, v{D2 + 8 + 2 * j + 1}")
        a(f"""
        {"" if nrm else f"ds_write_b128 v{aY}, {vr(AY, 4)}"}
        s_mov_b64 exec, {sr(sACQ, 2)}
        {"" if nrm else f"ds_xor_b32 v{la}, v{bit}"}
        {f"s_setprio {OPT['pbase']}" if OPT["prio"] else ""}
        s_mov_b64 exec, -1
        s_cbranch_scc1 P2_full{u}
        """)
        if inline:
            a(f"P2_fullr{u}:")
            cold.append(f"""
            P2_full{u}:
            s_mov_b64 {sr(M, 2)}, {sr(sF[buf], 2)}
            s_call_b64 {sr(sRET2, 2)}, P2_rmw{buf}
            s_branch P2_fullr{u}
            """)
        else:
            a(f"""
            s_setpc_b64 {sr(sRET2, 2)}
            P2_full{u}:
            {guard}
            s_mov_b64 {sr(M, 2)}, {sr(sF[buf], 2)}
            s_branch P2_rmw{buf}
            """)

    def slow_push(buf, slot):
        uid[0] += 1
        u = uid[0]
        d0, d1, d2 = RB[buf], RB[buf] + 1, RB[buf] + 2
        if slot == 0:
            s = f"""
            v_cmp_lt_u32 {sr(sM0, 2)}, v{RD[buf]}, v{RL[buf]}
            v_lshlrev_b32 v{t[11]}, 16, v{d1}
            """
            w, an = d0, t[11]
        else:
            s = f"""
            v_add_u32 v{t[11]}, 1, v{RD[buf]}
            v_cmp_lt_u32 {sr(sM0, 2)}, v{t[11]}, v{RL[buf]}
            """
            w, an = d2, d1
        return s + f"""
        P2_push{u}:
        s_bcnt1_i32_b64 s{sN0}, {sr(sM0, 2)}
        s_add_u32 s{sT0}, s{sCNT}, s{sN0}
        s_cmp_le_u32 s{sT0}, {RING_CAP}
        s_cbranch_scc1 P2_pok{u}
        s_call_b64 {sr(sRET, 2)}, P2_pop{buf}
        s_branch P2_push{u}
        P2_pok{u}:
        v_mbcnt_lo_u32_b32 v{t[4]}, s{sM0}, 0
        v_mbcnt_hi_u32_b32 v{t[4]}, s{sM0 + 1}, v{t[4]}
        v_lshl_add_u32 v{t[4]}, v{t[4]}, 3, s{sTOP}
        s_mov_b64 exec, {sr(sM0, 2)}
        ds_write2_b32 v{t[4]}, v{w}, v{an} offset1:1
        s_mov_b64 exec, -1
        s_mov_b32 s{sCNT}, s{sT0}
        s_lshl3_add_u32 s{sTOP}, s{sN0}, s{sTOP}
        """

    def step(buf, peeled=False):
        uid[0] += 1
        u = uid[0]
        prev = buf ^ 1
        d0, d1, d2 = RB[buf], RB[buf] + 1, RB[buf] + 2
        a.c(f"---- step, buffer {buf}: compact the loaded records onto the stack")
        if OPT["rot"] and (OPT["rot"] == 1 or buf == 0):
            a(f"""
            s_add_u32 s82, s82, 1
            s_bitcmp1_b32 s82, 1
            s_cbranch_scc1 P2_prh{u}
            s_setprio 0
            s_bitcmp1_b32 s82, 0
            s_cbranch_scc0 P2_pre{u}
            s_setprio 1
            s_branch P2_pre{u}
            P2_prh{u}:
            s_setprio 2
            s_bitcmp1_b32 s82, 0
            s_cbranch_scc0 P2_pre{u}
            s_setprio 3
            P2_pre{u}:
            """)
        a(f"""
        {st(0)}
        s_waitcnt vmcnt({1 if peeled else 3})
        {st(1)}
        v_cmp_lt_u32 {sr(sM0, 2)}, v{RD[buf]}, v{RL[buf]}
        v_add_u32 v{t[1]}, 1, v{RD[buf]}
        v_lshlrev_b32 v{t[2]}, 16, v{d1}
        v_cmp_lt_u32 {sr(sM1, 2)}, v{t[1]}, v{RL[buf]}
        s_bcnt1_i32_b64 s{sN0}, {sr(sM0, 2)}
        v_mbcnt_lo_u32_b32 v{t[0]}, s{sM0}, 0
        s_bcnt1_i32_b64 s{sN}, {sr(sM1, 2)}
        v_mbcnt_hi_u32_b32 v{t[0]}, s{sM0 + 1}, v{t[0]}
        v_mbcnt_lo_u32_b32 v{t[1]}, s{sM1}, 0
        s_add_u32 s{sT0}, s{sCNT}, s{sN0}
        v_mbcnt_hi_u32_b32 v{t[1]}, s{sM1 + 1}, v{t[1]}
        s_add_u32 s{sT0}, s{sT0}, s{sN}
        s_lshl3_add_u32 s{sT1}, s{sN0}, s{sTOP}
        v_lshl_add_u32 v{t[0]}, v{t[0]}, 3, s{sTOP}
        s_cmp_lg_u64 {sr(sLONG[buf], 2)}, 0
        s_cselect_b32 s{sT2}, 0, {RING_CAP + 1}
        v_lshl_add_u32 v{t[1]}, v{t[1]}, 3, s{sT1}
        s_cmp_ge_u32 s{sT0}, s{sT2}
        s_cbranch_scc1 {"P2_alt" if peeled else f"P2_slow{u}"}
        s_mov_b64 exec, {sr(sM0, 2)}
        ds_write2_b32 v{t[0]}, v{d0}, v{t[2]} offset1:1
        s_mov_b64 exec, {sr(sM1, 2)}
        ds_write2_b32 v{t[1]}, v{d2}, v{d1} offset1:1
        s_mov_b64 exec, -1
        s_mov_b32 s{sCNT}, s{sT0}
        P2_slowr{u}:
        """)
        if peeled:
            a(pop_issue(buf))
            a("s_waitcnt lgkmcnt(0)")
            prep(buf, gathers(buf), False)
            a(coschain(buf))
            a("s_nop 0")
            a(cospack(buf))
            return
        cold.append(f"P2_slow{u}:\n" + slow_push(buf, 0) + slow_push(buf, 1) + f"""
        P2_long{u}:
        v_add_u32 v{RD[buf]}, {2 * LPS}, v{RD[buf]}
        v_add_u32 v{RA[buf]}, {12 * LPS}, v{RA[buf]}
        v_cmp_lt_i32 vcc, v{RD[buf]}, v{RL[buf]}
        s_cbranch_vccz P2_slowr{u}
        s_nop 0
        v_cndmask_b32 v{t[4]}, v{vOOB}, v{RA[buf]}, vcc
        buffer_load_dwordx3 {vr(RB[buf], 3)}, v{t[4]}, {sr(S_REC, 4)}, s{sCOB[buf]} offen
        s_waitcnt vmcnt(0)
        """ + slow_push(buf, 0) + slow_push(buf, 1) + f"s_branch P2_long{u}\n")
        if OPT["x_nopop"]:
            a(f"s_mov_b32 s{sCNT}, 0\ns_mov_b32 s{sTOP}, s{sRB}")
            prep(buf)
            for k in range(2):
                a(f"buffer_load_dword v{vDUM}, v{vOOB}, {sr(S_REC, 4)}, 0 offen")
            a("s_waitcnt lgkmcnt(0)")
            return
        a(pop_issue(buf))
        a(rbf_read(prev))
        prep(buf, lg(2) + "\n" + st(2) + "\n" + gathers(buf))
        a(st(3))
        a(lg(1))
        if OPT["x_nocore"]:
            a("s_waitcnt vmcnt(4) lgkmcnt(0)")
            a(f"s_mov_b64 {sr(sM[buf], 2)}, 0")
        else:
            a(gate(prev))
            a("s_waitcnt vmcnt(4)")
            a(st(4))
            a(fixup(prev))
            core_a(prev, coschain(buf), cospack(buf))
            core_b(prev, True)
        if OPT["lag"]:
            a(f"""
            s_waitcnt lgkmcnt(3)
            v_readfirstlane_b32 s{sT1}, v{t[10]}
            {spf() if OPT["spf"] else ""}
            s_mov_b64 exec, 1
            s_add_u32 s83, s83, 16
            ds_inc_u32 v{vH16}, v{vOOB} offset:784
            s_mov_b64 exec, -1
            s_cmp_lt_i32 s{sT1}, s83
            s_cbranch_scc1 P2_poll{u}
            """)
            if OPT["dynp"]:
                a(f"""
                s_sub_u32 s{sT1}, s{sT1}, {OPT["dynp"]}
                s_cmp_lt_i32 s{sT1}, s83
                s_cbranch_scc1 P2_pollr{u}
                s_setprio 2
                """)
            a(f"P2_pollr{u}:")
            cold.append(f"""
            P2_poll{u}:
            s_setprio 0
            s_mov_b64 exec, 1
            ds_read_b32 v{t[10]}, v{vH16} offset:784
            s_mov_b64 exec, -1
            s_waitcnt lgkmcnt(0)
            v_readfirstlane_b32 s{sT1}, v{t[10]}
            s_cmp_ge_i32 s{sT1}, s83
            s_setprio {OPT['pbase']}
            s_cbranch_scc1 P2_pollr{u}
            {f"s_sleep {OPT['sleep']}" if OPT['sleep'] else ''}
            {f"s_sub_u32 s{sG}, s{sG}, 1" if OPT["guard"] else ""}
            {"s_cbranch_scc1 P2_done" if OPT["guard"] else ""}
            s_branch P2_poll{u}
            """)
        if STAMP:
            a("s_waitcnt lgkmcnt(0)")
            a("s_sub_u32 s96, s60, s74\ns_add_u32 s84, s84, s96")
            a("s_memtime s[74:75]\ns_waitcnt lgkmcnt(0)")
            for i in range(7):
                a(f"s_sub_u32 s96, s{62 + 2 * i}, s{60 + 2 * i}\ns_add_u32 s{85 + i}, s{85 + i}, s96")

    if OPT["peel"]:
        a.c("first half of step 0 runs before the rest of the setup, so that its gathers are under way")
        step(0, True)
        a(f"s_call_b64 {sr(sRET2, 2)}, P2_tail")
        if OPT["stamp2"]:
            a("s_memrealtime s[60:61]\ns_memtime s[72:73]\ns_waitcnt lgkmcnt(0)")
        if OPT["lag"]:
            a(f"""
            s_mov_b64 exec, 1
            s_add_u32 s83, s83, 16
            ds_inc_u32 v{vH16}, v{vOOB} offset:784
            s_mov_b64 exec, -1
            """)
        a(f"""
        s_branch P2_step1
        P2_tail:
        """)
        prologue_tail()
        a(f"""
        s_setpc_b64 {sr(sRET2, 2)}
        P2_alt:
        s_call_b64 {sr(sRET2, 2)}, P2_tail
        """)
    if OPT["stamp2"]:
        a("s_memrealtime s[60:61]\ns_memtime s[72:73]\ns_waitcnt lgkmcnt(0)")
    if STAMP:
        for i in range(8):
            a(f"s_mov_b32 s{84 + i}, 0")
        a("s_memtime s[74:75]")
    if OPT["x_fake"]:
        a(f"s_lshl_b32 s98, s2, 10\nv_add_u32 v{D1}, s98, v0\nv_mul_lo_u32 v{D1}, v{D1}, v{D1}\nv_add_u32 v{D1}, v{D1}, v0")
    a("P2_loop:")
    if OPT["phase_bar"]:
        a(f"""
        s_add_u32 s{sT0}, s{sK}, s3
        s_and_b32 s{sT0}, s{sT0}, 7
        s_cbranch_scc1 P2_nobar
        s_barrier
        P2_nobar:
        """)
    a(f"""
    s_cmp_lt_u32 s{sK}, {NSTEP - 2}
    s_cselect_b32 s{sCAP}, {OPT['lim']}, 0
    """)
    step(0)
    a("P2_step1:")
    step(1)
    a(f"""
    s_add_u32 s{sK}, s{sK}, 2
    s_cmp_lt_u32 s{sK}, {NSTEP}
    s_cbranch_scc1 P2_loop
    """)
    if STAMP:
        a(f"""
        s_lshl_b32 s96, s2, 4
        s_add_u32 s96, s96, s{sW}
        s_lshl_b32 s96, s96, 6
        s_add_u32 s6, s6, {16 << 20}
        s_addc_u32 s7, s7, 0
        """)
        srd(a, S_DST, 6, 1 << 20)
        a(f"v_mov_b32 v{t[0]}, 0")
        for i in range(8):
            a(f"v_mov_b32 v{t[1]}, s{84 + i}")
            a(f"buffer_store_dword v{t[1]}, v{t[0]}, {sr(S_DST, 4)}, s96 offen offset:{4 * i}")
        a("s_waitcnt vmcnt(0)")
    if OPT["stamp2"]:
        a("s_memrealtime s[62:63]\ns_memtime s[74:75]\ns_waitcnt lgkmcnt(0)\ns_sub_u32 s72, s74, s72")
    a.c("fetch the epilogue's operands and the bucket's own m rows; finish the last pop; empty the stack")
    MP = [TT, RB[0], RB[1], RL[0], GP[1], GQ[1], WA[0]]
    A1, A2, A3, DX, DY, SX, SY = GP[0], GQ[0], A3a, D1, D2, A2a, A2b
    vMO = vE
    a(f"""
    v_and_b32 v{t[0]}, 31, v{vLANE}
    v_lshrrev_b32 v{t[1]}, 5, v{vLANE}
    v_lshlrev_b32 v{t[1]}, 4, v{t[1]}
    s_lshl_b32 s{sT0}, s{sW}, 10
    v_lshl_add_u32 v{vMO}, v{t[0]}, 5, v{t[1]}
    v_add_u32 v{vMO}, s{sT0}, v{vMO}
    s_mul_i32 s{sCO}, s{sB}, {EB * 32}
    s_mov_b32 s{sJ}, s{sCO}
    v_lshlrev_b32 v{t[2]}, 4, v{vLANE}
    s_mov_b32 s{sT0}, {TAB_BYTES + 1024 * 6}
    s_mov_b32 s{sT1}, {TAB_BYTES + 1024 * 7}
    {rbf_read(1)}
    buffer_load_dwordx4 {vr(A1, 4)}, v{t[2]}, {sr(S_TAB, 4)}, s{sT0} offen
    buffer_load_dwordx4 {vr(A2, 4)}, v{t[2]}, {sr(S_TAB, 4)}, s{sT1} offen
    buffer_load_dwordx4 {vr(MP[0], 4)}, v{vMO}, {sr(S_M, 4)}, s{sJ} offen
    s_add_u32 s{sJ}, s{sJ}, 16384
    s_waitcnt lgkmcnt(0)
    """)
    a(gate(1))
    a("s_waitcnt vmcnt(3)")
    for i in range(1, 4):
        a(f"buffer_load_dwordx4 {vr(MP[i], 4)}, v{vMO}, {sr(S_M, 4)}, s{sJ} offen")
        a(f"s_add_u32 s{sJ}, s{sJ}, 16384")
    a(fixup(1))
    core_a(1, "s_nop 6")
    a(f"""
    s_call_b64 {sr(sRET2, 2)}, P2_rmw1
    P2_drain:
    s_cmp_eq_u32 s{sCNT}, 0
    s_cbranch_scc1 P2_epi
    s_call_b64 {sr(sRET, 2)}, P2_pop1
    s_branch P2_drain
    P2_epi:
    """)
    for i in range(4, 7):
        a(f"buffer_load_dwordx4 {vr(MP[i], 4)}, v{vMO}, {sr(S_M, 4)}, s{sJ} offen")
        a(f"s_add_u32 s{sJ}, s{sJ}, 16384")
    if OPT["cntreq"]:
        a(f"""
        s_load_dwordx2 s[60:61], s[0:1], 96
        s_waitcnt lgkmcnt(0)
        v_mov_b32 v{t[0]}, s95
        v_mov_b32 v{t[1]}, 0
        s_mov_b64 exec, 1
        global_atomic_add v{t[1]}, v{t[0]}, s[60:61]
        s_mov_b64 exec, -1
        s_waitcnt vmcnt(0)
        """)
    a(f"""
    s_lshl_b32 s{sT0}, s{sW}, 9
    s_mov_b32 s{sT2}, {L_ACC0}
    v_and_b32 v{t[1]}, 31, v{vLANE}
    v_lshlrev_b32 v{t[1]}, 4, v{t[1]}
    v_add_u32 v{t[1]}, s{sT0}, v{t[1]}
    v_lshrrev_b32 v{t[0]}, 5, v{vLANE}
    v_mul_u32_u24 v{t[0]}, {EB * 16}, v{t[0]}
    v_add3_u32 v{t[0]}, v{t[0]}, v{t[1]}, s{sT2}
    s_waitcnt vmcnt(3) lgkmcnt(0)
    """)
    if OPT["stamp2"]:
        a("s_memrealtime s[64:65]\ns_waitcnt lgkmcnt(0)")
    a("s_barrier")
    if OPT["stamp2"]:
        a("s_memrealtime s[66:67]\ns_waitcnt lgkmcnt(0)")
    a.c("epilogue: out = m + (agg @ w_up) * (rbf @ w_rbf), 32 edges per pass, two passes at a time")
    OBX, OBY = TF, A3b

    EB_ = [(AX, SX, AY, SY), (A1a, A1b, vBP, t[5])]
    assert t[5] % 2 == 0

    def epi_reads(groups, st_):
        for (i, va), (Ac, Sb) in zip(groups, (EB_[st_][0:2], EB_[st_][2:4])):
            a(f"ds_read_b128 {vr(Ac, 4)}, v{t[0]} offset:{8192 * i}")
            a(f"ds_read_b128 {vr(Sb, 4)}, v{t[1]} offset:{L_RBF + 8192 * i}")

    def epi(groups, st_, nxt):
        regs = [(DX,) + EB_[st_][0:2] + (OBX,), (DY,) + EB_[st_][2:4] + (OBY,)]
        n = len(groups)
        for k, ((i, va), (Dd, Ac, Sb, Ob)) in enumerate(zip(groups, regs)):
            a(f"s_waitcnt lgkmcnt({2 * (n - 1 - k)})")
            a(f"v_mfma_f32_32x32x16_bf16 {vr(Dd, 16)}, {vr(A1, 4)}, {vr(Ac, 4)}, 0")
            a(f"v_mfma_f32_32x32x16_f16 {vr(Dd, 16)}, {vr(A2, 4)}, {vr(Sb, 4)}, {vr(Dd, 16)}")
        if nxt:
            epi_reads(nxt, st_ ^ 1)
        done = 2 * len(nxt) if nxt else 0
        a(f"s_nop {11 - done - (3 if n == 2 else 0)}")
        for k, ((i, va), (Dd, Ac, Sb, Ob)) in enumerate(zip(groups, regs)):
            for j in range(0, 8, 2):
                a(f"v_pk_mul_f32 {vr(Dd + j, 2)}, {vr(Dd + j, 2)}, {vr(Dd + 8 + j, 2)}")
        a({4: "s_waitcnt vmcnt(5)", 6: "s_waitcnt vmcnt(6)"}.get(groups[0][0], "s_nop 0"))
        if n == 1:
            a("s_nop 0")
        for (i, va), (Dd, Ac, Sb, Ob) in zip(groups, regs):
            a(f"v_mfma_f32_32x32x16_bf16 {vr(Dd, 16)}, {vr(A3, 4)}, {vr(MP[i], 4)}, {vr(Dd, 16)}")
        a(f"s_nop {11 - (n - 1)}")
        for (i, va), (Dd, Ac, Sb, Ob) in zip(groups, regs):
            for j in range(4):
                a(f"v_cvt_pk_bf16_f32 v{Ob + j}, v{Dd + 2 * j}, v{Dd + 2 * j + 1}")
            a(f"buffer_store_dwordx4 {vr(Ob, 4)}, v{va}, {sr(S_OUT, 4)}, s{sCO} offen{nto}")
            a(f"s_add_u32 s{sCO}, s{sCO}, 16384")

    gl = [[(i, vMO), (i + 1, vMO)] for i in (0, 2, 4)] + [[(6, t[2])]]
    epi_reads(gl[0], 0)
    for q in range(3):
        epi(gl[q], q & 1, gl[q + 1])
    if OPT["stamp2"]:
        a(f"""
        s_memrealtime s[84:85]
        s_waitcnt vmcnt(0) lgkmcnt(0)
        s_memrealtime s[86:87]
        s_lshl_b32 s98, s2, 4
        s_add_u32 s98, s98, s{sW}
        s_lshl_b32 s98, s98, 6
        s_add_u32 s6, s6, {16 << 20}
        s_addc_u32 s7, s7, 0
        s_waitcnt lgkmcnt(0)
        """)
        srd(a, S_TMP, 6, 1 << 20)
        a(f"v_mov_b32 v{t[5]}, 0")
        for i, r in enumerate([94, 60, 62, 64, 66, 84, 86, 72]):
            a(f"v_mov_b32 v{t[6]}, s{r}")
            a(f"buffer_store_dword v{t[6]}, v{t[5]}, {sr(S_TMP, 4)}, s98 offen offset:{4 * i}")
    a(f"""
    s_cmp_lt_u32 s{sW}, 2
    s_cbranch_scc0 P2_done
    v_cmp_gt_u32 vcc, {(EB - 6 * 512) * 32}, v{vMO}
    v_mov_b32 v{t[2]}, 0x7fffff00
    s_nop 0
    v_cndmask_b32 v{t[2]}, v{t[2]}, v{vMO}, vcc
    """)
    epi(gl[3], 1, None)
    a("P2_done:")
    a("s_endpgm")
    for buf in range(2):
        a.c(f"subroutine: pop up to 64 records into buffer {buf} and finish them")
        a(f"P2_pop{buf}:")
        if OPT["guard"]:
            a(f"s_sub_u32 s{sG}, s{sG}, 1\ns_cbranch_scc1 P2_done")
        a(pop_issue(buf))
        a("s_waitcnt lgkmcnt(0)")
        a(gathers(buf))
        a(coschain(buf))
        a(f"""
        {rbf_read(buf)}
        {cospack(buf)}
        s_mov_b64 {sr(sRET2, 2)}, {sr(sRET, 2)}
        s_waitcnt lgkmcnt(0)
        """)
        a(gate(buf))
        a("s_waitcnt vmcnt(0)")
        a(fixup(buf))
        core_a(buf, "s_nop 6")
        a(f"P2_rmw{buf}:")
        core_b(buf, False)
    for c in cold:
        a(c)
    kernel_desc(a, name, 128, 102)


def build():
    assert OPT['stag'] != 3 or max((OPT['rotl'] >> (4 * q)) & 15 for q in range(4)) < OPT['ns']
    a = A()
    ref = open(f"cdna_kernels/{NAME}.s.ref").read().split("\n")
    for line in ref:
        if line.startswith("; Override"):
            break
        a.raw(line)
    if not OPT["only2"]:
        a.raw(f"; @launch kernel=part_kernel grid=({NB},1,1) block=(1024,1,1) lds={B_LDS if OPT['big'] else P1_LDS}")
    a.raw(f"; @launch kernel={NAME}_kernel grid=({NB},1,1) block=(1024,1,1) lds={P2_LDS}")
    a.raw('.amdgcn_target "amdgcn-amd-amdhsa--gfx950"')
    (gen_part_big if OPT["big"] else gen_part)(a, "part_kernel")
    gen_main(a, f"{NAME}_kernel")
    return a.text()


def main():
    out = f"cdna_kernels/{NAME}.s"
    for arg in sys.argv[1:]:
        if "=" in arg:
            k, v = arg.split("=")
            assert k in OPT, k
            OPT[k] = type(OPT[k])(int(v))
        else:
            out = arg
    open(out, "w").write(build())


if __name__ == "__main__":
    main()
```

```python
import sys

NAME = "gather_scatter__molecular_angular_gemnet__graph"
E = 800000
T = 12800000
NB = 256
EB = 3125
CH = 25000
NCH = 512
NS = 8
CHB = 150016
REC_BYTES = NCH * CHB
TAB_OFF = REC_BYTES
TAB_BYTES = NB * NCH * 32
OPS_OFF = TAB_OFF + TAB_BYTES

OPT = dict(
    nt_in=True,
    nt_rec=False,
    phase_bar=False,
    nt_out=False,
    x_nogather=False, x_normw=False, x_norec=False,
    x_err=0, xpop=1, endn=0, endd=0, fuse=0, wb=0, bfair=0, adepth=1, h0=25984, depth=1, aearly=0, spl=4, big=1, only2=0, angl=1, bang=1, lim=24, x_lin=0, pbase=1, dynp=11, rexec=0, gexec=0, aslot=1, rotl=0x3a07, pfx=4, tabc=1, sleep=0, pfp1=0, peel=1, pfg=1, stm=1, stmb=1, outm=2, pfw=2, pfpos=1, pffirst=0, spf=0, pfs=1, pfn=0, mimic=0, pf0=0, valu_add=1, early=1, stpos=2, stag=3, pfm=0, slide=0, ns=13, bdelay=0, stamp1=0, stamp2=0, lag=1, lagoff=0, cntreq=0, rot=0, rotshift=2, stamp=False, pkf32=True, x_fake=0, x_nocore=0, x_recx4=0, x_nomfma=0, x_nopop=0, prio=True, lock_pos=2,
    guard=False,
)


class A:
    def __init__(self):
        self.l = []

    def __call__(self, s=""):
        for line in s.split("\n"):
            line = line.strip()
            if line:
                if line.endswith(":"):
                    self.l.append(line)
                else:
                    self.l.append("    " + line)

    def c(self, s):
        self.l.append("    ; " + s)

    def raw(self, s):
        self.l.append(s)

    def text(self):
        return "\n".join(self.l) + "\n"


def vr(a, n):
    return f"v[{a}:{a + n - 1}]"


def sr(a, n):
    return f"s[{a}:{a + n - 1}]"


def srd(a, dst, base, nbytes, stride=0):
    a(f"s_mov_b32 s{dst}, s{base}")
    a(f"s_and_b32 s{dst + 1}, s{base + 1}, 0xffff")
    if stride:
        a(f"s_or_b32 s{dst + 1}, s{dst + 1}, {stride << 16:#x}")
    a(f"s_mov_b32 s{dst + 2}, {nbytes}")
    a(f"s_mov_b32 s{dst + 3}, 0x20000")


def kernel_head(a, name):
    a.raw(".text")
    a.raw(f".globl {name}")
    a.raw(".p2align 8")
    a.raw(f".type {name},@function")
    a.raw(f"{name}:")


def kernel_desc(a, name, vgpr, sgpr):
    a.raw('.section .rodata,"a"')
    a.raw(".p2align 6")
    a.raw(f".amdhsa_kernel {name}")
    a.raw(f"  .amdhsa_next_free_vgpr {vgpr}")
    a.raw(f"  .amdhsa_next_free_sgpr {sgpr}")
    a.raw(f"  .amdhsa_accum_offset {(vgpr + 3) // 4 * 4}")
    a.raw("  .amdhsa_group_segment_fixed_size 0")
    a.raw("  .amdhsa_kernarg_size 112")
    a.raw("  .amdhsa_user_sgpr_count 2")
    a.raw("  .amdhsa_user_sgpr_kernarg_segment_ptr 1")
    a.raw("  .amdhsa_system_sgpr_workgroup_id_x 1")
    a.raw(".end_amdhsa_kernel")


P1_CNT = 16
P1_PART = P1_CNT + 8192
P1_REC = P1_PART + 64
P1_LDS = 158720


def builder(a, W, lane, f2, e0, e1, x0, x2, OPR, sW, sT0, S_TAB, first_loads, nyoung):
    a.c("one wave also prepares the matrix operands of the second kernel")
    W1, W2, W3, W4 = W
    a(f"""
    s_lshl_b32 s{sT0}, s2, 4
    s_add_u32 s68, s{sT0}, s{sW}
    s_cmp_eq_u32 s68, 15
    s_cbranch_scc0 P1_now
    s_load_dwordx4 s[72:75], s[0:1], 56
    s_load_dwordx4 s[76:79], s[0:1], 72
    v_and_b32 v{lane}, 63, v0
    v_and_b32 v{e0}, 3, v0
    v_bfe_u32 v{e1}, v0, 2, 1
    v_lshl_add_u32 v{e0}, v{e1}, 3, v{e0}
    v_bfe_u32 v{e1}, v0, 3, 1
    v_lshl_add_u32 v{e0}, v{e1}, 2, v{e0}
    v_lshlrev_b32 v{f2}, 1, v{e0}
    v_lshrrev_b32 v{e1}, 5, v{lane}
    v_lshl_add_u32 v{e1}, v{e1}, 8, v{f2}
    s_waitcnt lgkmcnt(0)
    """)
    for (Wx, n, p, nbytes, va) in ((W1, 16, 76, 512, f2), (W2, 16, 74, 512, f2), (W3, 8, 78, 512, e1), (W4, 8, 72, 256, f2)):
        srd(a, 80, p, nbytes)
        for j in range(n):
            a(f"buffer_load_ushort v{Wx + j}, v{va}, {sr(80, 4)}, 0 offen offset:{32 * j}")
    a("P1_now:")
    first_loads()
    a(f"""
    s_cmp_eq_u32 s68, 15
    s_cbranch_scc0 P1_noop
    s_waitcnt vmcnt({nyoung})
    """)

    def scale_exp(Wf, n):
        a(f"v_max3_f32 v{e0}, abs(v{Wf}), abs(v{Wf + 1}), abs(v{Wf + 2})")
        for j in range(3, n - 1, 2):
            a(f"v_max3_f32 v{e0}, v{e0}, abs(v{Wf + j}), abs(v{Wf + j + 1})")
        a(f"""
        v_max_f32 v{e0}, v{e0}, abs(v{Wf + n - 1})
        v_bfe_u32 v{e0}, v{e0}, 23, 8
        v_cmp_eq_u32 vcc, 0, v{e0}
        v_sub_u32 v{e0}, 141, v{e0}
        s_nop 0
        v_cndmask_b32 v{e0}, v{e0}, 0, vcc
        v_sub_u32 v{e1}, 0, v{e0}
        """)

    def put(k, cvt, srcs, mask):
        for j in range(4):
            a(f"{cvt} v{OPR + j}, v{srcs[2 * j]}, v{srcs[2 * j + 1]}")
        for j in range(4):
            a(f"v_cndmask_b32 v{OPR + j}, 0, v{OPR + j}, {sr(mask, 2)}")
        a(f"""
        s_mov_b32 s{sT0}, {TAB_BYTES + 1024 * k}
        buffer_store_dwordx4 {vr(OPR, 4)}, v{x2}, {sr(S_TAB, 4)}, s{sT0} offen
        s_nop 1
        """)

    for Wx, n in zip(W, (16, 16, 8, 8)):
        for j in range(n):
            a(f"v_lshlrev_b32 v{Wx + j}, 16, v{Wx + j}")
    mDIAG, mLO, mHI, mRB = 72, 74, 76, 78
    a(f"""
    v_lshrrev_b32 v{x0}, 1, v{lane}
    v_xor_b32 v{x0}, v{x0}, v{lane}
    v_and_b32 v{x0}, 16, v{x0}
    v_cmp_eq_u32 {sr(mDIAG, 2)}, 0, v{x0}
    v_and_b32 v{x0}, 16, v{lane}
    v_cmp_eq_u32 {sr(mLO, 2)}, 0, v{x0}
    v_cmp_eq_u32 {sr(mHI, 2)}, 16, v{x0}
    v_and_b32 v{x0}, 48, v{lane}
    v_cmp_eq_u32 {sr(mRB, 2)}, 16, v{x0}
    v_lshlrev_b32 v{x2}, 4, v{lane}
    """)
    scale_exp(W2, 16)
    for j in range(16):
        a(f"v_ldexp_f32 v{W2 + j}, v{W2 + j}, v{e0}")
        a(f"v_ldexp_f32 v{W1 + j}, v{W1 + j}, v{e1}")
    scale_exp(W4, 8)
    for j in range(8):
        a(f"v_ldexp_f32 v{W4 + j}, v{W4 + j}, v{e0}")
        a(f"v_ldexp_f32 v{W3 + j}, v{W3 + j}, v{e1}")
    bf, hf = "v_cvt_pk_bf16_f32", "v_cvt_pk_f16_f32"
    a.c("block diagonal: rows < 16 act on lanes < 32, rows >= 16 on lanes >= 32")
    put(0, bf, [W1 + j for j in range(8)], mDIAG)
    put(1, bf, [W1 + 8 + j for j in range(8)], mDIAG)
    put(2, hf, [W2 + 2 * j for j in range(8)], mDIAG)
    put(3, hf, [W2 + 2 * j + 1 for j in range(8)], mDIAG)
    put(6, bf, [W3 + j for j in range(8)], mLO)
    put(7, hf, [W4 + j for j in range(8)], mRB)
    a.c("identity: row i has a one at k = f(i & 15)")
    a(f"""
    v_lshrrev_b32 v{e0}, 1, v{f2}
    v_lshrrev_b32 v{e1}, 5, v{lane}
    v_lshlrev_b32 v{e1}, 3, v{e1}
    v_sub_u32 v{e0}, v{e0}, v{e1}
    """)
    for j in range(8):
        a(f"""
        v_cmp_eq_u32 vcc, {j}, v{e0}
        s_nop 1
        v_cndmask_b32 v{W1 + j}, 0, 1.0, vcc
        """)
    put(4, bf, [W1 + j for j in range(8)], mLO)
    put(5, bf, [W1 + j for j in range(8)], mHI)
    a("P1_noop:")


CH2 = 50000
B_CNT = 16
B_PART = B_CNT + 16384
B_LDS = 163840


def gen_part_big(a, name):
    nt = " nt" if OPT["nt_in"] else ""
    STM = [["", " sc1", " nt", " sc0 sc1", " sc1 nt"][OPT[k]] for k in ("stm", "stmb")]
    NS_ = OPT["ns"]
    NT = CH2 - 12 * 4096
    H0 = OPT['h0']
    assert H0 % 8 == 0 and H0 * 6 <= B_LDS and (CH2 - H0) * 6 > 8 * 16384
    HALF = H0 * 6
    NQ = [H0 * 6 // 16, (CH2 - H0) * 6 // 16]
    FU = OPT["fuse"]
    CB_ = B_LDS - NS_ * 1024 if FU else 0
    CO_ = 0 if FU else B_CNT
    PB_ = CB_ - 80 if FU else B_PART
    assert not FU or HALF <= PB_
    sCB = 30
    S_IN, S_OUT, S_ANG, S_REC, S_TAB = 8, 12, 16, 20, 24
    sMAG, sNEG, sHI, sOFF = 28, 29, 31, 32
    sOI, sOA = 33, 34
    sW, sT0, sT1 = 35, 36, 37
    sEX = 40
    sLUT, sST = 46, 47
    stn = [0]

    def st1():
        if OPT["stamp1"]:
            a(f"s_memrealtime s[{48 + 2 * stn[0]}:{49 + 2 * stn[0]}]\ns_waitcnt lgkmcnt(0)")
            stn[0] += 1
    vT16, vONE, vX = 1, 2, 3
    tmp = list(range(4, 12))
    G, G6, O6, I6, vT8 = 12, 28, 29, 30, 31
    O, I = 32, 80

    kernel_head(a, name)
    a(f"""
    s_cmp_ge_u32 s2, {NB}
    s_cbranch_scc1 P1_done
    s_load_dwordx4 s[4:7], s[0:1], 8
    s_load_dwordx2 s[42:43], s[0:1], 32
    s_load_dwordx2 s[44:45], s[0:1], 104
    v_lshlrev_b32 v{vT16}, 4, v0
    v_lshlrev_b32 v{vT8}, 3, v0
    v_mov_b32 v{vONE}, 1
    v_mov_b32 v{vX}, 0x7fffff00
    s_mov_b32 s{sMAG}, 1374390
    s_mov_b32 s{sNEG}, {-EB}
    s_mov_b32 s{sHI}, 0xffff0000
    s_mov_b32 s{sOFF}, {-HALF}
    v_lshrrev_b32 v8, 6, v0
    v_mov_b32 v4, 0
    v_mov_b32 v5, 0
    v_mov_b32 v6, 0
    v_mov_b32 v7, 0
    v_readfirstlane_b32 s{sW}, v8
    s_mov_b32 s{sCB}, {CB_}
    v_add_u32 v9, {CB_}, v{vT16}
    v_mov_b32 v10, {CB_ + CO_ - 4}
    ds_write_b128 v9, v[4:7] offset:{CO_}
    ds_write_b32 v10, v4
    s_waitcnt lgkmcnt(0)
    """)
    srd(a, S_IN, 4, T * 4)
    srd(a, S_OUT, 6, T * 4)
    srd(a, S_ANG, 42, T * 2)
    srd(a, S_REC, 44, REC_BYTES)
    a(f"s_add_u32 s44, s44, {TAB_OFF}")
    a("s_addc_u32 s45, s45, 0")
    srd(a, S_TAB, 44, TAB_BYTES + 8192)
    a.c("slice rotation per group of 32 buckets (one nibble each); depends on the step that will read this chunk")
    a(f"""
    s_bfe_u32 s{sT0}, s2, {(2 << 16) | 2}
    s_lshl_b32 s{sT0}, s{sT0}, 2
    s_sub_u32 s{sT0}, 16, s{sT0}
    s_lshr_b32 s{sT1}, 0x1111, s{sT0}
    s_lshl_b32 s{sLUT}, s{sT1}, s{sT0}
    s_add_u32 s{sLUT}, s{sLUT}, {OPT["rotl"]:#x}
    s_mul_i32 s{sLUT}, s{sLUT}, 0x10001
    s_mul_i32 s{sOI}, s2, {CH2 * 4}
    s_mul_i32 s{sOA}, s2, {CH2 * 2}
    """)
    vmq = []

    def vm_wait(tag):
        last = max(i for i, x in enumerate(vmq) if x == tag)
        a(f"s_waitcnt vmcnt({len(vmq) - 1 - last})")

    def tail_addr(sh):
        a(f"""
        v_cmp_gt_u32 vcc, {NT}, v0
        v_lshlrev_b32 v{tmp[7]}, {sh}, v0
        s_nop 0
        v_cndmask_b32 v{tmp[7]}, v{vX}, v{tmp[7]}, vcc
        """)

    def issue_idx(r):
        vmq.extend([("i", r)] * 2)
        if r < 12:
            a(f"""
            buffer_load_dwordx4 {vr(O + 4 * r, 4)}, v{vT16}, {sr(S_OUT, 4)}, s{sOI} offen{nt}
            buffer_load_dwordx4 {vr(I + 4 * r, 4)}, v{vT16}, {sr(S_IN, 4)}, s{sOI} offen{nt}
            s_add_u32 s{sOI}, s{sOI}, 16384
            """)
        else:
            tail_addr(2)
            a(f"""
            buffer_load_dword v{O6}, v{tmp[7]}, {sr(S_OUT, 4)}, s{sOI} offen{nt}
            buffer_load_dword v{I6}, v{tmp[7]}, {sr(S_IN, 4)}, s{sOI} offen{nt}
            """)

    def issue_ang(r):
        vmq.append(("a", r))
        if r < 12:
            a(f"""
            buffer_load_dwordx2 {vr(G + 2 * (r & 7), 2)}, v{vT8}, {sr(S_ANG, 4)}, s{sOA} offen{nt}
            s_add_u32 s{sOA}, s{sOA}, 8192
            """)
        else:
            tail_addr(1)
            a(f"""
            s_mul_i32 s{sT0}, s2, {CH2 * 2}
            s_add_u32 s{sT0}, s{sT0}, {12 * 8192}
            buffer_load_ushort v{G6}, v{tmp[7]}, {sr(S_ANG, 4)}, s{sT0} offen{nt}
            """)

    def recs(r):
        if r < 12:
            return [(O + 4 * r + k, I + 4 * r + k, G + 2 * (r & 7) + (k >> 1), k & 1) for k in range(4)]
        return [(O6, I6, G6, 0)]

    def tail(r, lbl, body):
        if r < 12:
            body()
            return
        a(f"""
        v_cmp_gt_u32 vcc, {NT}, v0
        s_and_saveexec_b64 {sr(sEX, 2)}, vcc
        s_cbranch_execz {lbl}
        """)
        body()
        a(f"{lbl}:\ns_mov_b64 exec, {sr(sEX, 2)}")

    def pack(rs):
        for h in range(0, len(rs), 2):
            pr = rs[h:h + 2]
            for k, (o, i, g, hi) in enumerate(pr):
                a(f"v_mul_hi_u32_u24 v{tmp[k]}, s{sMAG}, v{o}")
                a(f"v_mul_u32_u24 v{tmp[2 + k]}, {(NS_ << 24) // E}, v{i}")
            for k, (o, i, g, hi) in enumerate(pr):
                tb, tc, u = tmp[k], tmp[2 + k], tmp[4 + k]
                a(f"""
                v_mad_i32_i24 v{o}, v{tb}, s{sNEG}, v{o}
                v_lshrrev_b32 v{u}, 5, v{tb}
                v_lshrrev_b32 v{tc}, 24, v{tc}
                v_lshlrev_b32 v{u}, 2, v{u}
                v_lshl_add_u32 v{tb}, v{tb}, 2, s{sCB}
                v_bfe_u32 v{u}, s{sLUT}, v{u}, 4
                v_lshl_or_b32 v{i}, v{i}, 12, v{o}
                v_sub_u32 v{tc}, v{tc}, v{u}
                v_add_u32 v{u}, {NS_}, v{tc}
                v_min_u32 v{tc}, v{tc}, v{u}
                v_lshl_add_u32 v{o}, v{tc}, 10, v{tb}
                ds_add_u32 v{o}, v{vONE} offset:{CO_}
                """)

    def wave_scan(v):
        for sh in (1, 2, 4, 8):
            a(f"s_nop 1\nv_add_u32_dpp v{v}, v{v}, v{v} row_shr:{sh} row_mask:0xf bank_mask:0xf bound_ctrl:0")

    st1()
    D_ = OPT["depth"]
    assert D_ <= 4
    builder(a, (I + 16, I + 32, O + 16, O + 24), 4, 5, 6, 7, G, G + 1, 8, sW, sT0, S_TAB,
            lambda: [issue_idx(r) for r in range(D_)], 2 * D_)
    a("s_barrier")
    na = 0
    for r in range(13):
        vm_wait(("i", r))
        tail(r, "P1_pk", lambda: pack(recs(r)))
        if r + D_ < 13:
            issue_idx(r + D_)
        elif r < 12 and na < OPT["aearly"]:
            issue_ang(na)
            na += 1
    st1()
    c0, s_, inc, p, q = tmp[0], tmp[4], tmp[5], tmp[6], tmp[7]
    a.c("exclusive scan of the counters")
    a("s_waitcnt lgkmcnt(0)\ns_barrier")
    a(f"v_add_u32 v{G6}, {CB_}, v{vT16}")
    a(f"ds_read_b128 {vr(c0, 4)}, v{G6} offset:{CO_}")
    while na < 4:
        issue_ang(na)
        na += 1
    a(f"""
    s_waitcnt lgkmcnt(0)
    v_add_u32 v{s_}, v{c0}, v{c0 + 1}
    v_add3_u32 v{s_}, v{s_}, v{c0 + 2}, v{c0 + 3}
    v_mov_b32 v{inc}, v{s_}
    """)
    wave_scan(inc)
    a(f"""
    s_nop 1
    v_add_u32_dpp v{inc}, v{inc}, v{inc} row_bcast:15 row_mask:0xa bank_mask:0xf
    s_nop 1
    v_add_u32_dpp v{inc}, v{inc}, v{inc} row_bcast:31 row_mask:0xc bank_mask:0xf
    s_lshl_b32 s{sT1}, s{sW}, 2
    s_add_u32 s{sT1}, s{sT1}, {PB_}
    v_mov_b32 v{q}, s{sT1}
    v_readlane_b32 s{sT0}, v{inc}, 63
    s_nop 1
    v_mov_b32 v{p}, s{sT0}
    ds_write_b32 v{q}, v{p}
    v_and_b32 v{q}, 15, v0
    v_lshlrev_b32 v{p}, 2, v{q}
    v_add_u32 v{p}, {PB_}, v{p}
    s_waitcnt lgkmcnt(0)
    s_barrier
    v_cmp_gt_u32 vcc, s{sW}, v{q}
    ds_read_b32 v{p}, v{p}
    """)
    while na < 8:
        issue_ang(na)
        na += 1
    a(f"""
    s_waitcnt lgkmcnt(0)
    v_cndmask_b32 v{p}, 0, v{p}, vcc
    """)
    wave_scan(p)
    a(f"""
    v_sub_u32 v{inc}, v{inc}, v{s_}
    v_readlane_b32 s{sT0}, v{p}, 15
    s_nop 1
    v_add_u32 v{s_}, s{sT0}, v{inc}
    v_add_u32 v{s_ + 1}, v{s_}, v{c0}
    v_add_u32 v{s_ + 2}, v{s_ + 1}, v{c0 + 1}
    v_add_u32 v{s_ + 3}, v{s_ + 2}, v{c0 + 2}
    ds_write_b128 v{G6}, {vr(s_, 4)} offset:{CO_}
    s_waitcnt lgkmcnt(0)
    """)
    issue_ang(12)
    a("s_barrier")
    st1()
    a.c("position of every record; the angle joins it in the upper half of the register")

    def rank(rs):
        for (o, i, g, hi) in rs:
            a(f"ds_add_rtn_u32 v{o}, v{o}, v{vONE} offset:{CO_}")

    def merge(rs):
        for (o, i, g, hi) in rs:
            a(f"v_and_or_b32 v{o}, v{g}, s{sHI}, v{o}" if hi else f"v_lshl_or_b32 v{o}, v{g}, 16, v{o}")
    def put_half(rs, h):
        sets = [(tmp[4], tmp[5], tmp[6]), (tmp[7], G6, vT8)] if not (FU and h == 0) else [(tmp[0], tmp[1], tmp[2]), (tmp[3], tmp[4], tmp[5])]
        for k, (o, i, g, hi) in enumerate(rs):
            x, y, z = sets[k & 1]
            if h == 0 and FU:
                a(f"""
                v_mul_u32_u24_sdwa v{x}, v{o}, v{tmp[6]} dst_sel:DWORD dst_unused:UNUSED_PAD src0_sel:WORD_0 src1_sel:DWORD
                v_cmp_gt_u32 vcc, s{sT1}, v{x}
                v_and_b32 v{y}, 2, v{x}
                s_nop 0
                v_cndmask_b32 v{x}, v{vX}, v{x}, vcc
                """)
            elif h == 0:
                a(f"v_mul_u32_u24_sdwa v{x}, v{o}, v{vONE} dst_sel:DWORD dst_unused:UNUSED_PAD src0_sel:WORD_0 src1_sel:DWORD")
                a(f"v_and_b32 v{y}, 2, v{x}")
            else:
                a(f"v_and_b32 v{x}, 0xffff, v{o}\nv_mad_u32_u24 v{x}, v{x}, 6, s{sOFF}")
                a(f"v_and_b32 v{y}, 2, v{x}")
            a(f"""
            v_add_u32 v{z}, v{x}, v{y}
            v_mad_i32_i24 v{x}, v{y}, -2, v{x}
            ds_write_b32 v{z}, v{i}
            ds_write_b16_d16_hi v{x}, v{o} offset:4
            """)
    if FU:
        a(f"v_mov_b32 v{tmp[6]}, 6\ns_mov_b32 s{sT1}, {HALF}")
    rank(recs(0))
    rank(recs(1))
    for r in range(12):
        if r < 10:
            rank(recs(r + 2))
        if FU:
            a(f"s_waitcnt lgkmcnt({8 if r == 0 else (12 if r < 10 else 8)})")
        else:
            a(f"s_waitcnt lgkmcnt({8 if r < 10 else (4 if r == 10 else 0)})")
        vm_wait(("a", r))
        merge(recs(r))
        if FU:
            put_half(recs(r), 0)
        if r + 8 < 12:
            issue_ang(r + 8)
    vm_wait(("a", 12))
    tail(12, "P1_rk", lambda: (rank(recs(12)), a("s_waitcnt lgkmcnt(0)"), merge(recs(12)), put_half(recs(12), 0) if FU else None))
    a("s_waitcnt lgkmcnt(0)\ns_barrier")
    a.c("table of (start, length): the counters now hold the segment ends")
    ra = G
    a(f"""
    s_mov_b32 s{sT1}, {CB_ + CO_ - 4}
    v_and_b32 v{ra}, 3, v0
    v_lshlrev_b32 v{ra}, 12, v{ra}
    v_and_b32 v{ra + 1}, 0x3fc, v0
    v_add3_u32 v{ra}, v{ra}, v{ra + 1}, s{sT1}
    """)
    for qq in range(4):
        if qq:
            a(f"v_add_u32 v{ra}, 1024, v{ra}")
        a(f"ds_read2_b32 {vr(tmp[2 * qq], 2)}, v{ra} offset0:0 offset1:1")
    a("s_waitcnt lgkmcnt(0)" + ("" if FU else "\ns_barrier"))
    if FU:
        a.c("slots past the last slice read out of range: give them length zero")
        a(f"v_and_b32 v{ra + 1}, 3, v0")
        for qq in range(4):
            a(f"v_cmp_gt_u32 vcc, {(NS_ - qq + 3) // 4}, v{ra + 1}\ns_nop 1\nv_cndmask_b32 v{tmp[2 * qq + 1]}, v{tmp[2 * qq]}, v{tmp[2 * qq + 1]}, vcc")
    for qq in range(4):
        s0, e0 = tmp[2 * qq], tmp[2 * qq + 1]
        a(f"v_sub_u32 v{e0}, v{e0}, v{s0}\nv_lshl_or_b32 v{G + qq}, v{e0}, 16, v{s0}")
    a(f"""
    s_lshl_b32 s{sT0}, s2, 14
    s_mul_i32 s{sST}, s2, {2 * CHB}
    buffer_store_dwordx4 {vr(G, 4)}, v{vT16}, {sr(S_TAB, 4)}, s{sT0} offen{STM[0]}
    """)
    st1()
    pend = []

    def scatter(h):
        put = lambda rs: put_half(rs, h)
        for r in range(13):
            tail(r, f"P1_sc{h}", lambda: put(recs(r)))
            if pend:
                pend.pop(0)()
        while pend:
            pend.pop(0)()
        a("s_waitcnt lgkmcnt(0)\ns_barrier")

    LAST = [(n - 1) // 1024 for n in NQ]

    def reads(dst, rs, ra, rb, h):
        for r in rs:
            base = [vT16, ra, rb][r >> 2]
            if r == LAST[h]:
                a(f"v_cmp_gt_u32 vcc, {NQ[h] - 1024 * r}, v0\ns_and_saveexec_b64 {sr(sEX, 2)}, vcc")
            a(f"ds_read_b128 {vr(dst[r], 4)}, v{base} offset:{(r & 3) * 16384}")
            if r == LAST[h]:
                a(f"s_mov_b64 exec, {sr(sEX, 2)}\nv_cndmask_b32 v{rb}, v{vX}, v{vT16}, vcc")

    def store(dst, r, rb, h):
        a(f"s_add_u32 s{sT0}, s{sST}, {h * HALF + r * 16384}")
        a(f"buffer_store_dwordx4 {vr(dst[r], 4)}, v{vT16 if r < LAST[h] else rb}, {sr(S_REC, 4)}, s{sT0} offen{STM[h]}")

    if not FU:
        a(f"v_mov_b32 v{vONE}, 6")
        scatter(0)
    st1()
    ra, rb = tmp[4], tmp[5]
    q5 = [G, G + 4, G + 8, G + 12, tmp[0]]
    dst = q5 + q5
    a(f"v_add_u32 v{ra}, 0x10000, v{vT16}\nv_add_u32 v{rb}, 0x20000, v{vT16}")
    assert LAST[0] == 9
    reads(dst, range(5), ra, rb, 0)
    for r in range(5):
        a(f"s_waitcnt lgkmcnt({4 - r})")
        store(dst, r, rb, 0)
    reads(dst, range(5, 10), ra, rb, 0)
    a("s_waitcnt lgkmcnt(0)")
    store(dst, 9, rb, 0)
    a("s_barrier")
    pend.extend((lambda r=r: store(dst, r, rb, 0)) for r in range(5, 9))
    if OPT["stpos"] == 0:
        while pend:
            pend.pop(0)()
    if OPT["wb"]:
        pend.extend([lambda: None] * (OPT["wb"] - 1))
        pend.append(lambda: a(f"s_cmp_eq_u32 s{sW}, 15\ns_cbranch_scc0 P1_nowb\nbuffer_wbl2 sc1\nP1_nowb:"))
    st1()
    scatter(1)
    st1()
    dst = [O + 4 * r for r in range(10)]
    a(f"v_add_u32 v{ra}, 0x10000, v{vT16}\nv_add_u32 v{rb}, 0x20000, v{vT16}")
    reads(dst, range(LAST[1] + 1), ra, rb, 1)
    for r in range(LAST[1]):
        a(f"s_waitcnt lgkmcnt({LAST[1] - 1 - r})")
        store(dst, r, rb, 1)
    a("s_waitcnt lgkmcnt(0)")
    store(dst, LAST[1], rb, 1)
    st1()
    if OPT["stamp1"]:
        st1()
        a("s_waitcnt vmcnt(0)")
        st1()
        a(f"""
        s_lshl_b32 s3, s2, 4
        s_add_u32 s3, s3, s{sW}
        s_lshl_b32 s3, s3, 6
        s_add_u32 s44, s44, {17 << 20}
        s_addc_u32 s45, s45, 0
        """)
        srd(a, S_TAB, 44, 1 << 20)
        a("v_mov_b32 v4, 0")
        for i in range(stn[0]):
            a(f"v_mov_b32 v5, s{48 + 2 * i}")
            a(f"buffer_store_dword v5, v4, {sr(S_TAB, 4)}, s3 offen offset:{4 * i}")
    a("P1_done:")
    a("s_endpgm")
    kernel_desc(a, name, 128, 88)


def gen_part(a, name):
    nt = " nt" if OPT["nt_in"] else ""
    STMS = {X: ["", " sc1", " nt", " sc0 sc1", " sc1 nt"][OPT[k]] for X, k in (("A", "stm"), ("B", "stmb"))}
    S_IN, S_OUT, S_ANG, S_REC, S_TAB = 8, 12, 16, 20, 24
    sMAG, sNEG, sMASK, sHI, sDIV6 = 28, 29, 30, 31, 32
    sOI, sOA = 33, 34
    sW, sT0, sT1, sCH = 35, 36, 37, 38
    sEX = 40
    stn = [0]

    def st1():
        if OPT["stamp1"]:
            a(f"s_memrealtime s[{48 + 2 * stn[0]}:{49 + 2 * stn[0]}]\ns_waitcnt lgkmcnt(0)")
            stn[0] += 1
    vT16, vT8, vSIX = 1, 2, 3
    tmp = list(range(4, 14))
    O = {"A": 14, "B": 62}
    I = {"A": 38, "B": 86}
    G = 110
    O6 = {"A": 122, "B": 124}
    I6 = {"A": 123, "B": 125}
    G6 = 126
    vX = 127

    kernel_head(a, name)
    a(f"""
    s_cmp_ge_u32 s2, {NB}
    s_cbranch_scc1 P1_done
    s_load_dwordx4 s[4:7], s[0:1], 8
    s_load_dwordx2 s[42:43], s[0:1], 32
    s_load_dwordx2 s[44:45], s[0:1], 104
    s_load_dwordx2 s[70:71], s[0:1], 0
    v_lshlrev_b32 v{vT16}, 4, v0
    v_lshlrev_b32 v{vT8}, 3, v0
    v_mov_b32 v{vSIX}, 6
    s_mov_b32 s{sMAG}, 1374390
    s_mov_b32 s{sNEG}, {-EB}
    s_mov_b32 s{sMASK}, 0x1c00
    s_mov_b32 s{sHI}, 0xffff0000
    s_mov_b32 s{sDIV6}, 0x2aaaaaab
    v_lshrrev_b32 v4, 6, v0
    v_mov_b32 v6, 0
    v_mov_b32 v7, 0
    v_readfirstlane_b32 s{sW}, v4
    ds_write_b64 v{vT8}, v[6:7] offset:{P1_CNT}
    v_mov_b32 v5, {P1_REC}
    ds_write_b32 v6, v5 offset:{P1_CNT - 4}
    s_waitcnt lgkmcnt(0)
    """)
    srd(a, S_IN, 4, T * 4)
    srd(a, S_OUT, 6, T * 4)
    srd(a, S_ANG, 42, T * 2)
    srd(a, S_REC, 44, REC_BYTES)
    a(f"s_add_u32 s44, s44, {TAB_OFF}")
    a("s_addc_u32 s45, s45, 0")
    srd(a, S_TAB, 44, TAB_BYTES + 8192)
    a(f"""
    s_lshr_b32 s39, s2, 1
    s_and_b32 s39, s39, 7
    s_lshr_b32 s46, s39, {1 if OPT["stag"] == 1 else 0}
    s_lshr_b32 s46, {0xf0 if OPT["stag"] == 1 else 0xff00}, s46
    s_and_b32 s46, s46, {0xf if OPT["stag"] == 1 else 0xff}
    s_mul_i32 s46, s46, {0x11 if OPT["stag"] == 1 else 1}
    """)
    if OPT["stag"] == 3:
        a(f"""
        s_lshr_b32 s46, s39, 1
        s_lshl_b32 s46, s46, 2
        s_sub_u32 s46, 16, s46
        s_lshr_b32 s47, 0x1111, s46
        s_lshl_b32 s46, s47, s46
        s_add_u32 s46, s46, {OPT["rotl"]:#x}
        s_mul_i32 s46, s46, 0x10001
        """)
    a(f"""
    s_lshl_b32 s39, s39, 21
    s_sub_u32 s39, {OPT['ns'] << 24}, s39
    s_mul_i32 s{sOI}, s2, {2 * CH * 4}
    s_mul_i32 s{sOA}, s2, {2 * CH * 2}
    """)

    vmq = []

    def vm_wait(tag):
        last = max(i for i, x in enumerate(vmq) if x == tag)
        a(f"s_waitcnt vmcnt({len(vmq) - 1 - last})")

    pend = []

    def slot(n=1):
        for _ in range(n):
            if pend:
                pend.pop(0)()

    def issue_idx(X, r):
        vmq.extend([(X, r)] * 2)
        if r < 6:
            a(f"""
            buffer_load_dwordx4 {vr(O[X] + 4 * r, 4)}, v{vT16}, {sr(S_OUT, 4)}, s{sOI} offen{nt}
            buffer_load_dwordx4 {vr(I[X] + 4 * r, 4)}, v{vT16}, {sr(S_IN, 4)}, s{sOI} offen{nt}
            s_add_u32 s{sOI}, s{sOI}, 16384
            """)
        else:
            a(f"""
            v_cmp_gt_u32 vcc, {CH - 6 * 4096}, v0
            v_lshlrev_b32 v{tmp[9]}, 2, v0
            s_nop 0
            v_cndmask_b32 v{tmp[9]}, v{vX}, v{tmp[9]}, vcc
            buffer_load_dword v{O6[X]}, v{tmp[9]}, {sr(S_OUT, 4)}, s{sOI} offen{nt}
            buffer_load_dword v{I6[X]}, v{tmp[9]}, {sr(S_IN, 4)}, s{sOI} offen{nt}
            s_add_u32 s{sOI}, s{sOI}, {(CH - 6 * 4096) * 4}
            """)

    def issue_ang(X, r):
        vmq.append((X, "a", r))
        if r < 6:
            a(f"""
            buffer_load_dwordx2 {vr(G + 2 * r, 2)}, v{vT8}, {sr(S_ANG, 4)}, s{sOA} offen{nt}
            s_add_u32 s{sOA}, s{sOA}, 8192
            """)
        else:
            a(f"""
            v_cmp_gt_u32 vcc, {CH - 6 * 4096}, v0
            v_lshlrev_b32 v{tmp[9]}, 1, v0
            s_nop 0
            v_cndmask_b32 v{tmp[9]}, v{vX}, v{tmp[9]}, vcc
            buffer_load_ushort v{G6}, v{tmp[9]}, {sr(S_ANG, 4)}, s{sOA} offen{nt}
            s_add_u32 s{sOA}, s{sOA}, {(CH - 6 * 4096) * 2}
            """)

    def pack(recs):
        n = len(recs)
        tb = tmp[0:n]
        tc = tmp[4:4 + n]
        for k, (o, i, g, hi) in enumerate(recs):
            a(f"v_mul_hi_u32_u24 v{tb[k]}, s{sMAG}, v{o}")
            a(f"v_mul_u32_u24 v{tc[k]}, {(OPT['ns'] << 24) // E}, v{i}")
        if OPT["slide"]:
            for k in range(n):
                a(f"v_add_u32 v{tc[k]}, s39, v{tc[k]}")
            if OPT["ns"] != 8:
                for k in range(n):
                    a(f"v_subrev_u32 v{tmp[8]}, {OPT['ns'] << 24}, v{tc[k]}")
                    a(f"v_min_u32 v{tc[k]}, v{tc[k]}, v{tmp[8]}")
        for k, (o, i, g, hi) in enumerate(recs):
            a(f"v_mad_i32_i24 v{o}, v{tb[k]}, s{sNEG}, v{o}")
            if OPT["stag"] == 3:
                u = tmp[8 + (k & 1)]
                a(f"v_lshrrev_b32 v{u}, 5, v{tb[k]}")
                a(f"v_lshrrev_b32 v{tc[k]}, 24, v{tc[k]}")
                a(f"v_lshlrev_b32 v{u}, 2, v{u}")
                a(f"v_lshlrev_b32 v{tb[k]}, 2, v{tb[k]}")
                a(f"v_bfe_u32 v{u}, s46, v{u}, 4")
                a(f"v_sub_u32 v{tc[k]}, v{tc[k]}, v{u}")
                a(f"v_add_u32 v{u}, {OPT['ns']}, v{tc[k]}")
                a(f"v_min_u32 v{tc[k]}, v{tc[k]}, v{u}")
                continue
            a(f"v_lshrrev_b32 v{tc[k]}, 14, v{tc[k]}")
            if OPT["stag"]:
                u = tmp[8 + (k & 1)]
                a(f"v_lshrrev_b32 v{u}, 5, v{tb[k]}")
                a(f"v_bfe_i32 v{u}, s46, v{u}, 1")
                a(f"v_lshl_add_u32 v{tc[k]}, v{u}, 10, v{tc[k]}")
                if OPT["ns"] != 8:
                    a(f"v_add_u32 v{u}, {OPT['ns'] << 10}, v{tc[k]}")
                    a(f"v_min_u32 v{tc[k]}, v{tc[k]}, v{u}")
            a(f"v_lshlrev_b32 v{tb[k]}, 2, v{tb[k]}")
        for k, (o, i, g, hi) in enumerate(recs):
            a(f"v_lshl_or_b32 v{i}, v{i}, 12, v{o}")
            if OPT["stag"] == 3:
                a(f"v_lshl_or_b32 v{o}, v{tc[k]}, 10, v{tb[k]}")
            else:
                a(f"v_and_or_b32 v{o}, v{tc[k]}, s{sMASK}, v{tb[k]}")
        for k, (o, i, g, hi) in enumerate(recs):
            a(f"ds_add_u32 v{o}, v{vSIX} offset:{P1_CNT}")

    def round_recs(X, r):
        if r < 6:
            return [(O[X] + 4 * r + k, I[X] + 4 * r + k, G + 2 * r + (k >> 1), k & 1) for k in range(4)]
        return [(O6[X], I6[X], G6, 0)]

    def tail_begin(lbl):
        a(f"""
        v_cmp_gt_u32 vcc, {CH - 6 * 4096}, v0
        s_and_saveexec_b64 {sr(sEX, 2)}, vcc
        s_cbranch_execz {lbl}
        """)

    def tail_end(lbl):
        a(f"{lbl}:")
        a(f"s_mov_b64 exec, {sr(sEX, 2)}")

    def wave_scan(v):
        a(f"""
        s_nop 1
        v_add_u32_dpp v{v}, v{v}, v{v} row_shr:1 row_mask:0xf bank_mask:0xf bound_ctrl:0
        s_nop 1
        v_add_u32_dpp v{v}, v{v}, v{v} row_shr:2 row_mask:0xf bank_mask:0xf bound_ctrl:0
        s_nop 1
        v_add_u32_dpp v{v}, v{v}, v{v} row_shr:4 row_mask:0xf bank_mask:0xf bound_ctrl:0
        s_nop 1
        v_add_u32_dpp v{v}, v{v}, v{v} row_shr:8 row_mask:0xf bank_mask:0xf bound_ctrl:0
        """)

    def sort_chunk(X):
        c01, s, inc, p, q = tmp[0], tmp[2], tmp[3], tmp[4], tmp[5]
        st1()
        a.c("exclusive scan of the 2048 counters (units: bytes, 6 per record)")
        a(f"""
        s_waitcnt lgkmcnt(0)
        s_barrier
        """)
        if X == 'A' or OPT['stpos'] < 3:
            slot()
        a(f"""
        ds_read_b64 {vr(c01, 2)}, v{vT8} offset:{P1_CNT}
        s_waitcnt lgkmcnt(0)
        v_add_u32 v{s}, v{c01}, v{c01 + 1}
        v_mov_b32 v{inc}, v{s}
        """)
        wave_scan(inc)
        a(f"""
        s_nop 1
        v_add_u32_dpp v{inc}, v{inc}, v{inc} row_bcast:15 row_mask:0xa bank_mask:0xf
        s_nop 1
        v_add_u32_dpp v{inc}, v{inc}, v{inc} row_bcast:31 row_mask:0xc bank_mask:0xf
        s_lshl_b32 s{sT1}, s{sW}, 2
        v_mov_b32 v{q}, s{sT1}
        v_readlane_b32 s{sT0}, v{inc}, 63
        s_nop 1
        v_mov_b32 v{p}, s{sT0}
        ds_write_b32 v{q}, v{p} offset:{P1_PART}
        v_and_b32 v{q}, 15, v0
        v_lshlrev_b32 v{p}, 2, v{q}
        s_waitcnt lgkmcnt(0)
        s_barrier
        """)
        if X == 'A' or OPT['stpos'] < 3:
            slot()
        a(f"""
        v_cmp_gt_u32 vcc, s{sW}, v{q}
        ds_read_b32 v{p}, v{p} offset:{P1_PART}
        s_waitcnt lgkmcnt(0)
        v_cndmask_b32 v{p}, 0, v{p}, vcc
        """)
        wave_scan(p)
        a(f"""
        v_sub_u32 v{inc}, v{inc}, v{s}
        v_readlane_b32 s{sT0}, v{p}, 15
        s_add_u32 s{sT0}, s{sT0}, {P1_REC}
        s_nop 0
        v_add_u32 v{q + 1}, s{sT0}, v{inc}
        v_add_u32 v{q + 2}, v{q + 1}, v{c01}
        ds_write_b64 v{vT8}, {vr(q + 1, 2)} offset:{P1_CNT}
        s_waitcnt lgkmcnt(0)
        s_barrier
        """)
        assert (q + 1) % 2 == 0
        st1()
        a.c("rank and scatter into the LDS image")
        def rank_issue(recs):
            for k, (o, i, g, hi) in enumerate(recs):
                a(f"ds_add_rtn_u32 v{o}, v{o}, v{vSIX} offset:{P1_CNT}")

        def put_words(recs):
            for k, (o, i, g, hi) in enumerate(recs):
                a(f"v_and_b32 v{tmp[k]}, 2, v{o}")
            for k, (o, i, g, hi) in enumerate(recs):
                a(f"v_add_u32 v{tmp[k]}, v{o}, v{tmp[k]}")
            for k, (o, i, g, hi) in enumerate(recs):
                a(f"ds_write_b32 v{tmp[k]}, v{i}")

        def put_angles(recs):
            for k, (o, i, g, hi) in enumerate(recs):
                a(f"v_and_b32 v{tmp[4 + k]}, 2, v{o}")
            for k, (o, i, g, hi) in enumerate(recs):
                a(f"v_mad_i32_i24 v{tmp[4 + k]}, v{tmp[4 + k]}, -2, v{o}")
            for k, (o, i, g, hi) in enumerate(recs):
                a(f"ds_write_b16{'_d16_hi' if hi else ''} v{tmp[4 + k]}, v{g} offset:4")

        nslot = lambda r: (2 if OPT["stpos"] < 4 or r >= 2 else 0) if X == "B" else OPT["aslot"]
        rank_issue(round_recs(X, 0))
        rank_issue(round_recs(X, 1))
        for r in range(6):
            if r < 4:
                rank_issue(round_recs(X, r + 2))
            a(f"s_waitcnt lgkmcnt({[8, 12, 12, 12, 8, 4][r]})")
            put_words(round_recs(X, r))
            slot(nslot(r))
        tail_begin(f"P1_sc6{X}")
        rank_issue(round_recs(X, 6))
        a("s_waitcnt lgkmcnt(0)")
        put_words(round_recs(X, 6))
        tail_end(f"P1_sc6{X}")
        slot(99)
        for r in range(7):
            vm_wait((X, "a", r))
            if r == 6:
                tail_begin(f"P1_an6{X}")
            put_angles(round_recs(X, r))
            if r == 6:
                tail_end(f"P1_an6{X}")
            if X == "A" and OPT["bang"] == 1 and r < 6:
                issue_ang("B", r)
        slot(99)
        a("""
        s_waitcnt lgkmcnt(0)
        s_barrier
        """)
        st1()
        a.c("read the image back (into the dead record registers) and the counters (now segment ends)")
        dst = [O[X] + 4 * r for r in range(6)] + [I[X] + 4 * r for r in range(4)]
        ra, rb = tmp[8], tmp[9]
        a(f"v_add_u32 v{ra}, 0x10000, v{vT16}")
        a(f"v_add_u32 v{rb}, 0x20000, v{vT16}")
        for r in range(9):
            base = [vT16, ra, rb][r >> 2]
            a(f"ds_read_b128 {vr(dst[r], 4)}, v{base} offset:{P1_REC + (r & 3) * 16384}")
        nlast = CH * 6 // 16 - 9 * 1024
        a(f"""
        v_cmp_gt_u32 vcc, {nlast}, v0
        s_and_saveexec_b64 {sr(sEX, 2)}, vcc
        ds_read_b128 {vr(dst[9], 4)}, v{rb} offset:{P1_REC + 16384}
        s_mov_b64 exec, {sr(sEX, 2)}
        v_cndmask_b32 v{rb}, v{vX}, v{vT16}, vcc
        v_and_b32 v{ra}, 1, v0
        v_lshlrev_b32 v{ra}, 12, v{ra}
        v_lshrrev_b32 v{tmp[0]}, 1, v0
        v_lshl_add_u32 v{ra}, v{tmp[0]}, 2, v{ra}
        s_cmp_lt_u32 s{sW}, 8
        s_cbranch_scc0 P1_notab{X}
        """)
        for qq in range(4):
            if qq:
                a(f"v_add_u32 v{ra}, 1024, v{ra}")
            a(f"ds_read2_b32 {vr(tmp[2 * qq], 2)}, v{ra} offset0:{P1_CNT // 4 - 1} offset1:{P1_CNT // 4}")
        a("s_waitcnt lgkmcnt(0)")
        for qq in range(4):
            s_, e_ = tmp[2 * qq], tmp[2 * qq + 1]
            a(f"""
            v_sub_u32 v{e_}, v{e_}, v{s_}
            v_subrev_u32 v{s_}, {P1_REC}, v{s_}
            v_mul_hi_u32 v{e_}, v{e_}, s{sDIV6}
            v_mul_hi_u32 v{s_}, v{s_}, s{sDIV6}
            v_lshl_or_b32 v{tmp[qq]}, v{e_}, 16, v{s_}
            """)
        a(f"""
        v_lshrrev_b32 v{tmp[4]}, 1, v0
        v_and_b32 v{tmp[5]}, 1, v0
        v_lshlrev_b32 v{tmp[4]}, {5 if OPT["tabc"] else 14}, v{tmp[4]}
        v_lshl_or_b32 v{tmp[4]}, v{tmp[5]}, 4, v{tmp[4]}
        s_branch P1_tab{X}
        P1_notab{X}:
        v_mov_b32 v{tmp[4]}, v{vX}
        P1_tab{X}:
        s_lshl_b32 s{sT0}, s{sCH}, {13 if OPT['tabc'] else 5}
        s_mul_i32 s{sT1}, s{sCH}, {CHB}
        buffer_store_dwordx4 {vr(tmp[0], 4)}, v{tmp[4]}, {sr(S_TAB, 4)}, s{sT0} offen
        s_waitcnt lgkmcnt(0)
        """)
        vmq.append("st")
        a(f"s_add_u32 s{sT0}, s{sT1}, {9 * 16384}")
        a(f"buffer_store_dwordx4 {vr(dst[9], 4)}, v{rb}, {sr(S_REC, 4)}, s{sT0} offen{STMS[X]}")
        vmq.append("st")
        a(f"s_mov_b32 s47, s{sT1}")

        def mk(r):
            def f():
                a(f"buffer_store_dwordx4 {vr(dst[r], 4)}, v{vT16}, {sr(S_REC, 4)}, s47 offen{STMS[X]}")
                a(f"s_add_u32 s47, s47, 16384")
                vmq.append("st")
            return f
        pend.extend(mk(r) for r in range(9))
        if X == "B" or OPT["stpos"] == 0:
            slot(99)
        st1()

    st1()
    a(f"v_mov_b32 v{vX}, 0x7fffff00")
    AD = OPT["adepth"]
    aq = [lambda r=r: issue_idx("A", r) for r in range(7)] + [lambda: [issue_ang("A", r) for r in range(0, 2)], lambda: [issue_ang("A", r) for r in range(2, 4)], lambda: [issue_ang("A", r) for r in range(4, 7)]]

    def first_loads():
        if AD:
            for _ in range(AD):
                aq.pop(0)()
            return
        for r in range(7):
            issue_idx("A", r)
            if not OPT["angl"]:
                issue_ang("A", r)
        if OPT["angl"]:
            for r in range(7):
                issue_ang("A", r)
    builder(a, (62, 78, 94, 102), 4, 5, 6, 7, 12, 124, 8, sW, sT0, S_TAB, first_loads, 2 * AD if AD else 21)
    a("s_barrier")
    order = [6, 0, 1, 2, 3, 4, 5]
    nb = 0
    for r in range(7):
        vm_wait(("A", r))
        if r == 6:
            tail_begin("P1_pk6A")
        pack(round_recs("A", r))
        if r == 6:
            tail_end("P1_pk6A")
        if AD and aq:
            aq.pop(0)()
            if r == 6:
                while aq:
                    aq.pop(0)()
        elif r < 6 and r >= 6 - OPT["early"]:
            issue_idx("B", nb)
            nb += 1
    for r in range(nb, 6):
        pend.append(lambda r=r: (vm_wait(("B", r - OPT["bfair"])) if OPT["bfair"] and r >= OPT["bfair"] else None, issue_idx("B", r)))
    a(f"s_lshl_b32 s{sCH}, s2, 1")
    sort_chunk("A")
    a(f"""
    s_barrier
    v_mov_b32 v{tmp[8]}, 0
    v_mov_b32 v{tmp[9]}, 0
    ds_write_b64 v{vT8}, {vr(tmp[8], 2)} offset:{P1_CNT}
    s_add_u32 s{sCH}, s{sCH}, 1
    s_waitcnt lgkmcnt(0)
    """)
    issue_idx("B", 6)
    if OPT["bang"] == 2:
        for r in range(6):
            issue_ang("B", r)
    issue_ang("B", 6)
    a("s_barrier")
    for r in range(7):
        vm_wait(("B", r))
        if r == 6:
            tail_begin("P1_pk6B")
        pack(round_recs("B", r))
        if r == 6:
            tail_end("P1_pk6B")
        if OPT["stpos"] == 1:
            slot()
    def prefetch_m():
        a.c("touch this workgroup's share of m (one load per 128-byte line) so that the second kernel finds it on chip")
        srd(a, 80, 70, E * 32)
        a(f"""
        v_cmp_gt_u32 vcc, {OPT["pfp1"] or 782}, v0
        v_lshlrev_b32 v{G + 1}, 7, v0
        s_mul_i32 s{sT0}, s2, {OPT["pfp1"] * 128 or 100000}
        s_and_b32 s{sT0}, s{sT0}, 0xffffff80
        v_cndmask_b32 v{G + 1}, v{vX}, v{G + 1}, vcc
        buffer_load_dword v{G}, v{G + 1}, {sr(80, 4)}, s{sT0} offen
        """)
    if OPT["pfm"] or OPT["pfp1"]:
        prefetch_m()
    sort_chunk("B")
    if OPT["stamp1"]:
        a("s_waitcnt vmcnt(0)")
        st1()
        a(f"""
        s_lshl_b32 s3, s2, 4
        s_add_u32 s3, s3, s{sW}
        s_lshl_b32 s3, s3, 6
        s_add_u32 s44, s44, {17 << 20}
        s_addc_u32 s45, s45, 0
        """)
        srd(a, S_TAB, 44, 1 << 20)
        a("v_mov_b32 v4, 0")
        for i in range(stn[0]):
            a(f"v_mov_b32 v5, s{48 + 2 * i}")
            a(f"buffer_store_dword v5, v4, {sr(S_TAB, 4)}, s3 offen offset:{4 * i}")
    a("P1_done:")
    a("s_endpgm")
    kernel_desc(a, name, 128, 88)


L_LOCK = 0
L_RBF = 800
L_ACC0 = L_RBF + EB * 16
L_ACC1 = L_ACC0 + EB * 16
L_RING = L_ACC1 + EB * 16
RING_CAP = 101
RING_STRIDE = RING_CAP * 8
P2_LDS = 163840
assert L_RING + 16 * RING_STRIDE <= P2_LDS


def gen_main(a, name):
    BIG = OPT["big"]
    CB = 2 * CHB if BIG else CHB
    NCW = 16 if BIG else 32
    SPL = OPT['spl']
    LPS = 64 // SPL
    LSH = LPS.bit_length() - 1
    SPP = NCW // SPL
    TSH = 14 if BIG else 13
    NSTEP = SPP * OPT["ns"]
    ntr = " nt" if OPT["nt_rec"] else ""
    nto = ["", " sc1", " nt", " sc0 sc1", " sc1 nt"][OPT["outm"]]
    S_REC, S_M, S_TMP, S_OUT = 8, 12, 16, 20
    sB, sW = 24, 25
    sCNT, sTOP = 26, 27
    sM = [28, 30]
    sN, sT0, sT1, sT2 = 32, 33, 34, 35
    sACQ, sFAIL = 36, 38
    sM0, sM1 = 40, 42
    sRET, sRET2 = 44, 46
    sLONG = [48, 50]
    sEX = 52
    sCO = 54
    sCOB = [55, 56]
    sK, sJ, sPH = 57, 58, 59
    sP = 60
    sRB, sHI, sG, sKF0, sKF1, sN0 = 76, 77, 78, 79, 80, 81
    sCEN = 84
    sEVEN = 92
    sCAP = 97
    sF = [98, 100]
    assert not (OPT['pfn'] or OPT['spf'] or OPT['x_fake'] or OPT['gexec'])
    vLANE = 1
    A1a, A1b, A2a, A2b, A3a, A3b = 2, 6, 10, 14, 18, 22
    D1, D2 = 26, 42
    GP, GQ = [58, 66], [62, 70]
    TF = 74
    S0, S1 = 78, 82
    AX, AY = S0, S1
    WA = [86, 88]
    O = [90, 91]
    C = [92, 93]
    TT = 94
    RB = [98, 102]
    RD = [101, 105]
    RL = [106, 107]
    RA = [108, 109]
    vBP, vCB, vL2, vL8, vH16, vOOB, vE = range(110, 117)
    t = list(range(117, 128)) + [0]
    vDUM = GP[1]
    vPF = 0

    kernel_head(a, name)
    a(f"""
    s_cmp_ge_u32 s2, {NB}
    s_cbranch_scc1 P2_done
    {"s_memrealtime s[94:95]" if OPT["stamp2"] else ""}
    s_load_dwordx2 {sr(sP, 2)}, s[0:1], 0
    s_load_dwordx2 {sr(sP + 2, 2)}, s[0:1], 24
    s_load_dwordx4 {sr(sP + 4, 4)}, s[0:1], 40
    s_load_dwordx2 s[4:5], s[0:1], 88
    s_load_dwordx2 s[6:7], s[0:1], 104
    s_and_b32 s{sB}, s2, 7
    s_lshl_b32 s{sB}, s{sB}, 5
    s_lshr_b32 s{sT0}, s2, 3
    s_add_u32 s{sB}, s{sB}, s{sT0}
    v_lshrrev_b32 v{t[0]}, 6, v0
    v_and_b32 v{vLANE}, 63, v0
    s_mov_b32 s{sHI}, 0xffff0000
    v_readfirstlane_b32 s{sW}, v{t[0]}
    v_mov_b32 v{vOOB}, 0x7fffff00
    s_mov_b32 s{sEVEN}, 0x55555555
    s_mov_b32 s{sEVEN + 1}, 0x55555555
    s_waitcnt lgkmcnt(0)
    """)
    pM, pDIST, pCEN, pFREQ, pWRBF, pWSBF, pWDN, pWUP = [sP + 2 * k for k in range(8)]
    a(f"""
    s_load_dwordx4 {sr(sCEN, 4)}, {sr(pCEN, 2)}, 0
    s_load_dword s{sT2}, {sr(pFREQ, 2)}, 0
    """)
    sPM, sPFO, sPFD = 100, 99, 82

    def spf():
        return f"""
        s_load_dword s{sPFD}, {sr(sPM, 2)}, s{sPFO}
        s_add_u32 s{sPFO}, s{sPFO}, {4096 * 128}
        s_min_u32 s{sPFO}, s{sPFO}, {E * 32 - 4}
        """
    srd(a, S_REC, 6, REC_BYTES)
    srd(a, S_M, pM, E * 32)
    srd(a, S_OUT, 4, E * 32)
    a(f"s_add_u32 s6, s6, {TAB_OFF}")
    a("s_addc_u32 s7, s7, 0")
    S_TAB = S_TMP
    S_DST = 68
    srd(a, S_TAB, 6, TAB_BYTES + 8192)
    a.c("this wave's 32 x 8 table entries: lane = chunk (l & 31), slices 4*(l >> 5) .. +3")
    a(f"""
    v_and_b32 v{t[0]}, {NCW - 1}, v{vLANE}
    v_lshrrev_b32 v{t[1]}, {4 if BIG else 5}, v{vLANE}
    v_lshlrev_b32 v{vL8}, 3, v{vLANE}
    v_lshlrev_b32 v{t[2]}, 4, v{t[1]}
    v_lshl_add_u32 v{t[2]}, v{t[0]}, {TSH}, v{t[2]}
    s_lshl_b32 s{sT0}, s{sB}, {TSH - 8}
    s_lshl_b32 s{sT1}, s{sW}, 18
    s_add_u32 s{sT0}, s{sT0}, s{sT1}
    v_lshrrev_b32 v{t[3]}, {LSH}, v{vLANE}
    v_lshlrev_b32 v{t[3]}, {TSH}, v{t[3]}
    s_add_u32 s{sT1}, s{sT0}, {SPL << TSH}
    buffer_load_dword v{vE}, v{t[3]}, {sr(S_TAB, 4)}, s{sT0} offen
    buffer_load_dword v{C[0]}, v{t[3]}, {sr(S_TAB, 4)}, s{sT1} offen
    buffer_load_dwordx4 {vr(TT, 4)}, v{t[2]}, {sr(S_TAB, 4)}, s{sT0} offen
    """)
    srd(a, S_DST, pDIST, E * 2)

    a.c("dist of the bucket's edges t, t+1024, t+2048, t+3072")
    a(f"""
    s_mul_i32 s{sT0}, s{sB}, {EB * 2}
    v_lshlrev_b32 v{t[2]}, 1, v0
    buffer_load_ushort v{t[4]}, v{t[2]}, {sr(S_DST, 4)}, s{sT0} offen
    buffer_load_ushort v{t[5]}, v{t[2]}, {sr(S_DST, 4)}, s{sT0} offen offset:2048
    s_add_u32 s{sT0}, s{sT0}, 4096
    buffer_load_ushort v{t[6]}, v{t[2]}, {sr(S_DST, 4)}, s{sT0} offen
    buffer_load_ushort v{t[7]}, v{t[2]}, {sr(S_DST, 4)}, s{sT0} offen offset:2048
    """)
    a.c("matrix operands prepared by the first kernel")
    a(f"v_lshlrev_b32 v{t[3]}, 4, v{vLANE}")
    for k in range(6):
        a(f"s_mov_b32 s{sT0}, {TAB_BYTES + 1024 * k}")
        a(f"buffer_load_dwordx4 {vr(A1a + 4 * k, 4)}, v{t[3]}, {sr(S_TAB, 4)}, s{sT0} offen")
    npf = 0
    if OPT["pf0"]:
        a.c("touch a share of the first slice of m, one load per 128-byte line")
        lines = (E // OPT["ns"] * 32 // 128 + 31) // 32
        a(f"""
        v_cmp_gt_u32 vcc, {min(lines, 1024)}, v0
        v_lshlrev_b32 v{t[8]}, 7, v0
        s_lshr_b32 s{sT0}, s2, 3
        s_mul_i32 s{sT0}, s{sT0}, {lines * 128}
        v_cndmask_b32 v{t[8]}, v{vOOB}, v{t[8]}, vcc
        buffer_load_dword v{vDUM}, v{t[8]}, {sr(S_M, 4)}, s{sT0} offen
        """)
        npf = 1
    a.c("zero the locks and the accumulators")
    D = D1
    a(f"""
    v_mov_b32 v{D}, 0
    v_mov_b32 v{D + 1}, 0
    v_mov_b32 v{D + 2}, 0
    v_mov_b32 v{D + 3}, 0
    v_lshlrev_b32 v{t[2]}, 4, v0
    v_add_u32 v{t[9]}, {L_ACC0}, v{t[2]}
    """)
    for r in range(4):
        a(f"ds_write_b128 v{t[9]}, {vr(D, 4)} offset:{r * 16384}")
    a(f"v_add_u32 v{t[9]}, 0x10000, v{t[9]}")
    for r in range(2):
        a(f"ds_write_b128 v{t[9]}, {vr(D, 4)} offset:{r * 16384}")
    a(f"""
    v_cmp_gt_u32 vcc, {2 * EB - 6 * 1024}, v0
    s_and_saveexec_b64 {sr(sEX, 2)}, vcc
    ds_write_b128 v{t[9]}, {vr(D, 4)} offset:{2 * 16384}
    s_mov_b64 exec, {sr(sEX, 2)}
    v_cmp_gt_u32 vcc, {L_RBF // 16}, v0
    s_and_saveexec_b64 {sr(sEX, 2)}, vcc
    ds_write_b128 v{t[2]}, {vr(D, 4)}
    s_mov_b64 exec, {sr(sEX, 2)}
    s_waitcnt lgkmcnt(0)
    """)
    if OPT["spf"]:
        a.c("scalar loads walk over m, one per 128-byte line chip-wide, ahead of the gathers")
        a(f"""
        s_lshl_b32 s{sPFO}, s2, 4
        s_add_u32 s{sPFO}, s{sPFO}, s{sW}
        s_lshl_b32 s{sPFO}, s{sPFO}, 7
        """)
        for k in range(OPT["spf"]):
            a(spf())
    a.c("centers and frequencies to f32")
    for k in (3, 2, 1, 0):
        a(f"s_and_b32 s{sCEN + 2 * k + 1}, s{sCEN + k}, 0xffff0000")
        a(f"s_lshl_b32 s{sCEN + 2 * k}, s{sCEN + k}, 16")
    a(f"""
    s_lshl_b32 s{sT0}, s{sT2}, 16
    s_and_b32 s{sT1}, s{sT2}, 0xffff0000
    v_mov_b32 v{t[8]}, 0.15915494
    v_mul_f32 v{t[9]}, s{sT0}, v{t[8]}
    v_mul_f32 v{t[8]}, s{sT1}, v{t[8]}
    v_and_b32 v{vH16}, 1, v{vLANE}
    v_lshlrev_b32 v{vH16}, 4, v{vH16}
    v_readfirstlane_b32 s{sKF0}, v{t[9]}
    v_readfirstlane_b32 s{sKF1}, v{t[8]}
    """)
    a.c("record-stream lane constants")
    a(f"""
    v_and_b32 v{t[8]}, {LPS - 1}, v{vLANE}
    v_lshrrev_b32 v{t[9]}, {LSH}, v{vLANE}
    v_lshlrev_b32 v{vL2}, 1, v{t[8]}
    v_lshlrev_b32 v{vBP}, 2, v{t[9]}
    v_mul_u32_u24 v{t[9]}, {CB}, v{t[9]}
    v_mad_u32_u24 v{vCB}, v{t[8]}, 12, v{t[9]}
    s_mul_i32 s{sCO}, s{sW}, {32 * CHB}
    s_mul_i32 s{sRB}, s{sW}, {RING_STRIDE}
    s_add_u32 s{sRB}, s{sRB}, {L_RING}
    s_mov_b32 s{sTOP}, s{sRB}
    s_mov_b32 s{sCNT}, 0
    s_mov_b64 {sr(sM[0], 2)}, 0
    s_mov_b64 {sr(sM[1], 2)}, 0
    s_mov_b32 s{sJ}, 0
    s_mov_b32 s{sPH}, 0
    s_mov_b32 s{sG}, 100000
    s_mov_b32 s{sCAP}, {OPT['lim']}
    s_mov_b64 {sr(sF[0], 2)}, 0
    s_mov_b64 {sr(sF[1], 2)}, 0
    s_and_b32 s3, s2, {3 if OPT["stag"] == 1 else (6 if OPT["stag"] == 2 else 0)}
    s_lshl_b32 s3, s3, {1 if OPT["stag"] == 1 else 0}
    s_mov_b32 s83, {-16 * OPT["lag"] + OPT["lagoff"]}
    {'s_mov_b32 s95, 0' if OPT['cntreq'] else ''}
    """)

    uid = [0]
    kmul = (OPT["ns"] << 24) // E
    SLB = ((1 << 24) // kmul * 32) & ~127
    SHARE = (SLB // 128 + 64 * OPT['pfx']) // (64 * OPT['pfx'])

    PER = (SHARE + OPT["pfw"] - 1) // OPT["pfw"]

    def pf_share(sS, tmpv, vPF=vPF):
        return f"""
        s_mul_i32 s{sT0}, s{sS}, {SLB}
        s_mul_i32 s{sT1}, s82, {SHARE * 128}
        s_add_u32 s{sT0}, s{sT0}, s{sT1}
        s_mul_i32 s{sT1}, s{sW}, {PER}
        v_add_u32 v{tmpv}, s{sT1}, v{vLANE}
        v_cmp_gt_u32 vcc, {PER}, v{vLANE}
        v_lshlrev_b32 v{tmpv}, 7, v{tmpv}
        s_nop 0
        v_cndmask_b32 v{tmpv}, v{vOOB}, v{tmpv}, vcc
        buffer_load_dword v{vPF}, v{tmpv}, {sr(S_M, 4)}, s{sT0} offen
        """

    def prep(buf, mid=None, pf=True):
        uid[0] += 1
        u = uid[0]
        a(f"""
        v_lshrrev_b32 v{RL[buf]}, 16, v{vE}
        v_and_b32 v{t[0]}, 1, v{vE}
        v_and_b32 v{t[1]}, 0xfffe, v{vE}
        v_sub_u32 v{RD[buf]}, v{vL2}, v{t[0]}
        v_mad_u32_u24 v{RA[buf]}, v{t[1]}, 6, v{vCB}
        v_cmp_lt_i32 vcc, v{RD[buf]}, v{RL[buf]}
        v_cmp_lt_u32 {sr(sLONG[buf], 2)}, {2 * LPS - 1}, v{RL[buf]}
        s_mov_b32 s{sCOB[buf]}, s{sCO}
        {"s_or_b32 vcc_lo, vcc_lo, 1" if OPT["rexec"] else f"v_cndmask_b32 v{t[1]}, v{vOOB}, v{RA[buf]}, vcc"}
        v_add_u32 v{vBP}, {4 * SPL}, v{vBP}
        s_add_u32 s{sCO}, s{sCO}, {SPL * CB}
        s_add_u32 s{sJ}, s{sJ}, 1
        s_cmp_lt_u32 s{sJ}, {SPP}
        s_cbranch_scc0 P2_adv{u}
        P2_advr{u}:
        {f"ds_bpermute_b32 v{vE}, v{vBP}, v{TT}" if mid else ""}
        """)
        if mid:
            a(mid)
        if OPT["x_fake"]:
            a(f"buffer_load_dword v{D2}, v{vOOB}, {sr(S_REC, 4)}, s{sCOB[buf]} offen{ntr}")
            sz = E // OPT['ns']
            a(f"""
            s_add_u32 s98, s{sK}, {2 + buf}
            s_lshr_b32 s98, s98, 3
            s_min_u32 s98, s98, {OPT['ns'] - 1}
            s_mul_i32 s98, s98, {sz}
            s_mov_b32 s99, {sz}
            s_mov_b32 s97, 0x9E3779B1
            """)
            for dd in (RB[buf], RB[buf] + 2):
                a(f"""
                v_mul_lo_u32 v{D1}, v{D1}, s97
                v_add_u32 v{D1}, 0x3c6ef35f, v{D1}
                v_lshrrev_b32 v{D1 + 1}, 15, v{D1}
                v_xor_b32 v{D1}, v{D1}, v{D1 + 1}
                v_mul_hi_u32 v{dd}, v{D1}, s99
                v_add_u32 v{dd}, s98, v{dd}
                v_lshlrev_b32 v{dd}, 12, v{dd}
                """)
        else:
            if OPT["rexec"]:
                a(f"""
                s_mov_b64 exec, vcc
                buffer_load_dwordx3 {vr(RB[buf], 3)}, v{RA[buf]}, {sr(S_REC, 4)}, s{sCOB[buf]} offen{ntr}
                s_mov_b64 exec, -1
                """)
            else:
                a(f"buffer_load_dwordx3 {vr(RB[buf], 3)}, v{t[1]}, {sr(S_REC, 4)}, s{sCOB[buf]} offen{ntr}")
        if OPT["pfn"] and mid and pf:
            a(f"""
            s_cmp_eq_u32 s{sJ}, s99
            s_cbranch_scc1 P2_pf{u}
            P2_pfr{u}:
            """)
            cold.append(f"""
            P2_pf{u}:
            s_cmp_eq_u32 s{sPH}, s98
            s_cbranch_scc0 P2_pfr{u}
            s_add_u32 s98, s98, {OPT["pfg"]}
            """ + "".join(f"s_add_u32 s{sT2}, s{sPH}, {OPT['pfn'] + g}\n" + pf_share(sT2, t[3]) for g in range(OPT["pfg"])) + f"""
            s_branch P2_pfr{u}
            """)
        cold.append(f"""
        P2_adv{u}:
        s_mov_b32 s{sJ}, 0
        s_sub_u32 s{sCO}, s{sCO}, {32 * CHB}
        s_add_u32 s{sPH}, s{sPH}, 1
        s_and_b32 s{sT0}, s{sPH}, 3
        s_cselect_b32 s{sT0}, {4 * NCW}, 0
        v_subrev_u32 v{vBP}, s{sT0}, v{vBP}
        v_mov_b32 v{t[0]}, v{TT}
        v_mov_b32 v{TT}, v{TT + 1}
        v_mov_b32 v{TT + 1}, v{TT + 2}
        v_mov_b32 v{TT + 2}, v{TT + 3}
        v_mov_b32 v{TT + 3}, v{t[0]}
        s_cmp_lt_u32 s{sPH}, {16 if BIG else 8}
        s_cbranch_scc1 P2_advr{u}
        v_mov_b32 v{TT}, 0
        s_branch P2_advr{u}
        """)

    cold = []
    a(f"s_waitcnt vmcnt({11 + npf})")
    prep(0)
    a(f"v_mov_b32 v{vE}, v{C[0]}")
    prep(1)

    def pf_prologue():
        a(f"""
        s_bfe_u32 s99, s2, {(3 << 16) | 3 if OPT["pfs"] else 0}
        s_cmp_lt_u32 s99, {4 if OPT['peel'] else 3}
        s_cselect_b32 s98, {OPT["pfg"]}, 0
        s_lshr_b32 s82, s2, 2
        s_mul_i32 s82, s82, {OPT["pfx"]}
        s_and_b32 s{sT0}, s2, 3
        s_add_u32 s82, s82, s{sT0}
        s_cmp_lt_u32 s{sT0}, {OPT["pfx"]}
        s_cselect_b32 s{sT0}, s{sW}, 99
        s_cmp_lt_u32 s{sT0}, {OPT["pfw"]}
        s_cselect_b32 s99, s99, 99
        s_cbranch_scc0 P2_nopf
        """)
        for k in range(OPT["pffirst"], OPT["pfn"] + OPT["pfg"]):
            if k == OPT["pfn"]:
                a(f"s_cmp_lt_u32 s99, {4 if OPT['peel'] else 3}\ns_cbranch_scc0 P2_nopf")
            a(f"s_mov_b32 s{sT2}, {k}")
            a(pf_share(sT2, t[3], vDUM))
        a("P2_nopf:")
    if OPT["pfn"] and OPT["pfpos"] == 0:
        pf_prologue()
    a.c("radial basis table exp(-10 (d - c)^2), stored as f16")
    a(f"s_waitcnt vmcnt({8 + npf})")
    sTEN, sL2E = sRET, sRET + 1
    a(f"s_mov_b32 s{sTEN}, 0xc1200000")
    a(f"s_mov_b32 s{sL2E}, {0x3fb8aa3b if OPT['mimic'] else 0xc166d4ca:#x}")
    def rbf_round(r):
        dd = t[4 + r]
        if r == 3:
            a(f"""
            v_cmp_gt_u32 vcc, {EB - 3 * 1024}, v0
            s_and_saveexec_b64 {sr(sEX, 2)}, vcc
            s_cbranch_execz P2_rbf3
            """)
        a(f"v_lshlrev_b32 v{dd}, 16, v{dd}")
        x = [D + k for k in range(8)]
        for k in range(8):
            a(f"v_subrev_f32 v{x[k]}, s{sCEN + k}, v{dd}")

        def rnd():
            if not OPT["mimic"]:
                return
            for k in range(0, 8, 2):
                a(f"v_cvt_pk_bf16_f32 v{D + 8 + k // 2}, v{x[k]}, v{x[k + 1]}")
            for k in range(0, 8, 2):
                a(f"v_lshlrev_b32 v{x[k]}, 16, v{D + 8 + k // 2}")
                a(f"v_and_b32 v{x[k + 1]}, s{sHI}, v{D + 8 + k // 2}")
        rnd()
        for k in range(8):
            a(f"v_mul_f32 v{x[k]}, v{x[k]}, v{x[k]}")
        rnd()
        if OPT["mimic"]:
            for k in range(8):
                a(f"v_mul_f32 v{x[k]}, s{sRET}, v{x[k]}")
        rnd()
        for k in range(8):
            a(f"v_mul_f32 v{x[k]}, s{sRET + 1}, v{x[k]}")
        for k in range(8):
            a(f"v_exp_f32 v{x[k]}, v{x[k]}")
        a("s_nop 0")
        rnd()
        for k in range(0, 8, 2):
            a(f"v_cvt_pk_f16_f32 v{D + 8 + k // 2}, v{x[k]}, v{x[k + 1]}")
        a(f"ds_write_b128 v{t[8]}, {vr(D + 8, 4)} offset:{L_RBF + r * 16384}")
        if r == 3:
            a("P2_rbf3:")
            a(f"s_mov_b64 exec, {sr(sEX, 2)}")


    def rbf_consts():
        a(f"v_lshlrev_b32 v{t[8]}, 4, v0")
    rbf_consts()
    a(f"ds_bpermute_b32 v{vE}, v{vBP}, v{TT}")
    for r in range(2 if OPT["peel"] else 4):
        rbf_round(r)
    a(f"""
    v_mov_b32 v{O[1]}, 0
    v_mov_b32 v{WA[1]}, 0
    """)
    a(f"s_mov_b32 s{sK}, 0")
    if OPT["gexec"]:
        for j in range(16):
            a(f"v_mov_b32 v{GP[0] + j}, 0")

    def prologue_tail():
        if OPT["peel"]:
            rbf_round(2)
            rbf_round(3)
        if OPT["pfn"] and OPT["pfpos"] == 1:
            pf_prologue()
        a("s_waitcnt lgkmcnt(0)\ns_barrier")
    if not OPT["peel"]:
        a.c("two out-of-range loads stand in for the gathers of the steps before the first one")
        for k in range(2):
            a(f"buffer_load_dword v{vDUM}, v{vOOB}, {sr(S_REC, 4)}, 0 offen")
        prologue_tail()

    la, bit, aX, aY, old = t[5], t[6], t[7], t[8], t[9]
    STAMP = OPT["stamp"]

    def st(i):
        return f"s_memtime s[{60 + 2 * i}:{61 + 2 * i}]" if STAMP else ""

    def lg(n):
        return f"s_waitcnt lgkmcnt({0 if STAMP else n})"

    def pop_issue(buf):
        F, NF = sF[buf], sACQ
        return f"""
        s_bcnt0_i32_b64 s{sN}, {sr(F, 2)}
        s_not_b64 {sr(NF, 2)}, {sr(F, 2)}
        s_min_u32 s{sN}, s{sCNT}, s{sN}
        v_mbcnt_lo_u32_b32 v{t[2]}, s{NF}, 0
        s_sub_u32 s{sCNT}, s{sCNT}, s{sN}
        v_mbcnt_hi_u32_b32 v{t[2]}, s{NF + 1}, v{t[2]}
        s_lshl3_add_u32 s{sTOP}, s{sCNT}, s{sRB}
        v_cmp_gt_u32 vcc, s{sN}, v{t[2]}
        v_lshl_add_u32 v{t[2]}, v{t[2]}, 3, s{sTOP}
        s_mov_b64 exec, {sr(NF, 2)}
        v_mov_b32 v{WA[buf]}, 0xfffff000
        v_mov_b32 v{WA[buf] + 1}, 0
        s_and_b64 exec, vcc, {sr(NF, 2)}
        ds_read_b64 {vr(WA[buf], 2)}, v{t[2]}
        s_or_b64 {sr(sM[buf], 2)}, exec, {sr(F, 2)}
        s_mov_b64 exec, -1
        """

    def gathers(buf):
        W, F, X, Y = WA[buf], sF[buf], sACQ, sFAIL
        g0 = f"v_mov_b32 v{t[2]}, v{vOOB}" if OPT["x_nogather"] else f"v_and_b32 v{t[2]}, 0xffffffe0, v{t[2]}"
        return f"""
        v_lshrrev_b32 v{t[2]}, 7, v{W}
        s_and_b64 {sr(X, 2)}, {sr(F, 2)}, {sr(sEVEN, 2)}
        {g0}
        s_lshl_b64 {sr(Y, 2)}, {sr(X, 2)}, 1
        v_lshlrev_b32 v{O[buf]}, 4, v{W}
        v_and_b32 v{t[4]}, s{sHI}, v{W + 1}
        v_or_b32_dpp v{t[3]}, v{t[2]}, v{vH16} quad_perm:[0,0,2,2] row_mask:0xf bank_mask:0xf
        v_or_b32_dpp v{t[2]}, v{t[2]}, v{vH16} quad_perm:[1,1,3,3] row_mask:0xf bank_mask:0xf
        s_nor_b64 exec, {sr(X, 2)}, {sr(Y, 2)}
        s_andn2_b64 {sr(X, 2)}, {sr(F, 2)}, {sr(sEVEN, 2)}
        buffer_load_dwordx4 {vr(GP[buf], 4)}, v{t[3]}, {sr(S_M, 4)}, 0 offen
        s_lshr_b64 {sr(Y, 2)}, {sr(X, 2)}, 1
        s_nor_b64 exec, {sr(X, 2)}, {sr(Y, 2)}
        buffer_load_dwordx4 {vr(GQ[buf], 4)}, v{t[2]}, {sr(S_M, 4)}, 0 offen
        s_mov_b64 exec, -1
        """

    def coschain(buf):
        return f"""
        {f"v_lshlrev_b32 v{O[buf]}, 4, v{vLANE}" if OPT["x_lin"] else f"v_and_b32 v{O[buf]}, 0xfff0, v{O[buf]}"}
        v_mul_f32 v{C[buf]}, s{sKF0}, v{t[4]}
        v_mul_f32 v{t[4]}, s{sKF1}, v{t[4]}
        v_fract_f32 v{C[buf]}, v{C[buf]}
        v_fract_f32 v{t[4]}, v{t[4]}
        v_cos_f32 v{C[buf]}, v{C[buf]}
        v_cos_f32 v{t[4]}, v{t[4]}
        """

    def cospack(buf):
        return f"v_cvt_pk_f16_f32 v{C[buf]}, v{C[buf]}, v{t[4]}"

    def rbf_read(buf):
        return f"ds_read_b128 {vr(S1, 4)}, v{O[buf]} offset:{L_RBF}"

    def gate(buf):
        s = ""
        for j in range(4):
            s += f"v_pk_mul_f16 v{S0 + j}, v{S1 + j}, v{C[buf]} op_sel_hi:[1,0]\n"
        for j in range(4):
            s += f"v_pk_mul_f16 v{S1 + j}, v{S1 + j}, v{C[buf]} op_sel:[0,1]\n"
        s += f"""
        v_mfma_f32_32x32x16_f16 {vr(D2, 16)}, {vr(A2a, 4)}, {vr(S0, 4)}, 0
        s_mov_b64 vcc, {sr(sEVEN, 2)}
        v_mfma_f32_32x32x16_f16 {vr(D2, 16)}, {vr(A2b, 4)}, {vr(S1, 4)}, {vr(D2, 16)}
        """
        return s

    def fixup(buf):
        s = ""
        for j in range(4):
            s += f"v_cndmask_b32_dpp v{S0 + j}, v{GQ[buf] + j}, v{GP[buf] + j}, vcc quad_perm:[0,0,2,2] row_mask:0xf bank_mask:0xf\n"
        s += "s_not_b64 vcc, vcc\n"
        for j in range(4):
            s += f"v_cndmask_b32_dpp v{S1 + j}, v{GP[buf] + j}, v{GQ[buf] + j}, vcc quad_perm:[1,1,3,3] row_mask:0xf bank_mask:0xf\n"
        return s

    def muls():
        for j in range(0, 16, 2):
            a(f"v_pk_mul_f32 {vr(D1 + j, 2)}, {vr(D1 + j, 2)}, {vr(D2 + j, 2)}")

    def core_a(buf, fill, fill2=""):
        W = WA[buf]
        a(f"""
        v_mfma_f32_32x32x16_bf16 {vr(D1, 16)}, {vr(A1a, 4)}, {vr(S0, 4)}, 0
        v_add_u32 v{aX}, {L_ACC0}, v{O[buf]}
        v_mfma_f32_32x32x16_bf16 {vr(D1, 16)}, {vr(A1b, 4)}, {vr(S1, 4)}, {vr(D1, 16)}
        v_add_u32 v{aY}, {L_ACC1}, v{O[buf]}
        v_lshrrev_b32 v{la}, 2, v{W}
        v_lshlrev_b32_e64 v{bit}, v{W}, 1
        v_permlane32_swap_b32 v{aX}, v{aY}
        """)
        a(fill)
        a(f"v_and_b32 v{la}, 0x3fc, v{la}")
        if not OPT["valu_add"]:
            muls()
        a(fill2)

    def core_b(buf, inline):
        uid[0] += 1
        u = uid[0]
        W, M = WA[buf], sM[buf]
        nrm = OPT["x_normw"]
        va = OPT["valu_add"]
        guard = f"s_sub_u32 s{sG}, s{sG}, 1\ns_cbranch_scc1 P2_done" if OPT["guard"] else ""
        a(f"""
        {st(5) if inline else ""}
        {"s_setprio 3" if OPT["prio"] else ""}
        s_mov_b64 exec, {sr(M, 2)}
        {f"v_mov_b32 v{old}, 0" if nrm else f"ds_or_rtn_b32 v{old}, v{la}, v{bit}"}
        s_mov_b64 exec, -1
        {"" if nrm else f"ds_read_b128 {vr(AX, 4)}, v{aX}"}
        {"" if nrm else f"ds_read_b128 {vr(AY, 4)}, v{aY}"}
        {f"ds_read_b32 v{t[10]}, v{vH16} offset:784" if inline else ""}
        {lg(2 if inline else 1)}
        {st(6) if inline else ""}
        """)
        check = f"""
        v_cmp_eq_u32 vcc, 0, v{old}
        s_and_b64 {sr(sACQ, 2)}, vcc, {sr(M, 2)}
        s_andn2_b64 {sr(sF[buf], 2)}, {sr(M, 2)}, vcc
        s_bcnt1_i32_b64 s{sN}, {sr(sF[buf], 2)}
        {"s_add_u32 s95, s95, s%d" % sN if OPT["cntreq"] else ""}
        s_mov_b32 exec_lo, s{sACQ}
        s_mov_b32 exec_hi, s{sACQ}
        s_cmp_gt_u32 s{sN}, s{sCAP}
        """
        U = [TF, TF + 1, TF + 2, TF + 3, t[1], t[2], t[3], t[4]]
        assert t[1] % 2 == 0

        def addhalf(Ac, off):
            for j in range(4):
                a(f"v_lshlrev_b32 v{U[2 * j]}, 16, v{Ac + j}")
                a(f"v_and_b32 v{U[2 * j + 1]}, s{sHI}, v{Ac + j}")
            for j in range(4):
                a(f"v_pk_fma_f32 {vr(U[2 * j], 2)}, {vr(D1 + off + 2 * j, 2)}, {vr(D2 + off + 2 * j, 2)}, {vr(U[2 * j], 2)}")
            for j in range(4):
                a(f"v_cvt_pk_bf16_f32 v{Ac + j}, v{U[2 * j]}, v{U[2 * j + 1]}")
        if va:
            a(f"v_and_b32 v{old}, v{old}, v{bit}")
            a(check)
            addhalf(AX, 0)
            a(f"s_waitcnt lgkmcnt({1 if inline else 0})")
        else:
            a(f"""
            v_mfma_f32_32x32x16_bf16 {vr(D2, 16)}, {vr(A3a, 4)}, {vr(AX, 4)}, {vr(D1, 16)}
            v_and_b32 v{old}, v{old}, v{bit}
            s_waitcnt lgkmcnt({1 if inline else 0})
            v_mfma_f32_32x32x16_bf16 {vr(D2, 16)}, {vr(A3b, 4)}, {vr(AY, 4)}, {vr(D2, 16)}
            """)
            a(check)
            a("s_nop 4")
            for j in range(4):
                a(f"v_cvt_pk_bf16_f32 v{AX + j}, v{D2 + 2 * j}, v{D2 + 2 * j + 1}")
        a(f"""
        {"" if nrm else f"ds_write_b128 v{aX}, {vr(AX, 4)}"}
        s_mov_b32 exec_lo, s{sACQ + 1}
        s_mov_b32 exec_hi, s{sACQ + 1}
        """)
        if va:
            addhalf(AY, 8)
        else:
            for j in range(4):
                a(f"v_cvt_pk_bf16_f32 v{AY + j}, v{D2 + 8 + 2 * j}, v{D2 + 8 + 2 * j + 1}")
        a(f"""
        {"" if nrm else f"ds_write_b128 v{aY}, {vr(AY, 4)}"}
        s_mov_b64 exec, {sr(sACQ, 2)}
        {"" if nrm else f"ds_xor_b32 v{la}, v{bit}"}
        {f"s_setprio {OPT['pbase']}" if OPT["prio"] else ""}
        s_mov_b64 exec, -1
        s_cbranch_scc1 P2_full{u}
        """)
        if inline:
            a(f"P2_fullr{u}:")
            cold.append(f"""
            P2_full{u}:
            s_mov_b64 {sr(M, 2)}, {sr(sF[buf], 2)}
            s_call_b64 {sr(sRET2, 2)}, P2_rmw{buf}
            s_branch P2_fullr{u}
            """)
        else:
            a(f"""
            s_setpc_b64 {sr(sRET2, 2)}
            P2_full{u}:
            {guard}
            s_mov_b64 {sr(M, 2)}, {sr(sF[buf], 2)}
            s_branch P2_rmw{buf}
            """)

    def slow_push(buf, slot):
        uid[0] += 1
        u = uid[0]
        d0, d1, d2 = RB[buf], RB[buf] + 1, RB[buf] + 2
        if slot == 0:
            s = f"""
            v_cmp_lt_u32 {sr(sM0, 2)}, v{RD[buf]}, v{RL[buf]}
            v_lshlrev_b32 v{t[11]}, 16, v{d1}
            """
            w, an = d0, t[11]
        else:
            s = f"""
            v_add_u32 v{t[11]}, 1, v{RD[buf]}
            v_cmp_lt_u32 {sr(sM0, 2)}, v{t[11]}, v{RL[buf]}
            """
            w, an = d2, d1
        return s + f"""
        P2_push{u}:
        s_bcnt1_i32_b64 s{sN0}, {sr(sM0, 2)}
        s_add_u32 s{sT0}, s{sCNT}, s{sN0}
        s_cmp_le_u32 s{sT0}, {RING_CAP}
        s_cbranch_scc1 P2_pok{u}
        s_call_b64 {sr(sRET, 2)}, P2_pop{buf}
        s_branch P2_push{u}
        P2_pok{u}:
        v_mbcnt_lo_u32_b32 v{t[4]}, s{sM0}, 0
        v_mbcnt_hi_u32_b32 v{t[4]}, s{sM0 + 1}, v{t[4]}
        v_lshl_add_u32 v{t[4]}, v{t[4]}, 3, s{sTOP}
        s_mov_b64 exec, {sr(sM0, 2)}
        ds_write2_b32 v{t[4]}, v{w}, v{an} offset1:1
        s_mov_b64 exec, -1
        s_mov_b32 s{sCNT}, s{sT0}
        s_lshl3_add_u32 s{sTOP}, s{sN0}, s{sTOP}
        """

    def step(buf, peeled=False):
        uid[0] += 1
        u = uid[0]
        prev = buf ^ 1
        d0, d1, d2 = RB[buf], RB[buf] + 1, RB[buf] + 2
        a.c(f"---- step, buffer {buf}: compact the loaded records onto the stack")
        if OPT["rot"] and (OPT["rot"] == 1 or buf == 0):
            a(f"""
            s_add_u32 s82, s82, 1
            s_bitcmp1_b32 s82, 1
            s_cbranch_scc1 P2_prh{u}
            s_setprio 0
            s_bitcmp1_b32 s82, 0
            s_cbranch_scc0 P2_pre{u}
            s_setprio 1
            s_branch P2_pre{u}
            P2_prh{u}:
            s_setprio 2
            s_bitcmp1_b32 s82, 0
            s_cbranch_scc0 P2_pre{u}
            s_setprio 3
            P2_pre{u}:
            """)
        a(f"""
        {st(0)}
        s_waitcnt vmcnt({1 if peeled and buf == 0 else 3})
        {st(1)}
        v_cmp_lt_u32 {sr(sM0, 2)}, v{RD[buf]}, v{RL[buf]}
        v_add_u32 v{t[1]}, 1, v{RD[buf]}
        v_lshlrev_b32 v{t[2]}, 16, v{d1}
        v_cmp_lt_u32 {sr(sM1, 2)}, v{t[1]}, v{RL[buf]}
        s_bcnt1_i32_b64 s{sN0}, {sr(sM0, 2)}
        v_mbcnt_lo_u32_b32 v{t[0]}, s{sM0}, 0
        s_bcnt1_i32_b64 s{sN}, {sr(sM1, 2)}
        v_mbcnt_hi_u32_b32 v{t[0]}, s{sM0 + 1}, v{t[0]}
        v_mbcnt_lo_u32_b32 v{t[1]}, s{sM1}, 0
        s_add_u32 s{sT0}, s{sCNT}, s{sN0}
        v_mbcnt_hi_u32_b32 v{t[1]}, s{sM1 + 1}, v{t[1]}
        s_add_u32 s{sT0}, s{sT0}, s{sN}
        s_lshl3_add_u32 s{sT1}, s{sN0}, s{sTOP}
        v_lshl_add_u32 v{t[0]}, v{t[0]}, 3, s{sTOP}
        s_cmp_lg_u64 {sr(sLONG[buf], 2)}, 0
        s_cselect_b32 s{sT2}, 0, {RING_CAP + 1}
        v_lshl_add_u32 v{t[1]}, v{t[1]}, 3, s{sT1}
        s_cmp_ge_u32 s{sT0}, s{sT2}
        s_cbranch_scc1 {f"P2_alt{buf}" if peeled else f"P2_slow{u}"}
        s_mov_b64 exec, {sr(sM0, 2)}
        ds_write2_b32 v{t[0]}, v{d0}, v{t[2]} offset1:1
        s_mov_b64 exec, {sr(sM1, 2)}
        ds_write2_b32 v{t[1]}, v{d2}, v{d1} offset1:1
        s_mov_b64 exec, -1
        s_mov_b32 s{sCNT}, s{sT0}
        P2_slowr{u}:
        """)
        if peeled:
            a(pop_issue(buf))
            a("s_waitcnt lgkmcnt(0)")
            prep(buf, gathers(buf), False)
            a(coschain(buf))
            a("s_nop 0")
            a(cospack(buf))
            return
        cold.append(f"P2_slow{u}:\n" + slow_push(buf, 0) + slow_push(buf, 1) + f"""
        P2_long{u}:
        v_add_u32 v{RD[buf]}, {2 * LPS}, v{RD[buf]}
        v_add_u32 v{RA[buf]}, {12 * LPS}, v{RA[buf]}
        v_cmp_lt_i32 vcc, v{RD[buf]}, v{RL[buf]}
        s_cbranch_vccz P2_slowr{u}
        s_nop 0
        v_cndmask_b32 v{t[4]}, v{vOOB}, v{RA[buf]}, vcc
        buffer_load_dwordx3 {vr(RB[buf], 3)}, v{t[4]}, {sr(S_REC, 4)}, s{sCOB[buf]} offen
        s_waitcnt vmcnt(0)
        """ + slow_push(buf, 0) + slow_push(buf, 1) + f"s_branch P2_long{u}\n")
        if OPT["x_nopop"]:
            a(f"s_mov_b32 s{sCNT}, 0\ns_mov_b32 s{sTOP}, s{sRB}")
            prep(buf)
            for k in range(2):
                a(f"buffer_load_dword v{vDUM}, v{vOOB}, {sr(S_REC, 4)}, 0 offen")
            a("s_waitcnt lgkmcnt(0)")
            return
        a(pop_issue(buf))
        a(rbf_read(prev))
        prep(buf, lg(2) + "\n" + st(2) + "\n" + gathers(buf))
        a(st(3))
        a(lg(1))
        if OPT["x_nocore"]:
            a("s_waitcnt vmcnt(4) lgkmcnt(0)")
            a(f"s_mov_b64 {sr(sM[buf], 2)}, 0")
        else:
            a(gate(prev))
            a("s_waitcnt vmcnt(4)")
            a(st(4))
            a(fixup(prev))
            core_a(prev, coschain(buf), cospack(buf))
            core_b(prev, True)
        if OPT["lag"]:
            a(f"""
            s_waitcnt lgkmcnt(3)
            v_readfirstlane_b32 s{sT1}, v{t[10]}
            {spf() if OPT["spf"] else ""}
            s_mov_b64 exec, 1
            s_add_u32 s83, s83, 16
            ds_inc_u32 v{vH16}, v{vOOB} offset:784
            s_mov_b64 exec, -1
            s_cmp_lt_i32 s{sT1}, s83
            s_cbranch_scc1 P2_poll{u}
            """)
            if OPT["dynp"]:
                a(f"""
                s_sub_u32 s{sT1}, s{sT1}, {OPT["dynp"]}
                s_cmp_lt_i32 s{sT1}, s83
                s_cbranch_scc1 P2_pollr{u}
                s_setprio 2
                """)
            a(f"P2_pollr{u}:")
            cold.append(f"""
            P2_poll{u}:
            s_setprio 0
            s_mov_b64 exec, 1
            ds_read_b32 v{t[10]}, v{vH16} offset:784
            s_mov_b64 exec, -1
            s_waitcnt lgkmcnt(0)
            v_readfirstlane_b32 s{sT1}, v{t[10]}
            s_cmp_ge_i32 s{sT1}, s83
            s_setprio {OPT['pbase']}
            s_cbranch_scc1 P2_pollr{u}
            {f"s_sleep {OPT['sleep']}" if OPT['sleep'] else ''}
            {f"s_sub_u32 s{sG}, s{sG}, 1" if OPT["guard"] else ""}
            {"s_cbranch_scc1 P2_done" if OPT["guard"] else ""}
            s_branch P2_poll{u}
            """)
        if STAMP:
            a("s_waitcnt lgkmcnt(0)")
            a("s_sub_u32 s96, s60, s74\ns_add_u32 s84, s84, s96")
            a("s_memtime s[74:75]\ns_waitcnt lgkmcnt(0)")
            for i in range(7):
                a(f"s_sub_u32 s96, s{62 + 2 * i}, s{60 + 2 * i}\ns_add_u32 s{85 + i}, s{85 + i}, s96")

    if OPT["peel"]:
        a.c("the first halves of the first steps run before the rest of the setup, so that their gathers are under way")
        stamp = "s_memrealtime s[60:61]\ns_memtime s[72:73]\ns_waitcnt lgkmcnt(0)" if OPT["stamp2"] else ""
        done1 = f"""
        s_mov_b64 exec, 1
        s_add_u32 s83, s83, 16
        ds_inc_u32 v{vH16}, v{vOOB} offset:784
        s_mov_b64 exec, -1
        """ if OPT["lag"] else ""
        step(0, True)
        if OPT["peel"] == 2:
            step(1, True)
            a(f"""
            s_call_b64 {sr(sRET2, 2)}, P2_tail
            {stamp}
            {rbf_read(0)}
            {done1}
            s_mov_b32 s{sK}, 2
            s_waitcnt lgkmcnt(0)
            """)
            a(gate(0))
            a("s_waitcnt vmcnt(4)")
            a(fixup(0))
            core_a(0, "s_nop 6")
            a(f"""
            s_call_b64 {sr(sRET2, 2)}, P2_rmw0
            {done1}
            s_branch P2_loop
            P2_alt1:
            """)
        a(f"""
        s_call_b64 {sr(sRET2, 2)}, P2_tail
        {stamp}
        {done1}
        s_branch P2_step1
        P2_tail:
        """)
        prologue_tail()
        a(f"""
        s_setpc_b64 {sr(sRET2, 2)}
        P2_alt0:
        s_call_b64 {sr(sRET2, 2)}, P2_tail
        """)
    if OPT["stamp2"]:
        a("s_memrealtime s[60:61]\ns_memtime s[72:73]\ns_waitcnt lgkmcnt(0)")
    if STAMP:
        for i in range(8):
            a(f"s_mov_b32 s{84 + i}, 0")
        a("s_memtime s[74:75]")
    if OPT["x_fake"]:
        a(f"s_lshl_b32 s98, s2, 10\nv_add_u32 v{D1}, s98, v0\nv_mul_lo_u32 v{D1}, v{D1}, v{D1}\nv_add_u32 v{D1}, v{D1}, v0")
    a("P2_loop:")
    if OPT["phase_bar"]:
        a(f"""
        s_add_u32 s{sT0}, s{sK}, s3
        s_and_b32 s{sT0}, s{sT0}, 7
        s_cbranch_scc1 P2_nobar
        s_barrier
        P2_nobar:
        """)
    a(f"""
    {f"s_cmp_eq_u32 s{sK}, {NSTEP - OPT['endn']}" if OPT["endn"] else ""}
    {f"s_cselect_b32 s{sT0}, {OPT['endd']}, 0" if OPT["endn"] else ""}
    {f"s_add_u32 s83, s83, s{sT0}" if OPT["endn"] else ""}
    {"" if OPT["xpop"] else f"s_cmp_lt_u32 s{sK}, {NSTEP - 2}"}
    {"" if OPT["xpop"] else f"s_cselect_b32 s{sCAP}, {OPT['lim']}, 0"}
    """)
    step(0)
    a("P2_step1:")
    step(1)
    a(f"""
    s_add_u32 s{sK}, s{sK}, 2
    s_cmp_lt_u32 s{sK}, {NSTEP}
    s_cbranch_scc1 P2_loop
    """)
    if STAMP:
        a(f"""
        s_lshl_b32 s96, s2, 4
        s_add_u32 s96, s96, s{sW}
        s_lshl_b32 s96, s96, 6
        s_add_u32 s6, s6, {16 << 20}
        s_addc_u32 s7, s7, 0
        """)
        srd(a, S_DST, 6, 1 << 20)
        a(f"v_mov_b32 v{t[0]}, 0")
        for i in range(8):
            a(f"v_mov_b32 v{t[1]}, s{84 + i}")
            a(f"buffer_store_dword v{t[1]}, v{t[0]}, {sr(S_DST, 4)}, s96 offen offset:{4 * i}")
        a("s_waitcnt vmcnt(0)")
    if OPT["stamp2"]:
        a("s_memrealtime s[62:63]\ns_memtime s[74:75]\ns_waitcnt lgkmcnt(0)\ns_sub_u32 s72, s74, s72")
    a.c("fetch the epilogue's operands and the bucket's own m rows; finish the last pop; empty the stack")
    MP = [TT, RB[0], RB[1], RL[0], GP[1], GQ[1], WA[0]]
    XP = OPT["xpop"]
    assert not XP or OPT["valu_add"]
    A1, A2, A3, DX, DY, SX, SY = (A3b, vBP, A3a, D1, D2, A2a, A2b) if XP else (GP[0], GQ[0], A3a, D1, D2, A2a, A2b)
    vMO = vE
    if XP:
        a(f"s_mov_b32 s{sCAP}, 0")
        a(pop_issue(0))
    a(f"""
    v_and_b32 v{t[0]}, 31, v{vLANE}
    v_lshrrev_b32 v{t[1]}, 5, v{vLANE}
    v_lshlrev_b32 v{t[1]}, 4, v{t[1]}
    s_lshl_b32 s{sT0}, s{sW}, 10
    v_lshl_add_u32 v{vMO}, v{t[0]}, 5, v{t[1]}
    v_add_u32 v{vMO}, s{sT0}, v{vMO}
    s_mul_i32 s{sCO}, s{sB}, {EB * 32}
    s_mov_b32 s{sJ}, s{sCO}
    v_lshlrev_b32 v{t[0]}, 4, v{vLANE}
    s_mov_b32 s{sT0}, {TAB_BYTES + 1024 * 6}
    s_mov_b32 s{sT1}, {TAB_BYTES + 1024 * 7}
    {rbf_read(1)}
    """)
    if XP:
        a("s_waitcnt lgkmcnt(1)")
        a(gathers(0))
    a(f"""
    buffer_load_dwordx4 {vr(A1, 4)}, v{t[0]}, {sr(S_TAB, 4)}, s{sT0} offen
    buffer_load_dwordx4 {vr(A2, 4)}, v{t[0]}, {sr(S_TAB, 4)}, s{sT1} offen
    buffer_load_dwordx4 {vr(MP[0], 4)}, v{vMO}, {sr(S_M, 4)}, s{sJ} offen
    s_add_u32 s{sJ}, s{sJ}, 16384
    s_waitcnt lgkmcnt(0)
    """)
    a(gate(1))
    a(f"s_waitcnt vmcnt({5 if XP else 3})")
    for i in range(1, 4):
        a(f"buffer_load_dwordx4 {vr(MP[i], 4)}, v{vMO}, {sr(S_M, 4)}, s{sJ} offen")
        a(f"s_add_u32 s{sJ}, s{sJ}, 16384")
    a(fixup(1))
    if XP:
        core_a(1, coschain(0), cospack(0))
    else:
        core_a(1, "s_nop 6")
    a(f"s_call_b64 {sr(sRET2, 2)}, P2_rmw1")
    if XP:
        a(f"""
        s_cmp_eq_u64 {sr(sM[0], 2)}, 0
        s_cbranch_scc1 P2_drain
        {rbf_read(0)}
        s_waitcnt lgkmcnt(0)
        """)
        a(gate(0))
        a("s_waitcnt vmcnt(6)")
        a(fixup(0))
        core_a(0, "s_nop 6")
        a(f"s_call_b64 {sr(sRET2, 2)}, P2_rmw0")
    a(f"""
    P2_drain:
    s_cmp_eq_u32 s{sCNT}, 0
    s_cbranch_scc1 P2_epi
    s_call_b64 {sr(sRET, 2)}, P2_pop1
    s_branch P2_drain
    P2_epi:
    """)
    for i in range(4, 7):
        a(f"buffer_load_dwordx4 {vr(MP[i], 4)}, v{vMO}, {sr(S_M, 4)}, s{sJ} offen")
        a(f"s_add_u32 s{sJ}, s{sJ}, 16384")
    if OPT["cntreq"]:
        a(f"""
        s_load_dwordx2 s[60:61], s[0:1], 96
        s_waitcnt lgkmcnt(0)
        v_mov_b32 v{t[0]}, s95
        v_mov_b32 v{t[1]}, 0
        s_mov_b64 exec, 1
        global_atomic_add v{t[1]}, v{t[0]}, s[60:61]
        s_mov_b64 exec, -1
        s_waitcnt vmcnt(0)
        """)
    a(f"""
    s_lshl_b32 s{sT0}, s{sW}, 9
    s_mov_b32 s{sT2}, {L_ACC0}
    v_and_b32 v{t[1]}, 31, v{vLANE}
    v_lshlrev_b32 v{t[1]}, 4, v{t[1]}
    v_add_u32 v{t[1]}, s{sT0}, v{t[1]}
    v_lshrrev_b32 v{t[0]}, 5, v{vLANE}
    v_mul_u32_u24 v{t[0]}, {EB * 16}, v{t[0]}
    v_add3_u32 v{t[0]}, v{t[0]}, v{t[1]}, s{sT2}
    s_waitcnt vmcnt(3) lgkmcnt(0)
    """)
    if OPT["stamp2"]:
        a("s_memrealtime s[64:65]\ns_waitcnt lgkmcnt(0)")
    a("s_barrier")
    if OPT["stamp2"]:
        a("s_memrealtime s[66:67]\ns_waitcnt lgkmcnt(0)")
    a.c("epilogue: out = m + (agg @ w_up) * (rbf @ w_rbf), 32 edges per pass, two passes at a time")
    OBX, OBY = TF, (O[0] if XP else A3b)

    EB_ = [(AX, SX, AY, SY), (A1a, A1b, GP[0], GQ[0]) if XP else (A1a, A1b, vBP, t[5])]
    assert t[5] % 2 == 0

    def epi_reads(groups, st_):
        for (i, va), (Ac, Sb) in zip(groups, (EB_[st_][0:2], EB_[st_][2:4])):
            a(f"ds_read_b128 {vr(Ac, 4)}, v{t[0]} offset:{8192 * i}")
            a(f"ds_read_b128 {vr(Sb, 4)}, v{t[1]} offset:{L_RBF + 8192 * i}")

    def epi(groups, st_, nxt):
        regs = [(DX,) + EB_[st_][0:2] + (OBX,), (DY,) + EB_[st_][2:4] + (OBY,)]
        n = len(groups)
        for k, ((i, va), (Dd, Ac, Sb, Ob)) in enumerate(zip(groups, regs)):
            a(f"s_waitcnt lgkmcnt({2 * (n - 1 - k)})")
            a(f"v_mfma_f32_32x32x16_bf16 {vr(Dd, 16)}, {vr(A1, 4)}, {vr(Ac, 4)}, 0")
            a(f"v_mfma_f32_32x32x16_f16 {vr(Dd, 16)}, {vr(A2, 4)}, {vr(Sb, 4)}, {vr(Dd, 16)}")
        if nxt:
            epi_reads(nxt, st_ ^ 1)
        done = 2 * len(nxt) if nxt else 0
        a(f"s_nop {11 - done - (3 if n == 2 else 0)}")
        for k, ((i, va), (Dd, Ac, Sb, Ob)) in enumerate(zip(groups, regs)):
            for j in range(0, 8, 2):
                a(f"v_pk_mul_f32 {vr(Dd + j, 2)}, {vr(Dd + j, 2)}, {vr(Dd + 8 + j, 2)}")
            if OPT["x_err"]:
                import struct
                cst = struct.unpack("<I", struct.pack("<f", 1 + OPT["x_err"] / 1000))[0]
                for j in range(8):
                    a(f"v_mul_f32 v{Dd + j}, {cst:#x}, v{Dd + j}")
        a({4: "s_waitcnt vmcnt(5)", 6: "s_waitcnt vmcnt(6)"}.get(groups[0][0], "s_nop 0"))
        if n == 1:
            a("s_nop 0")
        for (i, va), (Dd, Ac, Sb, Ob) in zip(groups, regs):
            a(f"v_mfma_f32_32x32x16_bf16 {vr(Dd, 16)}, {vr(A3, 4)}, {vr(MP[i], 4)}, {vr(Dd, 16)}")
        a(f"s_nop {11 - (n - 1)}")
        for (i, va), (Dd, Ac, Sb, Ob) in zip(groups, regs):
            for j in range(4):
                a(f"v_cvt_pk_bf16_f32 v{Ob + j}, v{Dd + 2 * j}, v{Dd + 2 * j + 1}")
            a(f"buffer_store_dwordx4 {vr(Ob, 4)}, v{va}, {sr(S_OUT, 4)}, s{sCO} offen{nto}")
            a(f"s_add_u32 s{sCO}, s{sCO}, 16384")

    gl = [[(i, vMO), (i + 1, vMO)] for i in (0, 2, 4)] + [[(6, t[2])]]
    epi_reads(gl[0], 0)
    for q in range(3):
        epi(gl[q], q & 1, gl[q + 1])
    if OPT["stamp2"]:
        a(f"""
        s_memrealtime s[84:85]
        s_waitcnt vmcnt(0) lgkmcnt(0)
        s_memrealtime s[86:87]
        s_lshl_b32 s98, s2, 4
        s_add_u32 s98, s98, s{sW}
        s_lshl_b32 s98, s98, 6
        s_add_u32 s6, s6, {16 << 20}
        s_addc_u32 s7, s7, 0
        s_waitcnt lgkmcnt(0)
        """)
        srd(a, S_TMP, 6, 1 << 20)
        a(f"v_mov_b32 v{t[5]}, 0")
        for i, r in enumerate([94, 60, 62, 64, 66, 84, 86, 72]):
            a(f"v_mov_b32 v{t[6]}, s{r}")
            a(f"buffer_store_dword v{t[6]}, v{t[5]}, {sr(S_TMP, 4)}, s98 offen offset:{4 * i}")
    a(f"""
    s_cmp_lt_u32 s{sW}, 2
    s_cbranch_scc0 P2_done
    v_cmp_gt_u32 vcc, {(EB - 6 * 512) * 32}, v{vMO}
    v_mov_b32 v{t[2]}, 0x7fffff00
    s_nop 0
    v_cndmask_b32 v{t[2]}, v{t[2]}, v{vMO}, vcc
    """)
    epi(gl[3], 1, None)
    a("P2_done:")
    a("s_endpgm")
    for buf in range(2):
        a.c(f"subroutine: pop up to 64 records into buffer {buf} and finish them")
        a(f"P2_pop{buf}:")
        if OPT["guard"]:
            a(f"s_sub_u32 s{sG}, s{sG}, 1\ns_cbranch_scc1 P2_done")
        a(pop_issue(buf))
        a("s_waitcnt lgkmcnt(0)")
        a(gathers(buf))
        a(coschain(buf))
        a(f"""
        {rbf_read(buf)}
        {cospack(buf)}
        s_mov_b64 {sr(sRET2, 2)}, {sr(sRET, 2)}
        s_waitcnt lgkmcnt(0)
        """)
        a(gate(buf))
        a("s_waitcnt vmcnt(0)")
        a(fixup(buf))
        core_a(buf, "s_nop 6")
        a(f"P2_rmw{buf}:")
        core_b(buf, False)
    for c in cold:
        a(c)
    kernel_desc(a, name, 128, 102)


DESCRIPTION = """

Two launches.
part_kernel: workgroup c takes triplets [50000c, 50000c+50000), keeps them in registers, counting-sorts them by
  key = slot(idx_in) * 256 + idx_out / 3125 (histogram, scan and ranks with integer LDS atomics) and writes them to
  d_ws as 6-byte records (idx_in << 12 | idx_out % 3125, angle) plus a table of (start, length) per key. slot() is
  the slice of m the row lies in, rotated per group of 32 buckets. One wave also lays the weights out as matrix operands.
main kernel: workgroup b owns the output edges [3125b, 3125b+3125): their sums (bf16) and radial basis (f16) live in
  LDS. Each wave walks its 16 chunks slot by slot, so all gathers of a moment fall in one L2-sized slice of m:
  load four segments, compact them on a small LDS stack, gather 64 rows, (m @ w_down) and (sbf @ w_sbf) on the
  matrix cores, multiply, and add to the sums under one lock bit per edge; a record whose lock was taken stays in
  its lane for the next round. A progress word in LDS keeps the waves of a workgroup in the same slice.
  Segments of any length and any number of records per edge take slower paths that give the same result.
  Epilogue: out = m + (sum @ w_up) * (rbf @ w_rbf).
"""


def build():
    assert OPT['lagoff'] + OPT['endd'] <= 16 * OPT['lag']
    assert OPT['stag'] != 3 or max((OPT['rotl'] >> (4 * q)) & 15 for q in range(4)) < OPT['ns']
    a = A()
    ref = open(f"cdna_kernels/{NAME}.s.ref").read().split("\n")
    for line in ref:
        if line.startswith("; Override"):
            break
        a.raw(line)
    if not OPT["only2"]:
        a.raw(f"; @launch kernel=part_kernel grid=({NB},1,1) block=(1024,1,1) lds={B_LDS if OPT['big'] else P1_LDS}")
    a.raw(f"; @launch kernel={NAME}_kernel grid=({NB},1,1) block=(1024,1,1) lds={P2_LDS}")
    for line in DESCRIPTION.strip("\n").split("\n"):
        a.raw(("; " + line).rstrip())
    a.raw('.amdgcn_target "amdgcn-amd-amdhsa--gfx950"')
    (gen_part_big if OPT["big"] else gen_part)(a, "part_kernel")
    gen_main(a, f"{NAME}_kernel")
    return a.text()


def main():
    out = f"cdna_kernels/{NAME}.s"
    for arg in sys.argv[1:]:
        if "=" in arg:
            k, v = arg.split("=")
            assert k in OPT, k
            OPT[k] = type(OPT[k])(int(v))
        else:
            out = arg
    open(out, "w").write(build())


if __name__ == "__main__":
    main()
```

```python
import sys

NAME = "gather_scatter__molecular_angular_gemnet__graph"
E = 800000
T = 12800000
NB = 256
EB = 3125
CH = 25000
NCH = 512
NS = 8
CHB = 150016
REC_BYTES = NCH * CHB
TAB_OFF = REC_BYTES
TAB_BYTES = NB * NCH * 32
OPS_OFF = TAB_OFF + TAB_BYTES

OPT = dict(
    nt_in=True,
    nt_rec=False,
    phase_bar=False,
    nt_out=False,
    x_nogather=False, x_normw=False, x_norec=False,
    j0s=0x3210, pfl=782, x_err=0, xpop=1, endn=0, endd=0, fuse=0, wb=0, bfair=0, adepth=1, h0=25984, depth=1, aearly=0, spl=4, big=1, only2=0, angl=1, bang=1, lim=24, x_lin=0, pbase=1, dynp=11, rexec=0, gexec=0, aslot=1, rotl=0x3a07, pfx=4, tabc=1, sleep=0, pfp1=0, peel=1, pfg=1, stm=1, stmb=1, outm=2, pfw=2, pfpos=1, pffirst=0, spf=0, pfs=1, pfn=0, mimic=0, pf0=0, valu_add=1, early=1, stpos=2, stag=3, pfm=2, slide=0, ns=13, bdelay=0, stamp1=0, stamp2=0, lag=1, lagoff=0, cntreq=0, rot=0, rotshift=2, stamp=False, pkf32=True, x_fake=0, x_nocore=0, x_recx4=0, x_nomfma=0, x_nopop=0, prio=True, lock_pos=2,
    guard=False,
)


class A:
    def __init__(self):
        self.l = []

    def __call__(self, s=""):
        for line in s.split("\n"):
            line = line.strip()
            if line:
                if line.endswith(":"):
                    self.l.append(line)
                else:
                    self.l.append("    " + line)

    def c(self, s):
        self.l.append("    ; " + s)

    def raw(self, s):
        self.l.append(s)

    def text(self):
        return "\n".join(self.l) + "\n"


def vr(a, n):
    return f"v[{a}:{a + n - 1}]"


def sr(a, n):
    return f"s[{a}:{a + n - 1}]"


def srd(a, dst, base, nbytes, stride=0):
    a(f"s_mov_b32 s{dst}, s{base}")
    a(f"s_and_b32 s{dst + 1}, s{base + 1}, 0xffff")
    if stride:
        a(f"s_or_b32 s{dst + 1}, s{dst + 1}, {stride << 16:#x}")
    a(f"s_mov_b32 s{dst + 2}, {nbytes}")
    a(f"s_mov_b32 s{dst + 3}, 0x20000")


def kernel_head(a, name):
    a.raw(".text")
    a.raw(f".globl {name}")
    a.raw(".p2align 8")
    a.raw(f".type {name},@function")
    a.raw(f"{name}:")


def kernel_desc(a, name, vgpr, sgpr):
    a.raw('.section .rodata,"a"')
    a.raw(".p2align 6")
    a.raw(f".amdhsa_kernel {name}")
    a.raw(f"  .amdhsa_next_free_vgpr {vgpr}")
    a.raw(f"  .amdhsa_next_free_sgpr {sgpr}")
    a.raw(f"  .amdhsa_accum_offset {(vgpr + 3) // 4 * 4}")
    a.raw("  .amdhsa_group_segment_fixed_size 0")
    a.raw("  .amdhsa_kernarg_size 112")
    a.raw("  .amdhsa_user_sgpr_count 2")
    a.raw("  .amdhsa_user_sgpr_kernarg_segment_ptr 1")
    a.raw("  .amdhsa_system_sgpr_workgroup_id_x 1")
    a.raw(".end_amdhsa_kernel")


P1_CNT = 16
P1_PART = P1_CNT + 8192
P1_REC = P1_PART + 64
P1_LDS = 158720


def builder(a, W, lane, f2, e0, e1, x0, x2, OPR, sW, sT0, S_TAB, first_loads, nyoung):
    a.c("one wave also prepares the matrix operands of the second kernel")
    W1, W2, W3, W4 = W
    a(f"""
    s_lshl_b32 s{sT0}, s2, 4
    s_add_u32 s68, s{sT0}, s{sW}
    s_cmp_eq_u32 s68, 15
    s_cbranch_scc0 P1_now
    s_load_dwordx4 s[72:75], s[0:1], 56
    s_load_dwordx4 s[76:79], s[0:1], 72
    v_and_b32 v{lane}, 63, v0
    v_and_b32 v{e0}, 3, v0
    v_bfe_u32 v{e1}, v0, 2, 1
    v_lshl_add_u32 v{e0}, v{e1}, 3, v{e0}
    v_bfe_u32 v{e1}, v0, 3, 1
    v_lshl_add_u32 v{e0}, v{e1}, 2, v{e0}
    v_lshlrev_b32 v{f2}, 1, v{e0}
    v_lshrrev_b32 v{e1}, 5, v{lane}
    v_lshl_add_u32 v{e1}, v{e1}, 8, v{f2}
    s_waitcnt lgkmcnt(0)
    """)
    for (Wx, n, p, nbytes, va) in ((W1, 16, 76, 512, f2), (W2, 16, 74, 512, f2), (W3, 8, 78, 512, e1), (W4, 8, 72, 256, f2)):
        srd(a, 80, p, nbytes)
        for j in range(n):
            a(f"buffer_load_ushort v{Wx + j}, v{va}, {sr(80, 4)}, 0 offen offset:{32 * j}")
    a("P1_now:")
    first_loads()
    a(f"""
    s_cmp_eq_u32 s68, 15
    s_cbranch_scc0 P1_noop
    s_waitcnt vmcnt({nyoung})
    """)

    def scale_exp(Wf, n):
        a(f"v_max3_f32 v{e0}, abs(v{Wf}), abs(v{Wf + 1}), abs(v{Wf + 2})")
        for j in range(3, n - 1, 2):
            a(f"v_max3_f32 v{e0}, v{e0}, abs(v{Wf + j}), abs(v{Wf + j + 1})")
        a(f"""
        v_max_f32 v{e0}, v{e0}, abs(v{Wf + n - 1})
        v_bfe_u32 v{e0}, v{e0}, 23, 8
        v_cmp_eq_u32 vcc, 0, v{e0}
        v_sub_u32 v{e0}, 141, v{e0}
        s_nop 0
        v_cndmask_b32 v{e0}, v{e0}, 0, vcc
        v_sub_u32 v{e1}, 0, v{e0}
        """)

    def put(k, cvt, srcs, mask):
        for j in range(4):
            a(f"{cvt} v{OPR + j}, v{srcs[2 * j]}, v{srcs[2 * j + 1]}")
        for j in range(4):
            a(f"v_cndmask_b32 v{OPR + j}, 0, v{OPR + j}, {sr(mask, 2)}")
        a(f"""
        s_mov_b32 s{sT0}, {TAB_BYTES + 1024 * k}
        buffer_store_dwordx4 {vr(OPR, 4)}, v{x2}, {sr(S_TAB, 4)}, s{sT0} offen
        s_nop 1
        """)

    for Wx, n in zip(W, (16, 16, 8, 8)):
        for j in range(n):
            a(f"v_lshlrev_b32 v{Wx + j}, 16, v{Wx + j}")
    mDIAG, mLO, mHI, mRB = 72, 74, 76, 78
    a(f"""
    v_lshrrev_b32 v{x0}, 1, v{lane}
    v_xor_b32 v{x0}, v{x0}, v{lane}
    v_and_b32 v{x0}, 16, v{x0}
    v_cmp_eq_u32 {sr(mDIAG, 2)}, 0, v{x0}
    v_and_b32 v{x0}, 16, v{lane}
    v_cmp_eq_u32 {sr(mLO, 2)}, 0, v{x0}
    v_cmp_eq_u32 {sr(mHI, 2)}, 16, v{x0}
    v_and_b32 v{x0}, 48, v{lane}
    v_cmp_eq_u32 {sr(mRB, 2)}, 16, v{x0}
    v_lshlrev_b32 v{x2}, 4, v{lane}
    """)
    scale_exp(W2, 16)
    for j in range(16):
        a(f"v_ldexp_f32 v{W2 + j}, v{W2 + j}, v{e0}")
        a(f"v_ldexp_f32 v{W1 + j}, v{W1 + j}, v{e1}")
    scale_exp(W4, 8)
    for j in range(8):
        a(f"v_ldexp_f32 v{W4 + j}, v{W4 + j}, v{e0}")
        a(f"v_ldexp_f32 v{W3 + j}, v{W3 + j}, v{e1}")
    bf, hf = "v_cvt_pk_bf16_f32", "v_cvt_pk_f16_f32"
    a.c("block diagonal: rows < 16 act on lanes < 32, rows >= 16 on lanes >= 32")
    put(0, bf, [W1 + j for j in range(8)], mDIAG)
    put(1, bf, [W1 + 8 + j for j in range(8)], mDIAG)
    put(2, hf, [W2 + 2 * j for j in range(8)], mDIAG)
    put(3, hf, [W2 + 2 * j + 1 for j in range(8)], mDIAG)
    put(6, bf, [W3 + j for j in range(8)], mLO)
    put(7, hf, [W4 + j for j in range(8)], mRB)
    a.c("identity: row i has a one at k = f(i & 15)")
    a(f"""
    v_lshrrev_b32 v{e0}, 1, v{f2}
    v_lshrrev_b32 v{e1}, 5, v{lane}
    v_lshlrev_b32 v{e1}, 3, v{e1}
    v_sub_u32 v{e0}, v{e0}, v{e1}
    """)
    for j in range(8):
        a(f"""
        v_cmp_eq_u32 vcc, {j}, v{e0}
        s_nop 1
        v_cndmask_b32 v{W1 + j}, 0, 1.0, vcc
        """)
    put(4, bf, [W1 + j for j in range(8)], mLO)
    put(5, bf, [W1 + j for j in range(8)], mHI)
    a("P1_noop:")


CH2 = 50000
B_CNT = 16
B_PART = B_CNT + 16384
B_LDS = 163840


def gen_part_big(a, name):
    nt = " nt" if OPT["nt_in"] else ""
    STM = [["", " sc1", " nt", " sc0 sc1", " sc1 nt"][OPT[k]] for k in ("stm", "stmb")]
    NS_ = OPT["ns"]
    NT = CH2 - 12 * 4096
    H0 = OPT['h0']
    assert H0 % 8 == 0 and H0 * 6 <= B_LDS and (CH2 - H0) * 6 > 8 * 16384
    HALF = H0 * 6
    NQ = [H0 * 6 // 16, (CH2 - H0) * 6 // 16]
    FU = OPT["fuse"]
    CB_ = B_LDS - NS_ * 1024 if FU else 0
    CO_ = 0 if FU else B_CNT
    PB_ = CB_ - 80 if FU else B_PART
    assert not FU or HALF <= PB_
    sCB = 30
    S_IN, S_OUT, S_ANG, S_REC, S_TAB = 8, 12, 16, 20, 24
    sMAG, sNEG, sHI, sOFF = 28, 29, 31, 32
    sOI, sOA = 33, 34
    sW, sT0, sT1 = 35, 36, 37
    sEX = 40
    sLUT, sST = 46, 47
    stn = [0]

    def st1():
        if OPT["stamp1"]:
            a(f"s_memrealtime s[{48 + 2 * stn[0]}:{49 + 2 * stn[0]}]\ns_waitcnt lgkmcnt(0)")
            stn[0] += 1
    vT16, vONE, vX = 1, 2, 3
    tmp = list(range(4, 12))
    G, G6, O6, I6, vT8 = 12, 28, 29, 30, 31
    O, I = 32, 80

    kernel_head(a, name)
    a(f"""
    s_cmp_ge_u32 s2, {NB}
    s_cbranch_scc1 P1_done
    s_load_dwordx4 s[4:7], s[0:1], 8
    s_load_dwordx2 s[42:43], s[0:1], 32
    s_load_dwordx2 s[44:45], s[0:1], 104
    s_load_dwordx2 s[70:71], s[0:1], 0
    v_lshlrev_b32 v{vT16}, 4, v0
    v_lshlrev_b32 v{vT8}, 3, v0
    v_mov_b32 v{vONE}, 1
    v_mov_b32 v{vX}, 0x7fffff00
    s_mov_b32 s{sMAG}, 1374390
    s_mov_b32 s{sNEG}, {-EB}
    s_mov_b32 s{sHI}, 0xffff0000
    s_mov_b32 s{sOFF}, {-HALF}
    v_lshrrev_b32 v8, 6, v0
    v_mov_b32 v4, 0
    v_mov_b32 v5, 0
    v_mov_b32 v6, 0
    v_mov_b32 v7, 0
    v_readfirstlane_b32 s{sW}, v8
    s_mov_b32 s{sCB}, {CB_}
    v_add_u32 v9, {CB_}, v{vT16}
    v_mov_b32 v10, {CB_ + CO_ - 4}
    ds_write_b128 v9, v[4:7] offset:{CO_}
    ds_write_b32 v10, v4
    s_waitcnt lgkmcnt(0)
    """)
    srd(a, S_IN, 4, T * 4)
    srd(a, S_OUT, 6, T * 4)
    srd(a, S_ANG, 42, T * 2)
    srd(a, S_REC, 44, REC_BYTES)
    a(f"s_add_u32 s44, s44, {TAB_OFF}")
    a("s_addc_u32 s45, s45, 0")
    srd(a, S_TAB, 44, TAB_BYTES + 8192)
    PAT = 0
    for j in range(4):
        for q in range(4):
            j0 = (OPT["j0s"] >> (4 * q)) & 15
            PAT |= (((OPT["rotl"] >> (4 * q)) & 15) + (j >= 4 - j0)) << (16 * j + 4 * q)
    a.c("slice rotation per group of 32 buckets (one nibble each); depends on the step that will read this chunk")
    a(f"""
    s_bfe_u32 s{sT0}, s2, {(2 << 16) | 2}
    s_lshl_b32 s{sT0}, s{sT0}, 4
    s_mov_b32 s72, {PAT & 0xffffffff:#x}
    s_mov_b32 s73, {PAT >> 32:#x}
    s_lshr_b64 s[72:73], s[72:73], s{sT0}
    s_and_b32 s{sLUT}, s72, 0xffff
    s_mul_i32 s{sLUT}, s{sLUT}, 0x10001
    s_mul_i32 s{sOI}, s2, {CH2 * 4}
    s_mul_i32 s{sOA}, s2, {CH2 * 2}
    """)
    vmq = []

    def vm_wait(tag):
        last = max(i for i, x in enumerate(vmq) if x == tag)
        a(f"s_waitcnt vmcnt({len(vmq) - 1 - last})")

    def tail_addr(sh):
        a(f"""
        v_cmp_gt_u32 vcc, {NT}, v0
        v_lshlrev_b32 v{tmp[7]}, {sh}, v0
        s_nop 0
        v_cndmask_b32 v{tmp[7]}, v{vX}, v{tmp[7]}, vcc
        """)

    def issue_idx(r):
        vmq.extend([("i", r)] * 2)
        if r < 12:
            a(f"""
            buffer_load_dwordx4 {vr(O + 4 * r, 4)}, v{vT16}, {sr(S_OUT, 4)}, s{sOI} offen{nt}
            buffer_load_dwordx4 {vr(I + 4 * r, 4)}, v{vT16}, {sr(S_IN, 4)}, s{sOI} offen{nt}
            s_add_u32 s{sOI}, s{sOI}, 16384
            """)
        else:
            tail_addr(2)
            a(f"""
            buffer_load_dword v{O6}, v{tmp[7]}, {sr(S_OUT, 4)}, s{sOI} offen{nt}
            buffer_load_dword v{I6}, v{tmp[7]}, {sr(S_IN, 4)}, s{sOI} offen{nt}
            """)

    def issue_ang(r):
        vmq.append(("a", r))
        if r < 12:
            a(f"""
            buffer_load_dwordx2 {vr(G + 2 * (r & 7), 2)}, v{vT8}, {sr(S_ANG, 4)}, s{sOA} offen{nt}
            s_add_u32 s{sOA}, s{sOA}, 8192
            """)
        else:
            tail_addr(1)
            a(f"""
            s_mul_i32 s{sT0}, s2, {CH2 * 2}
            s_add_u32 s{sT0}, s{sT0}, {12 * 8192}
            buffer_load_ushort v{G6}, v{tmp[7]}, {sr(S_ANG, 4)}, s{sT0} offen{nt}
            """)

    def recs(r):
        if r < 12:
            return [(O + 4 * r + k, I + 4 * r + k, G + 2 * (r & 7) + (k >> 1), k & 1) for k in range(4)]
        return [(O6, I6, G6, 0)]

    def tail(r, lbl, body):
        if r < 12:
            body()
            return
        a(f"""
        v_cmp_gt_u32 vcc, {NT}, v0
        s_and_saveexec_b64 {sr(sEX, 2)}, vcc
        s_cbranch_execz {lbl}
        """)
        body()
        a(f"{lbl}:\ns_mov_b64 exec, {sr(sEX, 2)}")

    def pack(rs):
        for h in range(0, len(rs), 2):
            pr = rs[h:h + 2]
            for k, (o, i, g, hi) in enumerate(pr):
                a(f"v_mul_hi_u32_u24 v{tmp[k]}, s{sMAG}, v{o}")
                a(f"v_mul_u32_u24 v{tmp[2 + k]}, {(NS_ << 24) // E}, v{i}")
            for k, (o, i, g, hi) in enumerate(pr):
                tb, tc, u = tmp[k], tmp[2 + k], tmp[4 + k]
                a(f"""
                v_mad_i32_i24 v{o}, v{tb}, s{sNEG}, v{o}
                v_lshrrev_b32 v{u}, 5, v{tb}
                v_lshrrev_b32 v{tc}, 24, v{tc}
                v_lshlrev_b32 v{u}, 2, v{u}
                v_lshl_add_u32 v{tb}, v{tb}, 2, s{sCB}
                v_bfe_u32 v{u}, s{sLUT}, v{u}, 4
                v_lshl_or_b32 v{i}, v{i}, 12, v{o}
                v_sub_u32 v{tc}, v{tc}, v{u}
                v_add_u32 v{u}, {NS_}, v{tc}
                v_min_u32 v{tc}, v{tc}, v{u}
                v_lshl_add_u32 v{o}, v{tc}, 10, v{tb}
                ds_add_u32 v{o}, v{vONE} offset:{CO_}
                """)

    def wave_scan(v):
        for sh in (1, 2, 4, 8):
            a(f"s_nop 1\nv_add_u32_dpp v{v}, v{v}, v{v} row_shr:{sh} row_mask:0xf bank_mask:0xf bound_ctrl:0")

    st1()
    D_ = OPT["depth"]
    assert D_ <= 4
    builder(a, (I + 16, I + 32, O + 16, O + 24), 4, 5, 6, 7, G, G + 1, 8, sW, sT0, S_TAB,
            lambda: [issue_idx(r) for r in range(D_)], 2 * D_)
    a("s_barrier")
    na = 0
    for r in range(13):
        vm_wait(("i", r))
        tail(r, "P1_pk", lambda: pack(recs(r)))
        if r + D_ < 13:
            issue_idx(r + D_)
        elif r < 12 and na < OPT["aearly"]:
            issue_ang(na)
            na += 1
    st1()
    c0, s_, inc, p, q = tmp[0], tmp[4], tmp[5], tmp[6], tmp[7]
    a.c("exclusive scan of the counters")
    a("s_waitcnt lgkmcnt(0)\ns_barrier")
    a(f"v_add_u32 v{G6}, {CB_}, v{vT16}")
    a(f"ds_read_b128 {vr(c0, 4)}, v{G6} offset:{CO_}")
    while na < 4:
        issue_ang(na)
        na += 1
    a(f"""
    s_waitcnt lgkmcnt(0)
    v_add_u32 v{s_}, v{c0}, v{c0 + 1}
    v_add3_u32 v{s_}, v{s_}, v{c0 + 2}, v{c0 + 3}
    v_mov_b32 v{inc}, v{s_}
    """)
    wave_scan(inc)
    a(f"""
    s_nop 1
    v_add_u32_dpp v{inc}, v{inc}, v{inc} row_bcast:15 row_mask:0xa bank_mask:0xf
    s_nop 1
    v_add_u32_dpp v{inc}, v{inc}, v{inc} row_bcast:31 row_mask:0xc bank_mask:0xf
    s_lshl_b32 s{sT1}, s{sW}, 2
    s_add_u32 s{sT1}, s{sT1}, {PB_}
    v_mov_b32 v{q}, s{sT1}
    v_readlane_b32 s{sT0}, v{inc}, 63
    s_nop 1
    v_mov_b32 v{p}, s{sT0}
    ds_write_b32 v{q}, v{p}
    v_and_b32 v{q}, 15, v0
    v_lshlrev_b32 v{p}, 2, v{q}
    v_add_u32 v{p}, {PB_}, v{p}
    s_waitcnt lgkmcnt(0)
    s_barrier
    v_cmp_gt_u32 vcc, s{sW}, v{q}
    ds_read_b32 v{p}, v{p}
    """)
    while na < 8:
        issue_ang(na)
        na += 1
    a(f"""
    s_waitcnt lgkmcnt(0)
    v_cndmask_b32 v{p}, 0, v{p}, vcc
    """)
    wave_scan(p)
    a(f"""
    v_sub_u32 v{inc}, v{inc}, v{s_}
    v_readlane_b32 s{sT0}, v{p}, 15
    s_nop 1
    v_add_u32 v{s_}, s{sT0}, v{inc}
    v_add_u32 v{s_ + 1}, v{s_}, v{c0}
    v_add_u32 v{s_ + 2}, v{s_ + 1}, v{c0 + 1}
    v_add_u32 v{s_ + 3}, v{s_ + 2}, v{c0 + 2}
    ds_write_b128 v{G6}, {vr(s_, 4)} offset:{CO_}
    s_waitcnt lgkmcnt(0)
    """)
    issue_ang(12)
    a("s_barrier")
    st1()
    a.c("position of every record; the angle joins it in the upper half of the register")

    def touch_m(va):
        a.c("touch this workgroup's share of m, one load per 128-byte line, while the memory side is idle")
        n = OPT["pfl"]
        srd(a, 80, 70, E * 32)
        a(f"""
        v_cmp_gt_u32 vcc, {n}, v0
        v_lshlrev_b32 v{va}, 7, v0
        s_mul_i32 s{sT0}, s2, {n * 128}
        v_cndmask_b32 v{va}, v{vX}, v{va}, vcc
        buffer_load_dword v{vT8}, v{va}, {sr(80, 4)}, s{sT0} offen
        """)
        vmq.append("pf")

    def rank(rs):
        for (o, i, g, hi) in rs:
            a(f"ds_add_rtn_u32 v{o}, v{o}, v{vONE} offset:{CO_}")

    def merge(rs):
        for (o, i, g, hi) in rs:
            a(f"v_and_or_b32 v{o}, v{g}, s{sHI}, v{o}" if hi else f"v_lshl_or_b32 v{o}, v{g}, 16, v{o}")
    def put_half(rs, h):
        sets = [(tmp[4], tmp[5], tmp[6]), (tmp[7], tmp[2], tmp[3])] if not (FU and h == 0) else [(tmp[0], tmp[1], tmp[2]), (tmp[3], tmp[4], tmp[5])]
        for k, (o, i, g, hi) in enumerate(rs):
            x, y, z = sets[k & 1]
            if h == 0 and FU:
                a(f"""
                v_mul_u32_u24_sdwa v{x}, v{o}, v{tmp[6]} dst_sel:DWORD dst_unused:UNUSED_PAD src0_sel:WORD_0 src1_sel:DWORD
                v_cmp_gt_u32 vcc, s{sT1}, v{x}
                v_and_b32 v{y}, 2, v{x}
                s_nop 0
                v_cndmask_b32 v{x}, v{vX}, v{x}, vcc
                """)
            elif h == 0:
                a(f"v_mul_u32_u24_sdwa v{x}, v{o}, v{vONE} dst_sel:DWORD dst_unused:UNUSED_PAD src0_sel:WORD_0 src1_sel:DWORD")
                a(f"v_and_b32 v{y}, 2, v{x}")
            else:
                a(f"v_and_b32 v{x}, 0xffff, v{o}\nv_mad_u32_u24 v{x}, v{x}, 6, s{sOFF}")
                a(f"v_and_b32 v{y}, 2, v{x}")
            a(f"""
            v_add_u32 v{z}, v{x}, v{y}
            v_mad_i32_i24 v{x}, v{y}, -2, v{x}
            ds_write_b32 v{z}, v{i}
            ds_write_b16_d16_hi v{x}, v{o} offset:4
            """)
    if FU:
        a(f"v_mov_b32 v{tmp[6]}, 6\ns_mov_b32 s{sT1}, {HALF}")
    rank(recs(0))
    rank(recs(1))
    for r in range(12):
        if r < 10:
            rank(recs(r + 2))
        if FU:
            a(f"s_waitcnt lgkmcnt({8 if r == 0 else (12 if r < 10 else 8)})")
        else:
            a(f"s_waitcnt lgkmcnt({8 if r < 10 else (4 if r == 10 else 0)})")
        vm_wait(("a", r))
        merge(recs(r))
        if FU:
            put_half(recs(r), 0)
        if r + 8 < 12:
            issue_ang(r + 8)
        if OPT["pfm"] == 1 and r == 3:
            touch_m(tmp[7])
    vm_wait(("a", 12))
    tail(12, "P1_rk", lambda: (rank(recs(12)), a("s_waitcnt lgkmcnt(0)"), merge(recs(12)), put_half(recs(12), 0) if FU else None))
    a("s_waitcnt lgkmcnt(0)\ns_barrier")
    if OPT["pfm"] == 2:
        touch_m(G6)
    a.c("table of (start, length): the counters now hold the segment ends")
    ra = G
    a(f"""
    s_mov_b32 s{sT1}, {CB_ + CO_ - 4}
    v_and_b32 v{ra}, 3, v0
    v_lshlrev_b32 v{ra}, 12, v{ra}
    v_and_b32 v{ra + 1}, 0x3fc, v0
    v_add3_u32 v{ra}, v{ra}, v{ra + 1}, s{sT1}
    """)
    for qq in range(4):
        if qq:
            a(f"v_add_u32 v{ra}, 1024, v{ra}")
        a(f"ds_read2_b32 {vr(tmp[2 * qq], 2)}, v{ra} offset0:0 offset1:1")
    a("s_waitcnt lgkmcnt(0)" + ("" if FU else "\ns_barrier"))
    if FU:
        a.c("slots past the last slice read out of range: give them length zero")
        a(f"v_and_b32 v{ra + 1}, 3, v0")
        for qq in range(4):
            a(f"v_cmp_gt_u32 vcc, {(NS_ - qq + 3) // 4}, v{ra + 1}\ns_nop 1\nv_cndmask_b32 v{tmp[2 * qq + 1]}, v{tmp[2 * qq]}, v{tmp[2 * qq + 1]}, vcc")
    for qq in range(4):
        s0, e0 = tmp[2 * qq], tmp[2 * qq + 1]
        a(f"v_sub_u32 v{e0}, v{e0}, v{s0}\nv_lshl_or_b32 v{G + qq}, v{e0}, 16, v{s0}")
    a(f"""
    s_lshl_b32 s{sT0}, s2, 14
    s_mul_i32 s{sST}, s2, {2 * CHB}
    buffer_store_dwordx4 {vr(G, 4)}, v{vT16}, {sr(S_TAB, 4)}, s{sT0} offen{STM[0]}
    """)
    st1()
    pend = []

    def scatter(h):
        put = lambda rs: put_half(rs, h)
        for r in range(13):
            tail(r, f"P1_sc{h}", lambda: put(recs(r)))
            if pend:
                pend.pop(0)()
        while pend:
            pend.pop(0)()
        a("s_waitcnt lgkmcnt(0)\ns_barrier")

    LAST = [(n - 1) // 1024 for n in NQ]

    def reads(dst, rs, ra, rb, h):
        for r in rs:
            base = [vT16, ra, rb][r >> 2]
            if r == LAST[h]:
                a(f"v_cmp_gt_u32 vcc, {NQ[h] - 1024 * r}, v0\ns_and_saveexec_b64 {sr(sEX, 2)}, vcc")
            a(f"ds_read_b128 {vr(dst[r], 4)}, v{base} offset:{(r & 3) * 16384}")
            if r == LAST[h]:
                a(f"s_mov_b64 exec, {sr(sEX, 2)}\nv_cndmask_b32 v{rb}, v{vX}, v{vT16}, vcc")

    def store(dst, r, rb, h):
        a(f"s_add_u32 s{sT0}, s{sST}, {h * HALF + r * 16384}")
        a(f"buffer_store_dwordx4 {vr(dst[r], 4)}, v{vT16 if r < LAST[h] else rb}, {sr(S_REC, 4)}, s{sT0} offen{STM[h]}")

    if not FU:
        a(f"v_mov_b32 v{vONE}, 6")
        if OPT["pfm"] == 3:
            pend.extend([lambda: None] * 4 + [lambda: touch_m(G6)])
        if OPT["pfm"] == 4:
            touch_m(G6)
        if OPT["pfm"] == 5:
            pend.extend([lambda: touch_m(G6)])
        scatter(0)
    st1()
    ra, rb = tmp[4], tmp[5]
    q5 = [G, G + 4, G + 8, G + 12, tmp[0]]
    dst = q5 + q5
    a(f"v_add_u32 v{ra}, 0x10000, v{vT16}\nv_add_u32 v{rb}, 0x20000, v{vT16}")
    assert LAST[0] == 9
    reads(dst, range(5), ra, rb, 0)
    for r in range(5):
        a(f"s_waitcnt lgkmcnt({4 - r})")
        store(dst, r, rb, 0)
    reads(dst, range(5, 10), ra, rb, 0)
    a("s_waitcnt lgkmcnt(0)")
    store(dst, 9, rb, 0)
    a("s_barrier")
    pend.extend((lambda r=r: store(dst, r, rb, 0)) for r in range(5, 9))
    if OPT["stpos"] == 0:
        while pend:
            pend.pop(0)()
    if OPT["wb"]:
        pend.extend([lambda: None] * (OPT["wb"] - 1))
        pend.append(lambda: a(f"s_cmp_eq_u32 s{sW}, 15\ns_cbranch_scc0 P1_nowb\nbuffer_wbl2 sc1\nP1_nowb:"))
    st1()
    scatter(1)
    st1()
    dst = [O + 4 * r for r in range(10)]
    a(f"v_add_u32 v{ra}, 0x10000, v{vT16}\nv_add_u32 v{rb}, 0x20000, v{vT16}")
    reads(dst, range(LAST[1] + 1), ra, rb, 1)
    for r in range(LAST[1]):
        a(f"s_waitcnt lgkmcnt({LAST[1] - 1 - r})")
        store(dst, r, rb, 1)
    a("s_waitcnt lgkmcnt(0)")
    store(dst, LAST[1], rb, 1)
    st1()
    if OPT["stamp1"]:
        st1()
        a("s_waitcnt vmcnt(0)")
        st1()
        a(f"""
        s_lshl_b32 s3, s2, 4
        s_add_u32 s3, s3, s{sW}
        s_lshl_b32 s3, s3, 6
        s_add_u32 s44, s44, {17 << 20}
        s_addc_u32 s45, s45, 0
        """)
        srd(a, S_TAB, 44, 1 << 20)
        a("v_mov_b32 v4, 0")
        for i in range(stn[0]):
            a(f"v_mov_b32 v5, s{48 + 2 * i}")
            a(f"buffer_store_dword v5, v4, {sr(S_TAB, 4)}, s3 offen offset:{4 * i}")
    a("P1_done:")
    a("s_endpgm")
    kernel_desc(a, name, 128, 88)


def gen_part(a, name):
    nt = " nt" if OPT["nt_in"] else ""
    STMS = {X: ["", " sc1", " nt", " sc0 sc1", " sc1 nt"][OPT[k]] for X, k in (("A", "stm"), ("B", "stmb"))}
    S_IN, S_OUT, S_ANG, S_REC, S_TAB = 8, 12, 16, 20, 24
    sMAG, sNEG, sMASK, sHI, sDIV6 = 28, 29, 30, 31, 32
    sOI, sOA = 33, 34
    sW, sT0, sT1, sCH = 35, 36, 37, 38
    sEX = 40
    stn = [0]

    def st1():
        if OPT["stamp1"]:
            a(f"s_memrealtime s[{48 + 2 * stn[0]}:{49 + 2 * stn[0]}]\ns_waitcnt lgkmcnt(0)")
            stn[0] += 1
    vT16, vT8, vSIX = 1, 2, 3
    tmp = list(range(4, 14))
    O = {"A": 14, "B": 62}
    I = {"A": 38, "B": 86}
    G = 110
    O6 = {"A": 122, "B": 124}
    I6 = {"A": 123, "B": 125}
    G6 = 126
    vX = 127

    kernel_head(a, name)
    a(f"""
    s_cmp_ge_u32 s2, {NB}
    s_cbranch_scc1 P1_done
    s_load_dwordx4 s[4:7], s[0:1], 8
    s_load_dwordx2 s[42:43], s[0:1], 32
    s_load_dwordx2 s[44:45], s[0:1], 104
    s_load_dwordx2 s[70:71], s[0:1], 0
    v_lshlrev_b32 v{vT16}, 4, v0
    v_lshlrev_b32 v{vT8}, 3, v0
    v_mov_b32 v{vSIX}, 6
    s_mov_b32 s{sMAG}, 1374390
    s_mov_b32 s{sNEG}, {-EB}
    s_mov_b32 s{sMASK}, 0x1c00
    s_mov_b32 s{sHI}, 0xffff0000
    s_mov_b32 s{sDIV6}, 0x2aaaaaab
    v_lshrrev_b32 v4, 6, v0
    v_mov_b32 v6, 0
    v_mov_b32 v7, 0
    v_readfirstlane_b32 s{sW}, v4
    ds_write_b64 v{vT8}, v[6:7] offset:{P1_CNT}
    v_mov_b32 v5, {P1_REC}
    ds_write_b32 v6, v5 offset:{P1_CNT - 4}
    s_waitcnt lgkmcnt(0)
    """)
    srd(a, S_IN, 4, T * 4)
    srd(a, S_OUT, 6, T * 4)
    srd(a, S_ANG, 42, T * 2)
    srd(a, S_REC, 44, REC_BYTES)
    a(f"s_add_u32 s44, s44, {TAB_OFF}")
    a("s_addc_u32 s45, s45, 0")
    srd(a, S_TAB, 44, TAB_BYTES + 8192)
    a(f"""
    s_lshr_b32 s39, s2, 1
    s_and_b32 s39, s39, 7
    s_lshr_b32 s46, s39, {1 if OPT["stag"] == 1 else 0}
    s_lshr_b32 s46, {0xf0 if OPT["stag"] == 1 else 0xff00}, s46
    s_and_b32 s46, s46, {0xf if OPT["stag"] == 1 else 0xff}
    s_mul_i32 s46, s46, {0x11 if OPT["stag"] == 1 else 1}
    """)
    if OPT["stag"] == 3:
        a(f"""
        s_lshr_b32 s46, s39, 1
        s_lshl_b32 s46, s46, 2
        s_sub_u32 s46, 16, s46
        s_lshr_b32 s47, 0x1111, s46
        s_lshl_b32 s46, s47, s46
        s_add_u32 s46, s46, {OPT["rotl"]:#x}
        s_mul_i32 s46, s46, 0x10001
        """)
    a(f"""
    s_lshl_b32 s39, s39, 21
    s_sub_u32 s39, {OPT['ns'] << 24}, s39
    s_mul_i32 s{sOI}, s2, {2 * CH * 4}
    s_mul_i32 s{sOA}, s2, {2 * CH * 2}
    """)

    vmq = []

    def vm_wait(tag):
        last = max(i for i, x in enumerate(vmq) if x == tag)
        a(f"s_waitcnt vmcnt({len(vmq) - 1 - last})")

    pend = []

    def slot(n=1):
        for _ in range(n):
            if pend:
                pend.pop(0)()

    def issue_idx(X, r):
        vmq.extend([(X, r)] * 2)
        if r < 6:
            a(f"""
            buffer_load_dwordx4 {vr(O[X] + 4 * r, 4)}, v{vT16}, {sr(S_OUT, 4)}, s{sOI} offen{nt}
            buffer_load_dwordx4 {vr(I[X] + 4 * r, 4)}, v{vT16}, {sr(S_IN, 4)}, s{sOI} offen{nt}
            s_add_u32 s{sOI}, s{sOI}, 16384
            """)
        else:
            a(f"""
            v_cmp_gt_u32 vcc, {CH - 6 * 4096}, v0
            v_lshlrev_b32 v{tmp[9]}, 2, v0
            s_nop 0
            v_cndmask_b32 v{tmp[9]}, v{vX}, v{tmp[9]}, vcc
            buffer_load_dword v{O6[X]}, v{tmp[9]}, {sr(S_OUT, 4)}, s{sOI} offen{nt}
            buffer_load_dword v{I6[X]}, v{tmp[9]}, {sr(S_IN, 4)}, s{sOI} offen{nt}
            s_add_u32 s{sOI}, s{sOI}, {(CH - 6 * 4096) * 4}
            """)

    def issue_ang(X, r):
        vmq.append((X, "a", r))
        if r < 6:
            a(f"""
            buffer_load_dwordx2 {vr(G + 2 * r, 2)}, v{vT8}, {sr(S_ANG, 4)}, s{sOA} offen{nt}
            s_add_u32 s{sOA}, s{sOA}, 8192
            """)
        else:
            a(f"""
            v_cmp_gt_u32 vcc, {CH - 6 * 4096}, v0
            v_lshlrev_b32 v{tmp[9]}, 1, v0
            s_nop 0
            v_cndmask_b32 v{tmp[9]}, v{vX}, v{tmp[9]}, vcc
            buffer_load_ushort v{G6}, v{tmp[9]}, {sr(S_ANG, 4)}, s{sOA} offen{nt}
            s_add_u32 s{sOA}, s{sOA}, {(CH - 6 * 4096) * 2}
            """)

    def pack(recs):
        n = len(recs)
        tb = tmp[0:n]
        tc = tmp[4:4 + n]
        for k, (o, i, g, hi) in enumerate(recs):
            a(f"v_mul_hi_u32_u24 v{tb[k]}, s{sMAG}, v{o}")
            a(f"v_mul_u32_u24 v{tc[k]}, {(OPT['ns'] << 24) // E}, v{i}")
        if OPT["slide"]:
            for k in range(n):
                a(f"v_add_u32 v{tc[k]}, s39, v{tc[k]}")
            if OPT["ns"] != 8:
                for k in range(n):
                    a(f"v_subrev_u32 v{tmp[8]}, {OPT['ns'] << 24}, v{tc[k]}")
                    a(f"v_min_u32 v{tc[k]}, v{tc[k]}, v{tmp[8]}")
        for k, (o, i, g, hi) in enumerate(recs):
            a(f"v_mad_i32_i24 v{o}, v{tb[k]}, s{sNEG}, v{o}")
            if OPT["stag"] == 3:
                u = tmp[8 + (k & 1)]
                a(f"v_lshrrev_b32 v{u}, 5, v{tb[k]}")
                a(f"v_lshrrev_b32 v{tc[k]}, 24, v{tc[k]}")
                a(f"v_lshlrev_b32 v{u}, 2, v{u}")
                a(f"v_lshlrev_b32 v{tb[k]}, 2, v{tb[k]}")
                a(f"v_bfe_u32 v{u}, s46, v{u}, 4")
                a(f"v_sub_u32 v{tc[k]}, v{tc[k]}, v{u}")
                a(f"v_add_u32 v{u}, {OPT['ns']}, v{tc[k]}")
                a(f"v_min_u32 v{tc[k]}, v{tc[k]}, v{u}")
                continue
            a(f"v_lshrrev_b32 v{tc[k]}, 14, v{tc[k]}")
            if OPT["stag"]:
                u = tmp[8 + (k & 1)]
                a(f"v_lshrrev_b32 v{u}, 5, v{tb[k]}")
                a(f"v_bfe_i32 v{u}, s46, v{u}, 1")
                a(f"v_lshl_add_u32 v{tc[k]}, v{u}, 10, v{tc[k]}")
                if OPT["ns"] != 8:
                    a(f"v_add_u32 v{u}, {OPT['ns'] << 10}, v{tc[k]}")
                    a(f"v_min_u32 v{tc[k]}, v{tc[k]}, v{u}")
            a(f"v_lshlrev_b32 v{tb[k]}, 2, v{tb[k]}")
        for k, (o, i, g, hi) in enumerate(recs):
            a(f"v_lshl_or_b32 v{i}, v{i}, 12, v{o}")
            if OPT["stag"] == 3:
                a(f"v_lshl_or_b32 v{o}, v{tc[k]}, 10, v{tb[k]}")
            else:
                a(f"v_and_or_b32 v{o}, v{tc[k]}, s{sMASK}, v{tb[k]}")
        for k, (o, i, g, hi) in enumerate(recs):
            a(f"ds_add_u32 v{o}, v{vSIX} offset:{P1_CNT}")

    def round_recs(X, r):
        if r < 6:
            return [(O[X] + 4 * r + k, I[X] + 4 * r + k, G + 2 * r + (k >> 1), k & 1) for k in range(4)]
        return [(O6[X], I6[X], G6, 0)]

    def tail_begin(lbl):
        a(f"""
        v_cmp_gt_u32 vcc, {CH - 6 * 4096}, v0
        s_and_saveexec_b64 {sr(sEX, 2)}, vcc
        s_cbranch_execz {lbl}
        """)

    def tail_end(lbl):
        a(f"{lbl}:")
        a(f"s_mov_b64 exec, {sr(sEX, 2)}")

    def wave_scan(v):
        a(f"""
        s_nop 1
        v_add_u32_dpp v{v}, v{v}, v{v} row_shr:1 row_mask:0xf bank_mask:0xf bound_ctrl:0
        s_nop 1
        v_add_u32_dpp v{v}, v{v}, v{v} row_shr:2 row_mask:0xf bank_mask:0xf bound_ctrl:0
        s_nop 1
        v_add_u32_dpp v{v}, v{v}, v{v} row_shr:4 row_mask:0xf bank_mask:0xf bound_ctrl:0
        s_nop 1
        v_add_u32_dpp v{v}, v{v}, v{v} row_shr:8 row_mask:0xf bank_mask:0xf bound_ctrl:0
        """)

    def sort_chunk(X):
        c01, s, inc, p, q = tmp[0], tmp[2], tmp[3], tmp[4], tmp[5]
        st1()
        a.c("exclusive scan of the 2048 counters (units: bytes, 6 per record)")
        a(f"""
        s_waitcnt lgkmcnt(0)
        s_barrier
        """)
        if X == 'A' or OPT['stpos'] < 3:
            slot()
        a(f"""
        ds_read_b64 {vr(c01, 2)}, v{vT8} offset:{P1_CNT}
        s_waitcnt lgkmcnt(0)
        v_add_u32 v{s}, v{c01}, v{c01 + 1}
        v_mov_b32 v{inc}, v{s}
        """)
        wave_scan(inc)
        a(f"""
        s_nop 1
        v_add_u32_dpp v{inc}, v{inc}, v{inc} row_bcast:15 row_mask:0xa bank_mask:0xf
        s_nop 1
        v_add_u32_dpp v{inc}, v{inc}, v{inc} row_bcast:31 row_mask:0xc bank_mask:0xf
        s_lshl_b32 s{sT1}, s{sW}, 2
        v_mov_b32 v{q}, s{sT1}
        v_readlane_b32 s{sT0}, v{inc}, 63
        s_nop 1
        v_mov_b32 v{p}, s{sT0}
        ds_write_b32 v{q}, v{p} offset:{P1_PART}
        v_and_b32 v{q}, 15, v0
        v_lshlrev_b32 v{p}, 2, v{q}
        s_waitcnt lgkmcnt(0)
        s_barrier
        """)
        if X == 'A' or OPT['stpos'] < 3:
            slot()
        a(f"""
        v_cmp_gt_u32 vcc, s{sW}, v{q}
        ds_read_b32 v{p}, v{p} offset:{P1_PART}
        s_waitcnt lgkmcnt(0)
        v_cndmask_b32 v{p}, 0, v{p}, vcc
        """)
        wave_scan(p)
        a(f"""
        v_sub_u32 v{inc}, v{inc}, v{s}
        v_readlane_b32 s{sT0}, v{p}, 15
        s_add_u32 s{sT0}, s{sT0}, {P1_REC}
        s_nop 0
        v_add_u32 v{q + 1}, s{sT0}, v{inc}
        v_add_u32 v{q + 2}, v{q + 1}, v{c01}
        ds_write_b64 v{vT8}, {vr(q + 1, 2)} offset:{P1_CNT}
        s_waitcnt lgkmcnt(0)
        s_barrier
        """)
        assert (q + 1) % 2 == 0
        st1()
        a.c("rank and scatter into the LDS image")
        def rank_issue(recs):
            for k, (o, i, g, hi) in enumerate(recs):
                a(f"ds_add_rtn_u32 v{o}, v{o}, v{vSIX} offset:{P1_CNT}")

        def put_words(recs):
            for k, (o, i, g, hi) in enumerate(recs):
                a(f"v_and_b32 v{tmp[k]}, 2, v{o}")
            for k, (o, i, g, hi) in enumerate(recs):
                a(f"v_add_u32 v{tmp[k]}, v{o}, v{tmp[k]}")
            for k, (o, i, g, hi) in enumerate(recs):
                a(f"ds_write_b32 v{tmp[k]}, v{i}")

        def put_angles(recs):
            for k, (o, i, g, hi) in enumerate(recs):
                a(f"v_and_b32 v{tmp[4 + k]}, 2, v{o}")
            for k, (o, i, g, hi) in enumerate(recs):
                a(f"v_mad_i32_i24 v{tmp[4 + k]}, v{tmp[4 + k]}, -2, v{o}")
            for k, (o, i, g, hi) in enumerate(recs):
                a(f"ds_write_b16{'_d16_hi' if hi else ''} v{tmp[4 + k]}, v{g} offset:4")

        nslot = lambda r: (2 if OPT["stpos"] < 4 or r >= 2 else 0) if X == "B" else OPT["aslot"]
        rank_issue(round_recs(X, 0))
        rank_issue(round_recs(X, 1))
        for r in range(6):
            if r < 4:
                rank_issue(round_recs(X, r + 2))
            a(f"s_waitcnt lgkmcnt({[8, 12, 12, 12, 8, 4][r]})")
            put_words(round_recs(X, r))
            slot(nslot(r))
        tail_begin(f"P1_sc6{X}")
        rank_issue(round_recs(X, 6))
        a("s_waitcnt lgkmcnt(0)")
        put_words(round_recs(X, 6))
        tail_end(f"P1_sc6{X}")
        slot(99)
        for r in range(7):
            vm_wait((X, "a", r))
            if r == 6:
                tail_begin(f"P1_an6{X}")
            put_angles(round_recs(X, r))
            if r == 6:
                tail_end(f"P1_an6{X}")
            if X == "A" and OPT["bang"] == 1 and r < 6:
                issue_ang("B", r)
        slot(99)
        a("""
        s_waitcnt lgkmcnt(0)
        s_barrier
        """)
        st1()
        a.c("read the image back (into the dead record registers) and the counters (now segment ends)")
        dst = [O[X] + 4 * r for r in range(6)] + [I[X] + 4 * r for r in range(4)]
        ra, rb = tmp[8], tmp[9]
        a(f"v_add_u32 v{ra}, 0x10000, v{vT16}")
        a(f"v_add_u32 v{rb}, 0x20000, v{vT16}")
        for r in range(9):
            base = [vT16, ra, rb][r >> 2]
            a(f"ds_read_b128 {vr(dst[r], 4)}, v{base} offset:{P1_REC + (r & 3) * 16384}")
        nlast = CH * 6 // 16 - 9 * 1024
        a(f"""
        v_cmp_gt_u32 vcc, {nlast}, v0
        s_and_saveexec_b64 {sr(sEX, 2)}, vcc
        ds_read_b128 {vr(dst[9], 4)}, v{rb} offset:{P1_REC + 16384}
        s_mov_b64 exec, {sr(sEX, 2)}
        v_cndmask_b32 v{rb}, v{vX}, v{vT16}, vcc
        v_and_b32 v{ra}, 1, v0
        v_lshlrev_b32 v{ra}, 12, v{ra}
        v_lshrrev_b32 v{tmp[0]}, 1, v0
        v_lshl_add_u32 v{ra}, v{tmp[0]}, 2, v{ra}
        s_cmp_lt_u32 s{sW}, 8
        s_cbranch_scc0 P1_notab{X}
        """)
        for qq in range(4):
            if qq:
                a(f"v_add_u32 v{ra}, 1024, v{ra}")
            a(f"ds_read2_b32 {vr(tmp[2 * qq], 2)}, v{ra} offset0:{P1_CNT // 4 - 1} offset1:{P1_CNT // 4}")
        a("s_waitcnt lgkmcnt(0)")
        for qq in range(4):
            s_, e_ = tmp[2 * qq], tmp[2 * qq + 1]
            a(f"""
            v_sub_u32 v{e_}, v{e_}, v{s_}
            v_subrev_u32 v{s_}, {P1_REC}, v{s_}
            v_mul_hi_u32 v{e_}, v{e_}, s{sDIV6}
            v_mul_hi_u32 v{s_}, v{s_}, s{sDIV6}
            v_lshl_or_b32 v{tmp[qq]}, v{e_}, 16, v{s_}
            """)
        a(f"""
        v_lshrrev_b32 v{tmp[4]}, 1, v0
        v_and_b32 v{tmp[5]}, 1, v0
        v_lshlrev_b32 v{tmp[4]}, {5 if OPT["tabc"] else 14}, v{tmp[4]}
        v_lshl_or_b32 v{tmp[4]}, v{tmp[5]}, 4, v{tmp[4]}
        s_branch P1_tab{X}
        P1_notab{X}:
        v_mov_b32 v{tmp[4]}, v{vX}
        P1_tab{X}:
        s_lshl_b32 s{sT0}, s{sCH}, {13 if OPT['tabc'] else 5}
        s_mul_i32 s{sT1}, s{sCH}, {CHB}
        buffer_store_dwordx4 {vr(tmp[0], 4)}, v{tmp[4]}, {sr(S_TAB, 4)}, s{sT0} offen
        s_waitcnt lgkmcnt(0)
        """)
        vmq.append("st")
        a(f"s_add_u32 s{sT0}, s{sT1}, {9 * 16384}")
        a(f"buffer_store_dwordx4 {vr(dst[9], 4)}, v{rb}, {sr(S_REC, 4)}, s{sT0} offen{STMS[X]}")
        vmq.append("st")
        a(f"s_mov_b32 s47, s{sT1}")

        def mk(r):
            def f():
                a(f"buffer_store_dwordx4 {vr(dst[r], 4)}, v{vT16}, {sr(S_REC, 4)}, s47 offen{STMS[X]}")
                a(f"s_add_u32 s47, s47, 16384")
                vmq.append("st")
            return f
        pend.extend(mk(r) for r in range(9))
        if X == "B" or OPT["stpos"] == 0:
            slot(99)
        st1()

    st1()
    a(f"v_mov_b32 v{vX}, 0x7fffff00")
    AD = OPT["adepth"]
    aq = [lambda r=r: issue_idx("A", r) for r in range(7)] + [lambda: [issue_ang("A", r) for r in range(0, 2)], lambda: [issue_ang("A", r) for r in range(2, 4)], lambda: [issue_ang("A", r) for r in range(4, 7)]]

    def first_loads():
        if AD:
            for _ in range(AD):
                aq.pop(0)()
            return
        for r in range(7):
            issue_idx("A", r)
            if not OPT["angl"]:
                issue_ang("A", r)
        if OPT["angl"]:
            for r in range(7):
                issue_ang("A", r)
    builder(a, (62, 78, 94, 102), 4, 5, 6, 7, 12, 124, 8, sW, sT0, S_TAB, first_loads, 2 * AD if AD else 21)
    a("s_barrier")
    order = [6, 0, 1, 2, 3, 4, 5]
    nb = 0
    for r in range(7):
        vm_wait(("A", r))
        if r == 6:
            tail_begin("P1_pk6A")
        pack(round_recs("A", r))
        if r == 6:
            tail_end("P1_pk6A")
        if AD and aq:
            aq.pop(0)()
            if r == 6:
                while aq:
                    aq.pop(0)()
        elif r < 6 and r >= 6 - OPT["early"]:
            issue_idx("B", nb)
            nb += 1
    for r in range(nb, 6):
        pend.append(lambda r=r: (vm_wait(("B", r - OPT["bfair"])) if OPT["bfair"] and r >= OPT["bfair"] else None, issue_idx("B", r)))
    a(f"s_lshl_b32 s{sCH}, s2, 1")
    sort_chunk("A")
    a(f"""
    s_barrier
    v_mov_b32 v{tmp[8]}, 0
    v_mov_b32 v{tmp[9]}, 0
    ds_write_b64 v{vT8}, {vr(tmp[8], 2)} offset:{P1_CNT}
    s_add_u32 s{sCH}, s{sCH}, 1
    s_waitcnt lgkmcnt(0)
    """)
    issue_idx("B", 6)
    if OPT["bang"] == 2:
        for r in range(6):
            issue_ang("B", r)
    issue_ang("B", 6)
    a("s_barrier")
    for r in range(7):
        vm_wait(("B", r))
        if r == 6:
            tail_begin("P1_pk6B")
        pack(round_recs("B", r))
        if r == 6:
            tail_end("P1_pk6B")
        if OPT["stpos"] == 1:
            slot()
    def prefetch_m():
        a.c("touch this workgroup's share of m (one load per 128-byte line) so that the second kernel finds it on chip")
        srd(a, 80, 70, E * 32)
        a(f"""
        v_cmp_gt_u32 vcc, {OPT["pfp1"] or 782}, v0
        v_lshlrev_b32 v{G + 1}, 7, v0
        s_mul_i32 s{sT0}, s2, {OPT["pfp1"] * 128 or 100000}
        s_and_b32 s{sT0}, s{sT0}, 0xffffff80
        v_cndmask_b32 v{G + 1}, v{vX}, v{G + 1}, vcc
        buffer_load_dword v{G}, v{G + 1}, {sr(80, 4)}, s{sT0} offen
        """)
    if OPT["pfm"] or OPT["pfp1"]:
        prefetch_m()
    sort_chunk("B")
    if OPT["stamp1"]:
        a("s_waitcnt vmcnt(0)")
        st1()
        a(f"""
        s_lshl_b32 s3, s2, 4
        s_add_u32 s3, s3, s{sW}
        s_lshl_b32 s3, s3, 6
        s_add_u32 s44, s44, {17 << 20}
        s_addc_u32 s45, s45, 0
        """)
        srd(a, S_TAB, 44, 1 << 20)
        a("v_mov_b32 v4, 0")
        for i in range(stn[0]):
            a(f"v_mov_b32 v5, s{48 + 2 * i}")
            a(f"buffer_store_dword v5, v4, {sr(S_TAB, 4)}, s3 offen offset:{4 * i}")
    a("P1_done:")
    a("s_endpgm")
    kernel_desc(a, name, 128, 88)


L_LOCK = 0
L_RBF = 800
L_ACC0 = L_RBF + EB * 16
L_ACC1 = L_ACC0 + EB * 16
L_RING = L_ACC1 + EB * 16
RING_CAP = 101
RING_STRIDE = RING_CAP * 8
P2_LDS = 163840
assert L_RING + 16 * RING_STRIDE <= P2_LDS


def gen_main(a, name):
    BIG = OPT["big"]
    CB = 2 * CHB if BIG else CHB
    NCW = 16 if BIG else 32
    SPL = OPT['spl']
    LPS = 64 // SPL
    LSH = LPS.bit_length() - 1
    SPP = NCW // SPL
    TSH = 14 if BIG else 13
    NSTEP = SPP * OPT["ns"]
    ntr = " nt" if OPT["nt_rec"] else ""
    nto = ["", " sc1", " nt", " sc0 sc1", " sc1 nt"][OPT["outm"]]
    S_REC, S_M, S_TMP, S_OUT = 8, 12, 16, 20
    sB, sW = 24, 25
    sCNT, sTOP = 26, 27
    sM = [28, 30]
    sN, sT0, sT1, sT2 = 32, 33, 34, 35
    sACQ, sFAIL = 36, 38
    sM0, sM1 = 40, 42
    sRET, sRET2 = 44, 46
    sLONG = [48, 50]
    sEX = 52
    sCO = 54
    sCOB = [55, 56]
    sK, sJ, sPH = 57, 58, 59
    sP = 60
    sRB, sHI, sG, sKF0, sKF1, sN0 = 76, 77, 78, 79, 80, 81
    sCEN = 84
    sEVEN = 92
    sCAP = 97
    sF = [98, 100]
    assert not (OPT['pfn'] or OPT['spf'] or OPT['x_fake'] or OPT['gexec'])
    vLANE = 1
    A1a, A1b, A2a, A2b, A3a, A3b = 2, 6, 10, 14, 18, 22
    D1, D2 = 26, 42
    GP, GQ = [58, 66], [62, 70]
    TF = 74
    S0, S1 = 78, 82
    AX, AY = S0, S1
    WA = [86, 88]
    O = [90, 91]
    C = [92, 93]
    TT = 94
    RB = [98, 102]
    RD = [101, 105]
    RL = [106, 107]
    RA = [108, 109]
    vBP, vCB, vL2, vL8, vH16, vOOB, vE = range(110, 117)
    t = list(range(117, 128)) + [0]
    vDUM = GP[1]
    vPF = 0

    kernel_head(a, name)
    a(f"""
    s_cmp_ge_u32 s2, {NB}
    s_cbranch_scc1 P2_done
    {"s_memrealtime s[94:95]" if OPT["stamp2"] else ""}
    s_load_dwordx2 {sr(sP, 2)}, s[0:1], 0
    s_load_dwordx2 {sr(sP + 2, 2)}, s[0:1], 24
    s_load_dwordx4 {sr(sP + 4, 4)}, s[0:1], 40
    s_load_dwordx2 s[4:5], s[0:1], 88
    s_load_dwordx2 s[6:7], s[0:1], 104
    s_and_b32 s{sB}, s2, 7
    s_lshl_b32 s{sB}, s{sB}, 5
    s_lshr_b32 s{sT0}, s2, 3
    s_add_u32 s{sB}, s{sB}, s{sT0}
    v_lshrrev_b32 v{t[0]}, 6, v0
    v_and_b32 v{vLANE}, 63, v0
    s_mov_b32 s{sHI}, 0xffff0000
    v_readfirstlane_b32 s{sW}, v{t[0]}
    v_mov_b32 v{vOOB}, 0x7fffff00
    s_mov_b32 s{sEVEN}, 0x55555555
    s_mov_b32 s{sEVEN + 1}, 0x55555555
    s_waitcnt lgkmcnt(0)
    """)
    pM, pDIST, pCEN, pFREQ, pWRBF, pWSBF, pWDN, pWUP = [sP + 2 * k for k in range(8)]
    a(f"""
    s_load_dwordx4 {sr(sCEN, 4)}, {sr(pCEN, 2)}, 0
    s_load_dword s{sT2}, {sr(pFREQ, 2)}, 0
    """)
    sPM, sPFO, sPFD = 100, 99, 82

    def spf():
        return f"""
        s_load_dword s{sPFD}, {sr(sPM, 2)}, s{sPFO}
        s_add_u32 s{sPFO}, s{sPFO}, {4096 * 128}
        s_min_u32 s{sPFO}, s{sPFO}, {E * 32 - 4}
        """
    srd(a, S_REC, 6, REC_BYTES)
    srd(a, S_M, pM, E * 32)
    srd(a, S_OUT, 4, E * 32)
    a(f"s_add_u32 s6, s6, {TAB_OFF}")
    a("s_addc_u32 s7, s7, 0")
    S_TAB = S_TMP
    S_DST = 68
    srd(a, S_TAB, 6, TAB_BYTES + 8192)
    a.c("this wave's 32 x 8 table entries: lane = chunk (l & 31), slices 4*(l >> 5) .. +3")
    a(f"""
    v_and_b32 v{t[0]}, {NCW - 1}, v{vLANE}
    v_lshrrev_b32 v{t[1]}, {4 if BIG else 5}, v{vLANE}
    v_lshlrev_b32 v{vL8}, 3, v{vLANE}
    v_lshlrev_b32 v{t[2]}, 4, v{t[1]}
    v_lshl_add_u32 v{t[2]}, v{t[0]}, {TSH}, v{t[2]}
    s_lshl_b32 s{sT0}, s{sB}, {TSH - 8}
    s_lshl_b32 s{sT1}, s{sW}, 18
    s_add_u32 s{sT0}, s{sT0}, s{sT1}
    v_lshrrev_b32 v{t[3]}, {LSH}, v{vLANE}
    v_lshlrev_b32 v{t[3]}, {TSH}, v{t[3]}
    s_add_u32 s{sT1}, s{sT0}, {SPL << TSH}
    buffer_load_dword v{vE}, v{t[3]}, {sr(S_TAB, 4)}, s{sT0} offen
    buffer_load_dword v{C[0]}, v{t[3]}, {sr(S_TAB, 4)}, s{sT1} offen
    buffer_load_dwordx4 {vr(TT, 4)}, v{t[2]}, {sr(S_TAB, 4)}, s{sT0} offen
    """)
    srd(a, S_DST, pDIST, E * 2)

    a.c("dist of the bucket's edges t, t+1024, t+2048, t+3072")
    a(f"""
    s_mul_i32 s{sT0}, s{sB}, {EB * 2}
    v_lshlrev_b32 v{t[2]}, 1, v0
    buffer_load_ushort v{t[4]}, v{t[2]}, {sr(S_DST, 4)}, s{sT0} offen
    buffer_load_ushort v{t[5]}, v{t[2]}, {sr(S_DST, 4)}, s{sT0} offen offset:2048
    s_add_u32 s{sT0}, s{sT0}, 4096
    buffer_load_ushort v{t[6]}, v{t[2]}, {sr(S_DST, 4)}, s{sT0} offen
    buffer_load_ushort v{t[7]}, v{t[2]}, {sr(S_DST, 4)}, s{sT0} offen offset:2048
    """)
    a.c("matrix operands prepared by the first kernel")
    a(f"v_lshlrev_b32 v{t[3]}, 4, v{vLANE}")
    for k in range(6):
        a(f"s_mov_b32 s{sT0}, {TAB_BYTES + 1024 * k}")
        a(f"buffer_load_dwordx4 {vr(A1a + 4 * k, 4)}, v{t[3]}, {sr(S_TAB, 4)}, s{sT0} offen")
    npf = 0
    if OPT["pf0"]:
        a.c("touch a share of the first slice of m, one load per 128-byte line")
        lines = (E // OPT["ns"] * 32 // 128 + 31) // 32
        a(f"""
        v_cmp_gt_u32 vcc, {min(lines, 1024)}, v0
        v_lshlrev_b32 v{t[8]}, 7, v0
        s_lshr_b32 s{sT0}, s2, 3
        s_mul_i32 s{sT0}, s{sT0}, {lines * 128}
        v_cndmask_b32 v{t[8]}, v{vOOB}, v{t[8]}, vcc
        buffer_load_dword v{vDUM}, v{t[8]}, {sr(S_M, 4)}, s{sT0} offen
        """)
        npf = 1
    a.c("zero the locks and the accumulators")
    D = D1
    a(f"""
    v_mov_b32 v{D}, 0
    v_mov_b32 v{D + 1}, 0
    v_mov_b32 v{D + 2}, 0
    v_mov_b32 v{D + 3}, 0
    v_lshlrev_b32 v{t[2]}, 4, v0
    v_add_u32 v{t[9]}, {L_ACC0}, v{t[2]}
    """)
    for r in range(4):
        a(f"ds_write_b128 v{t[9]}, {vr(D, 4)} offset:{r * 16384}")
    a(f"v_add_u32 v{t[9]}, 0x10000, v{t[9]}")
    for r in range(2):
        a(f"ds_write_b128 v{t[9]}, {vr(D, 4)} offset:{r * 16384}")
    a(f"""
    v_cmp_gt_u32 vcc, {2 * EB - 6 * 1024}, v0
    s_and_saveexec_b64 {sr(sEX, 2)}, vcc
    ds_write_b128 v{t[9]}, {vr(D, 4)} offset:{2 * 16384}
    s_mov_b64 exec, {sr(sEX, 2)}
    v_cmp_gt_u32 vcc, {L_RBF // 16}, v0
    s_and_saveexec_b64 {sr(sEX, 2)}, vcc
    ds_write_b128 v{t[2]}, {vr(D, 4)}
    s_mov_b64 exec, {sr(sEX, 2)}
    s_waitcnt lgkmcnt(0)
    """)
    if OPT["spf"]:
        a.c("scalar loads walk over m, one per 128-byte line chip-wide, ahead of the gathers")
        a(f"""
        s_lshl_b32 s{sPFO}, s2, 4
        s_add_u32 s{sPFO}, s{sPFO}, s{sW}
        s_lshl_b32 s{sPFO}, s{sPFO}, 7
        """)
        for k in range(OPT["spf"]):
            a(spf())
    a.c("centers and frequencies to f32")
    for k in (3, 2, 1, 0):
        a(f"s_and_b32 s{sCEN + 2 * k + 1}, s{sCEN + k}, 0xffff0000")
        a(f"s_lshl_b32 s{sCEN + 2 * k}, s{sCEN + k}, 16")
    a(f"""
    s_lshl_b32 s{sT0}, s{sT2}, 16
    s_and_b32 s{sT1}, s{sT2}, 0xffff0000
    v_mov_b32 v{t[8]}, 0.15915494
    v_mul_f32 v{t[9]}, s{sT0}, v{t[8]}
    v_mul_f32 v{t[8]}, s{sT1}, v{t[8]}
    v_and_b32 v{vH16}, 1, v{vLANE}
    v_lshlrev_b32 v{vH16}, 4, v{vH16}
    v_readfirstlane_b32 s{sKF0}, v{t[9]}
    v_readfirstlane_b32 s{sKF1}, v{t[8]}
    """)
    a.c("record-stream lane constants")
    a(f"""
    v_and_b32 v{t[8]}, {LPS - 1}, v{vLANE}
    v_lshrrev_b32 v{t[9]}, {LSH}, v{vLANE}
    v_lshlrev_b32 v{vL2}, 1, v{t[8]}
    v_lshlrev_b32 v{vBP}, 2, v{t[9]}
    v_mul_u32_u24 v{t[9]}, {CB}, v{t[9]}
    v_mad_u32_u24 v{vCB}, v{t[8]}, 12, v{t[9]}
    s_mul_i32 s{sCO}, s{sW}, {32 * CHB}
    s_mul_i32 s{sRB}, s{sW}, {RING_STRIDE}
    s_add_u32 s{sRB}, s{sRB}, {L_RING}
    s_mov_b32 s{sTOP}, s{sRB}
    s_mov_b32 s{sCNT}, 0
    s_mov_b64 {sr(sM[0], 2)}, 0
    s_mov_b64 {sr(sM[1], 2)}, 0
    s_mov_b32 s{sJ}, 0
    s_mov_b32 s{sPH}, 0
    s_mov_b32 s{sG}, 100000
    s_mov_b32 s{sCAP}, {OPT['lim']}
    s_mov_b64 {sr(sF[0], 2)}, 0
    s_mov_b64 {sr(sF[1], 2)}, 0
    s_and_b32 s3, s2, {3 if OPT["stag"] == 1 else (6 if OPT["stag"] == 2 else 0)}
    s_lshl_b32 s3, s3, {1 if OPT["stag"] == 1 else 0}
    s_mov_b32 s83, {-16 * OPT["lag"] + OPT["lagoff"]}
    {'s_mov_b32 s95, 0' if OPT['cntreq'] else ''}
    """)

    uid = [0]
    kmul = (OPT["ns"] << 24) // E
    SLB = ((1 << 24) // kmul * 32) & ~127
    SHARE = (SLB // 128 + 64 * OPT['pfx']) // (64 * OPT['pfx'])

    PER = (SHARE + OPT["pfw"] - 1) // OPT["pfw"]

    def pf_share(sS, tmpv, vPF=vPF):
        return f"""
        s_mul_i32 s{sT0}, s{sS}, {SLB}
        s_mul_i32 s{sT1}, s82, {SHARE * 128}
        s_add_u32 s{sT0}, s{sT0}, s{sT1}
        s_mul_i32 s{sT1}, s{sW}, {PER}
        v_add_u32 v{tmpv}, s{sT1}, v{vLANE}
        v_cmp_gt_u32 vcc, {PER}, v{vLANE}
        v_lshlrev_b32 v{tmpv}, 7, v{tmpv}
        s_nop 0
        v_cndmask_b32 v{tmpv}, v{vOOB}, v{tmpv}, vcc
        buffer_load_dword v{vPF}, v{tmpv}, {sr(S_M, 4)}, s{sT0} offen
        """

    def prep(buf, mid=None, pf=True):
        uid[0] += 1
        u = uid[0]
        a(f"""
        v_lshrrev_b32 v{RL[buf]}, 16, v{vE}
        v_and_b32 v{t[0]}, 1, v{vE}
        v_and_b32 v{t[1]}, 0xfffe, v{vE}
        v_sub_u32 v{RD[buf]}, v{vL2}, v{t[0]}
        v_mad_u32_u24 v{RA[buf]}, v{t[1]}, 6, v{vCB}
        v_cmp_lt_i32 vcc, v{RD[buf]}, v{RL[buf]}
        v_cmp_lt_u32 {sr(sLONG[buf], 2)}, {2 * LPS - 1}, v{RL[buf]}
        s_mov_b32 s{sCOB[buf]}, s{sCO}
        {"s_or_b32 vcc_lo, vcc_lo, 1" if OPT["rexec"] else f"v_cndmask_b32 v{t[1]}, v{vOOB}, v{RA[buf]}, vcc"}
        v_add_u32 v{vBP}, {4 * SPL}, v{vBP}
        s_add_u32 s{sCO}, s{sCO}, {SPL * CB}
        s_add_u32 s{sJ}, s{sJ}, 1
        s_cmp_lt_u32 s{sJ}, {SPP}
        s_cbranch_scc0 P2_adv{u}
        P2_advr{u}:
        {f"ds_bpermute_b32 v{vE}, v{vBP}, v{TT}" if mid else ""}
        """)
        if mid:
            a(mid)
        if OPT["x_fake"]:
            a(f"buffer_load_dword v{D2}, v{vOOB}, {sr(S_REC, 4)}, s{sCOB[buf]} offen{ntr}")
            sz = E // OPT['ns']
            a(f"""
            s_add_u32 s98, s{sK}, {2 + buf}
            s_lshr_b32 s98, s98, 3
            s_min_u32 s98, s98, {OPT['ns'] - 1}
            s_mul_i32 s98, s98, {sz}
            s_mov_b32 s99, {sz}
            s_mov_b32 s97, 0x9E3779B1
            """)
            for dd in (RB[buf], RB[buf] + 2):
                a(f"""
                v_mul_lo_u32 v{D1}, v{D1}, s97
                v_add_u32 v{D1}, 0x3c6ef35f, v{D1}
                v_lshrrev_b32 v{D1 + 1}, 15, v{D1}
                v_xor_b32 v{D1}, v{D1}, v{D1 + 1}
                v_mul_hi_u32 v{dd}, v{D1}, s99
                v_add_u32 v{dd}, s98, v{dd}
                v_lshlrev_b32 v{dd}, 12, v{dd}
                """)
        else:
            if OPT["rexec"]:
                a(f"""
                s_mov_b64 exec, vcc
                buffer_load_dwordx3 {vr(RB[buf], 3)}, v{RA[buf]}, {sr(S_REC, 4)}, s{sCOB[buf]} offen{ntr}
                s_mov_b64 exec, -1
                """)
            else:
                a(f"buffer_load_dwordx3 {vr(RB[buf], 3)}, v{t[1]}, {sr(S_REC, 4)}, s{sCOB[buf]} offen{ntr}")
        if OPT["pfn"] and mid and pf:
            a(f"""
            s_cmp_eq_u32 s{sJ}, s99
            s_cbranch_scc1 P2_pf{u}
            P2_pfr{u}:
            """)
            cold.append(f"""
            P2_pf{u}:
            s_cmp_eq_u32 s{sPH}, s98
            s_cbranch_scc0 P2_pfr{u}
            s_add_u32 s98, s98, {OPT["pfg"]}
            """ + "".join(f"s_add_u32 s{sT2}, s{sPH}, {OPT['pfn'] + g}\n" + pf_share(sT2, t[3]) for g in range(OPT["pfg"])) + f"""
            s_branch P2_pfr{u}
            """)
        cold.append(f"""
        P2_adv{u}:
        s_mov_b32 s{sJ}, 0
        s_sub_u32 s{sCO}, s{sCO}, {32 * CHB}
        s_add_u32 s{sPH}, s{sPH}, 1
        s_and_b32 s{sT0}, s{sPH}, 3
        s_cselect_b32 s{sT0}, {4 * NCW}, 0
        v_subrev_u32 v{vBP}, s{sT0}, v{vBP}
        v_mov_b32 v{t[0]}, v{TT}
        v_mov_b32 v{TT}, v{TT + 1}
        v_mov_b32 v{TT + 1}, v{TT + 2}
        v_mov_b32 v{TT + 2}, v{TT + 3}
        v_mov_b32 v{TT + 3}, v{t[0]}
        s_cmp_lt_u32 s{sPH}, {16 if BIG else 8}
        s_cbranch_scc1 P2_advr{u}
        v_mov_b32 v{TT}, 0
        s_branch P2_advr{u}
        """)

    cold = []
    a(f"s_waitcnt vmcnt({11 + npf})")
    prep(0)
    a(f"v_mov_b32 v{vE}, v{C[0]}")
    prep(1)

    def pf_prologue():
        a(f"""
        s_bfe_u32 s99, s2, {(3 << 16) | 3 if OPT["pfs"] else 0}
        s_cmp_lt_u32 s99, {4 if OPT['peel'] else 3}
        s_cselect_b32 s98, {OPT["pfg"]}, 0
        s_lshr_b32 s82, s2, 2
        s_mul_i32 s82, s82, {OPT["pfx"]}
        s_and_b32 s{sT0}, s2, 3
        s_add_u32 s82, s82, s{sT0}
        s_cmp_lt_u32 s{sT0}, {OPT["pfx"]}
        s_cselect_b32 s{sT0}, s{sW}, 99
        s_cmp_lt_u32 s{sT0}, {OPT["pfw"]}
        s_cselect_b32 s99, s99, 99
        s_cbranch_scc0 P2_nopf
        """)
        for k in range(OPT["pffirst"], OPT["pfn"] + OPT["pfg"]):
            if k == OPT["pfn"]:
                a(f"s_cmp_lt_u32 s99, {4 if OPT['peel'] else 3}\ns_cbranch_scc0 P2_nopf")
            a(f"s_mov_b32 s{sT2}, {k}")
            a(pf_share(sT2, t[3], vDUM))
        a("P2_nopf:")
    if OPT["pfn"] and OPT["pfpos"] == 0:
        pf_prologue()
    a.c("radial basis table exp(-10 (d - c)^2), stored as f16")
    a(f"s_waitcnt vmcnt({8 + npf})")
    sTEN, sL2E = sRET, sRET + 1
    a(f"s_mov_b32 s{sTEN}, 0xc1200000")
    a(f"s_mov_b32 s{sL2E}, {0x3fb8aa3b if OPT['mimic'] else 0xc166d4ca:#x}")
    def rbf_round(r):
        dd = t[4 + r]
        if r == 3:
            a(f"""
            v_cmp_gt_u32 vcc, {EB - 3 * 1024}, v0
            s_and_saveexec_b64 {sr(sEX, 2)}, vcc
            s_cbranch_execz P2_rbf3
            """)
        a(f"v_lshlrev_b32 v{dd}, 16, v{dd}")
        x = [D + k for k in range(8)]
        for k in range(8):
            a(f"v_subrev_f32 v{x[k]}, s{sCEN + k}, v{dd}")

        def rnd():
            if not OPT["mimic"]:
                return
            for k in range(0, 8, 2):
                a(f"v_cvt_pk_bf16_f32 v{D + 8 + k // 2}, v{x[k]}, v{x[k + 1]}")
            for k in range(0, 8, 2):
                a(f"v_lshlrev_b32 v{x[k]}, 16, v{D + 8 + k // 2}")
                a(f"v_and_b32 v{x[k + 1]}, s{sHI}, v{D + 8 + k // 2}")
        rnd()
        for k in range(8):
            a(f"v_mul_f32 v{x[k]}, v{x[k]}, v{x[k]}")
        rnd()
        if OPT["mimic"]:
            for k in range(8):
                a(f"v_mul_f32 v{x[k]}, s{sRET}, v{x[k]}")
        rnd()
        for k in range(8):
            a(f"v_mul_f32 v{x[k]}, s{sRET + 1}, v{x[k]}")
        for k in range(8):
            a(f"v_exp_f32 v{x[k]}, v{x[k]}")
        a("s_nop 0")
        rnd()
        for k in range(0, 8, 2):
            a(f"v_cvt_pk_f16_f32 v{D + 8 + k // 2}, v{x[k]}, v{x[k + 1]}")
        a(f"ds_write_b128 v{t[8]}, {vr(D + 8, 4)} offset:{L_RBF + r * 16384}")
        if r == 3:
            a("P2_rbf3:")
            a(f"s_mov_b64 exec, {sr(sEX, 2)}")


    def rbf_consts():
        a(f"v_lshlrev_b32 v{t[8]}, 4, v0")
    rbf_consts()
    a(f"ds_bpermute_b32 v{vE}, v{vBP}, v{TT}")
    for r in range(2 if OPT["peel"] else 4):
        rbf_round(r)
    a(f"""
    v_mov_b32 v{O[1]}, 0
    v_mov_b32 v{WA[1]}, 0
    """)
    a(f"s_mov_b32 s{sK}, 0")
    if OPT["gexec"]:
        for j in range(16):
            a(f"v_mov_b32 v{GP[0] + j}, 0")

    def prologue_tail():
        if OPT["peel"]:
            rbf_round(2)
            rbf_round(3)
        if OPT["pfn"] and OPT["pfpos"] == 1:
            pf_prologue()
        a("s_waitcnt lgkmcnt(0)\ns_barrier")
    if not OPT["peel"]:
        a.c("two out-of-range loads stand in for the gathers of the steps before the first one")
        for k in range(2):
            a(f"buffer_load_dword v{vDUM}, v{vOOB}, {sr(S_REC, 4)}, 0 offen")
        prologue_tail()

    la, bit, aX, aY, old = t[5], t[6], t[7], t[8], t[9]
    STAMP = OPT["stamp"]

    def st(i):
        return f"s_memtime s[{60 + 2 * i}:{61 + 2 * i}]" if STAMP else ""

    def lg(n):
        return f"s_waitcnt lgkmcnt({0 if STAMP else n})"

    def pop_issue(buf):
        F, NF = sF[buf], sACQ
        return f"""
        s_bcnt0_i32_b64 s{sN}, {sr(F, 2)}
        s_not_b64 {sr(NF, 2)}, {sr(F, 2)}
        s_min_u32 s{sN}, s{sCNT}, s{sN}
        v_mbcnt_lo_u32_b32 v{t[2]}, s{NF}, 0
        s_sub_u32 s{sCNT}, s{sCNT}, s{sN}
        v_mbcnt_hi_u32_b32 v{t[2]}, s{NF + 1}, v{t[2]}
        s_lshl3_add_u32 s{sTOP}, s{sCNT}, s{sRB}
        v_cmp_gt_u32 vcc, s{sN}, v{t[2]}
        v_lshl_add_u32 v{t[2]}, v{t[2]}, 3, s{sTOP}
        s_mov_b64 exec, {sr(NF, 2)}
        v_mov_b32 v{WA[buf]}, 0xfffff000
        v_mov_b32 v{WA[buf] + 1}, 0
        s_and_b64 exec, vcc, {sr(NF, 2)}
        ds_read_b64 {vr(WA[buf], 2)}, v{t[2]}
        s_or_b64 {sr(sM[buf], 2)}, exec, {sr(F, 2)}
        s_mov_b64 exec, -1
        """

    def gathers(buf):
        W, F, X, Y = WA[buf], sF[buf], sACQ, sFAIL
        g0 = f"v_mov_b32 v{t[2]}, v{vOOB}" if OPT["x_nogather"] else f"v_and_b32 v{t[2]}, 0xffffffe0, v{t[2]}"
        return f"""
        v_lshrrev_b32 v{t[2]}, 7, v{W}
        s_and_b64 {sr(X, 2)}, {sr(F, 2)}, {sr(sEVEN, 2)}
        {g0}
        s_lshl_b64 {sr(Y, 2)}, {sr(X, 2)}, 1
        v_lshlrev_b32 v{O[buf]}, 4, v{W}
        v_and_b32 v{t[4]}, s{sHI}, v{W + 1}
        v_or_b32_dpp v{t[3]}, v{t[2]}, v{vH16} quad_perm:[0,0,2,2] row_mask:0xf bank_mask:0xf
        v_or_b32_dpp v{t[2]}, v{t[2]}, v{vH16} quad_perm:[1,1,3,3] row_mask:0xf bank_mask:0xf
        s_nor_b64 exec, {sr(X, 2)}, {sr(Y, 2)}
        s_andn2_b64 {sr(X, 2)}, {sr(F, 2)}, {sr(sEVEN, 2)}
        buffer_load_dwordx4 {vr(GP[buf], 4)}, v{t[3]}, {sr(S_M, 4)}, 0 offen
        s_lshr_b64 {sr(Y, 2)}, {sr(X, 2)}, 1
        s_nor_b64 exec, {sr(X, 2)}, {sr(Y, 2)}
        buffer_load_dwordx4 {vr(GQ[buf], 4)}, v{t[2]}, {sr(S_M, 4)}, 0 offen
        s_mov_b64 exec, -1
        """

    def coschain(buf):
        return f"""
        {f"v_lshlrev_b32 v{O[buf]}, 4, v{vLANE}" if OPT["x_lin"] else f"v_and_b32 v{O[buf]}, 0xfff0, v{O[buf]}"}
        v_mul_f32 v{C[buf]}, s{sKF0}, v{t[4]}
        v_mul_f32 v{t[4]}, s{sKF1}, v{t[4]}
        v_fract_f32 v{C[buf]}, v{C[buf]}
        v_fract_f32 v{t[4]}, v{t[4]}
        v_cos_f32 v{C[buf]}, v{C[buf]}
        v_cos_f32 v{t[4]}, v{t[4]}
        """

    def cospack(buf):
        return f"v_cvt_pk_f16_f32 v{C[buf]}, v{C[buf]}, v{t[4]}"

    def rbf_read(buf):
        return f"ds_read_b128 {vr(S1, 4)}, v{O[buf]} offset:{L_RBF}"

    def gate(buf):
        s = ""
        for j in range(4):
            s += f"v_pk_mul_f16 v{S0 + j}, v{S1 + j}, v{C[buf]} op_sel_hi:[1,0]\n"
        for j in range(4):
            s += f"v_pk_mul_f16 v{S1 + j}, v{S1 + j}, v{C[buf]} op_sel:[0,1]\n"
        s += f"""
        v_mfma_f32_32x32x16_f16 {vr(D2, 16)}, {vr(A2a, 4)}, {vr(S0, 4)}, 0
        s_mov_b64 vcc, {sr(sEVEN, 2)}
        v_mfma_f32_32x32x16_f16 {vr(D2, 16)}, {vr(A2b, 4)}, {vr(S1, 4)}, {vr(D2, 16)}
        """
        return s

    def fixup(buf):
        s = ""
        for j in range(4):
            s += f"v_cndmask_b32_dpp v{S0 + j}, v{GQ[buf] + j}, v{GP[buf] + j}, vcc quad_perm:[0,0,2,2] row_mask:0xf bank_mask:0xf\n"
        s += "s_not_b64 vcc, vcc\n"
        for j in range(4):
            s += f"v_cndmask_b32_dpp v{S1 + j}, v{GP[buf] + j}, v{GQ[buf] + j}, vcc quad_perm:[1,1,3,3] row_mask:0xf bank_mask:0xf\n"
        return s

    def muls():
        for j in range(0, 16, 2):
            a(f"v_pk_mul_f32 {vr(D1 + j, 2)}, {vr(D1 + j, 2)}, {vr(D2 + j, 2)}")

    def core_a(buf, fill, fill2=""):
        W = WA[buf]
        a(f"""
        v_mfma_f32_32x32x16_bf16 {vr(D1, 16)}, {vr(A1a, 4)}, {vr(S0, 4)}, 0
        v_add_u32 v{aX}, {L_ACC0}, v{O[buf]}
        v_mfma_f32_32x32x16_bf16 {vr(D1, 16)}, {vr(A1b, 4)}, {vr(S1, 4)}, {vr(D1, 16)}
        v_add_u32 v{aY}, {L_ACC1}, v{O[buf]}
        v_lshrrev_b32 v{la}, 2, v{W}
        v_lshlrev_b32_e64 v{bit}, v{W}, 1
        v_permlane32_swap_b32 v{aX}, v{aY}
        """)
        a(fill)
        a(f"v_and_b32 v{la}, 0x3fc, v{la}")
        if not OPT["valu_add"]:
            muls()
        a(fill2)

    def core_b(buf, inline):
        uid[0] += 1
        u = uid[0]
        W, M = WA[buf], sM[buf]
        nrm = OPT["x_normw"]
        va = OPT["valu_add"]
        guard = f"s_sub_u32 s{sG}, s{sG}, 1\ns_cbranch_scc1 P2_done" if OPT["guard"] else ""
        a(f"""
        {st(5) if inline else ""}
        {"s_setprio 3" if OPT["prio"] else ""}
        s_mov_b64 exec, {sr(M, 2)}
        {f"v_mov_b32 v{old}, 0" if nrm else f"ds_or_rtn_b32 v{old}, v{la}, v{bit}"}
        s_mov_b64 exec, -1
        {"" if nrm else f"ds_read_b128 {vr(AX, 4)}, v{aX}"}
        {"" if nrm else f"ds_read_b128 {vr(AY, 4)}, v{aY}"}
        {f"ds_read_b32 v{t[10]}, v{vH16} offset:784" if inline else ""}
        {lg(2 if inline else 1)}
        {st(6) if inline else ""}
        """)
        check = f"""
        v_cmp_eq_u32 vcc, 0, v{old}
        s_and_b64 {sr(sACQ, 2)}, vcc, {sr(M, 2)}
        s_andn2_b64 {sr(sF[buf], 2)}, {sr(M, 2)}, vcc
        s_bcnt1_i32_b64 s{sN}, {sr(sF[buf], 2)}
        {"s_add_u32 s95, s95, s%d" % sN if OPT["cntreq"] else ""}
        s_mov_b32 exec_lo, s{sACQ}
        s_mov_b32 exec_hi, s{sACQ}
        s_cmp_gt_u32 s{sN}, s{sCAP}
        """
        U = [TF, TF + 1, TF + 2, TF + 3, t[1], t[2], t[3], t[4]]
        assert t[1] % 2 == 0

        def addhalf(Ac, off):
            for j in range(4):
                a(f"v_lshlrev_b32 v{U[2 * j]}, 16, v{Ac + j}")
                a(f"v_and_b32 v{U[2 * j + 1]}, s{sHI}, v{Ac + j}")
            for j in range(4):
                a(f"v_pk_fma_f32 {vr(U[2 * j], 2)}, {vr(D1 + off + 2 * j, 2)}, {vr(D2 + off + 2 * j, 2)}, {vr(U[2 * j], 2)}")
            for j in range(4):
                a(f"v_cvt_pk_bf16_f32 v{Ac + j}, v{U[2 * j]}, v{U[2 * j + 1]}")
        if va:
            a(f"v_and_b32 v{old}, v{old}, v{bit}")
            a(check)
            addhalf(AX, 0)
            a(f"s_waitcnt lgkmcnt({1 if inline else 0})")
        else:
            a(f"""
            v_mfma_f32_32x32x16_bf16 {vr(D2, 16)}, {vr(A3a, 4)}, {vr(AX, 4)}, {vr(D1, 16)}
            v_and_b32 v{old}, v{old}, v{bit}
            s_waitcnt lgkmcnt({1 if inline else 0})
            v_mfma_f32_32x32x16_bf16 {vr(D2, 16)}, {vr(A3b, 4)}, {vr(AY, 4)}, {vr(D2, 16)}
            """)
            a(check)
            a("s_nop 4")
            for j in range(4):
                a(f"v_cvt_pk_bf16_f32 v{AX + j}, v{D2 + 2 * j}, v{D2 + 2 * j + 1}")
        a(f"""
        {"" if nrm else f"ds_write_b128 v{aX}, {vr(AX, 4)}"}
        s_mov_b32 exec_lo, s{sACQ + 1}
        s_mov_b32 exec_hi, s{sACQ + 1}
        """)
        if va:
            addhalf(AY, 8)
        else:
            for j in range(4):
                a(f"v_cvt_pk_bf16_f32 v{AY + j}, v{D2 + 8 + 2 * j}, v{D2 + 8 + 2 * j + 1}")
        a(f"""
        {"" if nrm else f"ds_write_b128 v{aY}, {vr(AY, 4)}"}
        s_mov_b64 exec, {sr(sACQ, 2)}
        {"" if nrm else f"ds_xor_b32 v{la}, v{bit}"}
        {f"s_setprio {OPT['pbase']}" if OPT["prio"] else ""}
        s_mov_b64 exec, -1
        s_cbranch_scc1 P2_full{u}
        """)
        if inline:
            a(f"P2_fullr{u}:")
            cold.append(f"""
            P2_full{u}:
            s_mov_b64 {sr(M, 2)}, {sr(sF[buf], 2)}
            s_call_b64 {sr(sRET2, 2)}, P2_rmw{buf}
            s_branch P2_fullr{u}
            """)
        else:
            a(f"""
            s_setpc_b64 {sr(sRET2, 2)}
            P2_full{u}:
            {guard}
            s_mov_b64 {sr(M, 2)}, {sr(sF[buf], 2)}
            s_branch P2_rmw{buf}
            """)

    def slow_push(buf, slot):
        uid[0] += 1
        u = uid[0]
        d0, d1, d2 = RB[buf], RB[buf] + 1, RB[buf] + 2
        if slot == 0:
            s = f"""
            v_cmp_lt_u32 {sr(sM0, 2)}, v{RD[buf]}, v{RL[buf]}
            v_lshlrev_b32 v{t[11]}, 16, v{d1}
            """
            w, an = d0, t[11]
        else:
            s = f"""
            v_add_u32 v{t[11]}, 1, v{RD[buf]}
            v_cmp_lt_u32 {sr(sM0, 2)}, v{t[11]}, v{RL[buf]}
            """
            w, an = d2, d1
        return s + f"""
        P2_push{u}:
        s_bcnt1_i32_b64 s{sN0}, {sr(sM0, 2)}
        s_add_u32 s{sT0}, s{sCNT}, s{sN0}
        s_cmp_le_u32 s{sT0}, {RING_CAP}
        s_cbranch_scc1 P2_pok{u}
        s_call_b64 {sr(sRET, 2)}, P2_pop{buf}
        s_branch P2_push{u}
        P2_pok{u}:
        v_mbcnt_lo_u32_b32 v{t[4]}, s{sM0}, 0
        v_mbcnt_hi_u32_b32 v{t[4]}, s{sM0 + 1}, v{t[4]}
        v_lshl_add_u32 v{t[4]}, v{t[4]}, 3, s{sTOP}
        s_mov_b64 exec, {sr(sM0, 2)}
        ds_write2_b32 v{t[4]}, v{w}, v{an} offset1:1
        s_mov_b64 exec, -1
        s_mov_b32 s{sCNT}, s{sT0}
        s_lshl3_add_u32 s{sTOP}, s{sN0}, s{sTOP}
        """

    def step(buf, peeled=False):
        uid[0] += 1
        u = uid[0]
        prev = buf ^ 1
        d0, d1, d2 = RB[buf], RB[buf] + 1, RB[buf] + 2
        a.c(f"---- step, buffer {buf}: compact the loaded records onto the stack")
        if OPT["rot"] and (OPT["rot"] == 1 or buf == 0):
            a(f"""
            s_add_u32 s82, s82, 1
            s_bitcmp1_b32 s82, 1
            s_cbranch_scc1 P2_prh{u}
            s_setprio 0
            s_bitcmp1_b32 s82, 0
            s_cbranch_scc0 P2_pre{u}
            s_setprio 1
            s_branch P2_pre{u}
            P2_prh{u}:
            s_setprio 2
            s_bitcmp1_b32 s82, 0
            s_cbranch_scc0 P2_pre{u}
            s_setprio 3
            P2_pre{u}:
            """)
        a(f"""
        {st(0)}
        s_waitcnt vmcnt({1 if peeled and buf == 0 else 3})
        {st(1)}
        v_cmp_lt_u32 {sr(sM0, 2)}, v{RD[buf]}, v{RL[buf]}
        v_add_u32 v{t[1]}, 1, v{RD[buf]}
        v_lshlrev_b32 v{t[2]}, 16, v{d1}
        v_cmp_lt_u32 {sr(sM1, 2)}, v{t[1]}, v{RL[buf]}
        s_bcnt1_i32_b64 s{sN0}, {sr(sM0, 2)}
        v_mbcnt_lo_u32_b32 v{t[0]}, s{sM0}, 0
        s_bcnt1_i32_b64 s{sN}, {sr(sM1, 2)}
        v_mbcnt_hi_u32_b32 v{t[0]}, s{sM0 + 1}, v{t[0]}
        v_mbcnt_lo_u32_b32 v{t[1]}, s{sM1}, 0
        s_add_u32 s{sT0}, s{sCNT}, s{sN0}
        v_mbcnt_hi_u32_b32 v{t[1]}, s{sM1 + 1}, v{t[1]}
        s_add_u32 s{sT0}, s{sT0}, s{sN}
        s_lshl3_add_u32 s{sT1}, s{sN0}, s{sTOP}
        v_lshl_add_u32 v{t[0]}, v{t[0]}, 3, s{sTOP}
        s_cmp_lg_u64 {sr(sLONG[buf], 2)}, 0
        s_cselect_b32 s{sT2}, 0, {RING_CAP + 1}
        v_lshl_add_u32 v{t[1]}, v{t[1]}, 3, s{sT1}
        s_cmp_ge_u32 s{sT0}, s{sT2}
        s_cbranch_scc1 {f"P2_alt{buf}" if peeled else f"P2_slow{u}"}
        s_mov_b64 exec, {sr(sM0, 2)}
        ds_write2_b32 v{t[0]}, v{d0}, v{t[2]} offset1:1
        s_mov_b64 exec, {sr(sM1, 2)}
        ds_write2_b32 v{t[1]}, v{d2}, v{d1} offset1:1
        s_mov_b64 exec, -1
        s_mov_b32 s{sCNT}, s{sT0}
        P2_slowr{u}:
        """)
        if peeled:
            a(pop_issue(buf))
            a("s_waitcnt lgkmcnt(0)")
            prep(buf, gathers(buf), False)
            a(coschain(buf))
            a("s_nop 0")
            a(cospack(buf))
            return
        cold.append(f"P2_slow{u}:\n" + slow_push(buf, 0) + slow_push(buf, 1) + f"""
        P2_long{u}:
        v_add_u32 v{RD[buf]}, {2 * LPS}, v{RD[buf]}
        v_add_u32 v{RA[buf]}, {12 * LPS}, v{RA[buf]}
        v_cmp_lt_i32 vcc, v{RD[buf]}, v{RL[buf]}
        s_cbranch_vccz P2_slowr{u}
        s_nop 0
        v_cndmask_b32 v{t[4]}, v{vOOB}, v{RA[buf]}, vcc
        buffer_load_dwordx3 {vr(RB[buf], 3)}, v{t[4]}, {sr(S_REC, 4)}, s{sCOB[buf]} offen
        s_waitcnt vmcnt(0)
        """ + slow_push(buf, 0) + slow_push(buf, 1) + f"s_branch P2_long{u}\n")
        if OPT["x_nopop"]:
            a(f"s_mov_b32 s{sCNT}, 0\ns_mov_b32 s{sTOP}, s{sRB}")
            prep(buf)
            for k in range(2):
                a(f"buffer_load_dword v{vDUM}, v{vOOB}, {sr(S_REC, 4)}, 0 offen")
            a("s_waitcnt lgkmcnt(0)")
            return
        a(pop_issue(buf))
        a(rbf_read(prev))
        prep(buf, lg(2) + "\n" + st(2) + "\n" + gathers(buf))
        a(st(3))
        a(lg(1))
        if OPT["x_nocore"]:
            a("s_waitcnt vmcnt(4) lgkmcnt(0)")
            a(f"s_mov_b64 {sr(sM[buf], 2)}, 0")
        else:
            a(gate(prev))
            a("s_waitcnt vmcnt(4)")
            a(st(4))
            a(fixup(prev))
            core_a(prev, coschain(buf), cospack(buf))
            core_b(prev, True)
        if OPT["lag"]:
            a(f"""
            s_waitcnt lgkmcnt(3)
            v_readfirstlane_b32 s{sT1}, v{t[10]}
            {spf() if OPT["spf"] else ""}
            s_mov_b64 exec, 1
            s_add_u32 s83, s83, 16
            ds_inc_u32 v{vH16}, v{vOOB} offset:784
            s_mov_b64 exec, -1
            s_cmp_lt_i32 s{sT1}, s83
            s_cbranch_scc1 P2_poll{u}
            """)
            if OPT["dynp"]:
                a(f"""
                s_sub_u32 s{sT1}, s{sT1}, {OPT["dynp"]}
                s_cmp_lt_i32 s{sT1}, s83
                s_cbranch_scc1 P2_pollr{u}
                s_setprio 2
                """)
            a(f"P2_pollr{u}:")
            cold.append(f"""
            P2_poll{u}:
            s_setprio 0
            s_mov_b64 exec, 1
            ds_read_b32 v{t[10]}, v{vH16} offset:784
            s_mov_b64 exec, -1
            s_waitcnt lgkmcnt(0)
            v_readfirstlane_b32 s{sT1}, v{t[10]}
            s_cmp_ge_i32 s{sT1}, s83
            s_setprio {OPT['pbase']}
            s_cbranch_scc1 P2_pollr{u}
            {f"s_sleep {OPT['sleep']}" if OPT['sleep'] else ''}
            {f"s_sub_u32 s{sG}, s{sG}, 1" if OPT["guard"] else ""}
            {"s_cbranch_scc1 P2_done" if OPT["guard"] else ""}
            s_branch P2_poll{u}
            """)
        if STAMP:
            a("s_waitcnt lgkmcnt(0)")
            a("s_sub_u32 s96, s60, s74\ns_add_u32 s84, s84, s96")
            a("s_memtime s[74:75]\ns_waitcnt lgkmcnt(0)")
            for i in range(7):
                a(f"s_sub_u32 s96, s{62 + 2 * i}, s{60 + 2 * i}\ns_add_u32 s{85 + i}, s{85 + i}, s96")

    if OPT["peel"]:
        a.c("the first halves of the first steps run before the rest of the setup, so that their gathers are under way")
        stamp = "s_memrealtime s[60:61]\ns_memtime s[72:73]\ns_waitcnt lgkmcnt(0)" if OPT["stamp2"] else ""
        done1 = f"""
        s_mov_b64 exec, 1
        s_add_u32 s83, s83, 16
        ds_inc_u32 v{vH16}, v{vOOB} offset:784
        s_mov_b64 exec, -1
        """ if OPT["lag"] else ""
        step(0, True)
        if OPT["peel"] == 2:
            step(1, True)
            a(f"""
            s_call_b64 {sr(sRET2, 2)}, P2_tail
            {stamp}
            {rbf_read(0)}
            {done1}
            s_mov_b32 s{sK}, 2
            s_waitcnt lgkmcnt(0)
            """)
            a(gate(0))
            a("s_waitcnt vmcnt(4)")
            a(fixup(0))
            core_a(0, "s_nop 6")
            a(f"""
            s_call_b64 {sr(sRET2, 2)}, P2_rmw0
            {done1}
            s_branch P2_loop
            P2_alt1:
            """)
        a(f"""
        s_call_b64 {sr(sRET2, 2)}, P2_tail
        {stamp}
        {done1}
        s_branch P2_step1
        P2_tail:
        """)
        prologue_tail()
        a(f"""
        s_setpc_b64 {sr(sRET2, 2)}
        P2_alt0:
        s_call_b64 {sr(sRET2, 2)}, P2_tail
        """)
    if OPT["stamp2"]:
        a("s_memrealtime s[60:61]\ns_memtime s[72:73]\ns_waitcnt lgkmcnt(0)")
    if STAMP:
        for i in range(8):
            a(f"s_mov_b32 s{84 + i}, 0")
        a("s_memtime s[74:75]")
    if OPT["x_fake"]:
        a(f"s_lshl_b32 s98, s2, 10\nv_add_u32 v{D1}, s98, v0\nv_mul_lo_u32 v{D1}, v{D1}, v{D1}\nv_add_u32 v{D1}, v{D1}, v0")
    a("P2_loop:")
    if OPT["phase_bar"]:
        a(f"""
        s_add_u32 s{sT0}, s{sK}, s3
        s_and_b32 s{sT0}, s{sT0}, 7
        s_cbranch_scc1 P2_nobar
        s_barrier
        P2_nobar:
        """)
    a(f"""
    {f"s_cmp_eq_u32 s{sK}, {NSTEP - OPT['endn']}" if OPT["endn"] else ""}
    {f"s_cselect_b32 s{sT0}, {OPT['endd']}, 0" if OPT["endn"] else ""}
    {f"s_add_u32 s83, s83, s{sT0}" if OPT["endn"] else ""}
    {"" if OPT["xpop"] else f"s_cmp_lt_u32 s{sK}, {NSTEP - 2}"}
    {"" if OPT["xpop"] else f"s_cselect_b32 s{sCAP}, {OPT['lim']}, 0"}
    """)
    step(0)
    a("P2_step1:")
    step(1)
    a(f"""
    s_add_u32 s{sK}, s{sK}, 2
    s_cmp_lt_u32 s{sK}, {NSTEP}
    s_cbranch_scc1 P2_loop
    """)
    if STAMP:
        a(f"""
        s_lshl_b32 s96, s2, 4
        s_add_u32 s96, s96, s{sW}
        s_lshl_b32 s96, s96, 6
        s_add_u32 s6, s6, {16 << 20}
        s_addc_u32 s7, s7, 0
        """)
        srd(a, S_DST, 6, 1 << 20)
        a(f"v_mov_b32 v{t[0]}, 0")
        for i in range(8):
            a(f"v_mov_b32 v{t[1]}, s{84 + i}")
            a(f"buffer_store_dword v{t[1]}, v{t[0]}, {sr(S_DST, 4)}, s96 offen offset:{4 * i}")
        a("s_waitcnt vmcnt(0)")
    if OPT["stamp2"]:
        a("s_memrealtime s[62:63]\ns_memtime s[74:75]\ns_waitcnt lgkmcnt(0)\ns_sub_u32 s72, s74, s72")
    a.c("fetch the epilogue's operands and the bucket's own m rows; finish the last pop; empty the stack")
    MP = [TT, RB[0], RB[1], RL[0], GP[1], GQ[1], WA[0]]
    XP = OPT["xpop"]
    assert not XP or OPT["valu_add"]
    A1, A2, A3, DX, DY, SX, SY = (A3b, vBP, A3a, D1, D2, A2a, A2b) if XP else (GP[0], GQ[0], A3a, D1, D2, A2a, A2b)
    vMO = vE
    if XP:
        a(f"s_mov_b32 s{sCAP}, 0")
        a(pop_issue(0))
    a(f"""
    v_and_b32 v{t[0]}, 31, v{vLANE}
    v_lshrrev_b32 v{t[1]}, 5, v{vLANE}
    v_lshlrev_b32 v{t[1]}, 4, v{t[1]}
    s_lshl_b32 s{sT0}, s{sW}, 10
    v_lshl_add_u32 v{vMO}, v{t[0]}, 5, v{t[1]}
    v_add_u32 v{vMO}, s{sT0}, v{vMO}
    s_mul_i32 s{sCO}, s{sB}, {EB * 32}
    s_mov_b32 s{sJ}, s{sCO}
    v_lshlrev_b32 v{t[0]}, 4, v{vLANE}
    s_mov_b32 s{sT0}, {TAB_BYTES + 1024 * 6}
    s_mov_b32 s{sT1}, {TAB_BYTES + 1024 * 7}
    {rbf_read(1)}
    """)
    if XP:
        a("s_waitcnt lgkmcnt(1)")
        a(gathers(0))
    a(f"""
    buffer_load_dwordx4 {vr(A1, 4)}, v{t[0]}, {sr(S_TAB, 4)}, s{sT0} offen
    buffer_load_dwordx4 {vr(A2, 4)}, v{t[0]}, {sr(S_TAB, 4)}, s{sT1} offen
    buffer_load_dwordx4 {vr(MP[0], 4)}, v{vMO}, {sr(S_M, 4)}, s{sJ} offen
    s_add_u32 s{sJ}, s{sJ}, 16384
    s_waitcnt lgkmcnt(0)
    """)
    a(gate(1))
    a(f"s_waitcnt vmcnt({5 if XP else 3})")
    for i in range(1, 4):
        a(f"buffer_load_dwordx4 {vr(MP[i], 4)}, v{vMO}, {sr(S_M, 4)}, s{sJ} offen")
        a(f"s_add_u32 s{sJ}, s{sJ}, 16384")
    a(fixup(1))
    if XP:
        core_a(1, coschain(0), cospack(0))
    else:
        core_a(1, "s_nop 6")
    a(f"s_call_b64 {sr(sRET2, 2)}, P2_rmw1")
    if XP:
        a(f"""
        s_cmp_eq_u64 {sr(sM[0], 2)}, 0
        s_cbranch_scc1 P2_drain
        {rbf_read(0)}
        s_waitcnt lgkmcnt(0)
        """)
        a(gate(0))
        a("s_waitcnt vmcnt(6)")
        a(fixup(0))
        core_a(0, "s_nop 6")
        a(f"s_call_b64 {sr(sRET2, 2)}, P2_rmw0")
    a(f"""
    P2_drain:
    s_cmp_eq_u32 s{sCNT}, 0
    s_cbranch_scc1 P2_epi
    s_call_b64 {sr(sRET, 2)}, P2_pop1
    s_branch P2_drain
    P2_epi:
    """)
    for i in range(4, 7):
        a(f"buffer_load_dwordx4 {vr(MP[i], 4)}, v{vMO}, {sr(S_M, 4)}, s{sJ} offen")
        a(f"s_add_u32 s{sJ}, s{sJ}, 16384")
    if OPT["cntreq"]:
        a(f"""
        s_load_dwordx2 s[60:61], s[0:1], 96
        s_waitcnt lgkmcnt(0)
        v_mov_b32 v{t[0]}, s95
        v_mov_b32 v{t[1]}, 0
        s_mov_b64 exec, 1
        global_atomic_add v{t[1]}, v{t[0]}, s[60:61]
        s_mov_b64 exec, -1
        s_waitcnt vmcnt(0)
        """)
    a(f"""
    s_lshl_b32 s{sT0}, s{sW}, 9
    s_mov_b32 s{sT2}, {L_ACC0}
    v_and_b32 v{t[1]}, 31, v{vLANE}
    v_lshlrev_b32 v{t[1]}, 4, v{t[1]}
    v_add_u32 v{t[1]}, s{sT0}, v{t[1]}
    v_lshrrev_b32 v{t[0]}, 5, v{vLANE}
    v_mul_u32_u24 v{t[0]}, {EB * 16}, v{t[0]}
    v_add3_u32 v{t[0]}, v{t[0]}, v{t[1]}, s{sT2}
    s_waitcnt vmcnt(3) lgkmcnt(0)
    """)
    if OPT["stamp2"]:
        a("s_memrealtime s[64:65]\ns_waitcnt lgkmcnt(0)")
    a("s_barrier")
    if OPT["stamp2"]:
        a("s_memrealtime s[66:67]\ns_waitcnt lgkmcnt(0)")
    a.c("epilogue: out = m + (agg @ w_up) * (rbf @ w_rbf), 32 edges per pass, two passes at a time")
    OBX, OBY = TF, (O[0] if XP else A3b)

    EB_ = [(AX, SX, AY, SY), (A1a, A1b, GP[0], GQ[0]) if XP else (A1a, A1b, vBP, t[5])]
    assert t[5] % 2 == 0

    def epi_reads(groups, st_):
        for (i, va), (Ac, Sb) in zip(groups, (EB_[st_][0:2], EB_[st_][2:4])):
            a(f"ds_read_b128 {vr(Ac, 4)}, v{t[0]} offset:{8192 * i}")
            a(f"ds_read_b128 {vr(Sb, 4)}, v{t[1]} offset:{L_RBF + 8192 * i}")

    def epi(groups, st_, nxt):
        regs = [(DX,) + EB_[st_][0:2] + (OBX,), (DY,) + EB_[st_][2:4] + (OBY,)]
        n = len(groups)
        for k, ((i, va), (Dd, Ac, Sb, Ob)) in enumerate(zip(groups, regs)):
            a(f"s_waitcnt lgkmcnt({2 * (n - 1 - k)})")
            a(f"v_mfma_f32_32x32x16_bf16 {vr(Dd, 16)}, {vr(A1, 4)}, {vr(Ac, 4)}, 0")
            a(f"v_mfma_f32_32x32x16_f16 {vr(Dd, 16)}, {vr(A2, 4)}, {vr(Sb, 4)}, {vr(Dd, 16)}")
        if nxt:
            epi_reads(nxt, st_ ^ 1)
        done = 2 * len(nxt) if nxt else 0
        a(f"s_nop {11 - done - (3 if n == 2 else 0)}")
        for k, ((i, va), (Dd, Ac, Sb, Ob)) in enumerate(zip(groups, regs)):
            for j in range(0, 8, 2):
                a(f"v_pk_mul_f32 {vr(Dd + j, 2)}, {vr(Dd + j, 2)}, {vr(Dd + 8 + j, 2)}")
            if OPT["x_err"]:
                import struct
                cst = struct.unpack("<I", struct.pack("<f", 1 + OPT["x_err"] / 1000))[0]
                for j in range(8):
                    a(f"v_mul_f32 v{Dd + j}, {cst:#x}, v{Dd + j}")
        a({4: "s_waitcnt vmcnt(5)", 6: "s_waitcnt vmcnt(6)"}.get(groups[0][0], "s_nop 0"))
        if n == 1:
            a("s_nop 0")
        for (i, va), (Dd, Ac, Sb, Ob) in zip(groups, regs):
            a(f"v_mfma_f32_32x32x16_bf16 {vr(Dd, 16)}, {vr(A3, 4)}, {vr(MP[i], 4)}, {vr(Dd, 16)}")
        a(f"s_nop {11 - (n - 1)}")
        for (i, va), (Dd, Ac, Sb, Ob) in zip(groups, regs):
            for j in range(4):
                a(f"v_cvt_pk_bf16_f32 v{Ob + j}, v{Dd + 2 * j}, v{Dd + 2 * j + 1}")
            a(f"buffer_store_dwordx4 {vr(Ob, 4)}, v{va}, {sr(S_OUT, 4)}, s{sCO} offen{nto}")
            a(f"s_add_u32 s{sCO}, s{sCO}, 16384")

    gl = [[(i, vMO), (i + 1, vMO)] for i in (0, 2, 4)] + [[(6, t[2])]]
    epi_reads(gl[0], 0)
    for q in range(3):
        epi(gl[q], q & 1, gl[q + 1])
    if OPT["stamp2"]:
        a(f"""
        s_memrealtime s[84:85]
        s_waitcnt vmcnt(0) lgkmcnt(0)
        s_memrealtime s[86:87]
        s_lshl_b32 s98, s2, 4
        s_add_u32 s98, s98, s{sW}
        s_lshl_b32 s98, s98, 6
        s_add_u32 s6, s6, {16 << 20}
        s_addc_u32 s7, s7, 0
        s_waitcnt lgkmcnt(0)
        """)
        srd(a, S_TMP, 6, 1 << 20)
        a(f"v_mov_b32 v{t[5]}, 0")
        for i, r in enumerate([94, 60, 62, 64, 66, 84, 86, 72]):
            a(f"v_mov_b32 v{t[6]}, s{r}")
            a(f"buffer_store_dword v{t[6]}, v{t[5]}, {sr(S_TMP, 4)}, s98 offen offset:{4 * i}")
    a(f"""
    s_cmp_lt_u32 s{sW}, 2
    s_cbranch_scc0 P2_done
    v_cmp_gt_u32 vcc, {(EB - 6 * 512) * 32}, v{vMO}
    v_mov_b32 v{t[2]}, 0x7fffff00
    s_nop 0
    v_cndmask_b32 v{t[2]}, v{t[2]}, v{vMO}, vcc
    """)
    epi(gl[3], 1, None)
    a("P2_done:")
    a("s_endpgm")
    for buf in range(2):
        a.c(f"subroutine: pop up to 64 records into buffer {buf} and finish them")
        a(f"P2_pop{buf}:")
        if OPT["guard"]:
            a(f"s_sub_u32 s{sG}, s{sG}, 1\ns_cbranch_scc1 P2_done")
        a(pop_issue(buf))
        a("s_waitcnt lgkmcnt(0)")
        a(gathers(buf))
        a(coschain(buf))
        a(f"""
        {rbf_read(buf)}
        {cospack(buf)}
        s_mov_b64 {sr(sRET2, 2)}, {sr(sRET, 2)}
        s_waitcnt lgkmcnt(0)
        """)
        a(gate(buf))
        a("s_waitcnt vmcnt(0)")
        a(fixup(buf))
        core_a(buf, "s_nop 6")
        a(f"P2_rmw{buf}:")
        core_b(buf, False)
    for c in cold:
        a(c)
    kernel_desc(a, name, 128, 102)


DESCRIPTION = """

Two launches.
part_kernel: workgroup c takes triplets [50000c, 50000c+50000), keeps them in registers, counting-sorts them by
  key = slot(idx_in) * 256 + idx_out / 3125 (histogram, scan and ranks with integer LDS atomics) and writes them to
  d_ws as 6-byte records (idx_in << 12 | idx_out % 3125, angle) plus a table of (start, length) per key. slot() is
  the slice of m the row lies in, rotated per group of 32 buckets. One wave also lays the weights out as matrix operands.
main kernel: workgroup b owns the output edges [3125b, 3125b+3125): their sums (bf16) and radial basis (f16) live in
  LDS. Each wave walks its 16 chunks slot by slot, so all gathers of a moment fall in one L2-sized slice of m:
  load four segments, compact them on a small LDS stack, gather 64 rows, (m @ w_down) and (sbf @ w_sbf) on the
  matrix cores, multiply, and add to the sums under one lock bit per edge; a record whose lock was taken stays in
  its lane for the next round. A progress word in LDS keeps the waves of a workgroup in the same slice.
  Segments of any length and any number of records per edge take slower paths that give the same result.
  Epilogue: out = m + (sum @ w_up) * (rbf @ w_rbf).
"""


def build():
    assert OPT['lagoff'] + OPT['endd'] <= 16 * OPT['lag']
    assert OPT['stag'] != 3 or max((OPT['rotl'] >> (4 * q)) & 15 for q in range(4)) < OPT['ns']
    a = A()
    ref = open(f"cdna_kernels/{NAME}.s.ref").read().split("\n")
    for line in ref:
        if line.startswith("; Override"):
            break
        a.raw(line)
    if not OPT["only2"]:
        a.raw(f"; @launch kernel=part_kernel grid=({NB},1,1) block=(1024,1,1) lds={B_LDS if OPT['big'] else P1_LDS}")
    a.raw(f"; @launch kernel={NAME}_kernel grid=({NB},1,1) block=(1024,1,1) lds={P2_LDS}")
    for line in DESCRIPTION.strip("\n").split("\n"):
        a.raw(("; " + line).rstrip())
    a.raw('.amdgcn_target "amdgcn-amd-amdhsa--gfx950"')
    (gen_part_big if OPT["big"] else gen_part)(a, "part_kernel")
    gen_main(a, f"{NAME}_kernel")
    return a.text()


def main():
    out = f"cdna_kernels/{NAME}.s"
    for arg in sys.argv[1:]:
        if "=" in arg:
            k, v = arg.split("=")
            assert k in OPT, k
            OPT[k] = type(OPT[k])(int(v))
        else:
            out = arg
    open(out, "w").write(build())


if __name__ == "__main__":
    main()
```

```python
import sys

NAME = "gather_scatter__molecular_angular_gemnet__graph"
E = 800000
T = 12800000
NB = 256
EB = 3125
CH = 25000
NCH = 512
NS = 8
CHB = 150016
REC_BYTES = NCH * CHB
TAB_OFF = REC_BYTES
TAB_BYTES = NB * NCH * 32
OPS_OFF = TAB_OFF + TAB_BYTES

OPT = dict(
    nt_in=True,
    nt_rec=False,
    phase_bar=False,
    nt_out=False,
    x_nogather=False, x_normw=False, x_norec=False,
    pfq=0, ilv=0, edist=0, x_noinv=3, pollpos=1, fused=1, sigat=7, x_fuse=0, pfpar=0, pfd=0, j0s=0x3210, pfl=782, x_err=0, xpop=1, endn=0, endd=0, fuse=0, wb=0, bfair=0, adepth=1, h0=25984, depth=1, aearly=0, spl=4, big=1, only2=0, angl=1, bang=1, lim=24, x_lin=0, pbase=1, dynp=11, rexec=0, gexec=0, aslot=1, rotl=0x3a07, pfx=4, tabc=1, sleep=0, pfp1=0, peel=1, pfg=1, stm=1, stmb=1, outm=2, pfw=2, pfpos=1, pffirst=0, spf=0, pfs=1, pfn=0, mimic=0, pf0=0, valu_add=1, early=1, stpos=2, stag=3, pfm=2, slide=0, ns=13, bdelay=0, stamp1=0, stamp2=0, lag=1, lagoff=0, cntreq=0, rot=0, rotshift=2, stamp=False, pkf32=True, x_fake=0, x_nocore=0, x_recx4=0, x_nomfma=0, x_nopop=0, prio=True, lock_pos=2,
    guard=False,
)


class A:
    def __init__(self):
        self.l = []

    def __call__(self, s=""):
        for line in s.split("\n"):
            line = line.strip()
            if line:
                if line.endswith(":"):
                    self.l.append(line)
                else:
                    self.l.append("    " + line)

    def c(self, s):
        self.l.append("    ; " + s)

    def raw(self, s):
        self.l.append(s)

    def text(self):
        return "\n".join(self.l) + "\n"


def vr(a, n):
    return f"v[{a}:{a + n - 1}]"


def sr(a, n):
    return f"s[{a}:{a + n - 1}]"


def srd(a, dst, base, nbytes, stride=0):
    a(f"s_mov_b32 s{dst}, s{base}")
    a(f"s_and_b32 s{dst + 1}, s{base + 1}, 0xffff")
    if stride:
        a(f"s_or_b32 s{dst + 1}, s{dst + 1}, {stride << 16:#x}")
    a(f"s_mov_b32 s{dst + 2}, {nbytes}")
    a(f"s_mov_b32 s{dst + 3}, 0x20000")


def kernel_head(a, name):
    a.raw(".text")
    a.raw(f".globl {name}")
    a.raw(".p2align 8")
    a.raw(f".type {name},@function")
    a.raw(f"{name}:")


def kernel_desc(a, name, vgpr, sgpr):
    a.raw('.section .rodata,"a"')
    a.raw(".p2align 6")
    a.raw(f".amdhsa_kernel {name}")
    a.raw(f"  .amdhsa_next_free_vgpr {vgpr}")
    a.raw(f"  .amdhsa_next_free_sgpr {sgpr}")
    a.raw(f"  .amdhsa_accum_offset {(vgpr + 3) // 4 * 4}")
    a.raw("  .amdhsa_group_segment_fixed_size 0")
    a.raw("  .amdhsa_kernarg_size 112")
    a.raw("  .amdhsa_user_sgpr_count 2")
    a.raw("  .amdhsa_user_sgpr_kernarg_segment_ptr 1")
    a.raw("  .amdhsa_system_sgpr_workgroup_id_x 1")
    a.raw(".end_amdhsa_kernel")


P1_CNT = 16
P1_PART = P1_CNT + 8192
P1_REC = P1_PART + 64
P1_LDS = 158720


def builder(a, W, lane, f2, e0, e1, x0, x2, OPR, sW, sT0, S_TAB, first_loads, nyoung):
    a.c("one wave also prepares the matrix operands of part 2")
    W1, W2, W3, W4 = W
    a(f"""
    s_lshl_b32 s{sT0}, s2, 4
    s_add_u32 s68, s{sT0}, s{sW}
    s_cmp_eq_u32 s68, 15
    s_cbranch_scc0 P1_now
    s_load_dwordx4 s[72:75], s[0:1], 56
    s_load_dwordx4 s[76:79], s[0:1], 72
    v_and_b32 v{lane}, 63, v0
    v_and_b32 v{e0}, 3, v0
    v_bfe_u32 v{e1}, v0, 2, 1
    v_lshl_add_u32 v{e0}, v{e1}, 3, v{e0}
    v_bfe_u32 v{e1}, v0, 3, 1
    v_lshl_add_u32 v{e0}, v{e1}, 2, v{e0}
    v_lshlrev_b32 v{f2}, 1, v{e0}
    v_lshrrev_b32 v{e1}, 5, v{lane}
    v_lshl_add_u32 v{e1}, v{e1}, 8, v{f2}
    s_waitcnt lgkmcnt(0)
    """)
    for (Wx, n, p, nbytes, va) in ((W1, 16, 76, 512, f2), (W2, 16, 74, 512, f2), (W3, 8, 78, 512, e1), (W4, 8, 72, 256, f2)):
        srd(a, 80, p, nbytes)
        for j in range(n):
            a(f"buffer_load_ushort v{Wx + j}, v{va}, {sr(80, 4)}, 0 offen offset:{32 * j}")
    a("P1_now:")
    first_loads()
    a(f"""
    s_cmp_eq_u32 s68, 15
    s_cbranch_scc0 P1_noop
    s_waitcnt vmcnt({nyoung})
    """)

    def scale_exp(Wf, n):
        a(f"v_max3_f32 v{e0}, abs(v{Wf}), abs(v{Wf + 1}), abs(v{Wf + 2})")
        for j in range(3, n - 1, 2):
            a(f"v_max3_f32 v{e0}, v{e0}, abs(v{Wf + j}), abs(v{Wf + j + 1})")
        a(f"""
        v_max_f32 v{e0}, v{e0}, abs(v{Wf + n - 1})
        v_bfe_u32 v{e0}, v{e0}, 23, 8
        v_cmp_eq_u32 vcc, 0, v{e0}
        v_sub_u32 v{e0}, 141, v{e0}
        s_nop 0
        v_cndmask_b32 v{e0}, v{e0}, 0, vcc
        v_sub_u32 v{e1}, 0, v{e0}
        """)

    def put(k, cvt, srcs, mask):
        for j in range(4):
            a(f"{cvt} v{OPR + j}, v{srcs[2 * j]}, v{srcs[2 * j + 1]}")
        for j in range(4):
            a(f"v_cndmask_b32 v{OPR + j}, 0, v{OPR + j}, {sr(mask, 2)}")
        a(f"""
        s_mov_b32 s{sT0}, {TAB_BYTES + 1024 * k}
        buffer_store_dwordx4 {vr(OPR, 4)}, v{x2}, {sr(S_TAB, 4)}, s{sT0} offen{" sc1" if OPT["fused"] else ""}
        s_nop 1
        """)

    for Wx, n in zip(W, (16, 16, 8, 8)):
        for j in range(n):
            a(f"v_lshlrev_b32 v{Wx + j}, 16, v{Wx + j}")
    mDIAG, mLO, mHI, mRB = 72, 74, 76, 78
    a(f"""
    v_lshrrev_b32 v{x0}, 1, v{lane}
    v_xor_b32 v{x0}, v{x0}, v{lane}
    v_and_b32 v{x0}, 16, v{x0}
    v_cmp_eq_u32 {sr(mDIAG, 2)}, 0, v{x0}
    v_and_b32 v{x0}, 16, v{lane}
    v_cmp_eq_u32 {sr(mLO, 2)}, 0, v{x0}
    v_cmp_eq_u32 {sr(mHI, 2)}, 16, v{x0}
    v_and_b32 v{x0}, 48, v{lane}
    v_cmp_eq_u32 {sr(mRB, 2)}, 16, v{x0}
    v_lshlrev_b32 v{x2}, 4, v{lane}
    """)
    scale_exp(W2, 16)
    for j in range(16):
        a(f"v_ldexp_f32 v{W2 + j}, v{W2 + j}, v{e0}")
        a(f"v_ldexp_f32 v{W1 + j}, v{W1 + j}, v{e1}")
    scale_exp(W4, 8)
    for j in range(8):
        a(f"v_ldexp_f32 v{W4 + j}, v{W4 + j}, v{e0}")
        a(f"v_ldexp_f32 v{W3 + j}, v{W3 + j}, v{e1}")
    bf, hf = "v_cvt_pk_bf16_f32", "v_cvt_pk_f16_f32"
    a.c("block diagonal: rows < 16 act on lanes < 32, rows >= 16 on lanes >= 32")
    put(0, bf, [W1 + j for j in range(8)], mDIAG)
    put(1, bf, [W1 + 8 + j for j in range(8)], mDIAG)
    put(2, hf, [W2 + 2 * j for j in range(8)], mDIAG)
    put(3, hf, [W2 + 2 * j + 1 for j in range(8)], mDIAG)
    put(6, bf, [W3 + j for j in range(8)], mLO)
    put(7, hf, [W4 + j for j in range(8)], mRB)
    a.c("identity: row i has a one at k = f(i & 15)")
    a(f"""
    v_lshrrev_b32 v{e0}, 1, v{f2}
    v_lshrrev_b32 v{e1}, 5, v{lane}
    v_lshlrev_b32 v{e1}, 3, v{e1}
    v_sub_u32 v{e0}, v{e0}, v{e1}
    """)
    for j in range(8):
        a(f"""
        v_cmp_eq_u32 vcc, {j}, v{e0}
        s_nop 1
        v_cndmask_b32 v{W1 + j}, 0, 1.0, vcc
        """)
    put(4, bf, [W1 + j for j in range(8)], mLO)
    put(5, bf, [W1 + j for j in range(8)], mHI)
    a("P1_noop:")


CH2 = 50000
B_CNT = 16
B_PART = B_CNT + 16384
B_LDS = 163840


def gen_part_big(a, name):
    nt = " nt" if OPT["nt_in"] else ""
    STM = [["", " sc1", " nt", " sc0 sc1", " sc1 nt"][OPT[k]] for k in ("stm", "stmb")]
    NS_ = OPT["ns"]
    NT = CH2 - 12 * 4096
    H0 = OPT['h0']
    assert H0 % 8 == 0 and H0 * 6 <= B_LDS and (CH2 - H0) * 6 > 8 * 16384
    HALF = H0 * 6
    NQ = [H0 * 6 // 16, (CH2 - H0) * 6 // 16]
    FU = OPT["fuse"]
    CB_ = B_LDS - NS_ * 1024 if FU else 0
    CO_ = 0 if FU else B_CNT
    PB_ = CB_ - 80 if FU else B_PART
    assert not FU or HALF <= PB_
    sCB = 30
    S_IN, S_OUT, S_ANG, S_REC, S_TAB = 8, 12, 16, 20, 24
    sMAG, sNEG, sHI, sOFF = 28, 29, 31, 32
    sOI, sOA = 33, 34
    sW, sT0, sT1 = 35, 36, 37
    sEX = 40
    sLUT, sST = 46, 47
    stn = [0]

    def st1():
        if OPT["stamp1"]:
            a(f"s_memrealtime s[{48 + 2 * stn[0]}:{49 + 2 * stn[0]}]\ns_waitcnt lgkmcnt(0)")
            stn[0] += 1
    vT16, vONE, vX = 1, 2, 3
    tmp = list(range(4, 12))
    G, G6, O6, I6, vT8 = 12, 28, 29, 30, 31
    O, I = 32, 80

    kernel_head(a, name)
    a(f"""
    s_cmp_ge_u32 s2, {NB}
    s_cbranch_scc1 {"P2_done" if OPT["fused"] else "P1_done"}
    s_load_dwordx4 s[4:7], s[0:1], 8
    s_load_dwordx2 s[42:43], s[0:1], 32
    s_load_dwordx2 s[44:45], s[0:1], 104
    s_load_dwordx2 s[70:71], s[0:1], 0
    s_load_dwordx2 s[84:85], s[0:1], 24
    s_load_dwordx2 s[86:87], s[0:1], 96
    v_lshlrev_b32 v{vT16}, 4, v0
    v_lshlrev_b32 v{vT8}, 3, v0
    v_mov_b32 v{vONE}, 1
    v_mov_b32 v{vX}, 0x7fffff00
    s_mov_b32 s{sMAG}, 1374390
    s_mov_b32 s{sNEG}, {-EB}
    s_mov_b32 s{sHI}, 0xffff0000
    s_mov_b32 s{sOFF}, {-HALF}
    v_lshrrev_b32 v8, 6, v0
    v_mov_b32 v4, 0
    v_mov_b32 v5, 0
    v_mov_b32 v6, 0
    v_mov_b32 v7, 0
    v_readfirstlane_b32 s{sW}, v8
    s_mov_b32 s{sCB}, {CB_}
    v_add_u32 v9, {CB_}, v{vT16}
    v_mov_b32 v10, {CB_ + CO_ - 4}
    ds_write_b128 v9, v[4:7] offset:{CO_}
    ds_write_b32 v10, v4
    s_waitcnt lgkmcnt(0)
    """)
    srd(a, S_IN, 4, T * 4)
    srd(a, S_OUT, 6, T * 4)
    srd(a, S_ANG, 42, T * 2)
    srd(a, S_REC, 44, REC_BYTES)
    a(f"s_add_u32 s44, s44, {TAB_OFF}")
    a("s_addc_u32 s45, s45, 0")
    srd(a, S_TAB, 44, TAB_BYTES + 8192)
    PAT = 0
    for j in range(4):
        for q in range(4):
            j0 = (OPT["j0s"] >> (4 * q)) & 15
            PAT |= (((OPT["rotl"] >> (4 * q)) & 15) + (j >= 4 - j0)) << (16 * j + 4 * q)
    a.c("slice rotation per group of 32 buckets (one nibble each); depends on the step that will read this chunk")
    a(f"""
    s_bfe_u32 s{sT0}, s2, {(2 << 16) | 2}
    s_lshl_b32 s{sT0}, s{sT0}, 4
    s_mov_b32 s72, {PAT & 0xffffffff:#x}
    s_mov_b32 s73, {PAT >> 32:#x}
    s_lshr_b64 s[72:73], s[72:73], s{sT0}
    s_and_b32 s{sLUT}, s72, 0xffff
    s_mul_i32 s{sLUT}, s{sLUT}, 0x10001
    s_mul_i32 s{sOI}, s2, {CH2 * 4}
    s_mul_i32 s{sOA}, s2, {CH2 * 2}
    """)
    vmq = []

    def vm_wait(tag):
        last = max(i for i, x in enumerate(vmq) if x == tag)
        a(f"s_waitcnt vmcnt({len(vmq) - 1 - last})")

    def tail_addr(sh):
        a(f"""
        v_cmp_gt_u32 vcc, {NT}, v0
        v_lshlrev_b32 v{tmp[7]}, {sh}, v0
        s_nop 0
        v_cndmask_b32 v{tmp[7]}, v{vX}, v{tmp[7]}, vcc
        """)

    def issue_idx(r):
        vmq.extend([("i", r)] * 2)
        if r < 12:
            a(f"""
            buffer_load_dwordx4 {vr(O + 4 * r, 4)}, v{vT16}, {sr(S_OUT, 4)}, s{sOI} offen{nt}
            buffer_load_dwordx4 {vr(I + 4 * r, 4)}, v{vT16}, {sr(S_IN, 4)}, s{sOI} offen{nt}
            s_add_u32 s{sOI}, s{sOI}, 16384
            """)
        else:
            tail_addr(2)
            a(f"""
            buffer_load_dword v{O6}, v{tmp[7]}, {sr(S_OUT, 4)}, s{sOI} offen{nt}
            buffer_load_dword v{I6}, v{tmp[7]}, {sr(S_IN, 4)}, s{sOI} offen{nt}
            """)

    def issue_ang(r):
        vmq.append(("a", r))
        if r < 12:
            a(f"""
            buffer_load_dwordx2 {vr(G + 2 * (r & 7), 2)}, v{vT8}, {sr(S_ANG, 4)}, s{sOA} offen{nt}
            s_add_u32 s{sOA}, s{sOA}, 8192
            """)
        else:
            tail_addr(1)
            a(f"""
            s_mul_i32 s{sT0}, s2, {CH2 * 2}
            s_add_u32 s{sT0}, s{sT0}, {12 * 8192}
            buffer_load_ushort v{G6}, v{tmp[7]}, {sr(S_ANG, 4)}, s{sT0} offen{nt}
            """)

    def recs(r):
        if r < 12:
            return [(O + 4 * r + k, I + 4 * r + k, G + 2 * (r & 7) + (k >> 1), k & 1) for k in range(4)]
        return [(O6, I6, G6, 0)]

    def tail(r, lbl, body):
        if r < 12:
            body()
            return
        a(f"""
        v_cmp_gt_u32 vcc, {NT}, v0
        s_and_saveexec_b64 {sr(sEX, 2)}, vcc
        s_cbranch_execz {lbl}
        """)
        body()
        a(f"{lbl}:\ns_mov_b64 exec, {sr(sEX, 2)}")

    def pack(rs):
        for h in range(0, len(rs), 2):
            pr = rs[h:h + 2]
            for k, (o, i, g, hi) in enumerate(pr):
                a(f"v_mul_hi_u32_u24 v{tmp[k]}, s{sMAG}, v{o}")
                a(f"v_mul_u32_u24 v{tmp[2 + k]}, {(NS_ << 24) // E}, v{i}")
            for k, (o, i, g, hi) in enumerate(pr):
                tb, tc, u = tmp[k], tmp[2 + k], tmp[4 + k]
                a(f"""
                v_mad_i32_i24 v{o}, v{tb}, s{sNEG}, v{o}
                v_lshrrev_b32 v{u}, 5, v{tb}
                v_lshrrev_b32 v{tc}, 24, v{tc}
                v_lshlrev_b32 v{u}, 2, v{u}
                v_lshl_add_u32 v{tb}, v{tb}, 2, s{sCB}
                v_bfe_u32 v{u}, s{sLUT}, v{u}, 4
                v_lshl_or_b32 v{i}, v{i}, 12, v{o}
                v_sub_u32 v{tc}, v{tc}, v{u}
                v_add_u32 v{u}, {NS_}, v{tc}
                v_min_u32 v{tc}, v{tc}, v{u}
                v_lshl_add_u32 v{o}, v{tc}, 10, v{tb}
                ds_add_u32 v{o}, v{vONE} offset:{CO_}
                """)

    def wave_scan(v):
        for sh in (1, 2, 4, 8):
            a(f"s_nop 1\nv_add_u32_dpp v{v}, v{v}, v{v} row_shr:{sh} row_mask:0xf bank_mask:0xf bound_ctrl:0")

    ILV = OPT["fused"] and OPT["ilv"]
    bucket2 = f"""
    s_and_b32 s{sT0}, s2, 7
    s_lshl_b32 s{sT0}, s{sT0}, 5
    s_lshr_b32 s{sT1}, s2, 3
    s_add_u32 s{sT0}, s{sT0}, s{sT1}
    s_mul_i32 s{sT0}, s{sT0}, {EB * 2}
    """
    if ILV:
        a.c("touch the dist values this workgroup needs later")
        srd(a, 80, 84, E * 2)
        a(bucket2)
        a(f"""
        v_cmp_gt_u32 vcc, 50, v0
        v_lshlrev_b32 v{G6}, 7, v0
        s_and_b32 s{sT0}, s{sT0}, 0xffffff80
        v_cndmask_b32 v{G6}, v{vX}, v{G6}, vcc
        buffer_load_dword v{G6}, v{G6}, s[80:83], s{sT0} offen
        """)
    st1()
    D_ = OPT["depth"]
    assert D_ <= 4
    builder(a, (I + 16, I + 32, O + 16, O + 24), 4, 5, 6, 7, G, G + 1, 8, sW, sT0, S_TAB,
            lambda: [issue_idx(r) for r in range(D_)], 2 * D_)
    a("s_barrier")
    na = 0
    for r in range(13):
        vm_wait(("i", r))
        tail(r, "P1_pk", lambda: pack(recs(r)))
        if r + D_ < 13:
            issue_idx(r + D_)
        elif r < 12 and na < OPT["aearly"]:
            issue_ang(na)
            na += 1
    st1()
    c0, s_, inc, p, q = tmp[0], tmp[4], tmp[5], tmp[6], tmp[7]
    a.c("exclusive scan of the counters")
    a("s_waitcnt lgkmcnt(0)\ns_barrier")
    a(f"v_add_u32 v{G6}, {CB_}, v{vT16}")
    a(f"ds_read_b128 {vr(c0, 4)}, v{G6} offset:{CO_}")
    while na < 4:
        issue_ang(na)
        na += 1
    a(f"""
    s_waitcnt lgkmcnt(0)
    v_add_u32 v{s_}, v{c0}, v{c0 + 1}
    v_add3_u32 v{s_}, v{s_}, v{c0 + 2}, v{c0 + 3}
    v_mov_b32 v{inc}, v{s_}
    """)
    wave_scan(inc)
    a(f"""
    s_nop 1
    v_add_u32_dpp v{inc}, v{inc}, v{inc} row_bcast:15 row_mask:0xa bank_mask:0xf
    s_nop 1
    v_add_u32_dpp v{inc}, v{inc}, v{inc} row_bcast:31 row_mask:0xc bank_mask:0xf
    s_lshl_b32 s{sT1}, s{sW}, 2
    s_add_u32 s{sT1}, s{sT1}, {PB_}
    v_mov_b32 v{q}, s{sT1}
    v_readlane_b32 s{sT0}, v{inc}, 63
    s_nop 1
    v_mov_b32 v{p}, s{sT0}
    ds_write_b32 v{q}, v{p}
    v_and_b32 v{q}, 15, v0
    v_lshlrev_b32 v{p}, 2, v{q}
    v_add_u32 v{p}, {PB_}, v{p}
    s_waitcnt lgkmcnt(0)
    s_barrier
    v_cmp_gt_u32 vcc, s{sW}, v{q}
    ds_read_b32 v{p}, v{p}
    """)
    while na < 8:
        issue_ang(na)
        na += 1
    a(f"""
    s_waitcnt lgkmcnt(0)
    v_cndmask_b32 v{p}, 0, v{p}, vcc
    """)
    wave_scan(p)
    a(f"""
    v_sub_u32 v{inc}, v{inc}, v{s_}
    v_readlane_b32 s{sT0}, v{p}, 15
    s_nop 1
    v_add_u32 v{s_}, s{sT0}, v{inc}
    v_add_u32 v{s_ + 1}, v{s_}, v{c0}
    v_add_u32 v{s_ + 2}, v{s_ + 1}, v{c0 + 1}
    v_add_u32 v{s_ + 3}, v{s_ + 2}, v{c0 + 2}
    ds_write_b128 v{G6}, {vr(s_, 4)} offset:{CO_}
    s_waitcnt lgkmcnt(0)
    """)
    issue_ang(12)
    a("s_barrier")
    st1()
    a.c("position of every record; the angle joins it in the upper half of the register")

    def touch_m(va):
        a.c("touch this workgroup's share of m, one load per 128-byte line, while the memory side is idle")
        n = OPT["pfl"]
        srd(a, 80, 70, E * 32)
        if PQ:
            n = -(-(E // 4) // PQ)
            k = -(-n // 1024)
            per = -(-n // k)
            a(f"""
            ds_read_b32 v{tmp[0]}, v{tmp[1]} offset:{B_PART + 64}
            v_cmp_gt_u32 vcc, {per}, v0
            v_lshlrev_b32 v{va}, 7, v0
            s_waitcnt lgkmcnt(0)
            v_readfirstlane_b32 s{sT0}, v{tmp[0]}
            v_cndmask_b32 v{va}, v{vX}, v{va}, vcc
            s_cmp_lt_u32 s{sT0}, {PQ}
            s_cbranch_scc0 P1_nopf
            s_mul_i32 s{sT1}, s{sT0}, {per * k * 128}
            """)
            for q in range(k):
                a(f"buffer_load_dword v{vT8}, v{va}, {sr(80, 4)}, s{sT1} offen\ns_add_u32 s{sT1}, s{sT1}, {per * 128}")
            a("P1_nopf:")
            return
        if OPT["pfpar"]:
            a(f"""
            s_bitcmp1_b32 s2, 0
            s_cbranch_scc{1 if OPT["pfpar"] == 1 else 0} P1_nopf
            v_cmp_gt_u32 vcc, {n}, v0
            v_lshlrev_b32 v{va}, 7, v0
            s_and_b32 s{sT0}, s2, 0xfe
            s_mul_i32 s{sT0}, s{sT0}, {n * 128}
            v_cndmask_b32 v{va}, v{vX}, v{va}, vcc
            s_add_u32 s{sT1}, s{sT0}, {n * 128}
            buffer_load_dword v{vT8}, v{va}, {sr(80, 4)}, s{sT0} offen
            buffer_load_dword v{vT8}, v{va}, {sr(80, 4)}, s{sT1} offen
            P1_nopf:
            """)
            return
        a(f"""
        v_cmp_gt_u32 vcc, {n}, v0
        v_lshlrev_b32 v{va}, 7, v0
        s_mul_i32 s{sT0}, s2, {n * 128}
        v_cndmask_b32 v{va}, v{vX}, v{va}, vcc
        buffer_load_dword v{vT8}, v{va}, {sr(80, 4)}, s{sT0} offen
        """)
        vmq.append("pf")
        if OPT["pfd"]:
            srd(a, 80, 84, E * 2)
            a(f"""
            v_subrev_u32 v{va}, 960, v0
            v_cmp_gt_u32 vcc, 49, v{va}
            v_lshlrev_b32 v{va}, 7, v{va}
            s_mul_i32 s{sT0}, s2, {49 * 128}
            v_cndmask_b32 v{va}, v{vX}, v{va}, vcc
            buffer_load_dword v{vT8}, v{va}, {sr(80, 4)}, s{sT0} offen
            """)
            vmq.append("pf")

    def rank(rs):
        for (o, i, g, hi) in rs:
            a(f"ds_add_rtn_u32 v{o}, v{o}, v{vONE} offset:{CO_}")

    def merge(rs):
        for (o, i, g, hi) in rs:
            a(f"v_and_or_b32 v{o}, v{g}, s{sHI}, v{o}" if hi else f"v_lshl_or_b32 v{o}, v{g}, 16, v{o}")
    def put_half(rs, h):
        sets = [(tmp[4], tmp[5], tmp[6]), (tmp[7], tmp[2], tmp[3])] if not (FU and h == 0) else [(tmp[0], tmp[1], tmp[2]), (tmp[3], tmp[4], tmp[5])]
        for k, (o, i, g, hi) in enumerate(rs):
            x, y, z = sets[k & 1]
            if h == 0 and FU:
                a(f"""
                v_mul_u32_u24_sdwa v{x}, v{o}, v{tmp[6]} dst_sel:DWORD dst_unused:UNUSED_PAD src0_sel:WORD_0 src1_sel:DWORD
                v_cmp_gt_u32 vcc, s{sT1}, v{x}
                v_and_b32 v{y}, 2, v{x}
                s_nop 0
                v_cndmask_b32 v{x}, v{vX}, v{x}, vcc
                """)
            elif h == 0:
                a(f"v_mul_u32_u24_sdwa v{x}, v{o}, v{vONE} dst_sel:DWORD dst_unused:UNUSED_PAD src0_sel:WORD_0 src1_sel:DWORD")
                a(f"v_and_b32 v{y}, 2, v{x}")
            else:
                a(f"v_and_b32 v{x}, 0xffff, v{o}\nv_mad_u32_u24 v{x}, v{x}, 6, s{sOFF}")
                a(f"v_and_b32 v{y}, 2, v{x}")
            a(f"""
            v_add_u32 v{z}, v{x}, v{y}
            v_mad_i32_i24 v{x}, v{y}, -2, v{x}
            ds_write_b32 v{z}, v{i}
            ds_write_b16_d16_hi v{x}, v{o} offset:4
            """)
    if FU:
        a(f"v_mov_b32 v{tmp[6]}, 6\ns_mov_b32 s{sT1}, {HALF}")
    PQ = OPT["pfq"]
    if PQ:
        a.c("order of arrival: the early workgroups share the touching of m")
        a(f"""
        s_cmp_eq_u32 s{sW}, 0
        s_cbranch_scc0 P1_noq
        v_mov_b32 v{tmp[1]}, 0
        s_mov_b64 exec, 1
        global_atomic_add v{tmp[0]}, v{tmp[1]}, v{vONE}, s[86:87] offset:64 sc0 sc1
        s_mov_b64 exec, -1
        P1_noq:
        """)
    rank(recs(0))
    rank(recs(1))
    for r in range(12):
        if r < 10:
            rank(recs(r + 2))
        if FU:
            a(f"s_waitcnt lgkmcnt({8 if r == 0 else (12 if r < 10 else 8)})")
        else:
            a(f"s_waitcnt lgkmcnt({8 if r < 10 else (4 if r == 10 else 0)})")
        vm_wait(("a", r))
        merge(recs(r))
        if FU:
            put_half(recs(r), 0)
        if r + 8 < 12:
            issue_ang(r + 8)
        if OPT["pfm"] == 1 and r == 3:
            touch_m(tmp[7])
    vm_wait(("a", 12))
    tail(12, "P1_rk", lambda: (rank(recs(12)), a("s_waitcnt lgkmcnt(0)"), merge(recs(12)), put_half(recs(12), 0) if FU else None))
    if PQ:
        a(f"""
        v_mov_b32 v{tmp[1]}, 0
        s_cmp_eq_u32 s{sW}, 0
        s_cbranch_scc0 P1_noq2
        s_waitcnt vmcnt(0)
        s_mov_b64 exec, 1
        ds_write_b32 v{tmp[1]}, v{tmp[0]} offset:{B_PART + 64}
        s_mov_b64 exec, -1
        P1_noq2:
        """)
    a("s_waitcnt lgkmcnt(0)\ns_barrier")
    if OPT["pfm"] == 2:
        touch_m(G6)
    a.c("table of (start, length): the counters now hold the segment ends")
    ra = G
    a(f"""
    s_mov_b32 s{sT1}, {CB_ + CO_ - 4}
    v_and_b32 v{ra}, 3, v0
    v_lshlrev_b32 v{ra}, 12, v{ra}
    v_and_b32 v{ra + 1}, 0x3fc, v0
    v_add3_u32 v{ra}, v{ra}, v{ra + 1}, s{sT1}
    """)
    for qq in range(4):
        if qq:
            a(f"v_add_u32 v{ra}, 1024, v{ra}")
        a(f"ds_read2_b32 {vr(tmp[2 * qq], 2)}, v{ra} offset0:0 offset1:1")
    a("s_waitcnt lgkmcnt(0)" + ("" if FU else "\ns_barrier"))
    if FU:
        a.c("slots past the last slice read out of range: give them length zero")
        a(f"v_and_b32 v{ra + 1}, 3, v0")
        for qq in range(4):
            a(f"v_cmp_gt_u32 vcc, {(NS_ - qq + 3) // 4}, v{ra + 1}\ns_nop 1\nv_cndmask_b32 v{tmp[2 * qq + 1]}, v{tmp[2 * qq]}, v{tmp[2 * qq + 1]}, vcc")
    for qq in range(4):
        s0, e0 = tmp[2 * qq], tmp[2 * qq + 1]
        a(f"v_sub_u32 v{e0}, v{e0}, v{s0}\nv_lshl_or_b32 v{G + qq}, v{e0}, 16, v{s0}")
    a(f"""
    s_lshl_b32 s{sT0}, s2, 14
    s_mul_i32 s{sST}, s2, {2 * CHB}
    buffer_store_dwordx4 {vr(G, 4)}, v{vT16}, {sr(S_TAB, 4)}, s{sT0} offen{STM[0]}
    """)
    st1()
    pend = []

    def scatter(h):
        put = lambda rs: put_half(rs, h)
        for r in range(13):
            tail(r, f"P1_sc{h}", lambda: put(recs(r)))
            if pend:
                pend.pop(0)()
        while pend:
            pend.pop(0)()
        a("s_waitcnt lgkmcnt(0)\ns_barrier")

    LAST = [(n - 1) // 1024 for n in NQ]

    def reads(dst, rs, ra, rb, h):
        for r in rs:
            base = [vT16, ra, rb][r >> 2]
            if r == LAST[h]:
                a(f"v_cmp_gt_u32 vcc, {NQ[h] - 1024 * r}, v0\ns_and_saveexec_b64 {sr(sEX, 2)}, vcc")
            a(f"ds_read_b128 {vr(dst[r], 4)}, v{base} offset:{(r & 3) * 16384}")
            if r == LAST[h]:
                a(f"s_mov_b64 exec, {sr(sEX, 2)}\nv_cndmask_b32 v{rb}, v{vX}, v{vT16}, vcc")

    def store(dst, r, rb, h):
        a(f"s_add_u32 s{sT0}, s{sST}, {h * HALF + r * 16384}")
        a(f"buffer_store_dwordx4 {vr(dst[r], 4)}, v{vT16 if r < LAST[h] else rb}, {sr(S_REC, 4)}, s{sT0} offen{STM[h]}")

    if not FU:
        a(f"v_mov_b32 v{vONE}, 6")
        if OPT["pfm"] == 3:
            pend.extend([lambda: None] * 4 + [lambda: touch_m(G6)])
        if OPT["pfm"] == 4:
            touch_m(G6)
        if OPT["pfm"] == 5:
            pend.extend([lambda: touch_m(G6)])
        scatter(0)
    st1()
    ra, rb = tmp[4], tmp[5]
    q5 = [G, G + 4, G + 8, G + 12, tmp[0]]
    dst = q5 + q5
    a(f"v_add_u32 v{ra}, 0x10000, v{vT16}\nv_add_u32 v{rb}, 0x20000, v{vT16}")
    assert LAST[0] == 9
    reads(dst, range(5), ra, rb, 0)
    for r in range(5):
        a(f"s_waitcnt lgkmcnt({4 - r})")
        store(dst, r, rb, 0)
    reads(dst, range(5, 10), ra, rb, 0)
    FUS = OPT["fused"]
    if FUS:
        assert OPT["stm"] == 1 and OPT["stmb"] == 1 and not FU and HALF % 128 == 0 and HALF % 12 == 0 and HALF <= B_LDS - 4
        a(f"v_mov_b32 v{tmp[6]}, {B_LDS - 4}\nv_mov_b32 v{tmp[7]}, 0\nds_write_b32 v{tmp[6]}, v{tmp[7]}")
    a("s_waitcnt lgkmcnt(0)")
    store(dst, 9, rb, 0)
    a("s_barrier")
    pend.extend((lambda r=r: store(dst, r, rb, 0)) for r in range(5, 9))
    if OPT["stpos"] == 0:
        while pend:
            pend.pop(0)()
    if FUS:
        def signal0():
            a.c("first half, table and operands are out: the last wave to see its stores done tells the other workgroups")
            a(f"""
            s_waitcnt vmcnt(0)
            v_mov_b32 v{vT8}, {B_LDS - 4}
            v_mov_b32 v{G6}, 1
            s_mov_b64 exec, 1
            ds_add_rtn_u32 v{vT8}, v{vT8}, v{G6}
            s_waitcnt lgkmcnt(0)
            v_readfirstlane_b32 s{sT0}, v{vT8}
            v_mov_b32 v{vT8}, 0
            s_cmp_eq_u32 s{sT0}, 15
            s_cbranch_scc0 P1_nosig
            global_atomic_add v{vT8}, v{G6}, s[86:87] sc1
            P1_nosig:
            s_mov_b64 exec, -1
            """)
        pend.extend([lambda: None] * (OPT["sigat"] - len(pend)) + [signal0])

        def early_dist():
            a.c("dist of the output edges this workgroup owns next")
            srd(a, 80, 84, E * 2)
            a(f"""
            s_and_b32 s{sT0}, s2, 7
            s_lshl_b32 s{sT0}, s{sT0}, 5
            s_lshr_b32 s{sT1}, s2, 3
            s_add_u32 s{sT0}, s{sT0}, s{sT1}
            s_mul_i32 s{sT0}, s{sT0}, {EB * 2}
            v_lshlrev_b32 v{G6}, 1, v0
            s_add_u32 s{sT1}, s{sT0}, 4096
            buffer_load_ushort v{G}, v{G6}, s[80:83], s{sT0} offen
            buffer_load_ushort v{G + 1}, v{G6}, s[80:83], s{sT0} offen offset:2048
            buffer_load_ushort v{G + 2}, v{G6}, s[80:83], s{sT1} offen
            buffer_load_ushort v{G + 3}, v{G6}, s[80:83], s{sT1} offen offset:2048
            """)
        if OPT["edist"]:
            pend.append(early_dist)
            OPT["_nst"] = LAST[1] + 1
    if OPT["wb"]:
        pend.extend([lambda: None] * (OPT["wb"] - 1))
        pend.append(lambda: a(f"s_cmp_eq_u32 s{sW}, 15\ns_cbranch_scc0 P1_nowb\nbuffer_wbl2 sc1\nP1_nowb:"))
    st1()
    scatter(1)
    st1()
    dst = [(40 if ILV else O) + 4 * r for r in range(10)]
    if ILV:
        srd(a, 80, 84, E * 2)
        a(bucket2)
        a(f"""
        v_lshlrev_b32 v{G6}, 1, v0
        s_add_u32 s{sT1}, s{sT0}, 4096
        buffer_load_ushort v121, v{G6}, s[80:83], s{sT0} offen
        buffer_load_ushort v122, v{G6}, s[80:83], s{sT0} offen offset:2048
        buffer_load_ushort v123, v{G6}, s[80:83], s{sT1} offen
        buffer_load_ushort v124, v{G6}, s[80:83], s{sT1} offen offset:2048
        """)
    a(f"v_add_u32 v{ra}, 0x10000, v{vT16}\nv_add_u32 v{rb}, 0x20000, v{vT16}")
    reads(dst, range(LAST[1] + 1), ra, rb, 1)
    if ILV:
        a(f"""
        v_mov_b32 v{ra}, v{vT16}
        s_mov_b32 s72, s{S_REC}
        s_mov_b32 s73, s{S_REC + 1}
        s_mov_b32 s74, s{S_REC + 2}
        s_mov_b32 s75, 0x20000
        s_waitcnt lgkmcnt(0)
        """)
        OPT["_stores"] = [f"""
        s_add_u32 s38, s{sST}, {HALF + r * 16384}
        buffer_store_dwordx4 {vr(dst[r], 4)}, v{ra if r < LAST[1] else rb}, s[72:75], s38 offen{STM[1]}
        """ for r in range(LAST[1] + 1)]
    else:
        for r in range(LAST[1]):
            a(f"s_waitcnt lgkmcnt({LAST[1] - 1 - r})")
            store(dst, r, rb, 1)
        a("s_waitcnt lgkmcnt(0)")
        store(dst, LAST[1], rb, 1)
    st1()
    if OPT["stamp1"]:
        st1()
        a("" if OPT["x_fuse"] or OPT["fused"] else "s_waitcnt vmcnt(0)")
        st1()
        a(f"""
        s_lshl_b32 s3, s2, 4
        s_add_u32 s3, s3, s{sW}
        s_lshl_b32 s3, s3, 6
        s_add_u32 s44, s44, {17 << 20}
        s_addc_u32 s45, s45, 0
        """)
        srd(a, S_TAB, 44, 1 << 20)
        a("v_mov_b32 v4, 0")
        for i in range(stn[0]):
            a(f"v_mov_b32 v5, s{48 + 2 * i}")
            a(f"buffer_store_dword v5, v4, {sr(S_TAB, 4)}, s3 offen offset:{4 * i}")
    if FUS:
        a("s_barrier")
        return
    if OPT["x_fuse"]:
        a("s_barrier\ns_branch P2_entry")
    a("P1_done:")
    a("s_endpgm")
    kernel_desc(a, name, 128, 102 if OPT["x_fuse"] else 88)


def gen_part(a, name):
    nt = " nt" if OPT["nt_in"] else ""
    STMS = {X: ["", " sc1", " nt", " sc0 sc1", " sc1 nt"][OPT[k]] for X, k in (("A", "stm"), ("B", "stmb"))}
    S_IN, S_OUT, S_ANG, S_REC, S_TAB = 8, 12, 16, 20, 24
    sMAG, sNEG, sMASK, sHI, sDIV6 = 28, 29, 30, 31, 32
    sOI, sOA = 33, 34
    sW, sT0, sT1, sCH = 35, 36, 37, 38
    sEX = 40
    stn = [0]

    def st1():
        if OPT["stamp1"]:
            a(f"s_memrealtime s[{48 + 2 * stn[0]}:{49 + 2 * stn[0]}]\ns_waitcnt lgkmcnt(0)")
            stn[0] += 1
    vT16, vT8, vSIX = 1, 2, 3
    tmp = list(range(4, 14))
    O = {"A": 14, "B": 62}
    I = {"A": 38, "B": 86}
    G = 110
    O6 = {"A": 122, "B": 124}
    I6 = {"A": 123, "B": 125}
    G6 = 126
    vX = 127

    kernel_head(a, name)
    a(f"""
    s_cmp_ge_u32 s2, {NB}
    s_cbranch_scc1 P1_done
    s_load_dwordx4 s[4:7], s[0:1], 8
    s_load_dwordx2 s[42:43], s[0:1], 32
    s_load_dwordx2 s[44:45], s[0:1], 104
    s_load_dwordx2 s[70:71], s[0:1], 0
    v_lshlrev_b32 v{vT16}, 4, v0
    v_lshlrev_b32 v{vT8}, 3, v0
    v_mov_b32 v{vSIX}, 6
    s_mov_b32 s{sMAG}, 1374390
    s_mov_b32 s{sNEG}, {-EB}
    s_mov_b32 s{sMASK}, 0x1c00
    s_mov_b32 s{sHI}, 0xffff0000
    s_mov_b32 s{sDIV6}, 0x2aaaaaab
    v_lshrrev_b32 v4, 6, v0
    v_mov_b32 v6, 0
    v_mov_b32 v7, 0
    v_readfirstlane_b32 s{sW}, v4
    ds_write_b64 v{vT8}, v[6:7] offset:{P1_CNT}
    v_mov_b32 v5, {P1_REC}
    ds_write_b32 v6, v5 offset:{P1_CNT - 4}
    s_waitcnt lgkmcnt(0)
    """)
    srd(a, S_IN, 4, T * 4)
    srd(a, S_OUT, 6, T * 4)
    srd(a, S_ANG, 42, T * 2)
    srd(a, S_REC, 44, REC_BYTES)
    a(f"s_add_u32 s44, s44, {TAB_OFF}")
    a("s_addc_u32 s45, s45, 0")
    srd(a, S_TAB, 44, TAB_BYTES + 8192)
    a(f"""
    s_lshr_b32 s39, s2, 1
    s_and_b32 s39, s39, 7
    s_lshr_b32 s46, s39, {1 if OPT["stag"] == 1 else 0}
    s_lshr_b32 s46, {0xf0 if OPT["stag"] == 1 else 0xff00}, s46
    s_and_b32 s46, s46, {0xf if OPT["stag"] == 1 else 0xff}
    s_mul_i32 s46, s46, {0x11 if OPT["stag"] == 1 else 1}
    """)
    if OPT["stag"] == 3:
        a(f"""
        s_lshr_b32 s46, s39, 1
        s_lshl_b32 s46, s46, 2
        s_sub_u32 s46, 16, s46
        s_lshr_b32 s47, 0x1111, s46
        s_lshl_b32 s46, s47, s46
        s_add_u32 s46, s46, {OPT["rotl"]:#x}
        s_mul_i32 s46, s46, 0x10001
        """)
    a(f"""
    s_lshl_b32 s39, s39, 21
    s_sub_u32 s39, {OPT['ns'] << 24}, s39
    s_mul_i32 s{sOI}, s2, {2 * CH * 4}
    s_mul_i32 s{sOA}, s2, {2 * CH * 2}
    """)

    vmq = []

    def vm_wait(tag):
        last = max(i for i, x in enumerate(vmq) if x == tag)
        a(f"s_waitcnt vmcnt({len(vmq) - 1 - last})")

    pend = []

    def slot(n=1):
        for _ in range(n):
            if pend:
                pend.pop(0)()

    def issue_idx(X, r):
        vmq.extend([(X, r)] * 2)
        if r < 6:
            a(f"""
            buffer_load_dwordx4 {vr(O[X] + 4 * r, 4)}, v{vT16}, {sr(S_OUT, 4)}, s{sOI} offen{nt}
            buffer_load_dwordx4 {vr(I[X] + 4 * r, 4)}, v{vT16}, {sr(S_IN, 4)}, s{sOI} offen{nt}
            s_add_u32 s{sOI}, s{sOI}, 16384
            """)
        else:
            a(f"""
            v_cmp_gt_u32 vcc, {CH - 6 * 4096}, v0
            v_lshlrev_b32 v{tmp[9]}, 2, v0
            s_nop 0
            v_cndmask_b32 v{tmp[9]}, v{vX}, v{tmp[9]}, vcc
            buffer_load_dword v{O6[X]}, v{tmp[9]}, {sr(S_OUT, 4)}, s{sOI} offen{nt}
            buffer_load_dword v{I6[X]}, v{tmp[9]}, {sr(S_IN, 4)}, s{sOI} offen{nt}
            s_add_u32 s{sOI}, s{sOI}, {(CH - 6 * 4096) * 4}
            """)

    def issue_ang(X, r):
        vmq.append((X, "a", r))
        if r < 6:
            a(f"""
            buffer_load_dwordx2 {vr(G + 2 * r, 2)}, v{vT8}, {sr(S_ANG, 4)}, s{sOA} offen{nt}
            s_add_u32 s{sOA}, s{sOA}, 8192
            """)
        else:
            a(f"""
            v_cmp_gt_u32 vcc, {CH - 6 * 4096}, v0
            v_lshlrev_b32 v{tmp[9]}, 1, v0
            s_nop 0
            v_cndmask_b32 v{tmp[9]}, v{vX}, v{tmp[9]}, vcc
            buffer_load_ushort v{G6}, v{tmp[9]}, {sr(S_ANG, 4)}, s{sOA} offen{nt}
            s_add_u32 s{sOA}, s{sOA}, {(CH - 6 * 4096) * 2}
            """)

    def pack(recs):
        n = len(recs)
        tb = tmp[0:n]
        tc = tmp[4:4 + n]
        for k, (o, i, g, hi) in enumerate(recs):
            a(f"v_mul_hi_u32_u24 v{tb[k]}, s{sMAG}, v{o}")
            a(f"v_mul_u32_u24 v{tc[k]}, {(OPT['ns'] << 24) // E}, v{i}")
        if OPT["slide"]:
            for k in range(n):
                a(f"v_add_u32 v{tc[k]}, s39, v{tc[k]}")
            if OPT["ns"] != 8:
                for k in range(n):
                    a(f"v_subrev_u32 v{tmp[8]}, {OPT['ns'] << 24}, v{tc[k]}")
                    a(f"v_min_u32 v{tc[k]}, v{tc[k]}, v{tmp[8]}")
        for k, (o, i, g, hi) in enumerate(recs):
            a(f"v_mad_i32_i24 v{o}, v{tb[k]}, s{sNEG}, v{o}")
            if OPT["stag"] == 3:
                u = tmp[8 + (k & 1)]
                a(f"v_lshrrev_b32 v{u}, 5, v{tb[k]}")
                a(f"v_lshrrev_b32 v{tc[k]}, 24, v{tc[k]}")
                a(f"v_lshlrev_b32 v{u}, 2, v{u}")
                a(f"v_lshlrev_b32 v{tb[k]}, 2, v{tb[k]}")
                a(f"v_bfe_u32 v{u}, s46, v{u}, 4")
                a(f"v_sub_u32 v{tc[k]}, v{tc[k]}, v{u}")
                a(f"v_add_u32 v{u}, {OPT['ns']}, v{tc[k]}")
                a(f"v_min_u32 v{tc[k]}, v{tc[k]}, v{u}")
                continue
            a(f"v_lshrrev_b32 v{tc[k]}, 14, v{tc[k]}")
            if OPT["stag"]:
                u = tmp[8 + (k & 1)]
                a(f"v_lshrrev_b32 v{u}, 5, v{tb[k]}")
                a(f"v_bfe_i32 v{u}, s46, v{u}, 1")
                a(f"v_lshl_add_u32 v{tc[k]}, v{u}, 10, v{tc[k]}")
                if OPT["ns"] != 8:
                    a(f"v_add_u32 v{u}, {OPT['ns'] << 10}, v{tc[k]}")
                    a(f"v_min_u32 v{tc[k]}, v{tc[k]}, v{u}")
            a(f"v_lshlrev_b32 v{tb[k]}, 2, v{tb[k]}")
        for k, (o, i, g, hi) in enumerate(recs):
            a(f"v_lshl_or_b32 v{i}, v{i}, 12, v{o}")
            if OPT["stag"] == 3:
                a(f"v_lshl_or_b32 v{o}, v{tc[k]}, 10, v{tb[k]}")
            else:
                a(f"v_and_or_b32 v{o}, v{tc[k]}, s{sMASK}, v{tb[k]}")
        for k, (o, i, g, hi) in enumerate(recs):
            a(f"ds_add_u32 v{o}, v{vSIX} offset:{P1_CNT}")

    def round_recs(X, r):
        if r < 6:
            return [(O[X] + 4 * r + k, I[X] + 4 * r + k, G + 2 * r + (k >> 1), k & 1) for k in range(4)]
        return [(O6[X], I6[X], G6, 0)]

    def tail_begin(lbl):
        a(f"""
        v_cmp_gt_u32 vcc, {CH - 6 * 4096}, v0
        s_and_saveexec_b64 {sr(sEX, 2)}, vcc
        s_cbranch_execz {lbl}
        """)

    def tail_end(lbl):
        a(f"{lbl}:")
        a(f"s_mov_b64 exec, {sr(sEX, 2)}")

    def wave_scan(v):
        a(f"""
        s_nop 1
        v_add_u32_dpp v{v}, v{v}, v{v} row_shr:1 row_mask:0xf bank_mask:0xf bound_ctrl:0
        s_nop 1
        v_add_u32_dpp v{v}, v{v}, v{v} row_shr:2 row_mask:0xf bank_mask:0xf bound_ctrl:0
        s_nop 1
        v_add_u32_dpp v{v}, v{v}, v{v} row_shr:4 row_mask:0xf bank_mask:0xf bound_ctrl:0
        s_nop 1
        v_add_u32_dpp v{v}, v{v}, v{v} row_shr:8 row_mask:0xf bank_mask:0xf bound_ctrl:0
        """)

    def sort_chunk(X):
        c01, s, inc, p, q = tmp[0], tmp[2], tmp[3], tmp[4], tmp[5]
        st1()
        a.c("exclusive scan of the 2048 counters (units: bytes, 6 per record)")
        a(f"""
        s_waitcnt lgkmcnt(0)
        s_barrier
        """)
        if X == 'A' or OPT['stpos'] < 3:
            slot()
        a(f"""
        ds_read_b64 {vr(c01, 2)}, v{vT8} offset:{P1_CNT}
        s_waitcnt lgkmcnt(0)
        v_add_u32 v{s}, v{c01}, v{c01 + 1}
        v_mov_b32 v{inc}, v{s}
        """)
        wave_scan(inc)
        a(f"""
        s_nop 1
        v_add_u32_dpp v{inc}, v{inc}, v{inc} row_bcast:15 row_mask:0xa bank_mask:0xf
        s_nop 1
        v_add_u32_dpp v{inc}, v{inc}, v{inc} row_bcast:31 row_mask:0xc bank_mask:0xf
        s_lshl_b32 s{sT1}, s{sW}, 2
        v_mov_b32 v{q}, s{sT1}
        v_readlane_b32 s{sT0}, v{inc}, 63
        s_nop 1
        v_mov_b32 v{p}, s{sT0}
        ds_write_b32 v{q}, v{p} offset:{P1_PART}
        v_and_b32 v{q}, 15, v0
        v_lshlrev_b32 v{p}, 2, v{q}
        s_waitcnt lgkmcnt(0)
        s_barrier
        """)
        if X == 'A' or OPT['stpos'] < 3:
            slot()
        a(f"""
        v_cmp_gt_u32 vcc, s{sW}, v{q}
        ds_read_b32 v{p}, v{p} offset:{P1_PART}
        s_waitcnt lgkmcnt(0)
        v_cndmask_b32 v{p}, 0, v{p}, vcc
        """)
        wave_scan(p)
        a(f"""
        v_sub_u32 v{inc}, v{inc}, v{s}
        v_readlane_b32 s{sT0}, v{p}, 15
        s_add_u32 s{sT0}, s{sT0}, {P1_REC}
        s_nop 0
        v_add_u32 v{q + 1}, s{sT0}, v{inc}
        v_add_u32 v{q + 2}, v{q + 1}, v{c01}
        ds_write_b64 v{vT8}, {vr(q + 1, 2)} offset:{P1_CNT}
        s_waitcnt lgkmcnt(0)
        s_barrier
        """)
        assert (q + 1) % 2 == 0
        st1()
        a.c("rank and scatter into the LDS image")
        def rank_issue(recs):
            for k, (o, i, g, hi) in enumerate(recs):
                a(f"ds_add_rtn_u32 v{o}, v{o}, v{vSIX} offset:{P1_CNT}")

        def put_words(recs):
            for k, (o, i, g, hi) in enumerate(recs):
                a(f"v_and_b32 v{tmp[k]}, 2, v{o}")
            for k, (o, i, g, hi) in enumerate(recs):
                a(f"v_add_u32 v{tmp[k]}, v{o}, v{tmp[k]}")
            for k, (o, i, g, hi) in enumerate(recs):
                a(f"ds_write_b32 v{tmp[k]}, v{i}")

        def put_angles(recs):
            for k, (o, i, g, hi) in enumerate(recs):
                a(f"v_and_b32 v{tmp[4 + k]}, 2, v{o}")
            for k, (o, i, g, hi) in enumerate(recs):
                a(f"v_mad_i32_i24 v{tmp[4 + k]}, v{tmp[4 + k]}, -2, v{o}")
            for k, (o, i, g, hi) in enumerate(recs):
                a(f"ds_write_b16{'_d16_hi' if hi else ''} v{tmp[4 + k]}, v{g} offset:4")

        nslot = lambda r: (2 if OPT["stpos"] < 4 or r >= 2 else 0) if X == "B" else OPT["aslot"]
        rank_issue(round_recs(X, 0))
        rank_issue(round_recs(X, 1))
        for r in range(6):
            if r < 4:
                rank_issue(round_recs(X, r + 2))
            a(f"s_waitcnt lgkmcnt({[8, 12, 12, 12, 8, 4][r]})")
            put_words(round_recs(X, r))
            slot(nslot(r))
        tail_begin(f"P1_sc6{X}")
        rank_issue(round_recs(X, 6))
        a("s_waitcnt lgkmcnt(0)")
        put_words(round_recs(X, 6))
        tail_end(f"P1_sc6{X}")
        slot(99)
        for r in range(7):
            vm_wait((X, "a", r))
            if r == 6:
                tail_begin(f"P1_an6{X}")
            put_angles(round_recs(X, r))
            if r == 6:
                tail_end(f"P1_an6{X}")
            if X == "A" and OPT["bang"] == 1 and r < 6:
                issue_ang("B", r)
        slot(99)
        a("""
        s_waitcnt lgkmcnt(0)
        s_barrier
        """)
        st1()
        a.c("read the image back (into the dead record registers) and the counters (now segment ends)")
        dst = [O[X] + 4 * r for r in range(6)] + [I[X] + 4 * r for r in range(4)]
        ra, rb = tmp[8], tmp[9]
        a(f"v_add_u32 v{ra}, 0x10000, v{vT16}")
        a(f"v_add_u32 v{rb}, 0x20000, v{vT16}")
        for r in range(9):
            base = [vT16, ra, rb][r >> 2]
            a(f"ds_read_b128 {vr(dst[r], 4)}, v{base} offset:{P1_REC + (r & 3) * 16384}")
        nlast = CH * 6 // 16 - 9 * 1024
        a(f"""
        v_cmp_gt_u32 vcc, {nlast}, v0
        s_and_saveexec_b64 {sr(sEX, 2)}, vcc
        ds_read_b128 {vr(dst[9], 4)}, v{rb} offset:{P1_REC + 16384}
        s_mov_b64 exec, {sr(sEX, 2)}
        v_cndmask_b32 v{rb}, v{vX}, v{vT16}, vcc
        v_and_b32 v{ra}, 1, v0
        v_lshlrev_b32 v{ra}, 12, v{ra}
        v_lshrrev_b32 v{tmp[0]}, 1, v0
        v_lshl_add_u32 v{ra}, v{tmp[0]}, 2, v{ra}
        s_cmp_lt_u32 s{sW}, 8
        s_cbranch_scc0 P1_notab{X}
        """)
        for qq in range(4):
            if qq:
                a(f"v_add_u32 v{ra}, 1024, v{ra}")
            a(f"ds_read2_b32 {vr(tmp[2 * qq], 2)}, v{ra} offset0:{P1_CNT // 4 - 1} offset1:{P1_CNT // 4}")
        a("s_waitcnt lgkmcnt(0)")
        for qq in range(4):
            s_, e_ = tmp[2 * qq], tmp[2 * qq + 1]
            a(f"""
            v_sub_u32 v{e_}, v{e_}, v{s_}
            v_subrev_u32 v{s_}, {P1_REC}, v{s_}
            v_mul_hi_u32 v{e_}, v{e_}, s{sDIV6}
            v_mul_hi_u32 v{s_}, v{s_}, s{sDIV6}
            v_lshl_or_b32 v{tmp[qq]}, v{e_}, 16, v{s_}
            """)
        a(f"""
        v_lshrrev_b32 v{tmp[4]}, 1, v0
        v_and_b32 v{tmp[5]}, 1, v0
        v_lshlrev_b32 v{tmp[4]}, {5 if OPT["tabc"] else 14}, v{tmp[4]}
        v_lshl_or_b32 v{tmp[4]}, v{tmp[5]}, 4, v{tmp[4]}
        s_branch P1_tab{X}
        P1_notab{X}:
        v_mov_b32 v{tmp[4]}, v{vX}
        P1_tab{X}:
        s_lshl_b32 s{sT0}, s{sCH}, {13 if OPT['tabc'] else 5}
        s_mul_i32 s{sT1}, s{sCH}, {CHB}
        buffer_store_dwordx4 {vr(tmp[0], 4)}, v{tmp[4]}, {sr(S_TAB, 4)}, s{sT0} offen
        s_waitcnt lgkmcnt(0)
        """)
        vmq.append("st")
        a(f"s_add_u32 s{sT0}, s{sT1}, {9 * 16384}")
        a(f"buffer_store_dwordx4 {vr(dst[9], 4)}, v{rb}, {sr(S_REC, 4)}, s{sT0} offen{STMS[X]}")
        vmq.append("st")
        a(f"s_mov_b32 s47, s{sT1}")

        def mk(r):
            def f():
                a(f"buffer_store_dwordx4 {vr(dst[r], 4)}, v{vT16}, {sr(S_REC, 4)}, s47 offen{STMS[X]}")
                a(f"s_add_u32 s47, s47, 16384")
                vmq.append("st")
            return f
        pend.extend(mk(r) for r in range(9))
        if X == "B" or OPT["stpos"] == 0:
            slot(99)
        st1()

    st1()
    a(f"v_mov_b32 v{vX}, 0x7fffff00")
    AD = OPT["adepth"]
    aq = [lambda r=r: issue_idx("A", r) for r in range(7)] + [lambda: [issue_ang("A", r) for r in range(0, 2)], lambda: [issue_ang("A", r) for r in range(2, 4)], lambda: [issue_ang("A", r) for r in range(4, 7)]]

    def first_loads():
        if AD:
            for _ in range(AD):
                aq.pop(0)()
            return
        for r in range(7):
            issue_idx("A", r)
            if not OPT["angl"]:
                issue_ang("A", r)
        if OPT["angl"]:
            for r in range(7):
                issue_ang("A", r)
    builder(a, (62, 78, 94, 102), 4, 5, 6, 7, 12, 124, 8, sW, sT0, S_TAB, first_loads, 2 * AD if AD else 21)
    a("s_barrier")
    order = [6, 0, 1, 2, 3, 4, 5]
    nb = 0
    for r in range(7):
        vm_wait(("A", r))
        if r == 6:
            tail_begin("P1_pk6A")
        pack(round_recs("A", r))
        if r == 6:
            tail_end("P1_pk6A")
        if AD and aq:
            aq.pop(0)()
            if r == 6:
                while aq:
                    aq.pop(0)()
        elif r < 6 and r >= 6 - OPT["early"]:
            issue_idx("B", nb)
            nb += 1
    for r in range(nb, 6):
        pend.append(lambda r=r: (vm_wait(("B", r - OPT["bfair"])) if OPT["bfair"] and r >= OPT["bfair"] else None, issue_idx("B", r)))
    a(f"s_lshl_b32 s{sCH}, s2, 1")
    sort_chunk("A")
    a(f"""
    s_barrier
    v_mov_b32 v{tmp[8]}, 0
    v_mov_b32 v{tmp[9]}, 0
    ds_write_b64 v{vT8}, {vr(tmp[8], 2)} offset:{P1_CNT}
    s_add_u32 s{sCH}, s{sCH}, 1
    s_waitcnt lgkmcnt(0)
    """)
    issue_idx("B", 6)
    if OPT["bang"] == 2:
        for r in range(6):
            issue_ang("B", r)
    issue_ang("B", 6)
    a("s_barrier")
    for r in range(7):
        vm_wait(("B", r))
        if r == 6:
            tail_begin("P1_pk6B")
        pack(round_recs("B", r))
        if r == 6:
            tail_end("P1_pk6B")
        if OPT["stpos"] == 1:
            slot()
    def prefetch_m():
        a.c("touch this workgroup's share of m (one load per 128-byte line) so that the second kernel finds it on chip")
        srd(a, 80, 70, E * 32)
        a(f"""
        v_cmp_gt_u32 vcc, {OPT["pfp1"] or 782}, v0
        v_lshlrev_b32 v{G + 1}, 7, v0
        s_mul_i32 s{sT0}, s2, {OPT["pfp1"] * 128 or 100000}
        s_and_b32 s{sT0}, s{sT0}, 0xffffff80
        v_cndmask_b32 v{G + 1}, v{vX}, v{G + 1}, vcc
        buffer_load_dword v{G}, v{G + 1}, {sr(80, 4)}, s{sT0} offen
        """)
    if OPT["pfm"] or OPT["pfp1"]:
        prefetch_m()
    sort_chunk("B")
    if OPT["stamp1"]:
        a("s_waitcnt vmcnt(0)")
        st1()
        a(f"""
        s_lshl_b32 s3, s2, 4
        s_add_u32 s3, s3, s{sW}
        s_lshl_b32 s3, s3, 6
        s_add_u32 s44, s44, {17 << 20}
        s_addc_u32 s45, s45, 0
        """)
        srd(a, S_TAB, 44, 1 << 20)
        a("v_mov_b32 v4, 0")
        for i in range(stn[0]):
            a(f"v_mov_b32 v5, s{48 + 2 * i}")
            a(f"buffer_store_dword v5, v4, {sr(S_TAB, 4)}, s3 offen offset:{4 * i}")
    a("P1_done:")
    a("s_endpgm")
    kernel_desc(a, name, 128, 88)


L_LOCK = 0
L_RBF = 800
L_ACC0 = L_RBF + EB * 16
L_ACC1 = L_ACC0 + EB * 16
L_RING = L_ACC1 + EB * 16
RING_CAP = 101
RING_STRIDE = RING_CAP * 8
P2_LDS = 163840
assert L_RING + 16 * RING_STRIDE <= P2_LDS


def gen_main(a, name):
    BIG = OPT["big"]
    CB = 2 * CHB if BIG else CHB
    NCW = 16 if BIG else 32
    SPL = OPT['spl']
    LPS = 64 // SPL
    LSH = LPS.bit_length() - 1
    SPP = NCW // SPL
    TSH = 14 if BIG else 13
    NSTEP = SPP * OPT["ns"]
    ntr = " nt" if OPT["nt_rec"] else ""
    nto = ["", " sc1", " nt", " sc0 sc1", " sc1 nt"][OPT["outm"]]
    S_REC, S_M, S_TMP, S_OUT = 8, 12, 16, 20
    sB, sW = 24, 25
    sCNT, sTOP = 26, 27
    sM = [28, 30]
    sN, sT0, sT1, sT2 = 32, 33, 34, 35
    sACQ, sFAIL = 36, 38
    sM0, sM1 = 40, 42
    sRET, sRET2 = 44, 46
    sLONG = [48, 50]
    sEX = 52
    sCO = 54
    sCOB = [55, 56]
    sK, sJ, sPH = 57, 58, 59
    sP = 60
    sRB, sHI, sG, sKF0, sKF1, sN0 = 76, 77, 78, 79, 80, 81
    sCEN = 84
    sEVEN = 92
    sCAP = 97
    sF = [98, 100]
    assert not (OPT['pfn'] or OPT['spf'] or OPT['x_fake'] or OPT['gexec'])
    vLANE = 1
    A1a, A1b, A2a, A2b, A3a, A3b = 2, 6, 10, 14, 18, 22
    D1, D2 = 26, 42
    GP, GQ = [58, 66], [62, 70]
    TF = 74
    S0, S1 = 78, 82
    AX, AY = S0, S1
    WA = [86, 88]
    O = [90, 91]
    C = [92, 93]
    TT = 94
    RB = [98, 102]
    RD = [101, 105]
    RL = [106, 107]
    RA = [108, 109]
    vBP, vCB, vL2, vL8, vH16, vOOB, vE = range(110, 117)
    t = list(range(117, 128)) + [0]
    vDUM = GP[1]
    vPF = 0

    FUS = OPT["fused"]
    sDBG, sA1, sTO = 62, 82, 96
    ILV = FUS and OPT["ilv"]
    stq = list(OPT.get("_stores", [])) if ILV else []
    nst = [0]

    def put(n):
        for _ in range(n):
            if stq:
                a(stq.pop(0))
                nst[0] += 1
    if not FUS:
        kernel_head(a, name)
        a(f"s_cmp_ge_u32 s2, {NB}\ns_cbranch_scc1 P2_done")
    a(f"""
    P2_entry:

    {"s_memrealtime s[94:95]" if OPT["stamp2"] else ""}
    s_load_dwordx2 {sr(sP, 2)}, s[0:1], 0
    s_load_dwordx2 {sr(sP + 2, 2)}, s[0:1], 24
    s_load_dwordx4 {sr(sP + 4, 4)}, s[0:1], 40
    s_load_dwordx2 s[4:5], s[0:1], 88
    s_load_dwordx2 s[6:7], s[0:1], 104
    s_and_b32 s{sB}, s2, 7
    s_lshl_b32 s{sB}, s{sB}, 5
    s_lshr_b32 s{sT0}, s2, 3
    s_add_u32 s{sB}, s{sB}, s{sT0}
    v_lshrrev_b32 v{t[0]}, 6, v0
    v_and_b32 v{vLANE}, 63, v0
    s_mov_b32 s{sHI}, 0xffff0000
    v_readfirstlane_b32 s{sW}, v{t[0]}
    v_mov_b32 v{vOOB}, 0x7fffff00
    s_mov_b32 s{sEVEN}, 0x55555555
    s_mov_b32 s{sEVEN + 1}, 0x55555555
    """)
    put(1)
    a("s_waitcnt lgkmcnt(0)")
    pM, pDIST, pCEN, pFREQ, pWRBF, pWSBF, pWDN, pWUP = [sP + 2 * k for k in range(8)]
    a(f"""
    s_load_dwordx4 {sr(sCEN, 4)}, {sr(pCEN, 2)}, 0
    s_load_dword s{sT2}, {sr(pFREQ, 2)}, 0
    """)
    sPM, sPFO, sPFD = 100, 99, 82

    def spf():
        return f"""
        s_load_dword s{sPFD}, {sr(sPM, 2)}, s{sPFO}
        s_add_u32 s{sPFO}, s{sPFO}, {4096 * 128}
        s_min_u32 s{sPFO}, s{sPFO}, {E * 32 - 4}
        """
    srd(a, S_REC, 6, REC_BYTES)
    srd(a, S_M, pM, E * 32)
    srd(a, S_OUT, 4, E * 32)
    a(f"s_add_u32 s6, s6, {TAB_OFF}")
    a("s_addc_u32 s7, s7, 0")
    S_TAB = S_TMP
    S_DST = 68
    srd(a, S_TAB, 6, TAB_BYTES + 8192)
    def table_loads():
        a.c("this wave's table entries: a lane holds four consecutive slots of one chunk")
        a(f"""
        v_and_b32 v{t[0]}, {NCW - 1}, v{vLANE}
        v_lshrrev_b32 v{t[1]}, {4 if BIG else 5}, v{vLANE}
        v_lshlrev_b32 v{vL8}, 3, v{vLANE}
        v_lshlrev_b32 v{t[2]}, 4, v{t[1]}
        v_lshl_add_u32 v{t[2]}, v{t[0]}, {TSH}, v{t[2]}
        s_lshl_b32 s{sT0}, s{sB}, {TSH - 8}
        s_lshl_b32 s{sT1}, s{sW}, 18
        s_add_u32 s{sT0}, s{sT0}, s{sT1}
        v_lshrrev_b32 v{t[3]}, {LSH}, v{vLANE}
        v_lshlrev_b32 v{t[3]}, {TSH}, v{t[3]}
        s_add_u32 s{sT1}, s{sT0}, {SPL << TSH}
        buffer_load_dword v{vE}, v{t[3]}, {sr(S_TAB, 4)}, s{sT0} offen
        buffer_load_dword v{C[0]}, v{t[3]}, {sr(S_TAB, 4)}, s{sT1} offen
        buffer_load_dwordx4 {vr(TT, 4)}, v{t[2]}, {sr(S_TAB, 4)}, s{sT0} offen
        """)

    def dist_loads():
        srd(a, S_DST, pDIST, E * 2)

        a.c("dist of the bucket's edges t, t+1024, t+2048, t+3072")
        a(f"""
        s_mul_i32 s{sT0}, s{sB}, {EB * 2}
        v_lshlrev_b32 v{t[2]}, 1, v0
        buffer_load_ushort v{t[4]}, v{t[2]}, {sr(S_DST, 4)}, s{sT0} offen
        buffer_load_ushort v{t[5]}, v{t[2]}, {sr(S_DST, 4)}, s{sT0} offen offset:2048
        s_add_u32 s{sT0}, s{sT0}, 4096
        buffer_load_ushort v{t[6]}, v{t[2]}, {sr(S_DST, 4)}, s{sT0} offen
        buffer_load_ushort v{t[7]}, v{t[2]}, {sr(S_DST, 4)}, s{sT0} offen offset:2048
        """)

    def ops_loads():
        a.c("matrix operands prepared in part 1")
        a(f"v_lshlrev_b32 v{t[3]}, 4, v{vLANE}")
        for k in range(6):
            a(f"s_mov_b32 s{sT0}, {TAB_BYTES + 1024 * k}")
            a(f"buffer_load_dwordx4 {vr(A1a + 4 * k, 4)}, v{t[3]}, {sr(S_TAB, 4)}, s{sT0} offen")

    def poll(off, lbl):
        return f"""
        s_mov_b32 s{sTO}, {1 << 21}
        v_mov_b32 v{t[2]}, 0
        {lbl}:
        global_load_dword v{t[3]}, v{t[2]}, {sr(sDBG, 2)} offset:{off} sc1
        s_sub_u32 s{sTO}, s{sTO}, 1
        s_cbranch_scc1 {lbl}x
        s_waitcnt vmcnt(0)
        v_readfirstlane_b32 s{sT0}, v{t[3]}
        s_cmp_lt_u32 s{sT0}, {NB}
        s_cbranch_scc1 {lbl}
        {lbl}x:
        {'' if OPT['x_noinv'] & (2 if off else 1) else 'buffer_inv sc1'}
        """
    def poll0():
        a(f"""
        s_cmp_eq_u32 s{sW}, 0
        s_cbranch_scc0 P2_nopoll
        {poll(0, "P2_poll0")}
        P2_nopoll:
        """)
    if FUS:
        if not OPT["edist"] and not ILV:
            dist_loads()
        a(f"s_load_dwordx2 {sr(sDBG, 2)}, s[0:1], 96\ns_mov_b32 s{sA1}, 0")
    else:
        table_loads()
        dist_loads()
        ops_loads()
    npf = 0
    if OPT["pf0"]:
        a.c("touch a share of the first slice of m, one load per 128-byte line")
        lines = (E // OPT["ns"] * 32 // 128 + 31) // 32
        a(f"""
        v_cmp_gt_u32 vcc, {min(lines, 1024)}, v0
        v_lshlrev_b32 v{t[8]}, 7, v0
        s_lshr_b32 s{sT0}, s2, 3
        s_mul_i32 s{sT0}, s{sT0}, {lines * 128}
        v_cndmask_b32 v{t[8]}, v{vOOB}, v{t[8]}, vcc
        buffer_load_dword v{vDUM}, v{t[8]}, {sr(S_M, 4)}, s{sT0} offen
        """)
        npf = 1
    put(1)
    a.c("zero the locks and the accumulators")
    D = D1
    a(f"""
    v_mov_b32 v{D}, 0
    v_mov_b32 v{D + 1}, 0
    v_mov_b32 v{D + 2}, 0
    v_mov_b32 v{D + 3}, 0
    v_lshlrev_b32 v{t[2]}, 4, v0
    v_add_u32 v{t[9]}, {L_ACC0}, v{t[2]}
    """)
    for r in range(4):
        a(f"ds_write_b128 v{t[9]}, {vr(D, 4)} offset:{r * 16384}")
    a(f"v_add_u32 v{t[9]}, 0x10000, v{t[9]}")
    for r in range(2):
        a(f"ds_write_b128 v{t[9]}, {vr(D, 4)} offset:{r * 16384}")
    a(f"""
    v_cmp_gt_u32 vcc, {2 * EB - 6 * 1024}, v0
    s_and_saveexec_b64 {sr(sEX, 2)}, vcc
    ds_write_b128 v{t[9]}, {vr(D, 4)} offset:{2 * 16384}
    s_mov_b64 exec, {sr(sEX, 2)}
    v_cmp_gt_u32 vcc, {L_RBF // 16}, v0
    s_and_saveexec_b64 {sr(sEX, 2)}, vcc
    ds_write_b128 v{t[2]}, {vr(D, 4)}
    s_mov_b64 exec, {sr(sEX, 2)}
    s_waitcnt lgkmcnt(0)
    """)
    if OPT["spf"]:
        a.c("scalar loads walk over m, one per 128-byte line chip-wide, ahead of the gathers")
        a(f"""
        s_lshl_b32 s{sPFO}, s2, 4
        s_add_u32 s{sPFO}, s{sPFO}, s{sW}
        s_lshl_b32 s{sPFO}, s{sPFO}, 7
        """)
        for k in range(OPT["spf"]):
            a(spf())
    put(1)
    a.c("centers and frequencies to f32")
    for k in (3, 2, 1, 0):
        a(f"s_and_b32 s{sCEN + 2 * k + 1}, s{sCEN + k}, 0xffff0000")
        a(f"s_lshl_b32 s{sCEN + 2 * k}, s{sCEN + k}, 16")
    a(f"""
    s_lshl_b32 s{sT0}, s{sT2}, 16
    s_and_b32 s{sT1}, s{sT2}, 0xffff0000
    v_mov_b32 v{t[8]}, 0.15915494
    v_mul_f32 v{t[9]}, s{sT0}, v{t[8]}
    v_mul_f32 v{t[8]}, s{sT1}, v{t[8]}
    v_and_b32 v{vH16}, 1, v{vLANE}
    v_lshlrev_b32 v{vH16}, 4, v{vH16}
    v_readfirstlane_b32 s{sKF0}, v{t[9]}
    v_readfirstlane_b32 s{sKF1}, v{t[8]}
    """)
    a.c("record-stream lane constants")
    a(f"""
    v_and_b32 v{t[8]}, {LPS - 1}, v{vLANE}
    v_lshrrev_b32 v{t[9]}, {LSH}, v{vLANE}
    v_lshlrev_b32 v{vL2}, 1, v{t[8]}
    v_lshlrev_b32 v{vBP}, 2, v{t[9]}
    v_mul_u32_u24 v{t[9]}, {CB}, v{t[9]}
    v_mad_u32_u24 v{vCB}, v{t[8]}, 12, v{t[9]}
    s_mul_i32 s{sCO}, s{sW}, {32 * CHB}
    s_mul_i32 s{sRB}, s{sW}, {RING_STRIDE}
    s_add_u32 s{sRB}, s{sRB}, {L_RING}
    s_mov_b32 s{sTOP}, s{sRB}
    s_mov_b32 s{sCNT}, 0
    s_mov_b64 {sr(sM[0], 2)}, 0
    s_mov_b64 {sr(sM[1], 2)}, 0
    s_mov_b32 s{sJ}, 0
    s_mov_b32 s{sPH}, 0
    s_mov_b32 s{sG}, 100000
    s_mov_b32 s{sCAP}, {OPT['lim']}
    s_mov_b64 {sr(sF[0], 2)}, 0
    s_mov_b64 {sr(sF[1], 2)}, 0
    s_and_b32 s3, s2, {3 if OPT["stag"] == 1 else (6 if OPT["stag"] == 2 else 0)}
    s_lshl_b32 s3, s3, {1 if OPT["stag"] == 1 else 0}
    s_mov_b32 s83, {-16 * OPT["lag"] + OPT["lagoff"]}
    {'s_mov_b32 s95, 0' if OPT['cntreq'] else ''}
    """)

    uid = [0]
    kmul = (OPT["ns"] << 24) // E
    SLB = ((1 << 24) // kmul * 32) & ~127
    SHARE = (SLB // 128 + 64 * OPT['pfx']) // (64 * OPT['pfx'])

    PER = (SHARE + OPT["pfw"] - 1) // OPT["pfw"]

    def pf_share(sS, tmpv, vPF=vPF):
        return f"""
        s_mul_i32 s{sT0}, s{sS}, {SLB}
        s_mul_i32 s{sT1}, s82, {SHARE * 128}
        s_add_u32 s{sT0}, s{sT0}, s{sT1}
        s_mul_i32 s{sT1}, s{sW}, {PER}
        v_add_u32 v{tmpv}, s{sT1}, v{vLANE}
        v_cmp_gt_u32 vcc, {PER}, v{vLANE}
        v_lshlrev_b32 v{tmpv}, 7, v{tmpv}
        s_nop 0
        v_cndmask_b32 v{tmpv}, v{vOOB}, v{tmpv}, vcc
        buffer_load_dword v{vPF}, v{tmpv}, {sr(S_M, 4)}, s{sT0} offen
        """

    def prep(buf, mid=None, pf=True):
        uid[0] += 1
        u = uid[0]
        a(f"""
        v_lshrrev_b32 v{RL[buf]}, 16, v{vE}
        v_and_b32 v{t[0]}, 1, v{vE}
        v_and_b32 v{t[1]}, 0xfffe, v{vE}
        v_sub_u32 v{RD[buf]}, v{vL2}, v{t[0]}
        v_mad_u32_u24 v{RA[buf]}, v{t[1]}, 6, v{vCB}
        v_cmp_lt_i32 vcc, v{RD[buf]}, v{RL[buf]}
        v_cmp_lt_u32 {sr(sLONG[buf], 2)}, {2 * LPS - 1}, v{RL[buf]}
        s_mov_b32 s{sCOB[buf]}, s{sCO}
        {"s_or_b32 vcc_lo, vcc_lo, 1" if OPT["rexec"] else f"v_cndmask_b32 v{t[1]}, v{vOOB}, v{RA[buf]}, vcc"}
        v_add_u32 v{vBP}, {4 * SPL}, v{vBP}
        s_add_u32 s{sCO}, s{sCO}, {SPL * CB}
        s_add_u32 s{sJ}, s{sJ}, 1
        s_cmp_lt_u32 s{sJ}, {SPP}
        s_cbranch_scc0 P2_adv{u}
        P2_advr{u}:
        {f"ds_bpermute_b32 v{vE}, v{vBP}, v{TT}" if mid else ""}
        """)
        if mid:
            a(mid)
        if OPT["x_fake"]:
            a(f"buffer_load_dword v{D2}, v{vOOB}, {sr(S_REC, 4)}, s{sCOB[buf]} offen{ntr}")
            sz = E // OPT['ns']
            a(f"""
            s_add_u32 s98, s{sK}, {2 + buf}
            s_lshr_b32 s98, s98, 3
            s_min_u32 s98, s98, {OPT['ns'] - 1}
            s_mul_i32 s98, s98, {sz}
            s_mov_b32 s99, {sz}
            s_mov_b32 s97, 0x9E3779B1
            """)
            for dd in (RB[buf], RB[buf] + 2):
                a(f"""
                v_mul_lo_u32 v{D1}, v{D1}, s97
                v_add_u32 v{D1}, 0x3c6ef35f, v{D1}
                v_lshrrev_b32 v{D1 + 1}, 15, v{D1}
                v_xor_b32 v{D1}, v{D1}, v{D1 + 1}
                v_mul_hi_u32 v{dd}, v{D1}, s99
                v_add_u32 v{dd}, s98, v{dd}
                v_lshlrev_b32 v{dd}, 12, v{dd}
                """)
        else:
            if OPT["rexec"]:
                a(f"""
                s_mov_b64 exec, vcc
                buffer_load_dwordx3 {vr(RB[buf], 3)}, v{RA[buf]}, {sr(S_REC, 4)}, s{sCOB[buf]} offen{ntr}
                s_mov_b64 exec, -1
                """)
            else:
                a(f"buffer_load_dwordx3 {vr(RB[buf], 3)}, v{t[1]}, {sr(S_REC, 4)}, s{sCOB[buf]} offen{ntr}")
        if OPT["pfn"] and mid and pf:
            a(f"""
            s_cmp_eq_u32 s{sJ}, s99
            s_cbranch_scc1 P2_pf{u}
            P2_pfr{u}:
            """)
            cold.append(f"""
            P2_pf{u}:
            s_cmp_eq_u32 s{sPH}, s98
            s_cbranch_scc0 P2_pfr{u}
            s_add_u32 s98, s98, {OPT["pfg"]}
            """ + "".join(f"s_add_u32 s{sT2}, s{sPH}, {OPT['pfn'] + g}\n" + pf_share(sT2, t[3]) for g in range(OPT["pfg"])) + f"""
            s_branch P2_pfr{u}
            """)
        cold.append(f"""
        P2_adv{u}:
        s_mov_b32 s{sJ}, 0
        s_sub_u32 s{sCO}, s{sCO}, {32 * CHB}
        s_add_u32 s{sPH}, s{sPH}, 1
        s_and_b32 s{sT0}, s{sPH}, 3
        s_cselect_b32 s{sT0}, {4 * NCW}, 0
        v_subrev_u32 v{vBP}, s{sT0}, v{vBP}
        v_mov_b32 v{t[0]}, v{TT}
        v_mov_b32 v{TT}, v{TT + 1}
        v_mov_b32 v{TT + 1}, v{TT + 2}
        v_mov_b32 v{TT + 2}, v{TT + 3}
        v_mov_b32 v{TT + 3}, v{t[0]}
        {f"s_call_b64 {sr(sRET, 2)}, P2_w1" if FUS else ""}
        s_cmp_lt_u32 s{sPH}, {16 if BIG else 8}
        s_cbranch_scc1 P2_advr{u}
        v_mov_b32 v{TT}, 0
        s_branch P2_advr{u}
        """)

    cold = []
    def first_recs():
        prep(0)
        a(f"v_mov_b32 v{vE}, v{C[0]}")
        prep(1)
    if not FUS:
        a(f"s_waitcnt vmcnt({11 + npf})")
        first_recs()

    def pf_prologue():
        a(f"""
        s_bfe_u32 s99, s2, {(3 << 16) | 3 if OPT["pfs"] else 0}
        s_cmp_lt_u32 s99, {4 if OPT['peel'] else 3}
        s_cselect_b32 s98, {OPT["pfg"]}, 0
        s_lshr_b32 s82, s2, 2
        s_mul_i32 s82, s82, {OPT["pfx"]}
        s_and_b32 s{sT0}, s2, 3
        s_add_u32 s82, s82, s{sT0}
        s_cmp_lt_u32 s{sT0}, {OPT["pfx"]}
        s_cselect_b32 s{sT0}, s{sW}, 99
        s_cmp_lt_u32 s{sT0}, {OPT["pfw"]}
        s_cselect_b32 s99, s99, 99
        s_cbranch_scc0 P2_nopf
        """)
        for k in range(OPT["pffirst"], OPT["pfn"] + OPT["pfg"]):
            if k == OPT["pfn"]:
                a(f"s_cmp_lt_u32 s99, {4 if OPT['peel'] else 3}\ns_cbranch_scc0 P2_nopf")
            a(f"s_mov_b32 s{sT2}, {k}")
            a(pf_share(sT2, t[3], vDUM))
        a("P2_nopf:")
    if OPT["pfn"] and OPT["pfpos"] == 0:
        pf_prologue()
    a.c("radial basis table exp(-10 (d - c)^2), stored as f16")
    ED = FUS and OPT["edist"]
    a(f"s_waitcnt vmcnt({nst[0] if ILV else OPT['_nst'] if ED else (0 if FUS else 8 + npf)})")
    ED = ED or ILV

    def signal1():
        a.c("second half is out: the last wave to see its stores done tells the other workgroups")
        a(f"""
        v_mov_b32 v{t[2]}, {P2_LDS - 4}
        v_mov_b32 v{t[3]}, 1
        s_mov_b64 exec, 1
        ds_add_rtn_u32 v{t[2]}, v{t[2]}, v{t[3]}
        s_waitcnt lgkmcnt(0)
        v_readfirstlane_b32 s{sT0}, v{t[2]}
        v_mov_b32 v{t[2]}, 0
        s_cmp_eq_u32 s{sT0}, 31
        s_cbranch_scc0 P2_nosig
        global_atomic_add v{t[2]}, v{t[3]}, {sr(sDBG, 2)} offset:128 sc1
        P2_nosig:
        s_mov_b64 exec, -1
        """)
    if FUS:
        if OPT["stamp2"] and not ED:
            a("s_memrealtime s[74:75]\ns_waitcnt lgkmcnt(0)\ns_mov_b32 s78, s74")
        if not ED:
            signal1()
        if OPT["pfm"] == 6:
            a(f"""
            v_cmp_gt_u32 vcc, 782, v0
            v_lshlrev_b32 v{t[2]}, 15, v0
            s_lshl_b32 s{sT0}, s2, 7
            v_cndmask_b32 v{t[2]}, v{vOOB}, v{t[2]}, vcc
            buffer_load_dword v{vDUM}, v{t[2]}, {sr(S_M, 4)}, s{sT0} offen
            """)
        if OPT["pollpos"] == 0:
            poll0()
    sTEN, sL2E = sRET, sRET + 1
    a(f"s_mov_b32 s{sTEN}, 0xc1200000")
    a(f"s_mov_b32 s{sL2E}, {0x3fb8aa3b if OPT['mimic'] else 0xc166d4ca:#x}")
    def rbf_round(r):
        dd = 12 + r if FUS and OPT['edist'] else t[4 + r]
        if r == 3:
            a(f"""
            v_cmp_gt_u32 vcc, {EB - 3 * 1024}, v0
            s_and_saveexec_b64 {sr(sEX, 2)}, vcc
            s_cbranch_execz P2_rbf3
            """)
        a(f"v_lshlrev_b32 v{dd}, 16, v{dd}")
        x = [D + k for k in range(8)]
        for k in range(8):
            a(f"v_subrev_f32 v{x[k]}, s{sCEN + k}, v{dd}")

        def rnd():
            if not OPT["mimic"]:
                return
            for k in range(0, 8, 2):
                a(f"v_cvt_pk_bf16_f32 v{D + 8 + k // 2}, v{x[k]}, v{x[k + 1]}")
            for k in range(0, 8, 2):
                a(f"v_lshlrev_b32 v{x[k]}, 16, v{D + 8 + k // 2}")
                a(f"v_and_b32 v{x[k + 1]}, s{sHI}, v{D + 8 + k // 2}")
        rnd()
        for k in range(8):
            a(f"v_mul_f32 v{x[k]}, v{x[k]}, v{x[k]}")
        rnd()
        if OPT["mimic"]:
            for k in range(8):
                a(f"v_mul_f32 v{x[k]}, s{sRET}, v{x[k]}")
        rnd()
        for k in range(8):
            a(f"v_mul_f32 v{x[k]}, s{sRET + 1}, v{x[k]}")
        for k in range(8):
            a(f"v_exp_f32 v{x[k]}, v{x[k]}")
        a("s_nop 0")
        rnd()
        for k in range(0, 8, 2):
            a(f"v_cvt_pk_f16_f32 v{D + 8 + k // 2}, v{x[k]}, v{x[k + 1]}")
        a(f"ds_write_b128 v{t[8]}, {vr(D + 8, 4)} offset:{L_RBF + r * 16384}")
        if r == 3:
            a("P2_rbf3:")
            a(f"s_mov_b64 exec, {sr(sEX, 2)}")


    def rbf_consts():
        a(f"v_lshlrev_b32 v{t[8]}, 4, v0")
    rbf_consts()
    if FUS:
        assert OPT["peel"] == 1
        for r in range(4):
            rbf_round(r)
            put(2)
        put(99)
        if ED:
            a("s_waitcnt vmcnt(0)")
            if OPT["stamp2"]:
                a("s_memrealtime s[74:75]\ns_waitcnt lgkmcnt(0)\ns_mov_b32 s78, s74")
            signal1()
        if OPT["pollpos"] == 1:
            poll0()
        a("s_waitcnt vmcnt(0) lgkmcnt(0)\ns_barrier")
        if OPT["stamp2"]:
            a("s_memrealtime s[74:75]\ns_waitcnt lgkmcnt(0)\ns_mov_b32 s3, s74")
        table_loads()
        ops_loads()
        a(f"s_waitcnt vmcnt(6)\ns_call_b64 {sr(sRET, 2)}, P2_w1")
        first_recs()
        a(f"ds_bpermute_b32 v{vE}, v{vBP}, v{TT}")
        cold.append(f"""
        P2_w1:
        s_cmp_eq_u32 s{sA1}, 1
        s_cbranch_scc1 P2_w1r
        v_and_b32 v{t[2]}, 0xffff, v{TT}
        v_lshrrev_b32 v{t[3]}, 16, v{TT}
        v_add_u32 v{t[2]}, v{t[2]}, v{t[3]}
        s_lshr_b32 s{sT0}, s{sPH}, 2
        s_lshl_b32 s{sT0}, s{sT0}, 4
        v_cmp_lt_u32 vcc, {OPT["h0"]}, v{t[2]}
        s_lshr_b64 vcc, vcc, s{sT0}
        s_and_b32 s{sT0}, vcc_lo, 0xffff
        s_cbranch_scc0 P2_w1r
        s_mov_b32 s{sA1}, 1
        v_mov_b32 v{t[2]}, 0
        v_mov_b32 v{t[3]}, 1
        s_mov_b64 exec, 1
        ds_or_rtn_b32 v{t[3]}, v{t[2]}, v{t[3]} offset:788
        s_mov_b64 exec, -1
        s_waitcnt lgkmcnt(0)
        v_readfirstlane_b32 s{sT0}, v{t[3]}
        s_cmp_eq_u32 s{sT0}, 0
        s_cbranch_scc0 P2_w1o
        {poll(128, "P2_poll1")}
        s_waitcnt vmcnt(0)
        v_mov_b32 v{t[3]}, 3
        ds_write_b32 v{t[2]}, v{t[3]} offset:788
        P2_w1r:
        s_setpc_b64 {sr(sRET, 2)}
        P2_w1o:
        s_cmp_eq_u32 s{sT0}, 3
        s_cbranch_scc1 P2_w1r
        ds_read_b32 v{t[3]}, v{t[2]} offset:788
        s_waitcnt lgkmcnt(0)
        v_readfirstlane_b32 s{sT0}, v{t[3]}
        s_branch P2_w1o
        """)
    else:
        a(f"ds_bpermute_b32 v{vE}, v{vBP}, v{TT}")
        for r in range(2 if OPT["peel"] else 4):
            rbf_round(r)
    a(f"""
    v_mov_b32 v{O[1]}, 0
    v_mov_b32 v{WA[1]}, 0
    """)
    a(f"s_mov_b32 s{sK}, 0")
    if OPT["gexec"]:
        for j in range(16):
            a(f"v_mov_b32 v{GP[0] + j}, 0")

    def prologue_tail():
        if FUS:
            a("s_waitcnt lgkmcnt(0)")
            return
        if OPT["peel"]:
            rbf_round(2)
            rbf_round(3)
        if OPT["pfn"] and OPT["pfpos"] == 1:
            pf_prologue()
        a("s_waitcnt lgkmcnt(0)\ns_barrier")
    if not OPT["peel"]:
        a.c("two out-of-range loads stand in for the gathers of the steps before the first one")
        for k in range(2):
            a(f"buffer_load_dword v{vDUM}, v{vOOB}, {sr(S_REC, 4)}, 0 offen")
        prologue_tail()

    la, bit, aX, aY, old = t[5], t[6], t[7], t[8], t[9]
    STAMP = OPT["stamp"]

    def st(i):
        return f"s_memtime s[{60 + 2 * i}:{61 + 2 * i}]" if STAMP else ""

    def lg(n):
        return f"s_waitcnt lgkmcnt({0 if STAMP else n})"

    def pop_issue(buf):
        F, NF = sF[buf], sACQ
        return f"""
        s_bcnt0_i32_b64 s{sN}, {sr(F, 2)}
        s_not_b64 {sr(NF, 2)}, {sr(F, 2)}
        s_min_u32 s{sN}, s{sCNT}, s{sN}
        v_mbcnt_lo_u32_b32 v{t[2]}, s{NF}, 0
        s_sub_u32 s{sCNT}, s{sCNT}, s{sN}
        v_mbcnt_hi_u32_b32 v{t[2]}, s{NF + 1}, v{t[2]}
        s_lshl3_add_u32 s{sTOP}, s{sCNT}, s{sRB}
        v_cmp_gt_u32 vcc, s{sN}, v{t[2]}
        v_lshl_add_u32 v{t[2]}, v{t[2]}, 3, s{sTOP}
        s_mov_b64 exec, {sr(NF, 2)}
        v_mov_b32 v{WA[buf]}, 0xfffff000
        v_mov_b32 v{WA[buf] + 1}, 0
        s_and_b64 exec, vcc, {sr(NF, 2)}
        ds_read_b64 {vr(WA[buf], 2)}, v{t[2]}
        s_or_b64 {sr(sM[buf], 2)}, exec, {sr(F, 2)}
        s_mov_b64 exec, -1
        """

    def gathers(buf):
        W, F, X, Y = WA[buf], sF[buf], sACQ, sFAIL
        g0 = f"v_mov_b32 v{t[2]}, v{vOOB}" if OPT["x_nogather"] else f"v_and_b32 v{t[2]}, 0xffffffe0, v{t[2]}"
        return f"""
        v_lshrrev_b32 v{t[2]}, 7, v{W}
        s_and_b64 {sr(X, 2)}, {sr(F, 2)}, {sr(sEVEN, 2)}
        {g0}
        s_lshl_b64 {sr(Y, 2)}, {sr(X, 2)}, 1
        v_lshlrev_b32 v{O[buf]}, 4, v{W}
        v_and_b32 v{t[4]}, s{sHI}, v{W + 1}
        v_or_b32_dpp v{t[3]}, v{t[2]}, v{vH16} quad_perm:[0,0,2,2] row_mask:0xf bank_mask:0xf
        v_or_b32_dpp v{t[2]}, v{t[2]}, v{vH16} quad_perm:[1,1,3,3] row_mask:0xf bank_mask:0xf
        s_nor_b64 exec, {sr(X, 2)}, {sr(Y, 2)}
        s_andn2_b64 {sr(X, 2)}, {sr(F, 2)}, {sr(sEVEN, 2)}
        buffer_load_dwordx4 {vr(GP[buf], 4)}, v{t[3]}, {sr(S_M, 4)}, 0 offen
        s_lshr_b64 {sr(Y, 2)}, {sr(X, 2)}, 1
        s_nor_b64 exec, {sr(X, 2)}, {sr(Y, 2)}
        buffer_load_dwordx4 {vr(GQ[buf], 4)}, v{t[2]}, {sr(S_M, 4)}, 0 offen
        s_mov_b64 exec, -1
        """

    def coschain(buf):
        return f"""
        {f"v_lshlrev_b32 v{O[buf]}, 4, v{vLANE}" if OPT["x_lin"] else f"v_and_b32 v{O[buf]}, 0xfff0, v{O[buf]}"}
        v_mul_f32 v{C[buf]}, s{sKF0}, v{t[4]}
        v_mul_f32 v{t[4]}, s{sKF1}, v{t[4]}
        v_fract_f32 v{C[buf]}, v{C[buf]}
        v_fract_f32 v{t[4]}, v{t[4]}
        v_cos_f32 v{C[buf]}, v{C[buf]}
        v_cos_f32 v{t[4]}, v{t[4]}
        """

    def cospack(buf):
        return f"v_cvt_pk_f16_f32 v{C[buf]}, v{C[buf]}, v{t[4]}"

    def rbf_read(buf):
        return f"ds_read_b128 {vr(S1, 4)}, v{O[buf]} offset:{L_RBF}"

    def gate(buf):
        s = ""
        for j in range(4):
            s += f"v_pk_mul_f16 v{S0 + j}, v{S1 + j}, v{C[buf]} op_sel_hi:[1,0]\n"
        for j in range(4):
            s += f"v_pk_mul_f16 v{S1 + j}, v{S1 + j}, v{C[buf]} op_sel:[0,1]\n"
        s += f"""
        v_mfma_f32_32x32x16_f16 {vr(D2, 16)}, {vr(A2a, 4)}, {vr(S0, 4)}, 0
        s_mov_b64 vcc, {sr(sEVEN, 2)}
        v_mfma_f32_32x32x16_f16 {vr(D2, 16)}, {vr(A2b, 4)}, {vr(S1, 4)}, {vr(D2, 16)}
        """
        return s

    def fixup(buf):
        s = ""
        for j in range(4):
            s += f"v_cndmask_b32_dpp v{S0 + j}, v{GQ[buf] + j}, v{GP[buf] + j}, vcc quad_perm:[0,0,2,2] row_mask:0xf bank_mask:0xf\n"
        s += "s_not_b64 vcc, vcc\n"
        for j in range(4):
            s += f"v_cndmask_b32_dpp v{S1 + j}, v{GP[buf] + j}, v{GQ[buf] + j}, vcc quad_perm:[1,1,3,3] row_mask:0xf bank_mask:0xf\n"
        return s

    def muls():
        for j in range(0, 16, 2):
            a(f"v_pk_mul_f32 {vr(D1 + j, 2)}, {vr(D1 + j, 2)}, {vr(D2 + j, 2)}")

    def core_a(buf, fill, fill2=""):
        W = WA[buf]
        a(f"""
        v_mfma_f32_32x32x16_bf16 {vr(D1, 16)}, {vr(A1a, 4)}, {vr(S0, 4)}, 0
        v_add_u32 v{aX}, {L_ACC0}, v{O[buf]}
        v_mfma_f32_32x32x16_bf16 {vr(D1, 16)}, {vr(A1b, 4)}, {vr(S1, 4)}, {vr(D1, 16)}
        v_add_u32 v{aY}, {L_ACC1}, v{O[buf]}
        v_lshrrev_b32 v{la}, 2, v{W}
        v_lshlrev_b32_e64 v{bit}, v{W}, 1
        v_permlane32_swap_b32 v{aX}, v{aY}
        """)
        a(fill)
        a(f"v_and_b32 v{la}, 0x3fc, v{la}")
        if not OPT["valu_add"]:
            muls()
        a(fill2)

    def core_b(buf, inline):
        uid[0] += 1
        u = uid[0]
        W, M = WA[buf], sM[buf]
        nrm = OPT["x_normw"]
        va = OPT["valu_add"]
        guard = f"s_sub_u32 s{sG}, s{sG}, 1\ns_cbranch_scc1 P2_done" if OPT["guard"] else ""
        a(f"""
        {st(5) if inline else ""}
        {"s_setprio 3" if OPT["prio"] else ""}
        s_mov_b64 exec, {sr(M, 2)}
        {f"v_mov_b32 v{old}, 0" if nrm else f"ds_or_rtn_b32 v{old}, v{la}, v{bit}"}
        s_mov_b64 exec, -1
        {"" if nrm else f"ds_read_b128 {vr(AX, 4)}, v{aX}"}
        {"" if nrm else f"ds_read_b128 {vr(AY, 4)}, v{aY}"}
        {f"ds_read_b32 v{t[10]}, v{vH16} offset:784" if inline else ""}
        {lg(2 if inline else 1)}
        {st(6) if inline else ""}
        """)
        check = f"""
        v_cmp_eq_u32 vcc, 0, v{old}
        s_and_b64 {sr(sACQ, 2)}, vcc, {sr(M, 2)}
        s_andn2_b64 {sr(sF[buf], 2)}, {sr(M, 2)}, vcc
        s_bcnt1_i32_b64 s{sN}, {sr(sF[buf], 2)}
        {"s_add_u32 s95, s95, s%d" % sN if OPT["cntreq"] else ""}
        s_mov_b32 exec_lo, s{sACQ}
        s_mov_b32 exec_hi, s{sACQ}
        s_cmp_gt_u32 s{sN}, s{sCAP}
        """
        U = [TF, TF + 1, TF + 2, TF + 3, t[1], t[2], t[3], t[4]]
        assert t[1] % 2 == 0

        def addhalf(Ac, off):
            for j in range(4):
                a(f"v_lshlrev_b32 v{U[2 * j]}, 16, v{Ac + j}")
                a(f"v_and_b32 v{U[2 * j + 1]}, s{sHI}, v{Ac + j}")
            for j in range(4):
                a(f"v_pk_fma_f32 {vr(U[2 * j], 2)}, {vr(D1 + off + 2 * j, 2)}, {vr(D2 + off + 2 * j, 2)}, {vr(U[2 * j], 2)}")
            for j in range(4):
                a(f"v_cvt_pk_bf16_f32 v{Ac + j}, v{U[2 * j]}, v{U[2 * j + 1]}")
        if va:
            a(f"v_and_b32 v{old}, v{old}, v{bit}")
            a(check)
            addhalf(AX, 0)
            a(f"s_waitcnt lgkmcnt({1 if inline else 0})")
        else:
            a(f"""
            v_mfma_f32_32x32x16_bf16 {vr(D2, 16)}, {vr(A3a, 4)}, {vr(AX, 4)}, {vr(D1, 16)}
            v_and_b32 v{old}, v{old}, v{bit}
            s_waitcnt lgkmcnt({1 if inline else 0})
            v_mfma_f32_32x32x16_bf16 {vr(D2, 16)}, {vr(A3b, 4)}, {vr(AY, 4)}, {vr(D2, 16)}
            """)
            a(check)
            a("s_nop 4")
            for j in range(4):
                a(f"v_cvt_pk_bf16_f32 v{AX + j}, v{D2 + 2 * j}, v{D2 + 2 * j + 1}")
        a(f"""
        {"" if nrm else f"ds_write_b128 v{aX}, {vr(AX, 4)}"}
        s_mov_b32 exec_lo, s{sACQ + 1}
        s_mov_b32 exec_hi, s{sACQ + 1}
        """)
        if va:
            addhalf(AY, 8)
        else:
            for j in range(4):
                a(f"v_cvt_pk_bf16_f32 v{AY + j}, v{D2 + 8 + 2 * j}, v{D2 + 8 + 2 * j + 1}")
        a(f"""
        {"" if nrm else f"ds_write_b128 v{aY}, {vr(AY, 4)}"}
        s_mov_b64 exec, {sr(sACQ, 2)}
        {"" if nrm else f"ds_xor_b32 v{la}, v{bit}"}
        {f"s_setprio {OPT['pbase']}" if OPT["prio"] else ""}
        s_mov_b64 exec, -1
        s_cbranch_scc1 P2_full{u}
        """)
        if inline:
            a(f"P2_fullr{u}:")
            cold.append(f"""
            P2_full{u}:
            s_mov_b64 {sr(M, 2)}, {sr(sF[buf], 2)}
            s_call_b64 {sr(sRET2, 2)}, P2_rmw{buf}
            s_branch P2_fullr{u}
            """)
        else:
            a(f"""
            s_setpc_b64 {sr(sRET2, 2)}
            P2_full{u}:
            {guard}
            s_mov_b64 {sr(M, 2)}, {sr(sF[buf], 2)}
            s_branch P2_rmw{buf}
            """)

    def slow_push(buf, slot):
        uid[0] += 1
        u = uid[0]
        d0, d1, d2 = RB[buf], RB[buf] + 1, RB[buf] + 2
        if slot == 0:
            s = f"""
            v_cmp_lt_u32 {sr(sM0, 2)}, v{RD[buf]}, v{RL[buf]}
            v_lshlrev_b32 v{t[11]}, 16, v{d1}
            """
            w, an = d0, t[11]
        else:
            s = f"""
            v_add_u32 v{t[11]}, 1, v{RD[buf]}
            v_cmp_lt_u32 {sr(sM0, 2)}, v{t[11]}, v{RL[buf]}
            """
            w, an = d2, d1
        return s + f"""
        P2_push{u}:
        s_bcnt1_i32_b64 s{sN0}, {sr(sM0, 2)}
        s_add_u32 s{sT0}, s{sCNT}, s{sN0}
        s_cmp_le_u32 s{sT0}, {RING_CAP}
        s_cbranch_scc1 P2_pok{u}
        s_call_b64 {sr(sRET, 2)}, P2_pop{buf}
        s_branch P2_push{u}
        P2_pok{u}:
        v_mbcnt_lo_u32_b32 v{t[4]}, s{sM0}, 0
        v_mbcnt_hi_u32_b32 v{t[4]}, s{sM0 + 1}, v{t[4]}
        v_lshl_add_u32 v{t[4]}, v{t[4]}, 3, s{sTOP}
        s_mov_b64 exec, {sr(sM0, 2)}
        ds_write2_b32 v{t[4]}, v{w}, v{an} offset1:1
        s_mov_b64 exec, -1
        s_mov_b32 s{sCNT}, s{sT0}
        s_lshl3_add_u32 s{sTOP}, s{sN0}, s{sTOP}
        """

    def step(buf, peeled=False):
        uid[0] += 1
        u = uid[0]
        prev = buf ^ 1
        d0, d1, d2 = RB[buf], RB[buf] + 1, RB[buf] + 2
        a.c(f"---- step, buffer {buf}: compact the loaded records onto the stack")
        if OPT["rot"] and (OPT["rot"] == 1 or buf == 0):
            a(f"""
            s_add_u32 s82, s82, 1
            s_bitcmp1_b32 s82, 1
            s_cbranch_scc1 P2_prh{u}
            s_setprio 0
            s_bitcmp1_b32 s82, 0
            s_cbranch_scc0 P2_pre{u}
            s_setprio 1
            s_branch P2_pre{u}
            P2_prh{u}:
            s_setprio 2
            s_bitcmp1_b32 s82, 0
            s_cbranch_scc0 P2_pre{u}
            s_setprio 3
            P2_pre{u}:
            """)
        a(f"""
        {st(0)}
        s_waitcnt vmcnt({1 if peeled and buf == 0 else 3})
        {st(1)}
        v_cmp_lt_u32 {sr(sM0, 2)}, v{RD[buf]}, v{RL[buf]}
        v_add_u32 v{t[1]}, 1, v{RD[buf]}
        v_lshlrev_b32 v{t[2]}, 16, v{d1}
        v_cmp_lt_u32 {sr(sM1, 2)}, v{t[1]}, v{RL[buf]}
        s_bcnt1_i32_b64 s{sN0}, {sr(sM0, 2)}
        v_mbcnt_lo_u32_b32 v{t[0]}, s{sM0}, 0
        s_bcnt1_i32_b64 s{sN}, {sr(sM1, 2)}
        v_mbcnt_hi_u32_b32 v{t[0]}, s{sM0 + 1}, v{t[0]}
        v_mbcnt_lo_u32_b32 v{t[1]}, s{sM1}, 0
        s_add_u32 s{sT0}, s{sCNT}, s{sN0}
        v_mbcnt_hi_u32_b32 v{t[1]}, s{sM1 + 1}, v{t[1]}
        s_add_u32 s{sT0}, s{sT0}, s{sN}
        s_lshl3_add_u32 s{sT1}, s{sN0}, s{sTOP}
        v_lshl_add_u32 v{t[0]}, v{t[0]}, 3, s{sTOP}
        s_cmp_lg_u64 {sr(sLONG[buf], 2)}, 0
        s_cselect_b32 s{sT2}, 0, {RING_CAP + 1}
        v_lshl_add_u32 v{t[1]}, v{t[1]}, 3, s{sT1}
        s_cmp_ge_u32 s{sT0}, s{sT2}
        s_cbranch_scc1 {f"P2_alt{buf}" if peeled else f"P2_slow{u}"}
        s_mov_b64 exec, {sr(sM0, 2)}
        ds_write2_b32 v{t[0]}, v{d0}, v{t[2]} offset1:1
        s_mov_b64 exec, {sr(sM1, 2)}
        ds_write2_b32 v{t[1]}, v{d2}, v{d1} offset1:1
        s_mov_b64 exec, -1
        s_mov_b32 s{sCNT}, s{sT0}
        P2_slowr{u}:
        """)
        if peeled:
            a(pop_issue(buf))
            a("s_waitcnt lgkmcnt(0)")
            prep(buf, gathers(buf), False)
            a(coschain(buf))
            a("s_nop 0")
            a(cospack(buf))
            return
        cold.append(f"P2_slow{u}:\n" + slow_push(buf, 0) + slow_push(buf, 1) + f"""
        P2_long{u}:
        v_add_u32 v{RD[buf]}, {2 * LPS}, v{RD[buf]}
        v_add_u32 v{RA[buf]}, {12 * LPS}, v{RA[buf]}
        v_cmp_lt_i32 vcc, v{RD[buf]}, v{RL[buf]}
        s_cbranch_vccz P2_slowr{u}
        s_nop 0
        v_cndmask_b32 v{t[4]}, v{vOOB}, v{RA[buf]}, vcc
        buffer_load_dwordx3 {vr(RB[buf], 3)}, v{t[4]}, {sr(S_REC, 4)}, s{sCOB[buf]} offen
        s_waitcnt vmcnt(0)
        """ + slow_push(buf, 0) + slow_push(buf, 1) + f"s_branch P2_long{u}\n")
        if OPT["x_nopop"]:
            a(f"s_mov_b32 s{sCNT}, 0\ns_mov_b32 s{sTOP}, s{sRB}")
            prep(buf)
            for k in range(2):
                a(f"buffer_load_dword v{vDUM}, v{vOOB}, {sr(S_REC, 4)}, 0 offen")
            a("s_waitcnt lgkmcnt(0)")
            return
        a(pop_issue(buf))
        a(rbf_read(prev))
        prep(buf, lg(2) + "\n" + st(2) + "\n" + gathers(buf))
        a(st(3))
        a(lg(1))
        if OPT["x_nocore"]:
            a("s_waitcnt vmcnt(4) lgkmcnt(0)")
            a(f"s_mov_b64 {sr(sM[buf], 2)}, 0")
        else:
            a(gate(prev))
            a("s_waitcnt vmcnt(4)")
            a(st(4))
            a(fixup(prev))
            core_a(prev, coschain(buf), cospack(buf))
            core_b(prev, True)
        if OPT["lag"]:
            a(f"""
            s_waitcnt lgkmcnt(3)
            v_readfirstlane_b32 s{sT1}, v{t[10]}
            {spf() if OPT["spf"] else ""}
            s_mov_b64 exec, 1
            s_add_u32 s83, s83, 16
            ds_inc_u32 v{vH16}, v{vOOB} offset:784
            s_mov_b64 exec, -1
            s_cmp_lt_i32 s{sT1}, s83
            s_cbranch_scc1 P2_poll{u}
            """)
            if OPT["dynp"]:
                a(f"""
                s_sub_u32 s{sT1}, s{sT1}, {OPT["dynp"]}
                s_cmp_lt_i32 s{sT1}, s83
                s_cbranch_scc1 P2_pollr{u}
                s_setprio 2
                """)
            a(f"P2_pollr{u}:")
            cold.append(f"""
            P2_poll{u}:
            s_setprio 0
            s_mov_b64 exec, 1
            ds_read_b32 v{t[10]}, v{vH16} offset:784
            s_mov_b64 exec, -1
            s_waitcnt lgkmcnt(0)
            v_readfirstlane_b32 s{sT1}, v{t[10]}
            s_cmp_ge_i32 s{sT1}, s83
            s_setprio {OPT['pbase']}
            s_cbranch_scc1 P2_pollr{u}
            {f"s_sleep {OPT['sleep']}" if OPT['sleep'] else ''}
            {f"s_sub_u32 s{sG}, s{sG}, 1" if OPT["guard"] else ""}
            {"s_cbranch_scc1 P2_done" if OPT["guard"] else ""}
            s_branch P2_poll{u}
            """)
        if STAMP:
            a("s_waitcnt lgkmcnt(0)")
            a("s_sub_u32 s96, s60, s74\ns_add_u32 s84, s84, s96")
            a("s_memtime s[74:75]\ns_waitcnt lgkmcnt(0)")
            for i in range(7):
                a(f"s_sub_u32 s96, s{62 + 2 * i}, s{60 + 2 * i}\ns_add_u32 s{85 + i}, s{85 + i}, s96")

    if OPT["peel"]:
        a.c("the first halves of the first steps run before the rest of the setup, so that their gathers are under way")
        stamp = "s_memrealtime s[60:61]\ns_memtime s[72:73]\ns_waitcnt lgkmcnt(0)" if OPT["stamp2"] else ""
        done1 = f"""
        s_mov_b64 exec, 1
        s_add_u32 s83, s83, 16
        ds_inc_u32 v{vH16}, v{vOOB} offset:784
        s_mov_b64 exec, -1
        """ if OPT["lag"] else ""
        step(0, True)
        if OPT["peel"] == 2:
            step(1, True)
            a(f"""
            s_call_b64 {sr(sRET2, 2)}, P2_tail
            {stamp}
            {rbf_read(0)}
            {done1}
            s_mov_b32 s{sK}, 2
            s_waitcnt lgkmcnt(0)
            """)
            a(gate(0))
            a("s_waitcnt vmcnt(4)")
            a(fixup(0))
            core_a(0, "s_nop 6")
            a(f"""
            s_call_b64 {sr(sRET2, 2)}, P2_rmw0
            {done1}
            s_branch P2_loop
            P2_alt1:
            """)
        a(f"""
        s_call_b64 {sr(sRET2, 2)}, P2_tail
        {stamp}
        {done1}
        s_branch P2_step1
        P2_tail:
        """)
        prologue_tail()
        a(f"""
        s_setpc_b64 {sr(sRET2, 2)}
        P2_alt0:
        s_call_b64 {sr(sRET2, 2)}, P2_tail
        """)
    if OPT["stamp2"]:
        a("s_memrealtime s[60:61]\ns_memtime s[72:73]\ns_waitcnt lgkmcnt(0)")
    if STAMP:
        for i in range(8):
            a(f"s_mov_b32 s{84 + i}, 0")
        a("s_memtime s[74:75]")
    if OPT["x_fake"]:
        a(f"s_lshl_b32 s98, s2, 10\nv_add_u32 v{D1}, s98, v0\nv_mul_lo_u32 v{D1}, v{D1}, v{D1}\nv_add_u32 v{D1}, v{D1}, v0")
    a("P2_loop:")
    if OPT["phase_bar"]:
        a(f"""
        s_add_u32 s{sT0}, s{sK}, s3
        s_and_b32 s{sT0}, s{sT0}, 7
        s_cbranch_scc1 P2_nobar
        s_barrier
        P2_nobar:
        """)
    a(f"""
    {f"s_cmp_eq_u32 s{sK}, {NSTEP - OPT['endn']}" if OPT["endn"] else ""}
    {f"s_cselect_b32 s{sT0}, {OPT['endd']}, 0" if OPT["endn"] else ""}
    {f"s_add_u32 s83, s83, s{sT0}" if OPT["endn"] else ""}
    {"" if OPT["xpop"] else f"s_cmp_lt_u32 s{sK}, {NSTEP - 2}"}
    {"" if OPT["xpop"] else f"s_cselect_b32 s{sCAP}, {OPT['lim']}, 0"}
    """)
    step(0)
    a("P2_step1:")
    step(1)
    a(f"""
    s_add_u32 s{sK}, s{sK}, 2
    s_cmp_lt_u32 s{sK}, {NSTEP}
    s_cbranch_scc1 P2_loop
    """)
    if STAMP:
        a(f"""
        s_lshl_b32 s96, s2, 4
        s_add_u32 s96, s96, s{sW}
        s_lshl_b32 s96, s96, 6
        s_add_u32 s6, s6, {16 << 20}
        s_addc_u32 s7, s7, 0
        """)
        srd(a, S_DST, 6, 1 << 20)
        a(f"v_mov_b32 v{t[0]}, 0")
        for i in range(8):
            a(f"v_mov_b32 v{t[1]}, s{84 + i}")
            a(f"buffer_store_dword v{t[1]}, v{t[0]}, {sr(S_DST, 4)}, s96 offen offset:{4 * i}")
        a("s_waitcnt vmcnt(0)")
    if OPT["stamp2"]:
        a("s_memrealtime s[62:63]\ns_memtime s[74:75]\ns_waitcnt lgkmcnt(0)\ns_sub_u32 s72, s74, s72")
    a.c("fetch the epilogue's operands and the bucket's own m rows; finish the last pop; empty the stack")
    MP = [TT, RB[0], RB[1], RL[0], GP[1], GQ[1], WA[0]]
    XP = OPT["xpop"]
    assert not XP or OPT["valu_add"]
    A1, A2, A3, DX, DY, SX, SY = (A3b, vBP, A3a, D1, D2, A2a, A2b) if XP else (GP[0], GQ[0], A3a, D1, D2, A2a, A2b)
    vMO = vE
    if XP:
        a(f"s_mov_b32 s{sCAP}, 0")
        a(pop_issue(0))
    a(f"""
    v_and_b32 v{t[0]}, 31, v{vLANE}
    v_lshrrev_b32 v{t[1]}, 5, v{vLANE}
    v_lshlrev_b32 v{t[1]}, 4, v{t[1]}
    s_lshl_b32 s{sT0}, s{sW}, 10
    v_lshl_add_u32 v{vMO}, v{t[0]}, 5, v{t[1]}
    v_add_u32 v{vMO}, s{sT0}, v{vMO}
    s_mul_i32 s{sCO}, s{sB}, {EB * 32}
    s_mov_b32 s{sJ}, s{sCO}
    v_lshlrev_b32 v{t[0]}, 4, v{vLANE}
    s_mov_b32 s{sT0}, {TAB_BYTES + 1024 * 6}
    s_mov_b32 s{sT1}, {TAB_BYTES + 1024 * 7}
    {rbf_read(1)}
    """)
    if XP:
        a("s_waitcnt lgkmcnt(1)")
        a(gathers(0))
    a(f"""
    buffer_load_dwordx4 {vr(A1, 4)}, v{t[0]}, {sr(S_TAB, 4)}, s{sT0} offen
    buffer_load_dwordx4 {vr(A2, 4)}, v{t[0]}, {sr(S_TAB, 4)}, s{sT1} offen
    buffer_load_dwordx4 {vr(MP[0], 4)}, v{vMO}, {sr(S_M, 4)}, s{sJ} offen
    s_add_u32 s{sJ}, s{sJ}, 16384
    s_waitcnt lgkmcnt(0)
    """)
    a(gate(1))
    a(f"s_waitcnt vmcnt({5 if XP else 3})")
    for i in range(1, 4):
        a(f"buffer_load_dwordx4 {vr(MP[i], 4)}, v{vMO}, {sr(S_M, 4)}, s{sJ} offen")
        a(f"s_add_u32 s{sJ}, s{sJ}, 16384")
    a(fixup(1))
    if XP:
        core_a(1, coschain(0), cospack(0))
    else:
        core_a(1, "s_nop 6")
    a(f"s_call_b64 {sr(sRET2, 2)}, P2_rmw1")
    if XP:
        a(f"""
        s_cmp_eq_u64 {sr(sM[0], 2)}, 0
        s_cbranch_scc1 P2_drain
        {rbf_read(0)}
        s_waitcnt lgkmcnt(0)
        """)
        a(gate(0))
        a("s_waitcnt vmcnt(6)")
        a(fixup(0))
        core_a(0, "s_nop 6")
        a(f"s_call_b64 {sr(sRET2, 2)}, P2_rmw0")
    a(f"""
    P2_drain:
    s_cmp_eq_u32 s{sCNT}, 0
    s_cbranch_scc1 P2_epi
    s_call_b64 {sr(sRET, 2)}, P2_pop1
    s_branch P2_drain
    P2_epi:
    """)
    for i in range(4, 7):
        a(f"buffer_load_dwordx4 {vr(MP[i], 4)}, v{vMO}, {sr(S_M, 4)}, s{sJ} offen")
        a(f"s_add_u32 s{sJ}, s{sJ}, 16384")
    if OPT["cntreq"]:
        a(f"""
        s_load_dwordx2 s[60:61], s[0:1], 96
        s_waitcnt lgkmcnt(0)
        v_mov_b32 v{t[0]}, s95
        v_mov_b32 v{t[1]}, 0
        s_mov_b64 exec, 1
        global_atomic_add v{t[1]}, v{t[0]}, s[60:61]
        s_mov_b64 exec, -1
        s_waitcnt vmcnt(0)
        """)
    a(f"""
    s_lshl_b32 s{sT0}, s{sW}, 9
    s_mov_b32 s{sT2}, {L_ACC0}
    v_and_b32 v{t[1]}, 31, v{vLANE}
    v_lshlrev_b32 v{t[1]}, 4, v{t[1]}
    v_add_u32 v{t[1]}, s{sT0}, v{t[1]}
    v_lshrrev_b32 v{t[0]}, 5, v{vLANE}
    v_mul_u32_u24 v{t[0]}, {EB * 16}, v{t[0]}
    v_add3_u32 v{t[0]}, v{t[0]}, v{t[1]}, s{sT2}
    s_waitcnt vmcnt(3) lgkmcnt(0)
    """)
    if OPT["stamp2"]:
        a("s_memrealtime s[64:65]\ns_waitcnt lgkmcnt(0)")
    a("s_barrier")
    if OPT["stamp2"]:
        a("s_memrealtime s[66:67]\ns_waitcnt lgkmcnt(0)")
    a.c("epilogue: out = m + (agg @ w_up) * (rbf @ w_rbf), 32 edges per pass, two passes at a time")
    OBX, OBY = TF, (O[0] if XP else A3b)

    EB_ = [(AX, SX, AY, SY), (A1a, A1b, GP[0], GQ[0]) if XP else (A1a, A1b, vBP, t[5])]
    assert t[5] % 2 == 0

    def epi_reads(groups, st_):
        for (i, va), (Ac, Sb) in zip(groups, (EB_[st_][0:2], EB_[st_][2:4])):
            a(f"ds_read_b128 {vr(Ac, 4)}, v{t[0]} offset:{8192 * i}")
            a(f"ds_read_b128 {vr(Sb, 4)}, v{t[1]} offset:{L_RBF + 8192 * i}")

    def epi(groups, st_, nxt):
        regs = [(DX,) + EB_[st_][0:2] + (OBX,), (DY,) + EB_[st_][2:4] + (OBY,)]
        n = len(groups)
        for k, ((i, va), (Dd, Ac, Sb, Ob)) in enumerate(zip(groups, regs)):
            a(f"s_waitcnt lgkmcnt({2 * (n - 1 - k)})")
            a(f"v_mfma_f32_32x32x16_bf16 {vr(Dd, 16)}, {vr(A1, 4)}, {vr(Ac, 4)}, 0")
            a(f"v_mfma_f32_32x32x16_f16 {vr(Dd, 16)}, {vr(A2, 4)}, {vr(Sb, 4)}, {vr(Dd, 16)}")
        if nxt:
            epi_reads(nxt, st_ ^ 1)
        done = 2 * len(nxt) if nxt else 0
        a(f"s_nop {11 - done - (3 if n == 2 else 0)}")
        for k, ((i, va), (Dd, Ac, Sb, Ob)) in enumerate(zip(groups, regs)):
            for j in range(0, 8, 2):
                a(f"v_pk_mul_f32 {vr(Dd + j, 2)}, {vr(Dd + j, 2)}, {vr(Dd + 8 + j, 2)}")
            if OPT["x_err"]:
                import struct
                cst = struct.unpack("<I", struct.pack("<f", 1 + OPT["x_err"] / 1000))[0]
                for j in range(8):
                    a(f"v_mul_f32 v{Dd + j}, {cst:#x}, v{Dd + j}")
        a({4: "s_waitcnt vmcnt(5)", 6: "s_waitcnt vmcnt(6)"}.get(groups[0][0], "s_nop 0"))
        if n == 1:
            a("s_nop 0")
        for (i, va), (Dd, Ac, Sb, Ob) in zip(groups, regs):
            a(f"v_mfma_f32_32x32x16_bf16 {vr(Dd, 16)}, {vr(A3, 4)}, {vr(MP[i], 4)}, {vr(Dd, 16)}")
        a(f"s_nop {11 - (n - 1)}")
        for (i, va), (Dd, Ac, Sb, Ob) in zip(groups, regs):
            for j in range(4):
                a(f"v_cvt_pk_bf16_f32 v{Ob + j}, v{Dd + 2 * j}, v{Dd + 2 * j + 1}")
            a(f"buffer_store_dwordx4 {vr(Ob, 4)}, v{va}, {sr(S_OUT, 4)}, s{sCO} offen{nto}")
            a(f"s_add_u32 s{sCO}, s{sCO}, 16384")

    gl = [[(i, vMO), (i + 1, vMO)] for i in (0, 2, 4)] + [[(6, t[2])]]
    epi_reads(gl[0], 0)
    for q in range(3):
        epi(gl[q], q & 1, gl[q + 1])
    if OPT["stamp2"]:
        a(f"""
        s_memrealtime s[84:85]
        s_waitcnt vmcnt(0) lgkmcnt(0)
        s_memrealtime s[86:87]
        s_lshl_b32 s98, s2, 4
        s_add_u32 s98, s98, s{sW}
        s_lshl_b32 s98, s98, 6
        s_add_u32 s6, s6, {16 << 20}
        s_addc_u32 s7, s7, 0
        s_waitcnt lgkmcnt(0)
        """)
        srd(a, S_TMP, 6, 1 << 20)
        a(f"v_mov_b32 v{t[5]}, 0")
        for i, r in enumerate([94, 60, 62, 64, 66, 84, 86, 72, 78, 3]):
            a(f"v_mov_b32 v{t[6]}, s{r}")
            a(f"buffer_store_dword v{t[6]}, v{t[5]}, {sr(S_TMP, 4)}, s98 offen offset:{4 * i}")
    a(f"""
    s_cmp_lt_u32 s{sW}, 2
    s_cbranch_scc0 P2_done
    v_cmp_gt_u32 vcc, {(EB - 6 * 512) * 32}, v{vMO}
    v_mov_b32 v{t[2]}, 0x7fffff00
    s_nop 0
    v_cndmask_b32 v{t[2]}, v{t[2]}, v{vMO}, vcc
    """)
    epi(gl[3], 1, None)
    a("P2_done:")
    a("s_endpgm")
    for buf in range(2):
        a.c(f"subroutine: pop up to 64 records into buffer {buf} and finish them")
        a(f"P2_pop{buf}:")
        if OPT["guard"]:
            a(f"s_sub_u32 s{sG}, s{sG}, 1\ns_cbranch_scc1 P2_done")
        a(pop_issue(buf))
        a("s_waitcnt lgkmcnt(0)")
        a(gathers(buf))
        a(coschain(buf))
        a(f"""
        {rbf_read(buf)}
        {cospack(buf)}
        s_mov_b64 {sr(sRET2, 2)}, {sr(sRET, 2)}
        s_waitcnt lgkmcnt(0)
        """)
        a(gate(buf))
        a("s_waitcnt vmcnt(0)")
        a(fixup(buf))
        core_a(buf, "s_nop 6")
        a(f"P2_rmw{buf}:")
        core_b(buf, False)
    for c in cold:
        a(c)
    kernel_desc(a, name, 128, 102)


DESCRIPTION = """
One launch, 256 workgroups (one per CU), two parts.
Part 1: workgroup c takes triplets [50000c, 50000c+50000), keeps them in registers, counting-sorts them by
  key = slot(idx_in) * 256 + idx_out / 3125 (histogram, scan and ranks with integer LDS atomics) and writes them to
  d_ws as 6-byte records (idx_in << 12 | idx_out % 3125, angle), in two halves through LDS, plus a table of
  (start, length) per key. slot() is the slice of m the row lies in, rotated per group of 32 buckets. One wave also
  lays the weights out as matrix operands.
Hand-off: every handed-off byte is stored write-through (sc1); once all waves of a workgroup have seen their stores
  complete, one of them adds to a counter in d_debug (word 0: table, operands, first half; word 32: second half).
  A workgroup reads such bytes only after it has seen the matching counter at 256; no line of d_ws is read earlier
  in the launch (the halves meet at a 128-byte boundary), so no cache can hold an older copy.
Part 2: a workgroup owns 3125 output edges: their sums (bf16) and radial basis (f16) live in LDS. Each wave walks
  its 16 chunks slot by slot, so all gathers of a moment fall in one L2-sized slice of m: load four segments,
  compact them on a small LDS stack, gather 64 rows, (m @ w_down) and (sbf @ w_sbf) on the matrix cores, multiply,
  and add to the sums under one lock bit per edge; a record whose lock was taken stays in its lane for the next
  round. A progress word in LDS keeps the waves of a workgroup in the same slice. Segments of any length and any
  number of records per edge take slower paths to the same result.
  Epilogue: out = m + (sum @ w_up) * (rbf @ w_rbf).
"""


def build():
    assert OPT['lagoff'] + OPT['endd'] <= 16 * OPT['lag']
    assert OPT['stag'] != 3 or max((OPT['rotl'] >> (4 * q)) & 15 for q in range(4)) < OPT['ns']
    a = A()
    ref = open(f"cdna_kernels/{NAME}.s.ref").read().split("\n")
    for line in ref:
        if line.startswith("; Override"):
            break
        a.raw(line)
    if OPT["fused"]:
        a.raw(f"; @launch grid=({NB},1,1) block=(1024,1,1) lds={P2_LDS}")
    elif not OPT["only2"]:
        a.raw(f"; @launch kernel=part_kernel grid=({NB},1,1) block=(1024,1,1) lds={B_LDS if OPT['big'] else P1_LDS}")
    if not OPT["x_fuse"] and not OPT["fused"]:
        a.raw(f"; @launch kernel={NAME}_kernel grid=({NB},1,1) block=(1024,1,1) lds={P2_LDS}")
    for line in DESCRIPTION.strip("\n").split("\n"):
        a.raw(("; " + line).rstrip())
    a.raw('.amdgcn_target "amdgcn-amd-amdhsa--gfx950"')
    (gen_part_big if OPT["big"] else gen_part)(a, f"{NAME}_kernel" if OPT["fused"] else "part_kernel")
    gen_main(a, f"{NAME}_kernel")
    return a.text()


def main():
    out = f"cdna_kernels/{NAME}.s"
    for arg in sys.argv[1:]:
        if "=" in arg:
            k, v = arg.split("=")
            assert k in OPT, k
            OPT[k] = type(OPT[k])(int(v))
        else:
            out = arg
    open(out, "w").write(build())


if __name__ == "__main__":
    main()
```

```python
import sys

NAME = "gather_scatter__molecular_angular_gemnet__graph"
E = 800000
T = 12800000
NB = 256
EB = 3125
CH = 25000
NCH = 512
NS = 8
CHB = 150016
REC_BYTES = NCH * CHB
TAB_OFF = REC_BYTES
TAB_BYTES = NB * NCH * 32
OPS_OFF = TAB_OFF + TAB_BYTES

OPT = dict(
    nt_in=True,
    nt_rec=False,
    phase_bar=False,
    nt_out=False,
    x_nogather=False, x_normw=False, x_norec=False,
    ldsc=3, pfq=0, ilv=0, edist=0, x_noinv=3, pollpos=1, fused=1, sigat=7, x_fuse=0, pfpar=0, pfd=0, j0s=0x3210, pfl=782, x_err=0, xpop=1, endn=0, endd=0, fuse=0, wb=0, bfair=0, adepth=1, h0=25984, depth=1, aearly=0, spl=4, big=1, only2=0, angl=1, bang=1, lim=24, x_lin=0, pbase=1, dynp=11, rexec=0, gexec=0, aslot=1, rotl=0x3a07, pfx=4, tabc=1, sleep=0, pfp1=0, peel=1, pfg=1, stm=1, stmb=1, outm=2, pfw=2, pfpos=1, pffirst=0, spf=0, pfs=1, pfn=0, mimic=0, pf0=0, valu_add=1, early=1, stpos=2, stag=3, pfm=2, slide=0, ns=13, bdelay=0, stamp1=0, stamp2=0, lag=1, lagoff=0, cntreq=0, rot=0, rotshift=2, stamp=False, pkf32=True, x_fake=0, x_nocore=0, x_recx4=0, x_nomfma=0, x_nopop=0, prio=True, lock_pos=2,
    guard=False,
)


class A:
    def __init__(self):
        self.l = []

    def __call__(self, s=""):
        for line in s.split("\n"):
            line = line.strip()
            if line:
                if line.endswith(":"):
                    self.l.append(line)
                else:
                    self.l.append("    " + line)

    def c(self, s):
        self.l.append("    ; " + s)

    def raw(self, s):
        self.l.append(s)

    def text(self):
        return "\n".join(self.l) + "\n"


def vr(a, n):
    return f"v[{a}:{a + n - 1}]"


def sr(a, n):
    return f"s[{a}:{a + n - 1}]"


def srd(a, dst, base, nbytes, stride=0):
    a(f"s_mov_b32 s{dst}, s{base}")
    a(f"s_and_b32 s{dst + 1}, s{base + 1}, 0xffff")
    if stride:
        a(f"s_or_b32 s{dst + 1}, s{dst + 1}, {stride << 16:#x}")
    a(f"s_mov_b32 s{dst + 2}, {nbytes}")
    a(f"s_mov_b32 s{dst + 3}, 0x20000")


def kernel_head(a, name):
    a.raw(".text")
    a.raw(f".globl {name}")
    a.raw(".p2align 8")
    a.raw(f".type {name},@function")
    a.raw(f"{name}:")


def kernel_desc(a, name, vgpr, sgpr):
    a.raw('.section .rodata,"a"')
    a.raw(".p2align 6")
    a.raw(f".amdhsa_kernel {name}")
    a.raw(f"  .amdhsa_next_free_vgpr {vgpr}")
    a.raw(f"  .amdhsa_next_free_sgpr {sgpr}")
    a.raw(f"  .amdhsa_accum_offset {(vgpr + 3) // 4 * 4}")
    a.raw("  .amdhsa_group_segment_fixed_size 0")
    a.raw("  .amdhsa_kernarg_size 112")
    a.raw("  .amdhsa_user_sgpr_count 2")
    a.raw("  .amdhsa_user_sgpr_kernarg_segment_ptr 1")
    a.raw("  .amdhsa_system_sgpr_workgroup_id_x 1")
    a.raw(".end_amdhsa_kernel")


P1_CNT = 16
P1_PART = P1_CNT + 8192
P1_REC = P1_PART + 64
P1_LDS = 158720


def builder(a, W, lane, f2, e0, e1, x0, x2, OPR, sW, sT0, S_TAB, first_loads, nyoung):
    a.c("one wave also prepares the matrix operands of part 2")
    W1, W2, W3, W4 = W
    a(f"""
    s_lshl_b32 s{sT0}, s2, 4
    s_add_u32 s68, s{sT0}, s{sW}
    s_cmp_eq_u32 s68, 15
    s_cbranch_scc0 P1_now
    s_load_dwordx4 s[72:75], s[0:1], 56
    s_load_dwordx4 s[76:79], s[0:1], 72
    v_and_b32 v{lane}, 63, v0
    v_and_b32 v{e0}, 3, v0
    v_bfe_u32 v{e1}, v0, 2, 1
    v_lshl_add_u32 v{e0}, v{e1}, 3, v{e0}
    v_bfe_u32 v{e1}, v0, 3, 1
    v_lshl_add_u32 v{e0}, v{e1}, 2, v{e0}
    v_lshlrev_b32 v{f2}, 1, v{e0}
    v_lshrrev_b32 v{e1}, 5, v{lane}
    v_lshl_add_u32 v{e1}, v{e1}, 8, v{f2}
    s_waitcnt lgkmcnt(0)
    """)
    for (Wx, n, p, nbytes, va) in ((W1, 16, 76, 512, f2), (W2, 16, 74, 512, f2), (W3, 8, 78, 512, e1), (W4, 8, 72, 256, f2)):
        srd(a, 80, p, nbytes)
        for j in range(n):
            a(f"buffer_load_ushort v{Wx + j}, v{va}, {sr(80, 4)}, 0 offen offset:{32 * j}")
    a("P1_now:")
    first_loads()
    a(f"""
    s_cmp_eq_u32 s68, 15
    s_cbranch_scc0 P1_noop
    s_waitcnt vmcnt({nyoung})
    """)

    def scale_exp(Wf, n):
        a(f"v_max3_f32 v{e0}, abs(v{Wf}), abs(v{Wf + 1}), abs(v{Wf + 2})")
        for j in range(3, n - 1, 2):
            a(f"v_max3_f32 v{e0}, v{e0}, abs(v{Wf + j}), abs(v{Wf + j + 1})")
        a(f"""
        v_max_f32 v{e0}, v{e0}, abs(v{Wf + n - 1})
        v_bfe_u32 v{e0}, v{e0}, 23, 8
        v_cmp_eq_u32 vcc, 0, v{e0}
        v_sub_u32 v{e0}, 141, v{e0}
        s_nop 0
        v_cndmask_b32 v{e0}, v{e0}, 0, vcc
        v_sub_u32 v{e1}, 0, v{e0}
        """)

    def put(k, cvt, srcs, mask):
        for j in range(4):
            a(f"{cvt} v{OPR + j}, v{srcs[2 * j]}, v{srcs[2 * j + 1]}")
        for j in range(4):
            a(f"v_cndmask_b32 v{OPR + j}, 0, v{OPR + j}, {sr(mask, 2)}")
        a(f"""
        s_mov_b32 s{sT0}, {TAB_BYTES + 1024 * k}
        buffer_store_dwordx4 {vr(OPR, 4)}, v{x2}, {sr(S_TAB, 4)}, s{sT0} offen{" sc1" if OPT["fused"] else ""}
        s_nop 1
        """)

    for Wx, n in zip(W, (16, 16, 8, 8)):
        for j in range(n):
            a(f"v_lshlrev_b32 v{Wx + j}, 16, v{Wx + j}")
    mDIAG, mLO, mHI, mRB = 72, 74, 76, 78
    a(f"""
    v_lshrrev_b32 v{x0}, 1, v{lane}
    v_xor_b32 v{x0}, v{x0}, v{lane}
    v_and_b32 v{x0}, 16, v{x0}
    v_cmp_eq_u32 {sr(mDIAG, 2)}, 0, v{x0}
    v_and_b32 v{x0}, 16, v{lane}
    v_cmp_eq_u32 {sr(mLO, 2)}, 0, v{x0}
    v_cmp_eq_u32 {sr(mHI, 2)}, 16, v{x0}
    v_and_b32 v{x0}, 48, v{lane}
    v_cmp_eq_u32 {sr(mRB, 2)}, 16, v{x0}
    v_lshlrev_b32 v{x2}, 4, v{lane}
    """)
    scale_exp(W2, 16)
    for j in range(16):
        a(f"v_ldexp_f32 v{W2 + j}, v{W2 + j}, v{e0}")
        a(f"v_ldexp_f32 v{W1 + j}, v{W1 + j}, v{e1}")
    scale_exp(W4, 8)
    for j in range(8):
        a(f"v_ldexp_f32 v{W4 + j}, v{W4 + j}, v{e0}")
        a(f"v_ldexp_f32 v{W3 + j}, v{W3 + j}, v{e1}")
    bf, hf = "v_cvt_pk_bf16_f32", "v_cvt_pk_f16_f32"
    a.c("block diagonal: rows < 16 act on lanes < 32, rows >= 16 on lanes >= 32")
    put(0, bf, [W1 + j for j in range(8)], mDIAG)
    put(1, bf, [W1 + 8 + j for j in range(8)], mDIAG)
    put(2, hf, [W2 + 2 * j for j in range(8)], mDIAG)
    put(3, hf, [W2 + 2 * j + 1 for j in range(8)], mDIAG)
    put(6, bf, [W3 + j for j in range(8)], mLO)
    put(7, hf, [W4 + j for j in range(8)], mRB)
    a.c("identity: row i has a one at k = f(i & 15)")
    a(f"""
    v_lshrrev_b32 v{e0}, 1, v{f2}
    v_lshrrev_b32 v{e1}, 5, v{lane}
    v_lshlrev_b32 v{e1}, 3, v{e1}
    v_sub_u32 v{e0}, v{e0}, v{e1}
    """)
    for j in range(8):
        a(f"""
        v_cmp_eq_u32 vcc, {j}, v{e0}
        s_nop 1
        v_cndmask_b32 v{W1 + j}, 0, 1.0, vcc
        """)
    put(4, bf, [W1 + j for j in range(8)], mLO)
    if not OPT["fused"]:
        put(5, bf, [W1 + j for j in range(8)], mHI)
    a("P1_noop:")


CH2 = 50000
B_CNT = 16
B_PART = B_CNT + 16384
B_LDS = 163840


def gen_part_big(a, name):
    nt = " nt" if OPT["nt_in"] else ""
    STM = [["", " sc1", " nt", " sc0 sc1", " sc1 nt"][OPT[k]] for k in ("stm", "stmb")]
    NS_ = OPT["ns"]
    NT = CH2 - 12 * 4096
    H0 = OPT['h0']
    assert H0 % 8 == 0 and H0 * 6 <= B_LDS and (CH2 - H0) * 6 > 8 * 16384
    HALF = H0 * 6
    NQ = [H0 * 6 // 16, (CH2 - H0) * 6 // 16]
    FU = OPT["fuse"]
    CB_ = B_LDS - NS_ * 1024 if FU else 0
    CO_ = 0 if FU else B_CNT
    PB_ = CB_ - 80 if FU else B_PART
    assert not FU or HALF <= PB_
    sCB = 30
    S_IN, S_OUT, S_ANG, S_REC, S_TAB = 8, 12, 16, 20, 24
    sMAG, sNEG, sHI, sOFF = 28, 29, 31, 32
    sOI, sOA = 33, 34
    sW, sT0, sT1 = 35, 36, 37
    sEX = 40
    sLUT, sST = 46, 47
    stn = [0]

    def st1():
        if OPT["stamp1"]:
            a(f"s_memrealtime s[{48 + 2 * stn[0]}:{49 + 2 * stn[0]}]\ns_waitcnt lgkmcnt(0)")
            stn[0] += 1
    vT16, vONE, vX = 1, 2, 3
    tmp = list(range(4, 12))
    G, G6, O6, I6, vT8 = 12, 28, 29, 30, 31
    O, I = 32, 80

    kernel_head(a, name)
    a(f"""
    s_cmp_ge_u32 s2, {NB}
    s_cbranch_scc1 {"P2_done" if OPT["fused"] else "P1_done"}
    s_load_dwordx4 s[4:7], s[0:1], 8
    s_load_dwordx2 s[42:43], s[0:1], 32
    s_load_dwordx2 s[44:45], s[0:1], 104
    s_load_dwordx2 s[70:71], s[0:1], 0
    s_load_dwordx2 s[84:85], s[0:1], 24
    s_load_dwordx2 s[86:87], s[0:1], 96
    v_lshlrev_b32 v{vT16}, 4, v0
    v_lshlrev_b32 v{vT8}, 3, v0
    v_mov_b32 v{vONE}, 1
    v_mov_b32 v{vX}, 0x7fffff00
    s_mov_b32 s{sMAG}, 1374390
    s_mov_b32 s{sNEG}, {-EB}
    s_mov_b32 s{sHI}, 0xffff0000
    s_mov_b32 s{sOFF}, {-HALF}
    v_lshrrev_b32 v8, 6, v0
    v_mov_b32 v4, 0
    v_mov_b32 v5, 0
    v_mov_b32 v6, 0
    v_mov_b32 v7, 0
    v_readfirstlane_b32 s{sW}, v8
    s_mov_b32 s{sCB}, {CB_}
    v_add_u32 v9, {CB_}, v{vT16}
    v_mov_b32 v10, {CB_ + CO_ - 4}
    ds_write_b128 v9, v[4:7] offset:{CO_}
    ds_write_b32 v10, v4
    s_waitcnt lgkmcnt(0)
    """)
    srd(a, S_IN, 4, T * 4)
    srd(a, S_OUT, 6, T * 4)
    srd(a, S_ANG, 42, T * 2)
    srd(a, S_REC, 44, REC_BYTES)
    a(f"s_add_u32 s44, s44, {TAB_OFF}")
    a("s_addc_u32 s45, s45, 0")
    srd(a, S_TAB, 44, TAB_BYTES + 8192)
    PAT = 0
    for j in range(4):
        for q in range(4):
            j0 = (OPT["j0s"] >> (4 * q)) & 15
            PAT |= (((OPT["rotl"] >> (4 * q)) & 15) + (j >= 4 - j0)) << (16 * j + 4 * q)
    a.c("slice rotation per group of 32 buckets (one nibble each); depends on the step that will read this chunk")
    a(f"""
    s_bfe_u32 s{sT0}, s2, {(2 << 16) | 2}
    s_lshl_b32 s{sT0}, s{sT0}, 4
    s_mov_b32 s72, {PAT & 0xffffffff:#x}
    s_mov_b32 s73, {PAT >> 32:#x}
    s_lshr_b64 s[72:73], s[72:73], s{sT0}
    s_and_b32 s{sLUT}, s72, 0xffff
    s_mul_i32 s{sLUT}, s{sLUT}, 0x10001
    s_mul_i32 s{sOI}, s2, {CH2 * 4}
    s_mul_i32 s{sOA}, s2, {CH2 * 2}
    """)
    vmq = []

    def vm_wait(tag):
        last = max(i for i, x in enumerate(vmq) if x == tag)
        a(f"s_waitcnt vmcnt({len(vmq) - 1 - last})")

    def tail_addr(sh):
        a(f"""
        v_cmp_gt_u32 vcc, {NT}, v0
        v_lshlrev_b32 v{tmp[7]}, {sh}, v0
        s_nop 0
        v_cndmask_b32 v{tmp[7]}, v{vX}, v{tmp[7]}, vcc
        """)

    def issue_idx(r):
        vmq.extend([("i", r)] * 2)
        if r < 12:
            a(f"""
            buffer_load_dwordx4 {vr(O + 4 * r, 4)}, v{vT16}, {sr(S_OUT, 4)}, s{sOI} offen{nt}
            buffer_load_dwordx4 {vr(I + 4 * r, 4)}, v{vT16}, {sr(S_IN, 4)}, s{sOI} offen{nt}
            s_add_u32 s{sOI}, s{sOI}, 16384
            """)
        else:
            tail_addr(2)
            a(f"""
            buffer_load_dword v{O6}, v{tmp[7]}, {sr(S_OUT, 4)}, s{sOI} offen{nt}
            buffer_load_dword v{I6}, v{tmp[7]}, {sr(S_IN, 4)}, s{sOI} offen{nt}
            """)

    def issue_ang(r):
        vmq.append(("a", r))
        if r < 12:
            a(f"""
            buffer_load_dwordx2 {vr(G + 2 * (r & 7), 2)}, v{vT8}, {sr(S_ANG, 4)}, s{sOA} offen{nt}
            s_add_u32 s{sOA}, s{sOA}, 8192
            """)
        else:
            tail_addr(1)
            a(f"""
            s_mul_i32 s{sT0}, s2, {CH2 * 2}
            s_add_u32 s{sT0}, s{sT0}, {12 * 8192}
            buffer_load_ushort v{G6}, v{tmp[7]}, {sr(S_ANG, 4)}, s{sT0} offen{nt}
            """)

    def recs(r):
        if r < 12:
            return [(O + 4 * r + k, I + 4 * r + k, G + 2 * (r & 7) + (k >> 1), k & 1) for k in range(4)]
        return [(O6, I6, G6, 0)]

    def tail(r, lbl, body):
        if r < 12:
            body()
            return
        a(f"""
        v_cmp_gt_u32 vcc, {NT}, v0
        s_and_saveexec_b64 {sr(sEX, 2)}, vcc
        s_cbranch_execz {lbl}
        """)
        body()
        a(f"{lbl}:\ns_mov_b64 exec, {sr(sEX, 2)}")

    def pack(rs):
        for h in range(0, len(rs), 2):
            pr = rs[h:h + 2]
            for k, (o, i, g, hi) in enumerate(pr):
                a(f"v_mul_hi_u32_u24 v{tmp[k]}, s{sMAG}, v{o}")
                a(f"v_mul_u32_u24 v{tmp[2 + k]}, {(NS_ << 24) // E}, v{i}")
            for k, (o, i, g, hi) in enumerate(pr):
                tb, tc, u = tmp[k], tmp[2 + k], tmp[4 + k]
                a(f"""
                v_mad_i32_i24 v{o}, v{tb}, s{sNEG}, v{o}
                v_lshrrev_b32 v{u}, 5, v{tb}
                v_lshrrev_b32 v{tc}, 24, v{tc}
                v_lshlrev_b32 v{u}, 2, v{u}
                v_lshl_add_u32 v{tb}, v{tb}, 2, s{sCB}
                v_bfe_u32 v{u}, s{sLUT}, v{u}, 4
                v_lshl_or_b32 v{i}, v{i}, 12, v{o}
                v_sub_u32 v{tc}, v{tc}, v{u}
                v_add_u32 v{u}, {NS_}, v{tc}
                v_min_u32 v{tc}, v{tc}, v{u}
                v_lshl_add_u32 v{o}, v{tc}, 10, v{tb}
                ds_add_u32 v{o}, v{vONE} offset:{CO_}
                """)

    def wave_scan(v):
        for sh in (1, 2, 4, 8):
            a(f"s_nop 1\nv_add_u32_dpp v{v}, v{v}, v{v} row_shr:{sh} row_mask:0xf bank_mask:0xf bound_ctrl:0")

    ILV = OPT["fused"] and OPT["ilv"]
    bucket2 = f"""
    s_and_b32 s{sT0}, s2, 7
    s_lshl_b32 s{sT0}, s{sT0}, 5
    s_lshr_b32 s{sT1}, s2, 3
    s_add_u32 s{sT0}, s{sT0}, s{sT1}
    s_mul_i32 s{sT0}, s{sT0}, {EB * 2}
    """
    if ILV:
        a.c("touch the dist values this workgroup needs later")
        srd(a, 80, 84, E * 2)
        a(bucket2)
        a(f"""
        v_cmp_gt_u32 vcc, 50, v0
        v_lshlrev_b32 v{G6}, 7, v0
        s_and_b32 s{sT0}, s{sT0}, 0xffffff80
        v_cndmask_b32 v{G6}, v{vX}, v{G6}, vcc
        buffer_load_dword v{G6}, v{G6}, s[80:83], s{sT0} offen
        """)
    st1()
    D_ = OPT["depth"]
    assert D_ <= 4
    builder(a, (I + 16, I + 32, O + 16, O + 24), 4, 5, 6, 7, G, G + 1, 8, sW, sT0, S_TAB,
            lambda: [issue_idx(r) for r in range(D_)], 2 * D_)
    a("s_barrier")
    na = 0
    for r in range(13):
        vm_wait(("i", r))
        tail(r, "P1_pk", lambda: pack(recs(r)))
        if r + D_ < 13:
            issue_idx(r + D_)
        elif r < 12 and na < OPT["aearly"]:
            issue_ang(na)
            na += 1
    st1()
    c0, s_, inc, p, q = tmp[0], tmp[4], tmp[5], tmp[6], tmp[7]
    a.c("exclusive scan of the counters")
    a("s_waitcnt lgkmcnt(0)\ns_barrier")
    a(f"v_add_u32 v{G6}, {CB_}, v{vT16}")
    a(f"ds_read_b128 {vr(c0, 4)}, v{G6} offset:{CO_}")
    while na < 4:
        issue_ang(na)
        na += 1
    a(f"""
    s_waitcnt lgkmcnt(0)
    v_add_u32 v{s_}, v{c0}, v{c0 + 1}
    v_add3_u32 v{s_}, v{s_}, v{c0 + 2}, v{c0 + 3}
    v_mov_b32 v{inc}, v{s_}
    """)
    wave_scan(inc)
    a(f"""
    s_nop 1
    v_add_u32_dpp v{inc}, v{inc}, v{inc} row_bcast:15 row_mask:0xa bank_mask:0xf
    s_nop 1
    v_add_u32_dpp v{inc}, v{inc}, v{inc} row_bcast:31 row_mask:0xc bank_mask:0xf
    s_lshl_b32 s{sT1}, s{sW}, 2
    s_add_u32 s{sT1}, s{sT1}, {PB_}
    v_mov_b32 v{q}, s{sT1}
    v_readlane_b32 s{sT0}, v{inc}, 63
    s_nop 1
    v_mov_b32 v{p}, s{sT0}
    ds_write_b32 v{q}, v{p}
    v_and_b32 v{q}, 15, v0
    v_lshlrev_b32 v{p}, 2, v{q}
    v_add_u32 v{p}, {PB_}, v{p}
    s_waitcnt lgkmcnt(0)
    s_barrier
    v_cmp_gt_u32 vcc, s{sW}, v{q}
    ds_read_b32 v{p}, v{p}
    """)
    while na < 8:
        issue_ang(na)
        na += 1
    a(f"""
    s_waitcnt lgkmcnt(0)
    v_cndmask_b32 v{p}, 0, v{p}, vcc
    """)
    wave_scan(p)
    a(f"""
    v_sub_u32 v{inc}, v{inc}, v{s_}
    v_readlane_b32 s{sT0}, v{p}, 15
    s_nop 1
    v_add_u32 v{s_}, s{sT0}, v{inc}
    v_add_u32 v{s_ + 1}, v{s_}, v{c0}
    v_add_u32 v{s_ + 2}, v{s_ + 1}, v{c0 + 1}
    v_add_u32 v{s_ + 3}, v{s_ + 2}, v{c0 + 2}
    ds_write_b128 v{G6}, {vr(s_, 4)} offset:{CO_}
    s_waitcnt lgkmcnt(0)
    """)
    issue_ang(12)
    a("s_barrier")
    st1()
    a.c("position of every record; the angle joins it in the upper half of the register")

    def touch_m(va):
        a.c("touch this workgroup's share of m, one load per 128-byte line, while the memory side is idle")
        n = OPT["pfl"]
        srd(a, 80, 70, E * 32)
        if PQ:
            n = -(-(E // 4) // PQ)
            k = -(-n // 1024)
            per = -(-n // k)
            a(f"""
            ds_read_b32 v{tmp[0]}, v{tmp[1]} offset:{B_PART + 64}
            v_cmp_gt_u32 vcc, {per}, v0
            v_lshlrev_b32 v{va}, 7, v0
            s_waitcnt lgkmcnt(0)
            v_readfirstlane_b32 s{sT0}, v{tmp[0]}
            v_cndmask_b32 v{va}, v{vX}, v{va}, vcc
            s_cmp_lt_u32 s{sT0}, {PQ}
            s_cbranch_scc0 P1_nopf
            s_mul_i32 s{sT1}, s{sT0}, {per * k * 128}
            """)
            for q in range(k):
                a(f"buffer_load_dword v{vT8}, v{va}, {sr(80, 4)}, s{sT1} offen\ns_add_u32 s{sT1}, s{sT1}, {per * 128}")
            a("P1_nopf:")
            return
        if OPT["pfpar"]:
            a(f"""
            s_bitcmp1_b32 s2, 0
            s_cbranch_scc{1 if OPT["pfpar"] == 1 else 0} P1_nopf
            v_cmp_gt_u32 vcc, {n}, v0
            v_lshlrev_b32 v{va}, 7, v0
            s_and_b32 s{sT0}, s2, 0xfe
            s_mul_i32 s{sT0}, s{sT0}, {n * 128}
            v_cndmask_b32 v{va}, v{vX}, v{va}, vcc
            s_add_u32 s{sT1}, s{sT0}, {n * 128}
            buffer_load_dword v{vT8}, v{va}, {sr(80, 4)}, s{sT0} offen
            buffer_load_dword v{vT8}, v{va}, {sr(80, 4)}, s{sT1} offen
            P1_nopf:
            """)
            return
        a(f"""
        v_cmp_gt_u32 vcc, {n}, v0
        v_lshlrev_b32 v{va}, 7, v0
        s_mul_i32 s{sT0}, s2, {n * 128}
        v_cndmask_b32 v{va}, v{vX}, v{va}, vcc
        buffer_load_dword v{vT8}, v{va}, {sr(80, 4)}, s{sT0} offen
        """)
        vmq.append("pf")
        if OPT["pfd"]:
            srd(a, 80, 84, E * 2)
            a(f"""
            v_subrev_u32 v{va}, 960, v0
            v_cmp_gt_u32 vcc, 49, v{va}
            v_lshlrev_b32 v{va}, 7, v{va}
            s_mul_i32 s{sT0}, s2, {49 * 128}
            v_cndmask_b32 v{va}, v{vX}, v{va}, vcc
            buffer_load_dword v{vT8}, v{va}, {sr(80, 4)}, s{sT0} offen
            """)
            vmq.append("pf")

    def rank(rs):
        for (o, i, g, hi) in rs:
            a(f"ds_add_rtn_u32 v{o}, v{o}, v{vONE} offset:{CO_}")

    def merge(rs):
        for (o, i, g, hi) in rs:
            a(f"v_and_or_b32 v{o}, v{g}, s{sHI}, v{o}" if hi else f"v_lshl_or_b32 v{o}, v{g}, 16, v{o}")
    def put_half(rs, h):
        sets = [(tmp[4], tmp[5], tmp[6]), (tmp[7], tmp[2], tmp[3])] if not (FU and h == 0) else [(tmp[0], tmp[1], tmp[2]), (tmp[3], tmp[4], tmp[5])]
        for k, (o, i, g, hi) in enumerate(rs):
            x, y, z = sets[k & 1]
            if h == 0 and FU:
                a(f"""
                v_mul_u32_u24_sdwa v{x}, v{o}, v{tmp[6]} dst_sel:DWORD dst_unused:UNUSED_PAD src0_sel:WORD_0 src1_sel:DWORD
                v_cmp_gt_u32 vcc, s{sT1}, v{x}
                v_and_b32 v{y}, 2, v{x}
                s_nop 0
                v_cndmask_b32 v{x}, v{vX}, v{x}, vcc
                """)
            elif h == 0:
                a(f"v_mul_u32_u24_sdwa v{x}, v{o}, v{vONE} dst_sel:DWORD dst_unused:UNUSED_PAD src0_sel:WORD_0 src1_sel:DWORD")
                a(f"v_and_b32 v{y}, 2, v{x}")
            else:
                a(f"v_and_b32 v{x}, 0xffff, v{o}\nv_mad_u32_u24 v{x}, v{x}, 6, s{sOFF}")
                a(f"v_and_b32 v{y}, 2, v{x}")
            a(f"""
            v_add_u32 v{z}, v{x}, v{y}
            v_mad_i32_i24 v{x}, v{y}, -2, v{x}
            ds_write_b32 v{z}, v{i}
            ds_write_b16_d16_hi v{x}, v{o} offset:4
            """)
    if FU:
        a(f"v_mov_b32 v{tmp[6]}, 6\ns_mov_b32 s{sT1}, {HALF}")
    PQ = OPT["pfq"]
    if PQ:
        a.c("order of arrival: the early workgroups share the touching of m")
        a(f"""
        s_cmp_eq_u32 s{sW}, 0
        s_cbranch_scc0 P1_noq
        v_mov_b32 v{tmp[1]}, 0
        s_mov_b64 exec, 1
        global_atomic_add v{tmp[0]}, v{tmp[1]}, v{vONE}, s[86:87] offset:64 sc0 sc1
        s_mov_b64 exec, -1
        P1_noq:
        """)
    rank(recs(0))
    rank(recs(1))
    for r in range(12):
        if r < 10:
            rank(recs(r + 2))
        if FU:
            a(f"s_waitcnt lgkmcnt({8 if r == 0 else (12 if r < 10 else 8)})")
        else:
            a(f"s_waitcnt lgkmcnt({8 if r < 10 else (4 if r == 10 else 0)})")
        vm_wait(("a", r))
        merge(recs(r))
        if FU:
            put_half(recs(r), 0)
        if r + 8 < 12:
            issue_ang(r + 8)
        if OPT["pfm"] == 1 and r == 3:
            touch_m(tmp[7])
    vm_wait(("a", 12))
    tail(12, "P1_rk", lambda: (rank(recs(12)), a("s_waitcnt lgkmcnt(0)"), merge(recs(12)), put_half(recs(12), 0) if FU else None))
    if PQ:
        a(f"""
        v_mov_b32 v{tmp[1]}, 0
        s_cmp_eq_u32 s{sW}, 0
        s_cbranch_scc0 P1_noq2
        s_waitcnt vmcnt(0)
        s_mov_b64 exec, 1
        ds_write_b32 v{tmp[1]}, v{tmp[0]} offset:{B_PART + 64}
        s_mov_b64 exec, -1
        P1_noq2:
        """)
    a("s_waitcnt lgkmcnt(0)\ns_barrier")
    if OPT["pfm"] == 2:
        touch_m(G6)
    a.c("table of (start, length): the counters now hold the segment ends")
    ra = G
    a(f"""
    s_mov_b32 s{sT1}, {CB_ + CO_ - 4}
    v_and_b32 v{ra}, 3, v0
    v_lshlrev_b32 v{ra}, 12, v{ra}
    v_and_b32 v{ra + 1}, 0x3fc, v0
    v_add3_u32 v{ra}, v{ra}, v{ra + 1}, s{sT1}
    """)
    for qq in range(4):
        if qq:
            a(f"v_add_u32 v{ra}, 1024, v{ra}")
        a(f"ds_read2_b32 {vr(tmp[2 * qq], 2)}, v{ra} offset0:0 offset1:1")
    a("s_waitcnt lgkmcnt(0)" + ("" if FU else "\ns_barrier"))
    if FU:
        a.c("slots past the last slice read out of range: give them length zero")
        a(f"v_and_b32 v{ra + 1}, 3, v0")
        for qq in range(4):
            a(f"v_cmp_gt_u32 vcc, {(NS_ - qq + 3) // 4}, v{ra + 1}\ns_nop 1\nv_cndmask_b32 v{tmp[2 * qq + 1]}, v{tmp[2 * qq]}, v{tmp[2 * qq + 1]}, vcc")
    for qq in range(4):
        s0, e0 = tmp[2 * qq], tmp[2 * qq + 1]
        a(f"v_sub_u32 v{e0}, v{e0}, v{s0}\nv_lshl_or_b32 v{G + qq}, v{e0}, 16, v{s0}")
    a(f"""
    s_lshl_b32 s{sT0}, s2, 14
    s_mul_i32 s{sST}, s2, {2 * CHB}
    buffer_store_dwordx4 {vr(G, 4)}, v{vT16}, {sr(S_TAB, 4)}, s{sT0} offen{STM[0]}
    """)
    st1()
    pend = []

    def scatter(h):
        put = lambda rs: put_half(rs, h)
        for r in range(13):
            tail(r, f"P1_sc{h}", lambda: put(recs(r)))
            if pend:
                pend.pop(0)()
        while pend:
            pend.pop(0)()
        a("s_waitcnt lgkmcnt(0)\ns_barrier")

    LAST = [(n - 1) // 1024 for n in NQ]

    def reads(dst, rs, ra, rb, h):
        for r in rs:
            base = [vT16, ra, rb][r >> 2]
            if r == LAST[h]:
                a(f"v_cmp_gt_u32 vcc, {NQ[h] - 1024 * r}, v0\ns_and_saveexec_b64 {sr(sEX, 2)}, vcc")
            a(f"ds_read_b128 {vr(dst[r], 4)}, v{base} offset:{(r & 3) * 16384}")
            if r == LAST[h]:
                a(f"s_mov_b64 exec, {sr(sEX, 2)}\nv_cndmask_b32 v{rb}, v{vX}, v{vT16}, vcc")

    def store(dst, r, rb, h):
        a(f"s_add_u32 s{sT0}, s{sST}, {h * HALF + r * 16384}")
        a(f"buffer_store_dwordx4 {vr(dst[r], 4)}, v{vT16 if r < LAST[h] else rb}, {sr(S_REC, 4)}, s{sT0} offen{STM[h]}")

    if not FU:
        a(f"v_mov_b32 v{vONE}, 6")
        if OPT["pfm"] == 3:
            pend.extend([lambda: None] * 4 + [lambda: touch_m(G6)])
        if OPT["pfm"] == 4:
            touch_m(G6)
        if OPT["pfm"] == 5:
            pend.extend([lambda: touch_m(G6)])
        scatter(0)
    st1()
    ra, rb = tmp[4], tmp[5]
    q5 = [G, G + 4, G + 8, G + 12, tmp[0]]
    dst = q5 + q5
    a(f"v_add_u32 v{ra}, 0x10000, v{vT16}\nv_add_u32 v{rb}, 0x20000, v{vT16}")
    assert LAST[0] == 9
    reads(dst, range(5), ra, rb, 0)
    for r in range(5):
        a(f"s_waitcnt lgkmcnt({4 - r})")
        store(dst, r, rb, 0)
    reads(dst, range(5, 10), ra, rb, 0)
    FUS = OPT["fused"]
    if FUS:
        assert OPT["stm"] == 1 and OPT["stmb"] == 1 and not FU and HALF % 128 == 0 and HALF % 12 == 0 and HALF <= B_LDS - 4
        a(f"v_mov_b32 v{tmp[6]}, {B_LDS - 4}\nv_mov_b32 v{tmp[7]}, 0\nds_write_b32 v{tmp[6]}, v{tmp[7]}")
    a("s_waitcnt lgkmcnt(0)")
    store(dst, 9, rb, 0)
    a("s_barrier")
    pend.extend((lambda r=r: store(dst, r, rb, 0)) for r in range(5, 9))
    if OPT["stpos"] == 0:
        while pend:
            pend.pop(0)()
    if FUS:
        def signal0():
            a.c("first half, table and operands are out: the last wave to see its stores done tells the other workgroups")
            a(f"""
            s_waitcnt vmcnt(0)
            v_mov_b32 v{vT8}, {B_LDS - 4}
            v_mov_b32 v{G6}, 1
            s_mov_b64 exec, 1
            ds_add_rtn_u32 v{vT8}, v{vT8}, v{G6}
            s_waitcnt lgkmcnt(0)
            v_readfirstlane_b32 s{sT0}, v{vT8}
            v_mov_b32 v{vT8}, 0
            s_cmp_eq_u32 s{sT0}, 15
            s_cbranch_scc0 P1_nosig
            global_atomic_add v{vT8}, v{G6}, s[86:87] sc1
            P1_nosig:
            s_mov_b64 exec, -1
            """)
        pend.extend([lambda: None] * (OPT["sigat"] - len(pend)) + [signal0])

        def early_dist():
            a.c("dist of the output edges this workgroup owns next")
            srd(a, 80, 84, E * 2)
            a(f"""
            s_and_b32 s{sT0}, s2, 7
            s_lshl_b32 s{sT0}, s{sT0}, 5
            s_lshr_b32 s{sT1}, s2, 3
            s_add_u32 s{sT0}, s{sT0}, s{sT1}
            s_mul_i32 s{sT0}, s{sT0}, {EB * 2}
            v_lshlrev_b32 v{G6}, 1, v0
            s_add_u32 s{sT1}, s{sT0}, 4096
            buffer_load_ushort v{G}, v{G6}, s[80:83], s{sT0} offen
            buffer_load_ushort v{G + 1}, v{G6}, s[80:83], s{sT0} offen offset:2048
            buffer_load_ushort v{G + 2}, v{G6}, s[80:83], s{sT1} offen
            buffer_load_ushort v{G + 3}, v{G6}, s[80:83], s{sT1} offen offset:2048
            """)
        if OPT["edist"]:
            pend.append(early_dist)
            OPT["_nst"] = LAST[1] + 1
    if OPT["wb"]:
        pend.extend([lambda: None] * (OPT["wb"] - 1))
        pend.append(lambda: a(f"s_cmp_eq_u32 s{sW}, 15\ns_cbranch_scc0 P1_nowb\nbuffer_wbl2 sc1\nP1_nowb:"))
    st1()
    scatter(1)
    st1()
    dst = [(40 if ILV else O) + 4 * r for r in range(10)]
    if ILV:
        srd(a, 80, 84, E * 2)
        a(bucket2)
        a(f"""
        v_lshlrev_b32 v{G6}, 1, v0
        s_add_u32 s{sT1}, s{sT0}, 4096
        buffer_load_ushort v121, v{G6}, s[80:83], s{sT0} offen
        buffer_load_ushort v122, v{G6}, s[80:83], s{sT0} offen offset:2048
        buffer_load_ushort v123, v{G6}, s[80:83], s{sT1} offen
        buffer_load_ushort v124, v{G6}, s[80:83], s{sT1} offen offset:2048
        """)
    a(f"v_add_u32 v{ra}, 0x10000, v{vT16}\nv_add_u32 v{rb}, 0x20000, v{vT16}")
    reads(dst, range(LAST[1] + 1), ra, rb, 1)
    if ILV:
        a(f"""
        v_mov_b32 v{ra}, v{vT16}
        s_mov_b32 s72, s{S_REC}
        s_mov_b32 s73, s{S_REC + 1}
        s_mov_b32 s74, s{S_REC + 2}
        s_mov_b32 s75, 0x20000
        s_waitcnt lgkmcnt(0)
        """)
        OPT["_stores"] = [f"""
        s_add_u32 s38, s{sST}, {HALF + r * 16384}
        buffer_store_dwordx4 {vr(dst[r], 4)}, v{ra if r < LAST[1] else rb}, s[72:75], s38 offen{STM[1]}
        """ for r in range(LAST[1] + 1)]
    else:
        for r in range(LAST[1]):
            a(f"s_waitcnt lgkmcnt({LAST[1] - 1 - r})")
            store(dst, r, rb, 1)
        a("s_waitcnt lgkmcnt(0)")
        store(dst, LAST[1], rb, 1)
    st1()
    if OPT["stamp1"]:
        st1()
        a("" if OPT["x_fuse"] or OPT["fused"] else "s_waitcnt vmcnt(0)")
        st1()
        a(f"""
        s_lshl_b32 s3, s2, 4
        s_add_u32 s3, s3, s{sW}
        s_lshl_b32 s3, s3, 6
        s_add_u32 s44, s44, {17 << 20}
        s_addc_u32 s45, s45, 0
        """)
        srd(a, S_TAB, 44, 1 << 20)
        a("v_mov_b32 v4, 0")
        for i in range(stn[0]):
            a(f"v_mov_b32 v5, s{48 + 2 * i}")
            a(f"buffer_store_dword v5, v4, {sr(S_TAB, 4)}, s3 offen offset:{4 * i}")
    if FUS:
        a("s_barrier")
        return
    if OPT["x_fuse"]:
        a("s_barrier\ns_branch P2_entry")
    a("P1_done:")
    a("s_endpgm")
    kernel_desc(a, name, 128, 102 if OPT["x_fuse"] else 88)


def gen_part(a, name):
    nt = " nt" if OPT["nt_in"] else ""
    STMS = {X: ["", " sc1", " nt", " sc0 sc1", " sc1 nt"][OPT[k]] for X, k in (("A", "stm"), ("B", "stmb"))}
    S_IN, S_OUT, S_ANG, S_REC, S_TAB = 8, 12, 16, 20, 24
    sMAG, sNEG, sMASK, sHI, sDIV6 = 28, 29, 30, 31, 32
    sOI, sOA = 33, 34
    sW, sT0, sT1, sCH = 35, 36, 37, 38
    sEX = 40
    stn = [0]

    def st1():
        if OPT["stamp1"]:
            a(f"s_memrealtime s[{48 + 2 * stn[0]}:{49 + 2 * stn[0]}]\ns_waitcnt lgkmcnt(0)")
            stn[0] += 1
    vT16, vT8, vSIX = 1, 2, 3
    tmp = list(range(4, 14))
    O = {"A": 14, "B": 62}
    I = {"A": 38, "B": 86}
    G = 110
    O6 = {"A": 122, "B": 124}
    I6 = {"A": 123, "B": 125}
    G6 = 126
    vX = 127

    kernel_head(a, name)
    a(f"""
    s_cmp_ge_u32 s2, {NB}
    s_cbranch_scc1 P1_done
    s_load_dwordx4 s[4:7], s[0:1], 8
    s_load_dwordx2 s[42:43], s[0:1], 32
    s_load_dwordx2 s[44:45], s[0:1], 104
    s_load_dwordx2 s[70:71], s[0:1], 0
    v_lshlrev_b32 v{vT16}, 4, v0
    v_lshlrev_b32 v{vT8}, 3, v0
    v_mov_b32 v{vSIX}, 6
    s_mov_b32 s{sMAG}, 1374390
    s_mov_b32 s{sNEG}, {-EB}
    s_mov_b32 s{sMASK}, 0x1c00
    s_mov_b32 s{sHI}, 0xffff0000
    s_mov_b32 s{sDIV6}, 0x2aaaaaab
    v_lshrrev_b32 v4, 6, v0
    v_mov_b32 v6, 0
    v_mov_b32 v7, 0
    v_readfirstlane_b32 s{sW}, v4
    ds_write_b64 v{vT8}, v[6:7] offset:{P1_CNT}
    v_mov_b32 v5, {P1_REC}
    ds_write_b32 v6, v5 offset:{P1_CNT - 4}
    s_waitcnt lgkmcnt(0)
    """)
    srd(a, S_IN, 4, T * 4)
    srd(a, S_OUT, 6, T * 4)
    srd(a, S_ANG, 42, T * 2)
    srd(a, S_REC, 44, REC_BYTES)
    a(f"s_add_u32 s44, s44, {TAB_OFF}")
    a("s_addc_u32 s45, s45, 0")
    srd(a, S_TAB, 44, TAB_BYTES + 8192)
    a(f"""
    s_lshr_b32 s39, s2, 1
    s_and_b32 s39, s39, 7
    s_lshr_b32 s46, s39, {1 if OPT["stag"] == 1 else 0}
    s_lshr_b32 s46, {0xf0 if OPT["stag"] == 1 else 0xff00}, s46
    s_and_b32 s46, s46, {0xf if OPT["stag"] == 1 else 0xff}
    s_mul_i32 s46, s46, {0x11 if OPT["stag"] == 1 else 1}
    """)
    if OPT["stag"] == 3:
        a(f"""
        s_lshr_b32 s46, s39, 1
        s_lshl_b32 s46, s46, 2
        s_sub_u32 s46, 16, s46
        s_lshr_b32 s47, 0x1111, s46
        s_lshl_b32 s46, s47, s46
        s_add_u32 s46, s46, {OPT["rotl"]:#x}
        s_mul_i32 s46, s46, 0x10001
        """)
    a(f"""
    s_lshl_b32 s39, s39, 21
    s_sub_u32 s39, {OPT['ns'] << 24}, s39
    s_mul_i32 s{sOI}, s2, {2 * CH * 4}
    s_mul_i32 s{sOA}, s2, {2 * CH * 2}
    """)

    vmq = []

    def vm_wait(tag):
        last = max(i for i, x in enumerate(vmq) if x == tag)
        a(f"s_waitcnt vmcnt({len(vmq) - 1 - last})")

    pend = []

    def slot(n=1):
        for _ in range(n):
            if pend:
                pend.pop(0)()

    def issue_idx(X, r):
        vmq.extend([(X, r)] * 2)
        if r < 6:
            a(f"""
            buffer_load_dwordx4 {vr(O[X] + 4 * r, 4)}, v{vT16}, {sr(S_OUT, 4)}, s{sOI} offen{nt}
            buffer_load_dwordx4 {vr(I[X] + 4 * r, 4)}, v{vT16}, {sr(S_IN, 4)}, s{sOI} offen{nt}
            s_add_u32 s{sOI}, s{sOI}, 16384
            """)
        else:
            a(f"""
            v_cmp_gt_u32 vcc, {CH - 6 * 4096}, v0
            v_lshlrev_b32 v{tmp[9]}, 2, v0
            s_nop 0
            v_cndmask_b32 v{tmp[9]}, v{vX}, v{tmp[9]}, vcc
            buffer_load_dword v{O6[X]}, v{tmp[9]}, {sr(S_OUT, 4)}, s{sOI} offen{nt}
            buffer_load_dword v{I6[X]}, v{tmp[9]}, {sr(S_IN, 4)}, s{sOI} offen{nt}
            s_add_u32 s{sOI}, s{sOI}, {(CH - 6 * 4096) * 4}
            """)

    def issue_ang(X, r):
        vmq.append((X, "a", r))
        if r < 6:
            a(f"""
            buffer_load_dwordx2 {vr(G + 2 * r, 2)}, v{vT8}, {sr(S_ANG, 4)}, s{sOA} offen{nt}
            s_add_u32 s{sOA}, s{sOA}, 8192
            """)
        else:
            a(f"""
            v_cmp_gt_u32 vcc, {CH - 6 * 4096}, v0
            v_lshlrev_b32 v{tmp[9]}, 1, v0
            s_nop 0
            v_cndmask_b32 v{tmp[9]}, v{vX}, v{tmp[9]}, vcc
            buffer_load_ushort v{G6}, v{tmp[9]}, {sr(S_ANG, 4)}, s{sOA} offen{nt}
            s_add_u32 s{sOA}, s{sOA}, {(CH - 6 * 4096) * 2}
            """)

    def pack(recs):
        n = len(recs)
        tb = tmp[0:n]
        tc = tmp[4:4 + n]
        for k, (o, i, g, hi) in enumerate(recs):
            a(f"v_mul_hi_u32_u24 v{tb[k]}, s{sMAG}, v{o}")
            a(f"v_mul_u32_u24 v{tc[k]}, {(OPT['ns'] << 24) // E}, v{i}")
        if OPT["slide"]:
            for k in range(n):
                a(f"v_add_u32 v{tc[k]}, s39, v{tc[k]}")
            if OPT["ns"] != 8:
                for k in range(n):
                    a(f"v_subrev_u32 v{tmp[8]}, {OPT['ns'] << 24}, v{tc[k]}")
                    a(f"v_min_u32 v{tc[k]}, v{tc[k]}, v{tmp[8]}")
        for k, (o, i, g, hi) in enumerate(recs):
            a(f"v_mad_i32_i24 v{o}, v{tb[k]}, s{sNEG}, v{o}")
            if OPT["stag"] == 3:
                u = tmp[8 + (k & 1)]
                a(f"v_lshrrev_b32 v{u}, 5, v{tb[k]}")
                a(f"v_lshrrev_b32 v{tc[k]}, 24, v{tc[k]}")
                a(f"v_lshlrev_b32 v{u}, 2, v{u}")
                a(f"v_lshlrev_b32 v{tb[k]}, 2, v{tb[k]}")
                a(f"v_bfe_u32 v{u}, s46, v{u}, 4")
                a(f"v_sub_u32 v{tc[k]}, v{tc[k]}, v{u}")
                a(f"v_add_u32 v{u}, {OPT['ns']}, v{tc[k]}")
                a(f"v_min_u32 v{tc[k]}, v{tc[k]}, v{u}")
                continue
            a(f"v_lshrrev_b32 v{tc[k]}, 14, v{tc[k]}")
            if OPT["stag"]:
                u = tmp[8 + (k & 1)]
                a(f"v_lshrrev_b32 v{u}, 5, v{tb[k]}")
                a(f"v_bfe_i32 v{u}, s46, v{u}, 1")
                a(f"v_lshl_add_u32 v{tc[k]}, v{u}, 10, v{tc[k]}")
                if OPT["ns"] != 8:
                    a(f"v_add_u32 v{u}, {OPT['ns'] << 10}, v{tc[k]}")
                    a(f"v_min_u32 v{tc[k]}, v{tc[k]}, v{u}")
            a(f"v_lshlrev_b32 v{tb[k]}, 2, v{tb[k]}")
        for k, (o, i, g, hi) in enumerate(recs):
            a(f"v_lshl_or_b32 v{i}, v{i}, 12, v{o}")
            if OPT["stag"] == 3:
                a(f"v_lshl_or_b32 v{o}, v{tc[k]}, 10, v{tb[k]}")
            else:
                a(f"v_and_or_b32 v{o}, v{tc[k]}, s{sMASK}, v{tb[k]}")
        for k, (o, i, g, hi) in enumerate(recs):
            a(f"ds_add_u32 v{o}, v{vSIX} offset:{P1_CNT}")

    def round_recs(X, r):
        if r < 6:
            return [(O[X] + 4 * r + k, I[X] + 4 * r + k, G + 2 * r + (k >> 1), k & 1) for k in range(4)]
        return [(O6[X], I6[X], G6, 0)]

    def tail_begin(lbl):
        a(f"""
        v_cmp_gt_u32 vcc, {CH - 6 * 4096}, v0
        s_and_saveexec_b64 {sr(sEX, 2)}, vcc
        s_cbranch_execz {lbl}
        """)

    def tail_end(lbl):
        a(f"{lbl}:")
        a(f"s_mov_b64 exec, {sr(sEX, 2)}")

    def wave_scan(v):
        a(f"""
        s_nop 1
        v_add_u32_dpp v{v}, v{v}, v{v} row_shr:1 row_mask:0xf bank_mask:0xf bound_ctrl:0
        s_nop 1
        v_add_u32_dpp v{v}, v{v}, v{v} row_shr:2 row_mask:0xf bank_mask:0xf bound_ctrl:0
        s_nop 1
        v_add_u32_dpp v{v}, v{v}, v{v} row_shr:4 row_mask:0xf bank_mask:0xf bound_ctrl:0
        s_nop 1
        v_add_u32_dpp v{v}, v{v}, v{v} row_shr:8 row_mask:0xf bank_mask:0xf bound_ctrl:0
        """)

    def sort_chunk(X):
        c01, s, inc, p, q = tmp[0], tmp[2], tmp[3], tmp[4], tmp[5]
        st1()
        a.c("exclusive scan of the 2048 counters (units: bytes, 6 per record)")
        a(f"""
        s_waitcnt lgkmcnt(0)
        s_barrier
        """)
        if X == 'A' or OPT['stpos'] < 3:
            slot()
        a(f"""
        ds_read_b64 {vr(c01, 2)}, v{vT8} offset:{P1_CNT}
        s_waitcnt lgkmcnt(0)
        v_add_u32 v{s}, v{c01}, v{c01 + 1}
        v_mov_b32 v{inc}, v{s}
        """)
        wave_scan(inc)
        a(f"""
        s_nop 1
        v_add_u32_dpp v{inc}, v{inc}, v{inc} row_bcast:15 row_mask:0xa bank_mask:0xf
        s_nop 1
        v_add_u32_dpp v{inc}, v{inc}, v{inc} row_bcast:31 row_mask:0xc bank_mask:0xf
        s_lshl_b32 s{sT1}, s{sW}, 2
        v_mov_b32 v{q}, s{sT1}
        v_readlane_b32 s{sT0}, v{inc}, 63
        s_nop 1
        v_mov_b32 v{p}, s{sT0}
        ds_write_b32 v{q}, v{p} offset:{P1_PART}
        v_and_b32 v{q}, 15, v0
        v_lshlrev_b32 v{p}, 2, v{q}
        s_waitcnt lgkmcnt(0)
        s_barrier
        """)
        if X == 'A' or OPT['stpos'] < 3:
            slot()
        a(f"""
        v_cmp_gt_u32 vcc, s{sW}, v{q}
        ds_read_b32 v{p}, v{p} offset:{P1_PART}
        s_waitcnt lgkmcnt(0)
        v_cndmask_b32 v{p}, 0, v{p}, vcc
        """)
        wave_scan(p)
        a(f"""
        v_sub_u32 v{inc}, v{inc}, v{s}
        v_readlane_b32 s{sT0}, v{p}, 15
        s_add_u32 s{sT0}, s{sT0}, {P1_REC}
        s_nop 0
        v_add_u32 v{q + 1}, s{sT0}, v{inc}
        v_add_u32 v{q + 2}, v{q + 1}, v{c01}
        ds_write_b64 v{vT8}, {vr(q + 1, 2)} offset:{P1_CNT}
        s_waitcnt lgkmcnt(0)
        s_barrier
        """)
        assert (q + 1) % 2 == 0
        st1()
        a.c("rank and scatter into the LDS image")
        def rank_issue(recs):
            for k, (o, i, g, hi) in enumerate(recs):
                a(f"ds_add_rtn_u32 v{o}, v{o}, v{vSIX} offset:{P1_CNT}")

        def put_words(recs):
            for k, (o, i, g, hi) in enumerate(recs):
                a(f"v_and_b32 v{tmp[k]}, 2, v{o}")
            for k, (o, i, g, hi) in enumerate(recs):
                a(f"v_add_u32 v{tmp[k]}, v{o}, v{tmp[k]}")
            for k, (o, i, g, hi) in enumerate(recs):
                a(f"ds_write_b32 v{tmp[k]}, v{i}")

        def put_angles(recs):
            for k, (o, i, g, hi) in enumerate(recs):
                a(f"v_and_b32 v{tmp[4 + k]}, 2, v{o}")
            for k, (o, i, g, hi) in enumerate(recs):
                a(f"v_mad_i32_i24 v{tmp[4 + k]}, v{tmp[4 + k]}, -2, v{o}")
            for k, (o, i, g, hi) in enumerate(recs):
                a(f"ds_write_b16{'_d16_hi' if hi else ''} v{tmp[4 + k]}, v{g} offset:4")

        nslot = lambda r: (2 if OPT["stpos"] < 4 or r >= 2 else 0) if X == "B" else OPT["aslot"]
        rank_issue(round_recs(X, 0))
        rank_issue(round_recs(X, 1))
        for r in range(6):
            if r < 4:
                rank_issue(round_recs(X, r + 2))
            a(f"s_waitcnt lgkmcnt({[8, 12, 12, 12, 8, 4][r]})")
            put_words(round_recs(X, r))
            slot(nslot(r))
        tail_begin(f"P1_sc6{X}")
        rank_issue(round_recs(X, 6))
        a("s_waitcnt lgkmcnt(0)")
        put_words(round_recs(X, 6))
        tail_end(f"P1_sc6{X}")
        slot(99)
        for r in range(7):
            vm_wait((X, "a", r))
            if r == 6:
                tail_begin(f"P1_an6{X}")
            put_angles(round_recs(X, r))
            if r == 6:
                tail_end(f"P1_an6{X}")
            if X == "A" and OPT["bang"] == 1 and r < 6:
                issue_ang("B", r)
        slot(99)
        a("""
        s_waitcnt lgkmcnt(0)
        s_barrier
        """)
        st1()
        a.c("read the image back (into the dead record registers) and the counters (now segment ends)")
        dst = [O[X] + 4 * r for r in range(6)] + [I[X] + 4 * r for r in range(4)]
        ra, rb = tmp[8], tmp[9]
        a(f"v_add_u32 v{ra}, 0x10000, v{vT16}")
        a(f"v_add_u32 v{rb}, 0x20000, v{vT16}")
        for r in range(9):
            base = [vT16, ra, rb][r >> 2]
            a(f"ds_read_b128 {vr(dst[r], 4)}, v{base} offset:{P1_REC + (r & 3) * 16384}")
        nlast = CH * 6 // 16 - 9 * 1024
        a(f"""
        v_cmp_gt_u32 vcc, {nlast}, v0
        s_and_saveexec_b64 {sr(sEX, 2)}, vcc
        ds_read_b128 {vr(dst[9], 4)}, v{rb} offset:{P1_REC + 16384}
        s_mov_b64 exec, {sr(sEX, 2)}
        v_cndmask_b32 v{rb}, v{vX}, v{vT16}, vcc
        v_and_b32 v{ra}, 1, v0
        v_lshlrev_b32 v{ra}, 12, v{ra}
        v_lshrrev_b32 v{tmp[0]}, 1, v0
        v_lshl_add_u32 v{ra}, v{tmp[0]}, 2, v{ra}
        s_cmp_lt_u32 s{sW}, 8
        s_cbranch_scc0 P1_notab{X}
        """)
        for qq in range(4):
            if qq:
                a(f"v_add_u32 v{ra}, 1024, v{ra}")
            a(f"ds_read2_b32 {vr(tmp[2 * qq], 2)}, v{ra} offset0:{P1_CNT // 4 - 1} offset1:{P1_CNT // 4}")
        a("s_waitcnt lgkmcnt(0)")
        for qq in range(4):
            s_, e_ = tmp[2 * qq], tmp[2 * qq + 1]
            a(f"""
            v_sub_u32 v{e_}, v{e_}, v{s_}
            v_subrev_u32 v{s_}, {P1_REC}, v{s_}
            v_mul_hi_u32 v{e_}, v{e_}, s{sDIV6}
            v_mul_hi_u32 v{s_}, v{s_}, s{sDIV6}
            v_lshl_or_b32 v{tmp[qq]}, v{e_}, 16, v{s_}
            """)
        a(f"""
        v_lshrrev_b32 v{tmp[4]}, 1, v0
        v_and_b32 v{tmp[5]}, 1, v0
        v_lshlrev_b32 v{tmp[4]}, {5 if OPT["tabc"] else 14}, v{tmp[4]}
        v_lshl_or_b32 v{tmp[4]}, v{tmp[5]}, 4, v{tmp[4]}
        s_branch P1_tab{X}
        P1_notab{X}:
        v_mov_b32 v{tmp[4]}, v{vX}
        P1_tab{X}:
        s_lshl_b32 s{sT0}, s{sCH}, {13 if OPT['tabc'] else 5}
        s_mul_i32 s{sT1}, s{sCH}, {CHB}
        buffer_store_dwordx4 {vr(tmp[0], 4)}, v{tmp[4]}, {sr(S_TAB, 4)}, s{sT0} offen
        s_waitcnt lgkmcnt(0)
        """)
        vmq.append("st")
        a(f"s_add_u32 s{sT0}, s{sT1}, {9 * 16384}")
        a(f"buffer_store_dwordx4 {vr(dst[9], 4)}, v{rb}, {sr(S_REC, 4)}, s{sT0} offen{STMS[X]}")
        vmq.append("st")
        a(f"s_mov_b32 s47, s{sT1}")

        def mk(r):
            def f():
                a(f"buffer_store_dwordx4 {vr(dst[r], 4)}, v{vT16}, {sr(S_REC, 4)}, s47 offen{STMS[X]}")
                a(f"s_add_u32 s47, s47, 16384")
                vmq.append("st")
            return f
        pend.extend(mk(r) for r in range(9))
        if X == "B" or OPT["stpos"] == 0:
            slot(99)
        st1()

    st1()
    a(f"v_mov_b32 v{vX}, 0x7fffff00")
    AD = OPT["adepth"]
    aq = [lambda r=r: issue_idx("A", r) for r in range(7)] + [lambda: [issue_ang("A", r) for r in range(0, 2)], lambda: [issue_ang("A", r) for r in range(2, 4)], lambda: [issue_ang("A", r) for r in range(4, 7)]]

    def first_loads():
        if AD:
            for _ in range(AD):
                aq.pop(0)()
            return
        for r in range(7):
            issue_idx("A", r)
            if not OPT["angl"]:
                issue_ang("A", r)
        if OPT["angl"]:
            for r in range(7):
                issue_ang("A", r)
    builder(a, (62, 78, 94, 102), 4, 5, 6, 7, 12, 124, 8, sW, sT0, S_TAB, first_loads, 2 * AD if AD else 21)
    a("s_barrier")
    order = [6, 0, 1, 2, 3, 4, 5]
    nb = 0
    for r in range(7):
        vm_wait(("A", r))
        if r == 6:
            tail_begin("P1_pk6A")
        pack(round_recs("A", r))
        if r == 6:
            tail_end("P1_pk6A")
        if AD and aq:
            aq.pop(0)()
            if r == 6:
                while aq:
                    aq.pop(0)()
        elif r < 6 and r >= 6 - OPT["early"]:
            issue_idx("B", nb)
            nb += 1
    for r in range(nb, 6):
        pend.append(lambda r=r: (vm_wait(("B", r - OPT["bfair"])) if OPT["bfair"] and r >= OPT["bfair"] else None, issue_idx("B", r)))
    a(f"s_lshl_b32 s{sCH}, s2, 1")
    sort_chunk("A")
    a(f"""
    s_barrier
    v_mov_b32 v{tmp[8]}, 0
    v_mov_b32 v{tmp[9]}, 0
    ds_write_b64 v{vT8}, {vr(tmp[8], 2)} offset:{P1_CNT}
    s_add_u32 s{sCH}, s{sCH}, 1
    s_waitcnt lgkmcnt(0)
    """)
    issue_idx("B", 6)
    if OPT["bang"] == 2:
        for r in range(6):
            issue_ang("B", r)
    issue_ang("B", 6)
    a("s_barrier")
    for r in range(7):
        vm_wait(("B", r))
        if r == 6:
            tail_begin("P1_pk6B")
        pack(round_recs("B", r))
        if r == 6:
            tail_end("P1_pk6B")
        if OPT["stpos"] == 1:
            slot()
    def prefetch_m():
        a.c("touch this workgroup's share of m (one load per 128-byte line) so that the second kernel finds it on chip")
        srd(a, 80, 70, E * 32)
        a(f"""
        v_cmp_gt_u32 vcc, {OPT["pfp1"] or 782}, v0
        v_lshlrev_b32 v{G + 1}, 7, v0
        s_mul_i32 s{sT0}, s2, {OPT["pfp1"] * 128 or 100000}
        s_and_b32 s{sT0}, s{sT0}, 0xffffff80
        v_cndmask_b32 v{G + 1}, v{vX}, v{G + 1}, vcc
        buffer_load_dword v{G}, v{G + 1}, {sr(80, 4)}, s{sT0} offen
        """)
    if OPT["pfm"] or OPT["pfp1"]:
        prefetch_m()
    sort_chunk("B")
    if OPT["stamp1"]:
        a("s_waitcnt vmcnt(0)")
        st1()
        a(f"""
        s_lshl_b32 s3, s2, 4
        s_add_u32 s3, s3, s{sW}
        s_lshl_b32 s3, s3, 6
        s_add_u32 s44, s44, {17 << 20}
        s_addc_u32 s45, s45, 0
        """)
        srd(a, S_TAB, 44, 1 << 20)
        a("v_mov_b32 v4, 0")
        for i in range(stn[0]):
            a(f"v_mov_b32 v5, s{48 + 2 * i}")
            a(f"buffer_store_dword v5, v4, {sr(S_TAB, 4)}, s3 offen offset:{4 * i}")
    a("P1_done:")
    a("s_endpgm")
    kernel_desc(a, name, 128, 88)


L_LOCK = 0
L_RBF = 800
L_ACC0 = L_RBF + EB * 16
L_ACC1 = L_ACC0 + EB * 16
L_RING = L_ACC1 + EB * 16
RING_CAP = 101
RING_STRIDE = RING_CAP * 8
P2_LDS = 163840
assert L_RING + 16 * RING_STRIDE <= P2_LDS


def gen_main(a, name):
    BIG = OPT["big"]
    CB = 2 * CHB if BIG else CHB
    NCW = 16 if BIG else 32
    SPL = OPT['spl']
    LPS = 64 // SPL
    LSH = LPS.bit_length() - 1
    SPP = NCW // SPL
    TSH = 14 if BIG else 13
    NSTEP = SPP * OPT["ns"]
    ntr = " nt" if OPT["nt_rec"] else (" sc1" if OPT["ldsc"] & 1 else "")
    tsc = " sc1" if OPT["ldsc"] & 2 else ""
    nto = ["", " sc1", " nt", " sc0 sc1", " sc1 nt"][OPT["outm"]]
    S_REC, S_M, S_TMP, S_OUT = 8, 12, 16, 20
    sB, sW = 24, 25
    sCNT, sTOP = 26, 27
    sM = [28, 30]
    sN, sT0, sT1, sT2 = 32, 33, 34, 35
    sACQ, sFAIL = 36, 38
    sM0, sM1 = 40, 42
    sRET, sRET2 = 44, 46
    sLONG = [48, 50]
    sEX = 52
    sCO = 54
    sCOB = [55, 56]
    sK, sJ, sPH = 57, 58, 59
    sP = 60
    sRB, sHI, sG, sKF0, sKF1, sN0 = 76, 77, 78, 79, 80, 81
    sCEN = 84
    sEVEN = 92
    sCAP = 97
    sF = [98, 100]
    assert not (OPT['pfn'] or OPT['spf'] or OPT['x_fake'] or OPT['gexec'])
    vLANE = 1
    A1a, A1b, A2a, A2b, A3a, A3b = 2, 6, 10, 14, 18, 22
    D1, D2 = 26, 42
    GP, GQ = [58, 66], [62, 70]
    TF = 74
    S0, S1 = 78, 82
    AX, AY = S0, S1
    WA = [86, 88]
    O = [90, 91]
    C = [92, 93]
    TT = 94
    RB = [98, 102]
    RD = [101, 105]
    RL = [106, 107]
    RA = [108, 109]
    vBP, vCB, vL2, vL8, vH16, vOOB, vE = range(110, 117)
    t = list(range(117, 128)) + [0]
    vDUM = GP[1]
    vPF = 0

    FUS = OPT["fused"]
    sDBG, sA1, sTO = 62, 82, 96
    ILV = FUS and OPT["ilv"]
    stq = list(OPT.get("_stores", [])) if ILV else []
    nst = [0]

    def put(n):
        for _ in range(n):
            if stq:
                a(stq.pop(0))
                nst[0] += 1
    if not FUS:
        kernel_head(a, name)
        a(f"s_cmp_ge_u32 s2, {NB}\ns_cbranch_scc1 P2_done")
    a(f"""
    P2_entry:

    {"s_memrealtime s[94:95]" if OPT["stamp2"] else ""}
    s_load_dwordx2 {sr(sP, 2)}, s[0:1], 0
    s_load_dwordx2 {sr(sP + 2, 2)}, s[0:1], 24
    s_load_dwordx4 {sr(sP + 4, 4)}, s[0:1], 40
    s_load_dwordx2 s[4:5], s[0:1], 88
    s_load_dwordx2 s[6:7], s[0:1], 104
    s_and_b32 s{sB}, s2, 7
    s_lshl_b32 s{sB}, s{sB}, 5
    s_lshr_b32 s{sT0}, s2, 3
    s_add_u32 s{sB}, s{sB}, s{sT0}
    v_lshrrev_b32 v{t[0]}, 6, v0
    v_and_b32 v{vLANE}, 63, v0
    s_mov_b32 s{sHI}, 0xffff0000
    v_readfirstlane_b32 s{sW}, v{t[0]}
    v_mov_b32 v{vOOB}, 0x7fffff00
    s_mov_b32 s{sEVEN}, 0x55555555
    s_mov_b32 s{sEVEN + 1}, 0x55555555
    """)
    put(1)
    a("s_waitcnt lgkmcnt(0)")
    pM, pDIST, pCEN, pFREQ, pWRBF, pWSBF, pWDN, pWUP = [sP + 2 * k for k in range(8)]
    a(f"""
    s_load_dwordx4 {sr(sCEN, 4)}, {sr(pCEN, 2)}, 0
    s_load_dword s{sT2}, {sr(pFREQ, 2)}, 0
    """)
    sPM, sPFO, sPFD = 100, 99, 82

    def spf():
        return f"""
        s_load_dword s{sPFD}, {sr(sPM, 2)}, s{sPFO}
        s_add_u32 s{sPFO}, s{sPFO}, {4096 * 128}
        s_min_u32 s{sPFO}, s{sPFO}, {E * 32 - 4}
        """
    srd(a, S_REC, 6, REC_BYTES)
    srd(a, S_M, pM, E * 32)
    srd(a, S_OUT, 4, E * 32)
    a(f"s_add_u32 s6, s6, {TAB_OFF}")
    a("s_addc_u32 s7, s7, 0")
    S_TAB = S_TMP
    S_DST = 68
    srd(a, S_TAB, 6, TAB_BYTES + 8192)
    def table_loads():
        a.c("this wave's table entries: a lane holds four consecutive slots of one chunk")
        a(f"""
        v_and_b32 v{t[0]}, {NCW - 1}, v{vLANE}
        v_lshrrev_b32 v{t[1]}, {4 if BIG else 5}, v{vLANE}
        v_lshlrev_b32 v{vL8}, 3, v{vLANE}
        v_lshlrev_b32 v{t[2]}, 4, v{t[1]}
        v_lshl_add_u32 v{t[2]}, v{t[0]}, {TSH}, v{t[2]}
        s_lshl_b32 s{sT0}, s{sB}, {TSH - 8}
        s_lshl_b32 s{sT1}, s{sW}, 18
        s_add_u32 s{sT0}, s{sT0}, s{sT1}
        v_lshrrev_b32 v{t[3]}, {LSH}, v{vLANE}
        v_lshlrev_b32 v{t[3]}, {TSH}, v{t[3]}
        s_add_u32 s{sT1}, s{sT0}, {SPL << TSH}
        buffer_load_dword v{vE}, v{t[3]}, {sr(S_TAB, 4)}, s{sT0} offen{tsc}
        buffer_load_dword v{C[0]}, v{t[3]}, {sr(S_TAB, 4)}, s{sT1} offen{tsc}
        buffer_load_dwordx4 {vr(TT, 4)}, v{t[2]}, {sr(S_TAB, 4)}, s{sT0} offen{tsc}
        """)

    def dist_loads():
        srd(a, S_DST, pDIST, E * 2)

        a.c("dist of the bucket's edges t, t+1024, t+2048, t+3072")
        a(f"""
        s_mul_i32 s{sT0}, s{sB}, {EB * 2}
        v_lshlrev_b32 v{t[2]}, 1, v0
        buffer_load_ushort v{t[4]}, v{t[2]}, {sr(S_DST, 4)}, s{sT0} offen
        buffer_load_ushort v{t[5]}, v{t[2]}, {sr(S_DST, 4)}, s{sT0} offen offset:2048
        s_add_u32 s{sT0}, s{sT0}, 4096
        buffer_load_ushort v{t[6]}, v{t[2]}, {sr(S_DST, 4)}, s{sT0} offen
        buffer_load_ushort v{t[7]}, v{t[2]}, {sr(S_DST, 4)}, s{sT0} offen offset:2048
        """)

    def ops_loads():
        a.c("matrix operands prepared in part 1")
        a(f"v_lshlrev_b32 v{t[3]}, 4, v{vLANE}")
        for k in range(4 if FUS else 6):
            a(f"s_mov_b32 s{sT0}, {TAB_BYTES + 1024 * k}")
            a(f"buffer_load_dwordx4 {vr(A1a + 4 * k, 4)}, v{t[3]}, {sr(S_TAB, 4)}, s{sT0} offen{tsc}")

    def poll(off, lbl):
        return f"""
        s_mov_b32 s{sTO}, {1 << 21}
        v_mov_b32 v{t[2]}, 0
        {lbl}:
        global_load_dword v{t[3]}, v{t[2]}, {sr(sDBG, 2)} offset:{off} sc1
        s_sub_u32 s{sTO}, s{sTO}, 1
        s_cbranch_scc1 {lbl}x
        s_waitcnt vmcnt(0)
        v_readfirstlane_b32 s{sT0}, v{t[3]}
        s_cmp_lt_u32 s{sT0}, {NB}
        s_cbranch_scc1 {lbl}
        {lbl}x:
        {'' if OPT['x_noinv'] & (2 if off else 1) else 'buffer_inv sc1'}
        """
    def poll0():
        a(f"""
        s_cmp_eq_u32 s{sW}, 0
        s_cbranch_scc0 P2_nopoll
        {poll(0, "P2_poll0")}
        P2_nopoll:
        """)
    if FUS:
        if not OPT["edist"] and not ILV:
            dist_loads()
        a(f"s_load_dwordx2 {sr(sDBG, 2)}, s[0:1], 96\ns_mov_b32 s{sA1}, 0")
    else:
        table_loads()
        dist_loads()
        ops_loads()
    npf = 0
    if OPT["pf0"]:
        a.c("touch a share of the first slice of m, one load per 128-byte line")
        lines = (E // OPT["ns"] * 32 // 128 + 31) // 32
        a(f"""
        v_cmp_gt_u32 vcc, {min(lines, 1024)}, v0
        v_lshlrev_b32 v{t[8]}, 7, v0
        s_lshr_b32 s{sT0}, s2, 3
        s_mul_i32 s{sT0}, s{sT0}, {lines * 128}
        v_cndmask_b32 v{t[8]}, v{vOOB}, v{t[8]}, vcc
        buffer_load_dword v{vDUM}, v{t[8]}, {sr(S_M, 4)}, s{sT0} offen
        """)
        npf = 1
    put(1)
    a.c("zero the locks and the accumulators")
    D = D1
    a(f"""
    v_mov_b32 v{D}, 0
    v_mov_b32 v{D + 1}, 0
    v_mov_b32 v{D + 2}, 0
    v_mov_b32 v{D + 3}, 0
    v_lshlrev_b32 v{t[2]}, 4, v0
    v_add_u32 v{t[9]}, {L_ACC0}, v{t[2]}
    """)
    for r in range(4):
        a(f"ds_write_b128 v{t[9]}, {vr(D, 4)} offset:{r * 16384}")
    a(f"v_add_u32 v{t[9]}, 0x10000, v{t[9]}")
    for r in range(2):
        a(f"ds_write_b128 v{t[9]}, {vr(D, 4)} offset:{r * 16384}")
    a(f"""
    v_cmp_gt_u32 vcc, {2 * EB - 6 * 1024}, v0
    s_and_saveexec_b64 {sr(sEX, 2)}, vcc
    ds_write_b128 v{t[9]}, {vr(D, 4)} offset:{2 * 16384}
    s_mov_b64 exec, {sr(sEX, 2)}
    v_cmp_gt_u32 vcc, {L_RBF // 16}, v0
    s_and_saveexec_b64 {sr(sEX, 2)}, vcc
    ds_write_b128 v{t[2]}, {vr(D, 4)}
    s_mov_b64 exec, {sr(sEX, 2)}
    s_waitcnt lgkmcnt(0)
    """)
    if OPT["spf"]:
        a.c("scalar loads walk over m, one per 128-byte line chip-wide, ahead of the gathers")
        a(f"""
        s_lshl_b32 s{sPFO}, s2, 4
        s_add_u32 s{sPFO}, s{sPFO}, s{sW}
        s_lshl_b32 s{sPFO}, s{sPFO}, 7
        """)
        for k in range(OPT["spf"]):
            a(spf())
    put(1)
    a.c("centers and frequencies to f32")
    for k in (3, 2, 1, 0):
        a(f"s_and_b32 s{sCEN + 2 * k + 1}, s{sCEN + k}, 0xffff0000")
        a(f"s_lshl_b32 s{sCEN + 2 * k}, s{sCEN + k}, 16")
    a(f"""
    s_lshl_b32 s{sT0}, s{sT2}, 16
    s_and_b32 s{sT1}, s{sT2}, 0xffff0000
    v_mov_b32 v{t[8]}, 0.15915494
    v_mul_f32 v{t[9]}, s{sT0}, v{t[8]}
    v_mul_f32 v{t[8]}, s{sT1}, v{t[8]}
    v_and_b32 v{vH16}, 1, v{vLANE}
    v_lshlrev_b32 v{vH16}, 4, v{vH16}
    v_readfirstlane_b32 s{sKF0}, v{t[9]}
    v_readfirstlane_b32 s{sKF1}, v{t[8]}
    """)
    a.c("record-stream lane constants")
    a(f"""
    v_and_b32 v{t[8]}, {LPS - 1}, v{vLANE}
    v_lshrrev_b32 v{t[9]}, {LSH}, v{vLANE}
    v_lshlrev_b32 v{vL2}, 1, v{t[8]}
    v_lshlrev_b32 v{vBP}, 2, v{t[9]}
    v_mul_u32_u24 v{t[9]}, {CB}, v{t[9]}
    v_mad_u32_u24 v{vCB}, v{t[8]}, 12, v{t[9]}
    s_mul_i32 s{sCO}, s{sW}, {32 * CHB}
    s_mul_i32 s{sRB}, s{sW}, {RING_STRIDE}
    s_add_u32 s{sRB}, s{sRB}, {L_RING}
    s_mov_b32 s{sTOP}, s{sRB}
    s_mov_b32 s{sCNT}, 0
    s_mov_b64 {sr(sM[0], 2)}, 0
    s_mov_b64 {sr(sM[1], 2)}, 0
    s_mov_b32 s{sJ}, 0
    s_mov_b32 s{sPH}, 0
    s_mov_b32 s{sG}, 100000
    s_mov_b32 s{sCAP}, {OPT['lim']}
    s_mov_b64 {sr(sF[0], 2)}, 0
    s_mov_b64 {sr(sF[1], 2)}, 0
    s_and_b32 s3, s2, {3 if OPT["stag"] == 1 else (6 if OPT["stag"] == 2 else 0)}
    s_lshl_b32 s3, s3, {1 if OPT["stag"] == 1 else 0}
    s_mov_b32 s83, {-16 * OPT["lag"] + OPT["lagoff"]}
    {'s_mov_b32 s95, 0' if OPT['cntreq'] else ''}
    """)

    uid = [0]
    kmul = (OPT["ns"] << 24) // E
    SLB = ((1 << 24) // kmul * 32) & ~127
    SHARE = (SLB // 128 + 64 * OPT['pfx']) // (64 * OPT['pfx'])

    PER = (SHARE + OPT["pfw"] - 1) // OPT["pfw"]

    def pf_share(sS, tmpv, vPF=vPF):
        return f"""
        s_mul_i32 s{sT0}, s{sS}, {SLB}
        s_mul_i32 s{sT1}, s82, {SHARE * 128}
        s_add_u32 s{sT0}, s{sT0}, s{sT1}
        s_mul_i32 s{sT1}, s{sW}, {PER}
        v_add_u32 v{tmpv}, s{sT1}, v{vLANE}
        v_cmp_gt_u32 vcc, {PER}, v{vLANE}
        v_lshlrev_b32 v{tmpv}, 7, v{tmpv}
        s_nop 0
        v_cndmask_b32 v{tmpv}, v{vOOB}, v{tmpv}, vcc
        buffer_load_dword v{vPF}, v{tmpv}, {sr(S_M, 4)}, s{sT0} offen
        """

    def prep(buf, mid=None, pf=True):
        uid[0] += 1
        u = uid[0]
        a(f"""
        v_lshrrev_b32 v{RL[buf]}, 16, v{vE}
        v_and_b32 v{t[0]}, 1, v{vE}
        v_and_b32 v{t[1]}, 0xfffe, v{vE}
        v_sub_u32 v{RD[buf]}, v{vL2}, v{t[0]}
        v_mad_u32_u24 v{RA[buf]}, v{t[1]}, 6, v{vCB}
        v_cmp_lt_i32 vcc, v{RD[buf]}, v{RL[buf]}
        v_cmp_lt_u32 {sr(sLONG[buf], 2)}, {2 * LPS - 1}, v{RL[buf]}
        s_mov_b32 s{sCOB[buf]}, s{sCO}
        {"s_or_b32 vcc_lo, vcc_lo, 1" if OPT["rexec"] else f"v_cndmask_b32 v{t[1]}, v{vOOB}, v{RA[buf]}, vcc"}
        v_add_u32 v{vBP}, {4 * SPL}, v{vBP}
        s_add_u32 s{sCO}, s{sCO}, {SPL * CB}
        s_add_u32 s{sJ}, s{sJ}, 1
        s_cmp_lt_u32 s{sJ}, {SPP}
        s_cbranch_scc0 P2_adv{u}
        P2_advr{u}:
        {f"ds_bpermute_b32 v{vE}, v{vBP}, v{TT}" if mid else ""}
        """)
        if mid:
            a(mid)
        if OPT["x_fake"]:
            a(f"buffer_load_dword v{D2}, v{vOOB}, {sr(S_REC, 4)}, s{sCOB[buf]} offen{ntr}")
            sz = E // OPT['ns']
            a(f"""
            s_add_u32 s98, s{sK}, {2 + buf}
            s_lshr_b32 s98, s98, 3
            s_min_u32 s98, s98, {OPT['ns'] - 1}
            s_mul_i32 s98, s98, {sz}
            s_mov_b32 s99, {sz}
            s_mov_b32 s97, 0x9E3779B1
            """)
            for dd in (RB[buf], RB[buf] + 2):
                a(f"""
                v_mul_lo_u32 v{D1}, v{D1}, s97
                v_add_u32 v{D1}, 0x3c6ef35f, v{D1}
                v_lshrrev_b32 v{D1 + 1}, 15, v{D1}
                v_xor_b32 v{D1}, v{D1}, v{D1 + 1}
                v_mul_hi_u32 v{dd}, v{D1}, s99
                v_add_u32 v{dd}, s98, v{dd}
                v_lshlrev_b32 v{dd}, 12, v{dd}
                """)
        else:
            if OPT["rexec"]:
                a(f"""
                s_mov_b64 exec, vcc
                buffer_load_dwordx3 {vr(RB[buf], 3)}, v{RA[buf]}, {sr(S_REC, 4)}, s{sCOB[buf]} offen{ntr}
                s_mov_b64 exec, -1
                """)
            else:
                a(f"buffer_load_dwordx3 {vr(RB[buf], 3)}, v{t[1]}, {sr(S_REC, 4)}, s{sCOB[buf]} offen{ntr}")
        if OPT["pfn"] and mid and pf:
            a(f"""
            s_cmp_eq_u32 s{sJ}, s99
            s_cbranch_scc1 P2_pf{u}
            P2_pfr{u}:
            """)
            cold.append(f"""
            P2_pf{u}:
            s_cmp_eq_u32 s{sPH}, s98
            s_cbranch_scc0 P2_pfr{u}
            s_add_u32 s98, s98, {OPT["pfg"]}
            """ + "".join(f"s_add_u32 s{sT2}, s{sPH}, {OPT['pfn'] + g}\n" + pf_share(sT2, t[3]) for g in range(OPT["pfg"])) + f"""
            s_branch P2_pfr{u}
            """)
        cold.append(f"""
        P2_adv{u}:
        s_mov_b32 s{sJ}, 0
        s_sub_u32 s{sCO}, s{sCO}, {32 * CHB}
        s_add_u32 s{sPH}, s{sPH}, 1
        s_and_b32 s{sT0}, s{sPH}, 3
        s_cselect_b32 s{sT0}, {4 * NCW}, 0
        v_subrev_u32 v{vBP}, s{sT0}, v{vBP}
        v_mov_b32 v{t[0]}, v{TT}
        v_mov_b32 v{TT}, v{TT + 1}
        v_mov_b32 v{TT + 1}, v{TT + 2}
        v_mov_b32 v{TT + 2}, v{TT + 3}
        v_mov_b32 v{TT + 3}, v{t[0]}
        {f"s_call_b64 {sr(sRET, 2)}, P2_w1" if FUS else ""}
        s_cmp_lt_u32 s{sPH}, {16 if BIG else 8}
        s_cbranch_scc1 P2_advr{u}
        v_mov_b32 v{TT}, 0
        s_branch P2_advr{u}
        """)

    cold = []
    def first_recs():
        prep(0)
        a(f"v_mov_b32 v{vE}, v{C[0]}")
        prep(1)
    if not FUS:
        a(f"s_waitcnt vmcnt({11 + npf})")
        first_recs()

    def pf_prologue():
        a(f"""
        s_bfe_u32 s99, s2, {(3 << 16) | 3 if OPT["pfs"] else 0}
        s_cmp_lt_u32 s99, {4 if OPT['peel'] else 3}
        s_cselect_b32 s98, {OPT["pfg"]}, 0
        s_lshr_b32 s82, s2, 2
        s_mul_i32 s82, s82, {OPT["pfx"]}
        s_and_b32 s{sT0}, s2, 3
        s_add_u32 s82, s82, s{sT0}
        s_cmp_lt_u32 s{sT0}, {OPT["pfx"]}
        s_cselect_b32 s{sT0}, s{sW}, 99
        s_cmp_lt_u32 s{sT0}, {OPT["pfw"]}
        s_cselect_b32 s99, s99, 99
        s_cbranch_scc0 P2_nopf
        """)
        for k in range(OPT["pffirst"], OPT["pfn"] + OPT["pfg"]):
            if k == OPT["pfn"]:
                a(f"s_cmp_lt_u32 s99, {4 if OPT['peel'] else 3}\ns_cbranch_scc0 P2_nopf")
            a(f"s_mov_b32 s{sT2}, {k}")
            a(pf_share(sT2, t[3], vDUM))
        a("P2_nopf:")
    if OPT["pfn"] and OPT["pfpos"] == 0:
        pf_prologue()
    a.c("radial basis table exp(-10 (d - c)^2), stored as f16")
    ED = FUS and OPT["edist"]
    a(f"s_waitcnt vmcnt({nst[0] if ILV else OPT['_nst'] if ED else (0 if FUS else 8 + npf)})")
    ED = ED or ILV

    def signal1():
        a.c("second half is out: the last wave to see its stores done tells the other workgroups")
        a(f"""
        v_mov_b32 v{t[2]}, {P2_LDS - 4}
        v_mov_b32 v{t[3]}, 1
        s_mov_b64 exec, 1
        ds_add_rtn_u32 v{t[2]}, v{t[2]}, v{t[3]}
        s_waitcnt lgkmcnt(0)
        v_readfirstlane_b32 s{sT0}, v{t[2]}
        v_mov_b32 v{t[2]}, 0
        s_cmp_eq_u32 s{sT0}, 31
        s_cbranch_scc0 P2_nosig
        global_atomic_add v{t[2]}, v{t[3]}, {sr(sDBG, 2)} offset:128 sc1
        P2_nosig:
        s_mov_b64 exec, -1
        """)
    if FUS:
        if OPT["stamp2"] and not ED:
            a("s_memrealtime s[74:75]\ns_waitcnt lgkmcnt(0)\ns_mov_b32 s78, s74")
        if not ED:
            signal1()
        if OPT["pfm"] == 6:
            a(f"""
            v_cmp_gt_u32 vcc, 782, v0
            v_lshlrev_b32 v{t[2]}, 15, v0
            s_lshl_b32 s{sT0}, s2, 7
            v_cndmask_b32 v{t[2]}, v{vOOB}, v{t[2]}, vcc
            buffer_load_dword v{vDUM}, v{t[2]}, {sr(S_M, 4)}, s{sT0} offen
            """)
        if OPT["pollpos"] == 0:
            poll0()
    sTEN, sL2E = sRET, sRET + 1
    a(f"s_mov_b32 s{sTEN}, 0xc1200000")
    a(f"s_mov_b32 s{sL2E}, {0x3fb8aa3b if OPT['mimic'] else 0xc166d4ca:#x}")
    def rbf_round(r):
        dd = 12 + r if FUS and OPT['edist'] else t[4 + r]
        if r == 3:
            a(f"""
            v_cmp_gt_u32 vcc, {EB - 3 * 1024}, v0
            s_and_saveexec_b64 {sr(sEX, 2)}, vcc
            s_cbranch_execz P2_rbf3
            """)
        a(f"v_lshlrev_b32 v{dd}, 16, v{dd}")
        x = [D + k for k in range(8)]
        for k in range(8):
            a(f"v_subrev_f32 v{x[k]}, s{sCEN + k}, v{dd}")

        def rnd():
            if not OPT["mimic"]:
                return
            for k in range(0, 8, 2):
                a(f"v_cvt_pk_bf16_f32 v{D + 8 + k // 2}, v{x[k]}, v{x[k + 1]}")
            for k in range(0, 8, 2):
                a(f"v_lshlrev_b32 v{x[k]}, 16, v{D + 8 + k // 2}")
                a(f"v_and_b32 v{x[k + 1]}, s{sHI}, v{D + 8 + k // 2}")
        rnd()
        for k in range(8):
            a(f"v_mul_f32 v{x[k]}, v{x[k]}, v{x[k]}")
        rnd()
        if OPT["mimic"]:
            for k in range(8):
                a(f"v_mul_f32 v{x[k]}, s{sRET}, v{x[k]}")
        rnd()
        for k in range(8):
            a(f"v_mul_f32 v{x[k]}, s{sRET + 1}, v{x[k]}")
        for k in range(8):
            a(f"v_exp_f32 v{x[k]}, v{x[k]}")
        a("s_nop 0")
        rnd()
        for k in range(0, 8, 2):
            a(f"v_cvt_pk_f16_f32 v{D + 8 + k // 2}, v{x[k]}, v{x[k + 1]}")
        a(f"ds_write_b128 v{t[8]}, {vr(D + 8, 4)} offset:{L_RBF + r * 16384}")
        if r == 3:
            a("P2_rbf3:")
            a(f"s_mov_b64 exec, {sr(sEX, 2)}")


    def rbf_consts():
        a(f"v_lshlrev_b32 v{t[8]}, 4, v0")
    rbf_consts()
    if FUS:
        assert OPT["peel"] == 1
        for r in range(4):
            rbf_round(r)
            put(2)
        put(99)
        if ED:
            a("s_waitcnt vmcnt(0)")
            if OPT["stamp2"]:
                a("s_memrealtime s[74:75]\ns_waitcnt lgkmcnt(0)\ns_mov_b32 s78, s74")
            signal1()
        if OPT["pollpos"] == 1:
            poll0()
        a("s_waitcnt vmcnt(0) lgkmcnt(0)\ns_barrier")
        if OPT["stamp2"]:
            a("s_memrealtime s[74:75]\ns_waitcnt lgkmcnt(0)\ns_mov_b32 s3, s74")
        assert OPT["valu_add"] and OPT["xpop"]
        table_loads()
        a(f"s_waitcnt vmcnt(0)\ns_call_b64 {sr(sRET, 2)}, P2_w1")
        first_recs()
        ops_loads()
        a(f"ds_bpermute_b32 v{vE}, v{vBP}, v{TT}")
        cold.append(f"""
        P2_w1:
        s_cmp_eq_u32 s{sA1}, 1
        s_cbranch_scc1 P2_w1r
        v_and_b32 v{t[2]}, 0xffff, v{TT}
        v_lshrrev_b32 v{t[3]}, 16, v{TT}
        v_add_u32 v{t[2]}, v{t[2]}, v{t[3]}
        s_lshr_b32 s{sT0}, s{sPH}, 2
        s_lshl_b32 s{sT0}, s{sT0}, 4
        v_cmp_lt_u32 vcc, {OPT["h0"]}, v{t[2]}
        s_lshr_b64 vcc, vcc, s{sT0}
        s_and_b32 s{sT0}, vcc_lo, 0xffff
        s_cbranch_scc0 P2_w1r
        s_mov_b32 s{sA1}, 1
        v_mov_b32 v{t[2]}, 0
        v_mov_b32 v{t[3]}, 1
        s_mov_b64 exec, 1
        ds_or_rtn_b32 v{t[3]}, v{t[2]}, v{t[3]} offset:788
        s_mov_b64 exec, -1
        s_waitcnt lgkmcnt(0)
        v_readfirstlane_b32 s{sT0}, v{t[3]}
        s_cmp_eq_u32 s{sT0}, 0
        s_cbranch_scc0 P2_w1o
        {poll(128, "P2_poll1")}
        s_waitcnt vmcnt(0)
        v_mov_b32 v{t[3]}, 3
        ds_write_b32 v{t[2]}, v{t[3]} offset:788
        P2_w1r:
        s_setpc_b64 {sr(sRET, 2)}
        P2_w1o:
        s_cmp_eq_u32 s{sT0}, 3
        s_cbranch_scc1 P2_w1r
        ds_read_b32 v{t[3]}, v{t[2]} offset:788
        s_waitcnt lgkmcnt(0)
        v_readfirstlane_b32 s{sT0}, v{t[3]}
        s_branch P2_w1o
        """)
    else:
        a(f"ds_bpermute_b32 v{vE}, v{vBP}, v{TT}")
        for r in range(2 if OPT["peel"] else 4):
            rbf_round(r)
    a(f"""
    v_mov_b32 v{O[1]}, 0
    v_mov_b32 v{WA[1]}, 0
    """)
    a(f"s_mov_b32 s{sK}, 0")
    if OPT["gexec"]:
        for j in range(16):
            a(f"v_mov_b32 v{GP[0] + j}, 0")

    def prologue_tail():
        if FUS:
            a("s_waitcnt lgkmcnt(0)")
            return
        if OPT["peel"]:
            rbf_round(2)
            rbf_round(3)
        if OPT["pfn"] and OPT["pfpos"] == 1:
            pf_prologue()
        a("s_waitcnt lgkmcnt(0)\ns_barrier")
    if not OPT["peel"]:
        a.c("two out-of-range loads stand in for the gathers of the steps before the first one")
        for k in range(2):
            a(f"buffer_load_dword v{vDUM}, v{vOOB}, {sr(S_REC, 4)}, 0 offen")
        prologue_tail()

    la, bit, aX, aY, old = t[5], t[6], t[7], t[8], t[9]
    STAMP = OPT["stamp"]

    def st(i):
        return f"s_memtime s[{60 + 2 * i}:{61 + 2 * i}]" if STAMP else ""

    def lg(n):
        return f"s_waitcnt lgkmcnt({0 if STAMP else n})"

    def pop_issue(buf):
        F, NF = sF[buf], sACQ
        return f"""
        s_bcnt0_i32_b64 s{sN}, {sr(F, 2)}
        s_not_b64 {sr(NF, 2)}, {sr(F, 2)}
        s_min_u32 s{sN}, s{sCNT}, s{sN}
        v_mbcnt_lo_u32_b32 v{t[2]}, s{NF}, 0
        s_sub_u32 s{sCNT}, s{sCNT}, s{sN}
        v_mbcnt_hi_u32_b32 v{t[2]}, s{NF + 1}, v{t[2]}
        s_lshl3_add_u32 s{sTOP}, s{sCNT}, s{sRB}
        v_cmp_gt_u32 vcc, s{sN}, v{t[2]}
        v_lshl_add_u32 v{t[2]}, v{t[2]}, 3, s{sTOP}
        s_mov_b64 exec, {sr(NF, 2)}
        v_mov_b32 v{WA[buf]}, 0xfffff000
        v_mov_b32 v{WA[buf] + 1}, 0
        s_and_b64 exec, vcc, {sr(NF, 2)}
        ds_read_b64 {vr(WA[buf], 2)}, v{t[2]}
        s_or_b64 {sr(sM[buf], 2)}, exec, {sr(F, 2)}
        s_mov_b64 exec, -1
        """

    def gathers(buf):
        W, F, X, Y = WA[buf], sF[buf], sACQ, sFAIL
        g0 = f"v_mov_b32 v{t[2]}, v{vOOB}" if OPT["x_nogather"] else f"v_and_b32 v{t[2]}, 0xffffffe0, v{t[2]}"
        return f"""
        v_lshrrev_b32 v{t[2]}, 7, v{W}
        s_and_b64 {sr(X, 2)}, {sr(F, 2)}, {sr(sEVEN, 2)}
        {g0}
        s_lshl_b64 {sr(Y, 2)}, {sr(X, 2)}, 1
        v_lshlrev_b32 v{O[buf]}, 4, v{W}
        v_and_b32 v{t[4]}, s{sHI}, v{W + 1}
        v_or_b32_dpp v{t[3]}, v{t[2]}, v{vH16} quad_perm:[0,0,2,2] row_mask:0xf bank_mask:0xf
        v_or_b32_dpp v{t[2]}, v{t[2]}, v{vH16} quad_perm:[1,1,3,3] row_mask:0xf bank_mask:0xf
        s_nor_b64 exec, {sr(X, 2)}, {sr(Y, 2)}
        s_andn2_b64 {sr(X, 2)}, {sr(F, 2)}, {sr(sEVEN, 2)}
        buffer_load_dwordx4 {vr(GP[buf], 4)}, v{t[3]}, {sr(S_M, 4)}, 0 offen
        s_lshr_b64 {sr(Y, 2)}, {sr(X, 2)}, 1
        s_nor_b64 exec, {sr(X, 2)}, {sr(Y, 2)}
        buffer_load_dwordx4 {vr(GQ[buf], 4)}, v{t[2]}, {sr(S_M, 4)}, 0 offen
        s_mov_b64 exec, -1
        """

    def coschain(buf):
        return f"""
        {f"v_lshlrev_b32 v{O[buf]}, 4, v{vLANE}" if OPT["x_lin"] else f"v_and_b32 v{O[buf]}, 0xfff0, v{O[buf]}"}
        v_mul_f32 v{C[buf]}, s{sKF0}, v{t[4]}
        v_mul_f32 v{t[4]}, s{sKF1}, v{t[4]}
        v_fract_f32 v{C[buf]}, v{C[buf]}
        v_fract_f32 v{t[4]}, v{t[4]}
        v_cos_f32 v{C[buf]}, v{C[buf]}
        v_cos_f32 v{t[4]}, v{t[4]}
        """

    def cospack(buf):
        return f"v_cvt_pk_f16_f32 v{C[buf]}, v{C[buf]}, v{t[4]}"

    def rbf_read(buf):
        return f"ds_read_b128 {vr(S1, 4)}, v{O[buf]} offset:{L_RBF}"

    def gate(buf):
        s = ""
        for j in range(4):
            s += f"v_pk_mul_f16 v{S0 + j}, v{S1 + j}, v{C[buf]} op_sel_hi:[1,0]\n"
        for j in range(4):
            s += f"v_pk_mul_f16 v{S1 + j}, v{S1 + j}, v{C[buf]} op_sel:[0,1]\n"
        s += f"""
        v_mfma_f32_32x32x16_f16 {vr(D2, 16)}, {vr(A2a, 4)}, {vr(S0, 4)}, 0
        s_mov_b64 vcc, {sr(sEVEN, 2)}
        v_mfma_f32_32x32x16_f16 {vr(D2, 16)}, {vr(A2b, 4)}, {vr(S1, 4)}, {vr(D2, 16)}
        """
        return s

    def fixup(buf):
        s = ""
        for j in range(4):
            s += f"v_cndmask_b32_dpp v{S0 + j}, v{GQ[buf] + j}, v{GP[buf] + j}, vcc quad_perm:[0,0,2,2] row_mask:0xf bank_mask:0xf\n"
        s += "s_not_b64 vcc, vcc\n"
        for j in range(4):
            s += f"v_cndmask_b32_dpp v{S1 + j}, v{GP[buf] + j}, v{GQ[buf] + j}, vcc quad_perm:[1,1,3,3] row_mask:0xf bank_mask:0xf\n"
        return s

    def muls():
        for j in range(0, 16, 2):
            a(f"v_pk_mul_f32 {vr(D1 + j, 2)}, {vr(D1 + j, 2)}, {vr(D2 + j, 2)}")

    def core_a(buf, fill, fill2=""):
        W = WA[buf]
        a(f"""
        v_mfma_f32_32x32x16_bf16 {vr(D1, 16)}, {vr(A1a, 4)}, {vr(S0, 4)}, 0
        v_add_u32 v{aX}, {L_ACC0}, v{O[buf]}
        v_mfma_f32_32x32x16_bf16 {vr(D1, 16)}, {vr(A1b, 4)}, {vr(S1, 4)}, {vr(D1, 16)}
        v_add_u32 v{aY}, {L_ACC1}, v{O[buf]}
        v_lshrrev_b32 v{la}, 2, v{W}
        v_lshlrev_b32_e64 v{bit}, v{W}, 1
        v_permlane32_swap_b32 v{aX}, v{aY}
        """)
        a(fill)
        a(f"v_and_b32 v{la}, 0x3fc, v{la}")
        if not OPT["valu_add"]:
            muls()
        a(fill2)

    def core_b(buf, inline):
        uid[0] += 1
        u = uid[0]
        W, M = WA[buf], sM[buf]
        nrm = OPT["x_normw"]
        va = OPT["valu_add"]
        guard = f"s_sub_u32 s{sG}, s{sG}, 1\ns_cbranch_scc1 P2_done" if OPT["guard"] else ""
        a(f"""
        {st(5) if inline else ""}
        {"s_setprio 3" if OPT["prio"] else ""}
        s_mov_b64 exec, {sr(M, 2)}
        {f"v_mov_b32 v{old}, 0" if nrm else f"ds_or_rtn_b32 v{old}, v{la}, v{bit}"}
        s_mov_b64 exec, -1
        {"" if nrm else f"ds_read_b128 {vr(AX, 4)}, v{aX}"}
        {"" if nrm else f"ds_read_b128 {vr(AY, 4)}, v{aY}"}
        {f"ds_read_b32 v{t[10]}, v{vH16} offset:784" if inline else ""}
        {lg(2 if inline else 1)}
        {st(6) if inline else ""}
        """)
        check = f"""
        v_cmp_eq_u32 vcc, 0, v{old}
        s_and_b64 {sr(sACQ, 2)}, vcc, {sr(M, 2)}
        s_andn2_b64 {sr(sF[buf], 2)}, {sr(M, 2)}, vcc
        s_bcnt1_i32_b64 s{sN}, {sr(sF[buf], 2)}
        {"s_add_u32 s95, s95, s%d" % sN if OPT["cntreq"] else ""}
        s_mov_b32 exec_lo, s{sACQ}
        s_mov_b32 exec_hi, s{sACQ}
        s_cmp_gt_u32 s{sN}, s{sCAP}
        """
        U = [TF, TF + 1, TF + 2, TF + 3, t[1], t[2], t[3], t[4]]
        assert t[1] % 2 == 0

        def addhalf(Ac, off):
            for j in range(4):
                a(f"v_lshlrev_b32 v{U[2 * j]}, 16, v{Ac + j}")
                a(f"v_and_b32 v{U[2 * j + 1]}, s{sHI}, v{Ac + j}")
            for j in range(4):
                a(f"v_pk_fma_f32 {vr(U[2 * j], 2)}, {vr(D1 + off + 2 * j, 2)}, {vr(D2 + off + 2 * j, 2)}, {vr(U[2 * j], 2)}")
            for j in range(4):
                a(f"v_cvt_pk_bf16_f32 v{Ac + j}, v{U[2 * j]}, v{U[2 * j + 1]}")
        if va:
            a(f"v_and_b32 v{old}, v{old}, v{bit}")
            a(check)
            addhalf(AX, 0)
            a(f"s_waitcnt lgkmcnt({1 if inline else 0})")
        else:
            a(f"""
            v_mfma_f32_32x32x16_bf16 {vr(D2, 16)}, {vr(A3a, 4)}, {vr(AX, 4)}, {vr(D1, 16)}
            v_and_b32 v{old}, v{old}, v{bit}
            s_waitcnt lgkmcnt({1 if inline else 0})
            v_mfma_f32_32x32x16_bf16 {vr(D2, 16)}, {vr(A3b, 4)}, {vr(AY, 4)}, {vr(D2, 16)}
            """)
            a(check)
            a("s_nop 4")
            for j in range(4):
                a(f"v_cvt_pk_bf16_f32 v{AX + j}, v{D2 + 2 * j}, v{D2 + 2 * j + 1}")
        a(f"""
        {"" if nrm else f"ds_write_b128 v{aX}, {vr(AX, 4)}"}
        s_mov_b32 exec_lo, s{sACQ + 1}
        s_mov_b32 exec_hi, s{sACQ + 1}
        """)
        if va:
            addhalf(AY, 8)
        else:
            for j in range(4):
                a(f"v_cvt_pk_bf16_f32 v{AY + j}, v{D2 + 8 + 2 * j}, v{D2 + 8 + 2 * j + 1}")
        a(f"""
        {"" if nrm else f"ds_write_b128 v{aY}, {vr(AY, 4)}"}
        s_mov_b64 exec, {sr(sACQ, 2)}
        {"" if nrm else f"ds_xor_b32 v{la}, v{bit}"}
        {f"s_setprio {OPT['pbase']}" if OPT["prio"] else ""}
        s_mov_b64 exec, -1
        s_cbranch_scc1 P2_full{u}
        """)
        if inline:
            a(f"P2_fullr{u}:")
            cold.append(f"""
            P2_full{u}:
            s_mov_b64 {sr(M, 2)}, {sr(sF[buf], 2)}
            s_call_b64 {sr(sRET2, 2)}, P2_rmw{buf}
            s_branch P2_fullr{u}
            """)
        else:
            a(f"""
            s_setpc_b64 {sr(sRET2, 2)}
            P2_full{u}:
            {guard}
            s_mov_b64 {sr(M, 2)}, {sr(sF[buf], 2)}
            s_branch P2_rmw{buf}
            """)

    def slow_push(buf, slot):
        uid[0] += 1
        u = uid[0]
        d0, d1, d2 = RB[buf], RB[buf] + 1, RB[buf] + 2
        if slot == 0:
            s = f"""
            v_cmp_lt_u32 {sr(sM0, 2)}, v{RD[buf]}, v{RL[buf]}
            v_lshlrev_b32 v{t[11]}, 16, v{d1}
            """
            w, an = d0, t[11]
        else:
            s = f"""
            v_add_u32 v{t[11]}, 1, v{RD[buf]}
            v_cmp_lt_u32 {sr(sM0, 2)}, v{t[11]}, v{RL[buf]}
            """
            w, an = d2, d1
        return s + f"""
        P2_push{u}:
        s_bcnt1_i32_b64 s{sN0}, {sr(sM0, 2)}
        s_add_u32 s{sT0}, s{sCNT}, s{sN0}
        s_cmp_le_u32 s{sT0}, {RING_CAP}
        s_cbranch_scc1 P2_pok{u}
        s_call_b64 {sr(sRET, 2)}, P2_pop{buf}
        s_branch P2_push{u}
        P2_pok{u}:
        v_mbcnt_lo_u32_b32 v{t[4]}, s{sM0}, 0
        v_mbcnt_hi_u32_b32 v{t[4]}, s{sM0 + 1}, v{t[4]}
        v_lshl_add_u32 v{t[4]}, v{t[4]}, 3, s{sTOP}
        s_mov_b64 exec, {sr(sM0, 2)}
        ds_write2_b32 v{t[4]}, v{w}, v{an} offset1:1
        s_mov_b64 exec, -1
        s_mov_b32 s{sCNT}, s{sT0}
        s_lshl3_add_u32 s{sTOP}, s{sN0}, s{sTOP}
        """

    def step(buf, peeled=False):
        uid[0] += 1
        u = uid[0]
        prev = buf ^ 1
        d0, d1, d2 = RB[buf], RB[buf] + 1, RB[buf] + 2
        a.c(f"---- step, buffer {buf}: compact the loaded records onto the stack")
        if OPT["rot"] and (OPT["rot"] == 1 or buf == 0):
            a(f"""
            s_add_u32 s82, s82, 1
            s_bitcmp1_b32 s82, 1
            s_cbranch_scc1 P2_prh{u}
            s_setprio 0
            s_bitcmp1_b32 s82, 0
            s_cbranch_scc0 P2_pre{u}
            s_setprio 1
            s_branch P2_pre{u}
            P2_prh{u}:
            s_setprio 2
            s_bitcmp1_b32 s82, 0
            s_cbranch_scc0 P2_pre{u}
            s_setprio 3
            P2_pre{u}:
            """)
        a(f"""
        {st(0)}
        s_waitcnt vmcnt({(5 if FUS else 1) if peeled and buf == 0 else 3})
        {st(1)}
        v_cmp_lt_u32 {sr(sM0, 2)}, v{RD[buf]}, v{RL[buf]}
        v_add_u32 v{t[1]}, 1, v{RD[buf]}
        v_lshlrev_b32 v{t[2]}, 16, v{d1}
        v_cmp_lt_u32 {sr(sM1, 2)}, v{t[1]}, v{RL[buf]}
        s_bcnt1_i32_b64 s{sN0}, {sr(sM0, 2)}
        v_mbcnt_lo_u32_b32 v{t[0]}, s{sM0}, 0
        s_bcnt1_i32_b64 s{sN}, {sr(sM1, 2)}
        v_mbcnt_hi_u32_b32 v{t[0]}, s{sM0 + 1}, v{t[0]}
        v_mbcnt_lo_u32_b32 v{t[1]}, s{sM1}, 0
        s_add_u32 s{sT0}, s{sCNT}, s{sN0}
        v_mbcnt_hi_u32_b32 v{t[1]}, s{sM1 + 1}, v{t[1]}
        s_add_u32 s{sT0}, s{sT0}, s{sN}
        s_lshl3_add_u32 s{sT1}, s{sN0}, s{sTOP}
        v_lshl_add_u32 v{t[0]}, v{t[0]}, 3, s{sTOP}
        s_cmp_lg_u64 {sr(sLONG[buf], 2)}, 0
        s_cselect_b32 s{sT2}, 0, {RING_CAP + 1}
        v_lshl_add_u32 v{t[1]}, v{t[1]}, 3, s{sT1}
        s_cmp_ge_u32 s{sT0}, s{sT2}
        s_cbranch_scc1 {f"P2_alt{buf}" if peeled else f"P2_slow{u}"}
        s_mov_b64 exec, {sr(sM0, 2)}
        ds_write2_b32 v{t[0]}, v{d0}, v{t[2]} offset1:1
        s_mov_b64 exec, {sr(sM1, 2)}
        ds_write2_b32 v{t[1]}, v{d2}, v{d1} offset1:1
        s_mov_b64 exec, -1
        s_mov_b32 s{sCNT}, s{sT0}
        P2_slowr{u}:
        """)
        if peeled:
            a(pop_issue(buf))
            a("s_waitcnt lgkmcnt(0)")
            prep(buf, gathers(buf), False)
            a(coschain(buf))
            a("s_nop 0")
            a(cospack(buf))
            return
        cold.append(f"P2_slow{u}:\n" + slow_push(buf, 0) + slow_push(buf, 1) + f"""
        P2_long{u}:
        v_add_u32 v{RD[buf]}, {2 * LPS}, v{RD[buf]}
        v_add_u32 v{RA[buf]}, {12 * LPS}, v{RA[buf]}
        v_cmp_lt_i32 vcc, v{RD[buf]}, v{RL[buf]}
        s_cbranch_vccz P2_slowr{u}
        s_nop 0
        v_cndmask_b32 v{t[4]}, v{vOOB}, v{RA[buf]}, vcc
        buffer_load_dwordx3 {vr(RB[buf], 3)}, v{t[4]}, {sr(S_REC, 4)}, s{sCOB[buf]} offen{ntr}
        s_waitcnt vmcnt(0)
        """ + slow_push(buf, 0) + slow_push(buf, 1) + f"s_branch P2_long{u}\n")
        if OPT["x_nopop"]:
            a(f"s_mov_b32 s{sCNT}, 0\ns_mov_b32 s{sTOP}, s{sRB}")
            prep(buf)
            for k in range(2):
                a(f"buffer_load_dword v{vDUM}, v{vOOB}, {sr(S_REC, 4)}, 0 offen")
            a("s_waitcnt lgkmcnt(0)")
            return
        a(pop_issue(buf))
        a(rbf_read(prev))
        prep(buf, lg(2) + "\n" + st(2) + "\n" + gathers(buf))
        a(st(3))
        a(lg(1))
        if OPT["x_nocore"]:
            a("s_waitcnt vmcnt(4) lgkmcnt(0)")
            a(f"s_mov_b64 {sr(sM[buf], 2)}, 0")
        else:
            a(gate(prev))
            a("s_waitcnt vmcnt(4)")
            a(st(4))
            a(fixup(prev))
            core_a(prev, coschain(buf), cospack(buf))
            core_b(prev, True)
        if OPT["lag"]:
            a(f"""
            s_waitcnt lgkmcnt(3)
            v_readfirstlane_b32 s{sT1}, v{t[10]}
            {spf() if OPT["spf"] else ""}
            s_mov_b64 exec, 1
            s_add_u32 s83, s83, 16
            ds_inc_u32 v{vH16}, v{vOOB} offset:784
            s_mov_b64 exec, -1
            s_cmp_lt_i32 s{sT1}, s83
            s_cbranch_scc1 P2_poll{u}
            """)
            if OPT["dynp"]:
                a(f"""
                s_sub_u32 s{sT1}, s{sT1}, {OPT["dynp"]}
                s_cmp_lt_i32 s{sT1}, s83
                s_cbranch_scc1 P2_pollr{u}
                s_setprio 2
                """)
            a(f"P2_pollr{u}:")
            cold.append(f"""
            P2_poll{u}:
            s_setprio 0
            s_mov_b64 exec, 1
            ds_read_b32 v{t[10]}, v{vH16} offset:784
            s_mov_b64 exec, -1
            s_waitcnt lgkmcnt(0)
            v_readfirstlane_b32 s{sT1}, v{t[10]}
            s_cmp_ge_i32 s{sT1}, s83
            s_setprio {OPT['pbase']}
            s_cbranch_scc1 P2_pollr{u}
            {f"s_sleep {OPT['sleep']}" if OPT['sleep'] else ''}
            {f"s_sub_u32 s{sG}, s{sG}, 1" if OPT["guard"] else ""}
            {"s_cbranch_scc1 P2_done" if OPT["guard"] else ""}
            s_branch P2_poll{u}
            """)
        if STAMP:
            a("s_waitcnt lgkmcnt(0)")
            a("s_sub_u32 s96, s60, s74\ns_add_u32 s84, s84, s96")
            a("s_memtime s[74:75]\ns_waitcnt lgkmcnt(0)")
            for i in range(7):
                a(f"s_sub_u32 s96, s{62 + 2 * i}, s{60 + 2 * i}\ns_add_u32 s{85 + i}, s{85 + i}, s96")

    if OPT["peel"]:
        a.c("the first halves of the first steps run before the rest of the setup, so that their gathers are under way")
        stamp = "s_memrealtime s[60:61]\ns_memtime s[72:73]\ns_waitcnt lgkmcnt(0)" if OPT["stamp2"] else ""
        done1 = f"""
        s_mov_b64 exec, 1
        s_add_u32 s83, s83, 16
        ds_inc_u32 v{vH16}, v{vOOB} offset:784
        s_mov_b64 exec, -1
        """ if OPT["lag"] else ""
        step(0, True)
        if OPT["peel"] == 2:
            step(1, True)
            a(f"""
            s_call_b64 {sr(sRET2, 2)}, P2_tail
            {stamp}
            {rbf_read(0)}
            {done1}
            s_mov_b32 s{sK}, 2
            s_waitcnt lgkmcnt(0)
            """)
            a(gate(0))
            a("s_waitcnt vmcnt(4)")
            a(fixup(0))
            core_a(0, "s_nop 6")
            a(f"""
            s_call_b64 {sr(sRET2, 2)}, P2_rmw0
            {done1}
            s_branch P2_loop
            P2_alt1:
            """)
        a(f"""
        s_call_b64 {sr(sRET2, 2)}, P2_tail
        {stamp}
        {done1}
        s_branch P2_step1
        P2_tail:
        """)
        prologue_tail()
        a(f"""
        s_setpc_b64 {sr(sRET2, 2)}
        P2_alt0:
        s_call_b64 {sr(sRET2, 2)}, P2_tail
        """)
    if OPT["stamp2"]:
        a("s_memrealtime s[60:61]\ns_memtime s[72:73]\ns_waitcnt lgkmcnt(0)")
    if STAMP:
        for i in range(8):
            a(f"s_mov_b32 s{84 + i}, 0")
        a("s_memtime s[74:75]")
    if OPT["x_fake"]:
        a(f"s_lshl_b32 s98, s2, 10\nv_add_u32 v{D1}, s98, v0\nv_mul_lo_u32 v{D1}, v{D1}, v{D1}\nv_add_u32 v{D1}, v{D1}, v0")
    a("P2_loop:")
    if OPT["phase_bar"]:
        a(f"""
        s_add_u32 s{sT0}, s{sK}, s3
        s_and_b32 s{sT0}, s{sT0}, 7
        s_cbranch_scc1 P2_nobar
        s_barrier
        P2_nobar:
        """)
    a(f"""
    {f"s_cmp_eq_u32 s{sK}, {NSTEP - OPT['endn']}" if OPT["endn"] else ""}
    {f"s_cselect_b32 s{sT0}, {OPT['endd']}, 0" if OPT["endn"] else ""}
    {f"s_add_u32 s83, s83, s{sT0}" if OPT["endn"] else ""}
    {"" if OPT["xpop"] else f"s_cmp_lt_u32 s{sK}, {NSTEP - 2}"}
    {"" if OPT["xpop"] else f"s_cselect_b32 s{sCAP}, {OPT['lim']}, 0"}
    """)
    step(0)
    a("P2_step1:")
    step(1)
    a(f"""
    s_add_u32 s{sK}, s{sK}, 2
    s_cmp_lt_u32 s{sK}, {NSTEP}
    s_cbranch_scc1 P2_loop
    """)
    if STAMP:
        a(f"""
        s_lshl_b32 s96, s2, 4
        s_add_u32 s96, s96, s{sW}
        s_lshl_b32 s96, s96, 6
        s_add_u32 s6, s6, {16 << 20}
        s_addc_u32 s7, s7, 0
        """)
        srd(a, S_DST, 6, 1 << 20)
        a(f"v_mov_b32 v{t[0]}, 0")
        for i in range(8):
            a(f"v_mov_b32 v{t[1]}, s{84 + i}")
            a(f"buffer_store_dword v{t[1]}, v{t[0]}, {sr(S_DST, 4)}, s96 offen offset:{4 * i}")
        a("s_waitcnt vmcnt(0)")
    if OPT["stamp2"]:
        a("s_memrealtime s[62:63]\ns_memtime s[74:75]\ns_waitcnt lgkmcnt(0)\ns_sub_u32 s72, s74, s72")
    a.c("fetch the epilogue's operands and the bucket's own m rows; finish the last pop; empty the stack")
    MP = [TT, RB[0], RB[1], RL[0], GP[1], GQ[1], WA[0]]
    XP = OPT["xpop"]
    assert not XP or OPT["valu_add"]
    A1, A2, A3, DX, DY, SX, SY = (A3b, vBP, A3a, D1, D2, A2a, A2b) if XP else (GP[0], GQ[0], A3a, D1, D2, A2a, A2b)
    vMO = vE
    if XP:
        a(f"s_mov_b32 s{sCAP}, 0")
        a(pop_issue(0))
    a(f"""
    v_and_b32 v{t[0]}, 31, v{vLANE}
    v_lshrrev_b32 v{t[1]}, 5, v{vLANE}
    v_lshlrev_b32 v{t[1]}, 4, v{t[1]}
    s_lshl_b32 s{sT0}, s{sW}, 10
    v_lshl_add_u32 v{vMO}, v{t[0]}, 5, v{t[1]}
    v_add_u32 v{vMO}, s{sT0}, v{vMO}
    s_mul_i32 s{sCO}, s{sB}, {EB * 32}
    s_mov_b32 s{sJ}, s{sCO}
    v_lshlrev_b32 v{t[0]}, 4, v{vLANE}
    s_mov_b32 s{sT0}, {TAB_BYTES + 1024 * 6}
    s_mov_b32 s{sT1}, {TAB_BYTES + 1024 * 7}
    {rbf_read(1)}
    """)
    if XP:
        a("s_waitcnt lgkmcnt(1)")
        a(gathers(0))
    a(f"""
    buffer_load_dwordx4 {vr(A1, 4)}, v{t[0]}, {sr(S_TAB, 4)}, s{sT0} offen{tsc}
    buffer_load_dwordx4 {vr(A2, 4)}, v{t[0]}, {sr(S_TAB, 4)}, s{sT1} offen{tsc}
    {f"s_mov_b32 s{sT0}, {TAB_BYTES + 1024 * 4}" if FUS else ""}
    {f"buffer_load_dwordx4 {vr(A3, 4)}, v{t[0]}, {sr(S_TAB, 4)}, s{sT0} offen{tsc}" if FUS else ""}
    buffer_load_dwordx4 {vr(MP[0], 4)}, v{vMO}, {sr(S_M, 4)}, s{sJ} offen
    s_add_u32 s{sJ}, s{sJ}, 16384
    s_waitcnt lgkmcnt(0)
    """)
    a(gate(1))
    a(f"s_waitcnt vmcnt({(6 if FUS else 5) if XP else 3})")
    for i in range(1, 4):
        a(f"buffer_load_dwordx4 {vr(MP[i], 4)}, v{vMO}, {sr(S_M, 4)}, s{sJ} offen")
        a(f"s_add_u32 s{sJ}, s{sJ}, 16384")
    a(fixup(1))
    if XP:
        core_a(1, coschain(0), cospack(0))
    else:
        core_a(1, "s_nop 6")
    a(f"s_call_b64 {sr(sRET2, 2)}, P2_rmw1")
    if XP:
        a(f"""
        s_cmp_eq_u64 {sr(sM[0], 2)}, 0
        s_cbranch_scc1 P2_drain
        {rbf_read(0)}
        s_waitcnt lgkmcnt(0)
        """)
        a(gate(0))
        a(f"s_waitcnt vmcnt({7 if FUS else 6})")
        a(fixup(0))
        core_a(0, "s_nop 6")
        a(f"s_call_b64 {sr(sRET2, 2)}, P2_rmw0")
    a(f"""
    P2_drain:
    s_cmp_eq_u32 s{sCNT}, 0
    s_cbranch_scc1 P2_epi
    s_call_b64 {sr(sRET, 2)}, P2_pop1
    s_branch P2_drain
    P2_epi:
    """)
    for i in range(4, 7):
        a(f"buffer_load_dwordx4 {vr(MP[i], 4)}, v{vMO}, {sr(S_M, 4)}, s{sJ} offen")
        a(f"s_add_u32 s{sJ}, s{sJ}, 16384")
    if OPT["cntreq"]:
        a(f"""
        s_load_dwordx2 s[60:61], s[0:1], 96
        s_waitcnt lgkmcnt(0)
        v_mov_b32 v{t[0]}, s95
        v_mov_b32 v{t[1]}, 0
        s_mov_b64 exec, 1
        global_atomic_add v{t[1]}, v{t[0]}, s[60:61]
        s_mov_b64 exec, -1
        s_waitcnt vmcnt(0)
        """)
    a(f"""
    s_lshl_b32 s{sT0}, s{sW}, 9
    s_mov_b32 s{sT2}, {L_ACC0}
    v_and_b32 v{t[1]}, 31, v{vLANE}
    v_lshlrev_b32 v{t[1]}, 4, v{t[1]}
    v_add_u32 v{t[1]}, s{sT0}, v{t[1]}
    v_lshrrev_b32 v{t[0]}, 5, v{vLANE}
    v_mul_u32_u24 v{t[0]}, {EB * 16}, v{t[0]}
    v_add3_u32 v{t[0]}, v{t[0]}, v{t[1]}, s{sT2}
    s_waitcnt vmcnt(3) lgkmcnt(0)
    """)
    if OPT["stamp2"]:
        a("s_memrealtime s[64:65]\ns_waitcnt lgkmcnt(0)")
    a("s_barrier")
    if OPT["stamp2"]:
        a("s_memrealtime s[66:67]\ns_waitcnt lgkmcnt(0)")
    a.c("epilogue: out = m + (agg @ w_up) * (rbf @ w_rbf), 32 edges per pass, two passes at a time")
    OBX, OBY = TF, (O[0] if XP else A3b)

    EB_ = [(AX, SX, AY, SY), (A1a, A1b, GP[0], GQ[0]) if XP else (A1a, A1b, vBP, t[5])]
    assert t[5] % 2 == 0

    def epi_reads(groups, st_):
        for (i, va), (Ac, Sb) in zip(groups, (EB_[st_][0:2], EB_[st_][2:4])):
            a(f"ds_read_b128 {vr(Ac, 4)}, v{t[0]} offset:{8192 * i}")
            a(f"ds_read_b128 {vr(Sb, 4)}, v{t[1]} offset:{L_RBF + 8192 * i}")

    def epi(groups, st_, nxt):
        regs = [(DX,) + EB_[st_][0:2] + (OBX,), (DY,) + EB_[st_][2:4] + (OBY,)]
        n = len(groups)
        for k, ((i, va), (Dd, Ac, Sb, Ob)) in enumerate(zip(groups, regs)):
            a(f"s_waitcnt lgkmcnt({2 * (n - 1 - k)})")
            a(f"v_mfma_f32_32x32x16_bf16 {vr(Dd, 16)}, {vr(A1, 4)}, {vr(Ac, 4)}, 0")
            a(f"v_mfma_f32_32x32x16_f16 {vr(Dd, 16)}, {vr(A2, 4)}, {vr(Sb, 4)}, {vr(Dd, 16)}")
        if nxt:
            epi_reads(nxt, st_ ^ 1)
        done = 2 * len(nxt) if nxt else 0
        a(f"s_nop {11 - done - (3 if n == 2 else 0)}")
        for k, ((i, va), (Dd, Ac, Sb, Ob)) in enumerate(zip(groups, regs)):
            for j in range(0, 8, 2):
                a(f"v_pk_mul_f32 {vr(Dd + j, 2)}, {vr(Dd + j, 2)}, {vr(Dd + 8 + j, 2)}")
            if OPT["x_err"]:
                import struct
                cst = struct.unpack("<I", struct.pack("<f", 1 + OPT["x_err"] / 1000))[0]
                for j in range(8):
                    a(f"v_mul_f32 v{Dd + j}, {cst:#x}, v{Dd + j}")
        a({4: "s_waitcnt vmcnt(5)", 6: "s_waitcnt vmcnt(6)"}.get(groups[0][0], "s_nop 0"))
        if n == 1:
            a("s_nop 0")
        for (i, va), (Dd, Ac, Sb, Ob) in zip(groups, regs):
            a(f"v_mfma_f32_32x32x16_bf16 {vr(Dd, 16)}, {vr(A3, 4)}, {vr(MP[i], 4)}, {vr(Dd, 16)}")
        a(f"s_nop {11 - (n - 1)}")
        for (i, va), (Dd, Ac, Sb, Ob) in zip(groups, regs):
            for j in range(4):
                a(f"v_cvt_pk_bf16_f32 v{Ob + j}, v{Dd + 2 * j}, v{Dd + 2 * j + 1}")
            a(f"buffer_store_dwordx4 {vr(Ob, 4)}, v{va}, {sr(S_OUT, 4)}, s{sCO} offen{nto}")
            a(f"s_add_u32 s{sCO}, s{sCO}, 16384")

    gl = [[(i, vMO), (i + 1, vMO)] for i in (0, 2, 4)] + [[(6, t[2])]]
    epi_reads(gl[0], 0)
    for q in range(3):
        epi(gl[q], q & 1, gl[q + 1])
    if OPT["stamp2"]:
        a(f"""
        s_memrealtime s[84:85]
        s_waitcnt vmcnt(0) lgkmcnt(0)
        s_memrealtime s[86:87]
        s_lshl_b32 s98, s2, 4
        s_add_u32 s98, s98, s{sW}
        s_lshl_b32 s98, s98, 6
        s_add_u32 s6, s6, {16 << 20}
        s_addc_u32 s7, s7, 0
        s_waitcnt lgkmcnt(0)
        """)
        srd(a, S_TMP, 6, 1 << 20)
        a(f"v_mov_b32 v{t[5]}, 0")
        for i, r in enumerate([94, 60, 62, 64, 66, 84, 86, 72, 78, 3]):
            a(f"v_mov_b32 v{t[6]}, s{r}")
            a(f"buffer_store_dword v{t[6]}, v{t[5]}, {sr(S_TMP, 4)}, s98 offen offset:{4 * i}")
    a(f"""
    s_cmp_lt_u32 s{sW}, 2
    s_cbranch_scc0 P2_done
    v_cmp_gt_u32 vcc, {(EB - 6 * 512) * 32}, v{vMO}
    v_mov_b32 v{t[2]}, 0x7fffff00
    s_nop 0
    v_cndmask_b32 v{t[2]}, v{t[2]}, v{vMO}, vcc
    """)
    epi(gl[3], 1, None)
    a("P2_done:")
    a("s_endpgm")
    for buf in range(2):
        a.c(f"subroutine: pop up to 64 records into buffer {buf} and finish them")
        a(f"P2_pop{buf}:")
        if OPT["guard"]:
            a(f"s_sub_u32 s{sG}, s{sG}, 1\ns_cbranch_scc1 P2_done")
        a(pop_issue(buf))
        a("s_waitcnt lgkmcnt(0)")
        a(gathers(buf))
        a(coschain(buf))
        a(f"""
        {rbf_read(buf)}
        {cospack(buf)}
        s_mov_b64 {sr(sRET2, 2)}, {sr(sRET, 2)}
        s_waitcnt lgkmcnt(0)
        """)
        a(gate(buf))
        a("s_waitcnt vmcnt(0)")
        a(fixup(buf))
        core_a(buf, "s_nop 6")
        a(f"P2_rmw{buf}:")
        core_b(buf, False)
    for c in cold:
        a(c)
    kernel_desc(a, name, 128, 102)


DESCRIPTION = """
One launch, 256 workgroups (one per CU), two parts.
Part 1: workgroup c takes triplets [50000c, 50000c+50000), keeps them in registers, counting-sorts them by
  key = slot(idx_in) * 256 + idx_out / 3125 (histogram, scan and ranks with integer LDS atomics) and writes them to
  d_ws as 6-byte records (idx_in << 12 | idx_out % 3125, angle), in two halves through LDS, plus a table of
  (start, length) per key. slot() is the slice of m the row lies in, rotated per group of 32 buckets. One wave also
  lays the weights out as matrix operands.
Hand-off: every handed-off byte is stored write-through (sc1); once all waves of a workgroup have seen their stores
  complete, one of them adds to a counter in d_debug (word 0: table, operands, first half; word 32: second half).
  A workgroup loads such bytes (sc1 loads) only after one of its waves has polled the matching counter to 256 and
  passed that on through a barrier or an LDS word; no line of d_ws is read earlier in the launch (the halves meet
  at a 128-byte boundary). The polls are bounded.
Part 2: a workgroup owns 3125 output edges: their sums (bf16) and radial basis (f16) live in LDS. Each wave walks
  its 16 chunks slot by slot, so all gathers of a moment fall in one L2-sized slice of m: load four segments,
  compact them on a small LDS stack, gather 64 rows, (m @ w_down) and (sbf @ w_sbf) on the matrix cores, multiply,
  and add to the sums under one lock bit per edge; a record whose lock was taken stays in its lane for the next
  round. A progress word in LDS keeps the waves of a workgroup in the same slice. Segments of any length and any
  number of records per edge take slower paths to the same result.
  Epilogue: out = m + (sum @ w_up) * (rbf @ w_rbf).
"""


def build():
    assert OPT['lagoff'] + OPT['endd'] <= 16 * OPT['lag']
    assert OPT['stag'] != 3 or max((OPT['rotl'] >> (4 * q)) & 15 for q in range(4)) < OPT['ns']
    a = A()
    ref = open(f"cdna_kernels/{NAME}.s.ref").read().split("\n")
    for line in ref:
        if line.startswith("; Override"):
            break
        a.raw(line)
    if OPT["fused"]:
        a.raw(f"; @launch grid=({NB},1,1) block=(1024,1,1) lds={P2_LDS}")
    elif not OPT["only2"]:
        a.raw(f"; @launch kernel=part_kernel grid=({NB},1,1) block=(1024,1,1) lds={B_LDS if OPT['big'] else P1_LDS}")
    if not OPT["x_fuse"] and not OPT["fused"]:
        a.raw(f"; @launch kernel={NAME}_kernel grid=({NB},1,1) block=(1024,1,1) lds={P2_LDS}")
    for line in DESCRIPTION.strip("\n").split("\n"):
        a.raw(("; " + line).rstrip())
    a.raw('.amdgcn_target "amdgcn-amd-amdhsa--gfx950"')
    (gen_part_big if OPT["big"] else gen_part)(a, f"{NAME}_kernel" if OPT["fused"] else "part_kernel")
    gen_main(a, f"{NAME}_kernel")
    return a.text()


def main():
    out = f"cdna_kernels/{NAME}.s"
    for arg in sys.argv[1:]:
        if "=" in arg:
            k, v = arg.split("=")
            assert k in OPT, k
            OPT[k] = type(OPT[k])(int(v))
        else:
            out = arg
    open(out, "w").write(build())


if __name__ == "__main__":
    main()
```

```python
import sys

NAME = "gather_scatter__molecular_angular_gemnet__graph"
E = 800000
T = 12800000
NB = 256
EB = 3125
CH = 25000
NCH = 512
NS = 8
CHB = 150016
REC_BYTES = NCH * CHB
TAB_OFF = REC_BYTES
TAB_BYTES = NB * NCH * 32
OPS_OFF = TAB_OFF + TAB_BYTES

OPT = dict(
    nt_in=True,
    nt_rec=False,
    phase_bar=False,
    nt_out=False,
    x_nogather=False, x_normw=False, x_norec=False,
    late=0, ldsc=3, pfq=0, ilv=0, edist=0, x_noinv=3, pollpos=1, fused=1, sigat=7, x_fuse=0, pfpar=0, pfd=0, j0s=0x3210, pfl=782, x_err=0, xpop=1, endn=0, endd=0, fuse=0, wb=0, bfair=0, adepth=1, h0=25984, depth=1, aearly=0, spl=4, big=1, only2=0, angl=1, bang=1, lim=24, x_lin=0, pbase=1, dynp=11, rexec=0, gexec=0, aslot=1, rotl=0x3a07, pfx=4, tabc=1, sleep=0, pfp1=0, peel=1, pfg=1, stm=1, stmb=1, outm=2, pfw=2, pfpos=1, pffirst=0, spf=0, pfs=1, pfn=0, mimic=0, pf0=0, valu_add=1, early=1, stpos=2, stag=3, pfm=2, slide=0, ns=13, bdelay=0, stamp1=0, stamp2=0, lag=1, lagoff=0, cntreq=0, rot=0, rotshift=2, stamp=False, pkf32=True, x_fake=0, x_nocore=0, x_recx4=0, x_nomfma=0, x_nopop=0, prio=True, lock_pos=2,
    guard=False,
)


class A:
    def __init__(self):
        self.l = []

    def __call__(self, s=""):
        for line in s.split("\n"):
            line = line.strip()
            if line:
                if line.endswith(":"):
                    self.l.append(line)
                else:
                    self.l.append("    " + line)

    def c(self, s):
        self.l.append("    ; " + s)

    def raw(self, s):
        self.l.append(s)

    def text(self):
        return "\n".join(self.l) + "\n"


def vr(a, n):
    return f"v[{a}:{a + n - 1}]"


def sr(a, n):
    return f"s[{a}:{a + n - 1}]"


def srd(a, dst, base, nbytes, stride=0):
    a(f"s_mov_b32 s{dst}, s{base}")
    a(f"s_and_b32 s{dst + 1}, s{base + 1}, 0xffff")
    if stride:
        a(f"s_or_b32 s{dst + 1}, s{dst + 1}, {stride << 16:#x}")
    a(f"s_mov_b32 s{dst + 2}, {nbytes}")
    a(f"s_mov_b32 s{dst + 3}, 0x20000")


def kernel_head(a, name):
    a.raw(".text")
    a.raw(f".globl {name}")
    a.raw(".p2align 8")
    a.raw(f".type {name},@function")
    a.raw(f"{name}:")


def kernel_desc(a, name, vgpr, sgpr):
    a.raw('.section .rodata,"a"')
    a.raw(".p2align 6")
    a.raw(f".amdhsa_kernel {name}")
    a.raw(f"  .amdhsa_next_free_vgpr {vgpr}")
    a.raw(f"  .amdhsa_next_free_sgpr {sgpr}")
    a.raw(f"  .amdhsa_accum_offset {(vgpr + 3) // 4 * 4}")
    a.raw("  .amdhsa_group_segment_fixed_size 0")
    a.raw("  .amdhsa_kernarg_size 112")
    a.raw("  .amdhsa_user_sgpr_count 2")
    a.raw("  .amdhsa_user_sgpr_kernarg_segment_ptr 1")
    a.raw("  .amdhsa_system_sgpr_workgroup_id_x 1")
    a.raw(".end_amdhsa_kernel")


P1_CNT = 16
P1_PART = P1_CNT + 8192
P1_REC = P1_PART + 64
P1_LDS = 158720


def builder(a, W, lane, f2, e0, e1, x0, x2, OPR, sW, sT0, S_TAB, first_loads, nyoung):
    a.c("one wave also prepares the matrix operands of part 2")
    W1, W2, W3, W4 = W
    a(f"""
    s_lshl_b32 s{sT0}, s2, 4
    s_add_u32 s68, s{sT0}, s{sW}
    s_cmp_eq_u32 s68, 15
    s_cbranch_scc0 P1_now
    s_load_dwordx4 s[72:75], s[0:1], 56
    s_load_dwordx4 s[76:79], s[0:1], 72
    v_and_b32 v{lane}, 63, v0
    v_and_b32 v{e0}, 3, v0
    v_bfe_u32 v{e1}, v0, 2, 1
    v_lshl_add_u32 v{e0}, v{e1}, 3, v{e0}
    v_bfe_u32 v{e1}, v0, 3, 1
    v_lshl_add_u32 v{e0}, v{e1}, 2, v{e0}
    v_lshlrev_b32 v{f2}, 1, v{e0}
    v_lshrrev_b32 v{e1}, 5, v{lane}
    v_lshl_add_u32 v{e1}, v{e1}, 8, v{f2}
    s_waitcnt lgkmcnt(0)
    """)
    for (Wx, n, p, nbytes, va) in ((W1, 16, 76, 512, f2), (W2, 16, 74, 512, f2), (W3, 8, 78, 512, e1), (W4, 8, 72, 256, f2)):
        srd(a, 80, p, nbytes)
        for j in range(n):
            a(f"buffer_load_ushort v{Wx + j}, v{va}, {sr(80, 4)}, 0 offen offset:{32 * j}")
    a("P1_now:")
    first_loads()
    a(f"""
    s_cmp_eq_u32 s68, 15
    s_cbranch_scc0 P1_noop
    s_waitcnt vmcnt({nyoung})
    """)

    def scale_exp(Wf, n):
        a(f"v_max3_f32 v{e0}, abs(v{Wf}), abs(v{Wf + 1}), abs(v{Wf + 2})")
        for j in range(3, n - 1, 2):
            a(f"v_max3_f32 v{e0}, v{e0}, abs(v{Wf + j}), abs(v{Wf + j + 1})")
        a(f"""
        v_max_f32 v{e0}, v{e0}, abs(v{Wf + n - 1})
        v_bfe_u32 v{e0}, v{e0}, 23, 8
        v_cmp_eq_u32 vcc, 0, v{e0}
        v_sub_u32 v{e0}, 141, v{e0}
        s_nop 0
        v_cndmask_b32 v{e0}, v{e0}, 0, vcc
        v_sub_u32 v{e1}, 0, v{e0}
        """)

    def put(k, cvt, srcs, mask):
        for j in range(4):
            a(f"{cvt} v{OPR + j}, v{srcs[2 * j]}, v{srcs[2 * j + 1]}")
        for j in range(4):
            a(f"v_cndmask_b32 v{OPR + j}, 0, v{OPR + j}, {sr(mask, 2)}")
        a(f"""
        s_mov_b32 s{sT0}, {TAB_BYTES + 1024 * k}
        buffer_store_dwordx4 {vr(OPR, 4)}, v{x2}, {sr(S_TAB, 4)}, s{sT0} offen{" sc1" if OPT["fused"] else ""}
        s_nop 1
        """)

    for Wx, n in zip(W, (16, 16, 8, 8)):
        for j in range(n):
            a(f"v_lshlrev_b32 v{Wx + j}, 16, v{Wx + j}")
    mDIAG, mLO, mHI, mRB = 72, 74, 76, 78
    a(f"""
    v_lshrrev_b32 v{x0}, 1, v{lane}
    v_xor_b32 v{x0}, v{x0}, v{lane}
    v_and_b32 v{x0}, 16, v{x0}
    v_cmp_eq_u32 {sr(mDIAG, 2)}, 0, v{x0}
    v_and_b32 v{x0}, 16, v{lane}
    v_cmp_eq_u32 {sr(mLO, 2)}, 0, v{x0}
    v_cmp_eq_u32 {sr(mHI, 2)}, 16, v{x0}
    v_and_b32 v{x0}, 48, v{lane}
    v_cmp_eq_u32 {sr(mRB, 2)}, 16, v{x0}
    v_lshlrev_b32 v{x2}, 4, v{lane}
    """)
    scale_exp(W2, 16)
    for j in range(16):
        a(f"v_ldexp_f32 v{W2 + j}, v{W2 + j}, v{e0}")
        a(f"v_ldexp_f32 v{W1 + j}, v{W1 + j}, v{e1}")
    scale_exp(W4, 8)
    for j in range(8):
        a(f"v_ldexp_f32 v{W4 + j}, v{W4 + j}, v{e0}")
        a(f"v_ldexp_f32 v{W3 + j}, v{W3 + j}, v{e1}")
    bf, hf = "v_cvt_pk_bf16_f32", "v_cvt_pk_f16_f32"
    a.c("block diagonal: rows < 16 act on lanes < 32, rows >= 16 on lanes >= 32")
    put(0, bf, [W1 + j for j in range(8)], mDIAG)
    put(1, bf, [W1 + 8 + j for j in range(8)], mDIAG)
    put(2, hf, [W2 + 2 * j for j in range(8)], mDIAG)
    put(3, hf, [W2 + 2 * j + 1 for j in range(8)], mDIAG)
    put(6, bf, [W3 + j for j in range(8)], mLO)
    put(7, hf, [W4 + j for j in range(8)], mRB)
    a.c("identity: row i has a one at k = f(i & 15)")
    a(f"""
    v_lshrrev_b32 v{e0}, 1, v{f2}
    v_lshrrev_b32 v{e1}, 5, v{lane}
    v_lshlrev_b32 v{e1}, 3, v{e1}
    v_sub_u32 v{e0}, v{e0}, v{e1}
    """)
    for j in range(8):
        a(f"""
        v_cmp_eq_u32 vcc, {j}, v{e0}
        s_nop 1
        v_cndmask_b32 v{W1 + j}, 0, 1.0, vcc
        """)
    put(4, bf, [W1 + j for j in range(8)], mLO)
    if not OPT["fused"]:
        put(5, bf, [W1 + j for j in range(8)], mHI)
    a("P1_noop:")


CH2 = 50000
B_CNT = 16
B_PART = B_CNT + 16384
B_LDS = 163840


def gen_part_big(a, name):
    nt = " nt" if OPT["nt_in"] else ""
    STM = [["", " sc1", " nt", " sc0 sc1", " sc1 nt"][OPT[k]] for k in ("stm", "stmb")]
    NS_ = OPT["ns"]
    NT = CH2 - 12 * 4096
    H0 = OPT['h0']
    assert H0 % 8 == 0 and H0 * 6 <= B_LDS and (CH2 - H0) * 6 > 8 * 16384
    HALF = H0 * 6
    NQ = [H0 * 6 // 16, (CH2 - H0) * 6 // 16]
    FU = OPT["fuse"]
    CB_ = B_LDS - NS_ * 1024 if FU else 0
    CO_ = 0 if FU else B_CNT
    PB_ = CB_ - 80 if FU else B_PART
    assert not FU or HALF <= PB_
    sCB = 30
    S_IN, S_OUT, S_ANG, S_REC, S_TAB = 8, 12, 16, 20, 24
    sMAG, sNEG, sHI, sOFF = 28, 29, 31, 32
    sOI, sOA = 33, 34
    sW, sT0, sT1 = 35, 36, 37
    sEX = 40
    sLUT, sST = 46, 47
    stn = [0]

    def st1():
        if OPT["stamp1"]:
            a(f"s_memrealtime s[{48 + 2 * stn[0]}:{49 + 2 * stn[0]}]\ns_waitcnt lgkmcnt(0)")
            stn[0] += 1
    vT16, vONE, vX = 1, 2, 3
    tmp = list(range(4, 12))
    G, G6, O6, I6, vT8 = 12, 28, 29, 30, 31
    O, I = 32, 80

    kernel_head(a, name)
    a(f"""
    s_cmp_ge_u32 s2, {NB}
    s_cbranch_scc1 {"P2_done" if OPT["fused"] else "P1_done"}
    s_load_dwordx4 s[4:7], s[0:1], 8
    s_load_dwordx2 s[42:43], s[0:1], 32
    s_load_dwordx2 s[44:45], s[0:1], 104
    s_load_dwordx2 s[70:71], s[0:1], 0
    s_load_dwordx2 s[84:85], s[0:1], 24
    s_load_dwordx2 s[86:87], s[0:1], 96
    v_lshlrev_b32 v{vT16}, 4, v0
    v_lshlrev_b32 v{vT8}, 3, v0
    v_mov_b32 v{vONE}, 1
    v_mov_b32 v{vX}, 0x7fffff00
    s_mov_b32 s{sMAG}, 1374390
    s_mov_b32 s{sNEG}, {-EB}
    s_mov_b32 s{sHI}, 0xffff0000
    s_mov_b32 s{sOFF}, {-HALF}
    v_lshrrev_b32 v8, 6, v0
    v_mov_b32 v4, 0
    v_mov_b32 v5, 0
    v_mov_b32 v6, 0
    v_mov_b32 v7, 0
    v_readfirstlane_b32 s{sW}, v8
    s_mov_b32 s{sCB}, {CB_}
    v_add_u32 v9, {CB_}, v{vT16}
    v_mov_b32 v10, {CB_ + CO_ - 4}
    ds_write_b128 v9, v[4:7] offset:{CO_}
    ds_write_b32 v10, v4
    s_waitcnt lgkmcnt(0)
    """)
    srd(a, S_IN, 4, T * 4)
    srd(a, S_OUT, 6, T * 4)
    srd(a, S_ANG, 42, T * 2)
    srd(a, S_REC, 44, REC_BYTES)
    a(f"s_add_u32 s44, s44, {TAB_OFF}")
    a("s_addc_u32 s45, s45, 0")
    srd(a, S_TAB, 44, TAB_BYTES + 8192)
    PAT = 0
    for j in range(4):
        for q in range(4):
            j0 = (OPT["j0s"] >> (4 * q)) & 15
            PAT |= (((OPT["rotl"] >> (4 * q)) & 15) + (j >= 4 - j0)) << (16 * j + 4 * q)
    a.c("slice rotation per group of 32 buckets (one nibble each); depends on the step that will read this chunk")
    a(f"""
    s_bfe_u32 s{sT0}, s2, {(2 << 16) | 2}
    s_lshl_b32 s{sT0}, s{sT0}, 4
    s_mov_b32 s72, {PAT & 0xffffffff:#x}
    s_mov_b32 s73, {PAT >> 32:#x}
    s_lshr_b64 s[72:73], s[72:73], s{sT0}
    s_and_b32 s{sLUT}, s72, 0xffff
    s_mul_i32 s{sLUT}, s{sLUT}, 0x10001
    s_mul_i32 s{sOI}, s2, {CH2 * 4}
    s_mul_i32 s{sOA}, s2, {CH2 * 2}
    """)
    vmq = []

    def vm_wait(tag):
        last = max(i for i, x in enumerate(vmq) if x == tag)
        a(f"s_waitcnt vmcnt({len(vmq) - 1 - last})")

    def tail_addr(sh):
        a(f"""
        v_cmp_gt_u32 vcc, {NT}, v0
        v_lshlrev_b32 v{tmp[7]}, {sh}, v0
        s_nop 0
        v_cndmask_b32 v{tmp[7]}, v{vX}, v{tmp[7]}, vcc
        """)

    def issue_idx(r):
        vmq.extend([("i", r)] * 2)
        if r < 12:
            a(f"""
            buffer_load_dwordx4 {vr(O + 4 * r, 4)}, v{vT16}, {sr(S_OUT, 4)}, s{sOI} offen{nt}
            buffer_load_dwordx4 {vr(I + 4 * r, 4)}, v{vT16}, {sr(S_IN, 4)}, s{sOI} offen{nt}
            s_add_u32 s{sOI}, s{sOI}, 16384
            """)
        else:
            tail_addr(2)
            a(f"""
            buffer_load_dword v{O6}, v{tmp[7]}, {sr(S_OUT, 4)}, s{sOI} offen{nt}
            buffer_load_dword v{I6}, v{tmp[7]}, {sr(S_IN, 4)}, s{sOI} offen{nt}
            """)

    def issue_ang(r):
        vmq.append(("a", r))
        if r < 12:
            a(f"""
            buffer_load_dwordx2 {vr(G + 2 * (r & 7), 2)}, v{vT8}, {sr(S_ANG, 4)}, s{sOA} offen{nt}
            s_add_u32 s{sOA}, s{sOA}, 8192
            """)
        else:
            tail_addr(1)
            a(f"""
            s_mul_i32 s{sT0}, s2, {CH2 * 2}
            s_add_u32 s{sT0}, s{sT0}, {12 * 8192}
            buffer_load_ushort v{G6}, v{tmp[7]}, {sr(S_ANG, 4)}, s{sT0} offen{nt}
            """)

    def recs(r):
        if r < 12:
            return [(O + 4 * r + k, I + 4 * r + k, G + 2 * (r & 7) + (k >> 1), k & 1) for k in range(4)]
        return [(O6, I6, G6, 0)]

    def tail(r, lbl, body):
        if r < 12:
            body()
            return
        a(f"""
        v_cmp_gt_u32 vcc, {NT}, v0
        s_and_saveexec_b64 {sr(sEX, 2)}, vcc
        s_cbranch_execz {lbl}
        """)
        body()
        a(f"{lbl}:\ns_mov_b64 exec, {sr(sEX, 2)}")

    def pack(rs):
        for h in range(0, len(rs), 2):
            pr = rs[h:h + 2]
            for k, (o, i, g, hi) in enumerate(pr):
                a(f"v_mul_hi_u32_u24 v{tmp[k]}, s{sMAG}, v{o}")
                a(f"v_mul_u32_u24 v{tmp[2 + k]}, {(NS_ << 24) // E}, v{i}")
            for k, (o, i, g, hi) in enumerate(pr):
                tb, tc, u = tmp[k], tmp[2 + k], tmp[4 + k]
                a(f"""
                v_mad_i32_i24 v{o}, v{tb}, s{sNEG}, v{o}
                v_lshrrev_b32 v{u}, 5, v{tb}
                v_lshrrev_b32 v{tc}, 24, v{tc}
                v_lshlrev_b32 v{u}, 2, v{u}
                v_lshl_add_u32 v{tb}, v{tb}, 2, s{sCB}
                v_bfe_u32 v{u}, s{sLUT}, v{u}, 4
                v_lshl_or_b32 v{i}, v{i}, 12, v{o}
                v_sub_u32 v{tc}, v{tc}, v{u}
                v_add_u32 v{u}, {NS_}, v{tc}
                v_min_u32 v{tc}, v{tc}, v{u}
                v_lshl_add_u32 v{o}, v{tc}, 10, v{tb}
                ds_add_u32 v{o}, v{vONE} offset:{CO_}
                """)

    def wave_scan(v):
        for sh in (1, 2, 4, 8):
            a(f"s_nop 1\nv_add_u32_dpp v{v}, v{v}, v{v} row_shr:{sh} row_mask:0xf bank_mask:0xf bound_ctrl:0")

    ILV = OPT["fused"] and OPT["ilv"]
    bucket2 = f"""
    s_and_b32 s{sT0}, s2, 7
    s_lshl_b32 s{sT0}, s{sT0}, 5
    s_lshr_b32 s{sT1}, s2, 3
    s_add_u32 s{sT0}, s{sT0}, s{sT1}
    s_mul_i32 s{sT0}, s{sT0}, {EB * 2}
    """
    if ILV:
        a.c("touch the dist values this workgroup needs later")
        srd(a, 80, 84, E * 2)
        a(bucket2)
        a(f"""
        v_cmp_gt_u32 vcc, 50, v0
        v_lshlrev_b32 v{G6}, 7, v0
        s_and_b32 s{sT0}, s{sT0}, 0xffffff80
        v_cndmask_b32 v{G6}, v{vX}, v{G6}, vcc
        buffer_load_dword v{G6}, v{G6}, s[80:83], s{sT0} offen
        """)
    st1()
    D_ = OPT["depth"]
    assert D_ <= 4
    builder(a, (I + 16, I + 32, O + 16, O + 24), 4, 5, 6, 7, G, G + 1, 8, sW, sT0, S_TAB,
            lambda: [issue_idx(r) for r in range(D_)], 2 * D_)
    a("s_barrier")
    na = 0
    for r in range(13):
        vm_wait(("i", r))
        tail(r, "P1_pk", lambda: pack(recs(r)))
        if r + D_ < 13:
            issue_idx(r + D_)
        elif r < 12 and na < OPT["aearly"]:
            issue_ang(na)
            na += 1
    st1()
    c0, s_, inc, p, q = tmp[0], tmp[4], tmp[5], tmp[6], tmp[7]
    a.c("exclusive scan of the counters")
    a("s_waitcnt lgkmcnt(0)\ns_barrier")
    a(f"v_add_u32 v{G6}, {CB_}, v{vT16}")
    a(f"ds_read_b128 {vr(c0, 4)}, v{G6} offset:{CO_}")
    while na < 4:
        issue_ang(na)
        na += 1
    a(f"""
    s_waitcnt lgkmcnt(0)
    v_add_u32 v{s_}, v{c0}, v{c0 + 1}
    v_add3_u32 v{s_}, v{s_}, v{c0 + 2}, v{c0 + 3}
    v_mov_b32 v{inc}, v{s_}
    """)
    wave_scan(inc)
    a(f"""
    s_nop 1
    v_add_u32_dpp v{inc}, v{inc}, v{inc} row_bcast:15 row_mask:0xa bank_mask:0xf
    s_nop 1
    v_add_u32_dpp v{inc}, v{inc}, v{inc} row_bcast:31 row_mask:0xc bank_mask:0xf
    s_lshl_b32 s{sT1}, s{sW}, 2
    s_add_u32 s{sT1}, s{sT1}, {PB_}
    v_mov_b32 v{q}, s{sT1}
    v_readlane_b32 s{sT0}, v{inc}, 63
    s_nop 1
    v_mov_b32 v{p}, s{sT0}
    ds_write_b32 v{q}, v{p}
    v_and_b32 v{q}, 15, v0
    v_lshlrev_b32 v{p}, 2, v{q}
    v_add_u32 v{p}, {PB_}, v{p}
    s_waitcnt lgkmcnt(0)
    s_barrier
    v_cmp_gt_u32 vcc, s{sW}, v{q}
    ds_read_b32 v{p}, v{p}
    """)
    while na < 8:
        issue_ang(na)
        na += 1
    a(f"""
    s_waitcnt lgkmcnt(0)
    v_cndmask_b32 v{p}, 0, v{p}, vcc
    """)
    wave_scan(p)
    a(f"""
    v_sub_u32 v{inc}, v{inc}, v{s_}
    v_readlane_b32 s{sT0}, v{p}, 15
    s_nop 1
    v_add_u32 v{s_}, s{sT0}, v{inc}
    v_add_u32 v{s_ + 1}, v{s_}, v{c0}
    v_add_u32 v{s_ + 2}, v{s_ + 1}, v{c0 + 1}
    v_add_u32 v{s_ + 3}, v{s_ + 2}, v{c0 + 2}
    ds_write_b128 v{G6}, {vr(s_, 4)} offset:{CO_}
    s_waitcnt lgkmcnt(0)
    """)
    issue_ang(12)
    a("s_barrier")
    st1()
    a.c("position of every record; the angle joins it in the upper half of the register")

    def touch_m(va):
        a.c("touch this workgroup's share of m, one load per 128-byte line, while the memory side is idle")
        n = OPT["pfl"]
        srd(a, 80, 70, E * 32)
        if PQ:
            n = -(-(E // 4) // PQ)
            k = -(-n // 1024)
            per = -(-n // k)
            a(f"""
            ds_read_b32 v{tmp[0]}, v{tmp[1]} offset:{B_PART + 64}
            v_cmp_gt_u32 vcc, {per}, v0
            v_lshlrev_b32 v{va}, 7, v0
            s_waitcnt lgkmcnt(0)
            v_readfirstlane_b32 s{sT0}, v{tmp[0]}
            v_cndmask_b32 v{va}, v{vX}, v{va}, vcc
            s_cmp_lt_u32 s{sT0}, {PQ}
            s_cbranch_scc0 P1_nopf
            s_mul_i32 s{sT1}, s{sT0}, {per * k * 128}
            """)
            for q in range(k):
                a(f"buffer_load_dword v{vT8}, v{va}, {sr(80, 4)}, s{sT1} offen\ns_add_u32 s{sT1}, s{sT1}, {per * 128}")
            a("P1_nopf:")
            return
        if OPT["pfpar"]:
            a(f"""
            s_bitcmp1_b32 s2, 0
            s_cbranch_scc{1 if OPT["pfpar"] == 1 else 0} P1_nopf
            v_cmp_gt_u32 vcc, {n}, v0
            v_lshlrev_b32 v{va}, 7, v0
            s_and_b32 s{sT0}, s2, 0xfe
            s_mul_i32 s{sT0}, s{sT0}, {n * 128}
            v_cndmask_b32 v{va}, v{vX}, v{va}, vcc
            s_add_u32 s{sT1}, s{sT0}, {n * 128}
            buffer_load_dword v{vT8}, v{va}, {sr(80, 4)}, s{sT0} offen
            buffer_load_dword v{vT8}, v{va}, {sr(80, 4)}, s{sT1} offen
            P1_nopf:
            """)
            return
        a(f"""
        v_cmp_gt_u32 vcc, {n}, v0
        v_lshlrev_b32 v{va}, 7, v0
        s_mul_i32 s{sT0}, s2, {n * 128}
        v_cndmask_b32 v{va}, v{vX}, v{va}, vcc
        buffer_load_dword v{vT8}, v{va}, {sr(80, 4)}, s{sT0} offen
        """)
        vmq.append("pf")
        if OPT["pfd"]:
            srd(a, 80, 84, E * 2)
            a(f"""
            v_subrev_u32 v{va}, 960, v0
            v_cmp_gt_u32 vcc, 49, v{va}
            v_lshlrev_b32 v{va}, 7, v{va}
            s_mul_i32 s{sT0}, s2, {49 * 128}
            v_cndmask_b32 v{va}, v{vX}, v{va}, vcc
            buffer_load_dword v{vT8}, v{va}, {sr(80, 4)}, s{sT0} offen
            """)
            vmq.append("pf")

    def rank(rs):
        for (o, i, g, hi) in rs:
            a(f"ds_add_rtn_u32 v{o}, v{o}, v{vONE} offset:{CO_}")

    def merge(rs):
        for (o, i, g, hi) in rs:
            a(f"v_and_or_b32 v{o}, v{g}, s{sHI}, v{o}" if hi else f"v_lshl_or_b32 v{o}, v{g}, 16, v{o}")
    def put_half(rs, h):
        sets = [(tmp[4], tmp[5], tmp[6]), (tmp[7], tmp[2], tmp[3])] if not (FU and h == 0) else [(tmp[0], tmp[1], tmp[2]), (tmp[3], tmp[4], tmp[5])]
        for k, (o, i, g, hi) in enumerate(rs):
            x, y, z = sets[k & 1]
            if h == 0 and FU:
                a(f"""
                v_mul_u32_u24_sdwa v{x}, v{o}, v{tmp[6]} dst_sel:DWORD dst_unused:UNUSED_PAD src0_sel:WORD_0 src1_sel:DWORD
                v_cmp_gt_u32 vcc, s{sT1}, v{x}
                v_and_b32 v{y}, 2, v{x}
                s_nop 0
                v_cndmask_b32 v{x}, v{vX}, v{x}, vcc
                """)
            elif h == 0:
                a(f"v_mul_u32_u24_sdwa v{x}, v{o}, v{vONE} dst_sel:DWORD dst_unused:UNUSED_PAD src0_sel:WORD_0 src1_sel:DWORD")
                a(f"v_and_b32 v{y}, 2, v{x}")
            else:
                a(f"v_and_b32 v{x}, 0xffff, v{o}\nv_mad_u32_u24 v{x}, v{x}, 6, s{sOFF}")
                a(f"v_and_b32 v{y}, 2, v{x}")
            a(f"""
            v_add_u32 v{z}, v{x}, v{y}
            v_mad_i32_i24 v{x}, v{y}, -2, v{x}
            ds_write_b32 v{z}, v{i}
            ds_write_b16_d16_hi v{x}, v{o} offset:4
            """)
    if FU:
        a(f"v_mov_b32 v{tmp[6]}, 6\ns_mov_b32 s{sT1}, {HALF}")
    PQ = OPT["pfq"]
    if PQ:
        a.c("order of arrival: the early workgroups share the touching of m")
        a(f"""
        s_cmp_eq_u32 s{sW}, 0
        s_cbranch_scc0 P1_noq
        v_mov_b32 v{tmp[1]}, 0
        s_mov_b64 exec, 1
        global_atomic_add v{tmp[0]}, v{tmp[1]}, v{vONE}, s[86:87] offset:64 sc0 sc1
        s_mov_b64 exec, -1
        P1_noq:
        """)
    rank(recs(0))
    rank(recs(1))
    for r in range(12):
        if r < 10:
            rank(recs(r + 2))
        if FU:
            a(f"s_waitcnt lgkmcnt({8 if r == 0 else (12 if r < 10 else 8)})")
        else:
            a(f"s_waitcnt lgkmcnt({8 if r < 10 else (4 if r == 10 else 0)})")
        vm_wait(("a", r))
        merge(recs(r))
        if FU:
            put_half(recs(r), 0)
        if r + 8 < 12:
            issue_ang(r + 8)
        if OPT["pfm"] == 1 and r == 3:
            touch_m(tmp[7])
    vm_wait(("a", 12))
    tail(12, "P1_rk", lambda: (rank(recs(12)), a("s_waitcnt lgkmcnt(0)"), merge(recs(12)), put_half(recs(12), 0) if FU else None))
    if PQ:
        a(f"""
        v_mov_b32 v{tmp[1]}, 0
        s_cmp_eq_u32 s{sW}, 0
        s_cbranch_scc0 P1_noq2
        s_waitcnt vmcnt(0)
        s_mov_b64 exec, 1
        ds_write_b32 v{tmp[1]}, v{tmp[0]} offset:{B_PART + 64}
        s_mov_b64 exec, -1
        P1_noq2:
        """)
    a("s_waitcnt lgkmcnt(0)\ns_barrier")
    if OPT["pfm"] == 2:
        touch_m(G6)
    a.c("table of (start, length): the counters now hold the segment ends")
    ra = G
    a(f"""
    s_mov_b32 s{sT1}, {CB_ + CO_ - 4}
    v_and_b32 v{ra}, 3, v0
    v_lshlrev_b32 v{ra}, 12, v{ra}
    v_and_b32 v{ra + 1}, 0x3fc, v0
    v_add3_u32 v{ra}, v{ra}, v{ra + 1}, s{sT1}
    """)
    for qq in range(4):
        if qq:
            a(f"v_add_u32 v{ra}, 1024, v{ra}")
        a(f"ds_read2_b32 {vr(tmp[2 * qq], 2)}, v{ra} offset0:0 offset1:1")
    a("s_waitcnt lgkmcnt(0)" + ("" if FU else "\ns_barrier"))
    if FU:
        a.c("slots past the last slice read out of range: give them length zero")
        a(f"v_and_b32 v{ra + 1}, 3, v0")
        for qq in range(4):
            a(f"v_cmp_gt_u32 vcc, {(NS_ - qq + 3) // 4}, v{ra + 1}\ns_nop 1\nv_cndmask_b32 v{tmp[2 * qq + 1]}, v{tmp[2 * qq]}, v{tmp[2 * qq + 1]}, vcc")
    for qq in range(4):
        s0, e0 = tmp[2 * qq], tmp[2 * qq + 1]
        a(f"v_sub_u32 v{e0}, v{e0}, v{s0}\nv_lshl_or_b32 v{G + qq}, v{e0}, 16, v{s0}")
    a(f"""
    s_lshl_b32 s{sT0}, s2, 14
    s_mul_i32 s{sST}, s2, {2 * CHB}
    buffer_store_dwordx4 {vr(G, 4)}, v{vT16}, {sr(S_TAB, 4)}, s{sT0} offen{STM[0]}
    """)
    st1()
    pend = []

    def scatter(h):
        put = lambda rs: put_half(rs, h)
        for r in range(13):
            tail(r, f"P1_sc{h}", lambda: put(recs(r)))
            if pend:
                pend.pop(0)()
        while pend:
            pend.pop(0)()
        a("s_waitcnt lgkmcnt(0)\ns_barrier")

    LAST = [(n - 1) // 1024 for n in NQ]

    def reads(dst, rs, ra, rb, h):
        for r in rs:
            base = [vT16, ra, rb][r >> 2]
            if r == LAST[h]:
                a(f"v_cmp_gt_u32 vcc, {NQ[h] - 1024 * r}, v0\ns_and_saveexec_b64 {sr(sEX, 2)}, vcc")
            a(f"ds_read_b128 {vr(dst[r], 4)}, v{base} offset:{(r & 3) * 16384}")
            if r == LAST[h]:
                a(f"s_mov_b64 exec, {sr(sEX, 2)}\nv_cndmask_b32 v{rb}, v{vX}, v{vT16}, vcc")

    def store(dst, r, rb, h):
        a(f"s_add_u32 s{sT0}, s{sST}, {h * HALF + r * 16384}")
        a(f"buffer_store_dwordx4 {vr(dst[r], 4)}, v{vT16 if r < LAST[h] else rb}, {sr(S_REC, 4)}, s{sT0} offen{STM[h]}")

    if not FU:
        a(f"v_mov_b32 v{vONE}, 6")
        if OPT["pfm"] == 3:
            pend.extend([lambda: None] * 4 + [lambda: touch_m(G6)])
        if OPT["pfm"] == 4:
            touch_m(G6)
        if OPT["pfm"] == 5:
            pend.extend([lambda: touch_m(G6)])
        scatter(0)
    st1()
    ra, rb = tmp[4], tmp[5]
    q5 = [G, G + 4, G + 8, G + 12, tmp[0]]
    dst = q5 + q5
    a(f"v_add_u32 v{ra}, 0x10000, v{vT16}\nv_add_u32 v{rb}, 0x20000, v{vT16}")
    assert LAST[0] == 9
    reads(dst, range(5), ra, rb, 0)
    for r in range(5):
        a(f"s_waitcnt lgkmcnt({4 - r})")
        store(dst, r, rb, 0)
    reads(dst, range(5, 10), ra, rb, 0)
    FUS = OPT["fused"]
    if FUS:
        assert OPT["stm"] == 1 and OPT["stmb"] == 1 and not FU and HALF % 128 == 0 and HALF % 12 == 0 and HALF <= B_LDS - 4
        a(f"v_mov_b32 v{tmp[6]}, {B_LDS - 4}\nv_mov_b32 v{tmp[7]}, 0\nds_write_b32 v{tmp[6]}, v{tmp[7]}")
    a("s_waitcnt lgkmcnt(0)")
    store(dst, 9, rb, 0)
    a("s_barrier")
    pend.extend((lambda r=r: store(dst, r, rb, 0)) for r in range(5, 9))
    if OPT["stpos"] == 0:
        while pend:
            pend.pop(0)()
    if FUS:
        def signal0():
            a.c("first half, table and operands are out: the last wave to see its stores done tells the other workgroups")
            a(f"""
            s_waitcnt vmcnt(0)
            v_mov_b32 v{vT8}, {B_LDS - 4}
            v_mov_b32 v{G6}, 1
            s_mov_b64 exec, 1
            ds_add_rtn_u32 v{vT8}, v{vT8}, v{G6}
            s_waitcnt lgkmcnt(0)
            v_readfirstlane_b32 s{sT0}, v{vT8}
            v_mov_b32 v{vT8}, 0
            s_cmp_eq_u32 s{sT0}, 15
            s_cbranch_scc0 P1_nosig
            global_atomic_add v{vT8}, v{G6}, s[86:87] sc1
            P1_nosig:
            s_mov_b64 exec, -1
            """)
        pend.extend([lambda: None] * (OPT["sigat"] - len(pend)) + [signal0])

        def early_dist():
            a.c("dist of the output edges this workgroup owns next")
            srd(a, 80, 84, E * 2)
            a(f"""
            s_and_b32 s{sT0}, s2, 7
            s_lshl_b32 s{sT0}, s{sT0}, 5
            s_lshr_b32 s{sT1}, s2, 3
            s_add_u32 s{sT0}, s{sT0}, s{sT1}
            s_mul_i32 s{sT0}, s{sT0}, {EB * 2}
            v_lshlrev_b32 v{G6}, 1, v0
            s_add_u32 s{sT1}, s{sT0}, 4096
            buffer_load_ushort v{G}, v{G6}, s[80:83], s{sT0} offen
            buffer_load_ushort v{G + 1}, v{G6}, s[80:83], s{sT0} offen offset:2048
            buffer_load_ushort v{G + 2}, v{G6}, s[80:83], s{sT1} offen
            buffer_load_ushort v{G + 3}, v{G6}, s[80:83], s{sT1} offen offset:2048
            """)
        if OPT["edist"]:
            pend.append(early_dist)
            OPT["_nst"] = LAST[1] + 1
    if OPT["wb"]:
        pend.extend([lambda: None] * (OPT["wb"] - 1))
        pend.append(lambda: a(f"s_cmp_eq_u32 s{sW}, 15\ns_cbranch_scc0 P1_nowb\nbuffer_wbl2 sc1\nP1_nowb:"))
    st1()
    scatter(1)
    st1()
    dst = [(40 if ILV else O) + 4 * r for r in range(10)]
    if ILV:
        srd(a, 80, 84, E * 2)
        a(bucket2)
        a(f"""
        v_lshlrev_b32 v{G6}, 1, v0
        s_add_u32 s{sT1}, s{sT0}, 4096
        buffer_load_ushort v121, v{G6}, s[80:83], s{sT0} offen
        buffer_load_ushort v122, v{G6}, s[80:83], s{sT0} offen offset:2048
        buffer_load_ushort v123, v{G6}, s[80:83], s{sT1} offen
        buffer_load_ushort v124, v{G6}, s[80:83], s{sT1} offen offset:2048
        """)
    a(f"v_add_u32 v{ra}, 0x10000, v{vT16}\nv_add_u32 v{rb}, 0x20000, v{vT16}")
    reads(dst, range(LAST[1] + 1), ra, rb, 1)
    if ILV:
        a(f"""
        v_mov_b32 v{ra}, v{vT16}
        s_mov_b32 s72, s{S_REC}
        s_mov_b32 s73, s{S_REC + 1}
        s_mov_b32 s74, s{S_REC + 2}
        s_mov_b32 s75, 0x20000
        s_waitcnt lgkmcnt(0)
        """)
        OPT["_stores"] = [f"""
        s_add_u32 s38, s{sST}, {HALF + r * 16384}
        buffer_store_dwordx4 {vr(dst[r], 4)}, v{ra if r < LAST[1] else rb}, s[72:75], s38 offen{STM[1]}
        """ for r in range(LAST[1] + 1)]
    else:
        for r in range(LAST[1]):
            a(f"s_waitcnt lgkmcnt({LAST[1] - 1 - r})")
            store(dst, r, rb, 1)
        a("s_waitcnt lgkmcnt(0)")
        store(dst, LAST[1], rb, 1)
    st1()
    if OPT["stamp1"]:
        st1()
        a("" if OPT["x_fuse"] or OPT["fused"] else "s_waitcnt vmcnt(0)")
        st1()
        a(f"""
        s_lshl_b32 s3, s2, 4
        s_add_u32 s3, s3, s{sW}
        s_lshl_b32 s3, s3, 6
        s_add_u32 s44, s44, {17 << 20}
        s_addc_u32 s45, s45, 0
        """)
        srd(a, S_TAB, 44, 1 << 20)
        a("v_mov_b32 v4, 0")
        for i in range(stn[0]):
            a(f"v_mov_b32 v5, s{48 + 2 * i}")
            a(f"buffer_store_dword v5, v4, {sr(S_TAB, 4)}, s3 offen offset:{4 * i}")
    if FUS:
        a("s_barrier")
        return
    if OPT["x_fuse"]:
        a("s_barrier\ns_branch P2_entry")
    a("P1_done:")
    a("s_endpgm")
    kernel_desc(a, name, 128, 102 if OPT["x_fuse"] else 88)


def gen_part(a, name):
    nt = " nt" if OPT["nt_in"] else ""
    STMS = {X: ["", " sc1", " nt", " sc0 sc1", " sc1 nt"][OPT[k]] for X, k in (("A", "stm"), ("B", "stmb"))}
    S_IN, S_OUT, S_ANG, S_REC, S_TAB = 8, 12, 16, 20, 24
    sMAG, sNEG, sMASK, sHI, sDIV6 = 28, 29, 30, 31, 32
    sOI, sOA = 33, 34
    sW, sT0, sT1, sCH = 35, 36, 37, 38
    sEX = 40
    stn = [0]

    def st1():
        if OPT["stamp1"]:
            a(f"s_memrealtime s[{48 + 2 * stn[0]}:{49 + 2 * stn[0]}]\ns_waitcnt lgkmcnt(0)")
            stn[0] += 1
    vT16, vT8, vSIX = 1, 2, 3
    tmp = list(range(4, 14))
    O = {"A": 14, "B": 62}
    I = {"A": 38, "B": 86}
    G = 110
    O6 = {"A": 122, "B": 124}
    I6 = {"A": 123, "B": 125}
    G6 = 126
    vX = 127

    kernel_head(a, name)
    a(f"""
    s_cmp_ge_u32 s2, {NB}
    s_cbranch_scc1 P1_done
    s_load_dwordx4 s[4:7], s[0:1], 8
    s_load_dwordx2 s[42:43], s[0:1], 32
    s_load_dwordx2 s[44:45], s[0:1], 104
    s_load_dwordx2 s[70:71], s[0:1], 0
    v_lshlrev_b32 v{vT16}, 4, v0
    v_lshlrev_b32 v{vT8}, 3, v0
    v_mov_b32 v{vSIX}, 6
    s_mov_b32 s{sMAG}, 1374390
    s_mov_b32 s{sNEG}, {-EB}
    s_mov_b32 s{sMASK}, 0x1c00
    s_mov_b32 s{sHI}, 0xffff0000
    s_mov_b32 s{sDIV6}, 0x2aaaaaab
    v_lshrrev_b32 v4, 6, v0
    v_mov_b32 v6, 0
    v_mov_b32 v7, 0
    v_readfirstlane_b32 s{sW}, v4
    ds_write_b64 v{vT8}, v[6:7] offset:{P1_CNT}
    v_mov_b32 v5, {P1_REC}
    ds_write_b32 v6, v5 offset:{P1_CNT - 4}
    s_waitcnt lgkmcnt(0)
    """)
    srd(a, S_IN, 4, T * 4)
    srd(a, S_OUT, 6, T * 4)
    srd(a, S_ANG, 42, T * 2)
    srd(a, S_REC, 44, REC_BYTES)
    a(f"s_add_u32 s44, s44, {TAB_OFF}")
    a("s_addc_u32 s45, s45, 0")
    srd(a, S_TAB, 44, TAB_BYTES + 8192)
    a(f"""
    s_lshr_b32 s39, s2, 1
    s_and_b32 s39, s39, 7
    s_lshr_b32 s46, s39, {1 if OPT["stag"] == 1 else 0}
    s_lshr_b32 s46, {0xf0 if OPT["stag"] == 1 else 0xff00}, s46
    s_and_b32 s46, s46, {0xf if OPT["stag"] == 1 else 0xff}
    s_mul_i32 s46, s46, {0x11 if OPT["stag"] == 1 else 1}
    """)
    if OPT["stag"] == 3:
        a(f"""
        s_lshr_b32 s46, s39, 1
        s_lshl_b32 s46, s46, 2
        s_sub_u32 s46, 16, s46
        s_lshr_b32 s47, 0x1111, s46
        s_lshl_b32 s46, s47, s46
        s_add_u32 s46, s46, {OPT["rotl"]:#x}
        s_mul_i32 s46, s46, 0x10001
        """)
    a(f"""
    s_lshl_b32 s39, s39, 21
    s_sub_u32 s39, {OPT['ns'] << 24}, s39
    s_mul_i32 s{sOI}, s2, {2 * CH * 4}
    s_mul_i32 s{sOA}, s2, {2 * CH * 2}
    """)

    vmq = []

    def vm_wait(tag):
        last = max(i for i, x in enumerate(vmq) if x == tag)
        a(f"s_waitcnt vmcnt({len(vmq) - 1 - last})")

    pend = []

    def slot(n=1):
        for _ in range(n):
            if pend:
                pend.pop(0)()

    def issue_idx(X, r):
        vmq.extend([(X, r)] * 2)
        if r < 6:
            a(f"""
            buffer_load_dwordx4 {vr(O[X] + 4 * r, 4)}, v{vT16}, {sr(S_OUT, 4)}, s{sOI} offen{nt}
            buffer_load_dwordx4 {vr(I[X] + 4 * r, 4)}, v{vT16}, {sr(S_IN, 4)}, s{sOI} offen{nt}
            s_add_u32 s{sOI}, s{sOI}, 16384
            """)
        else:
            a(f"""
            v_cmp_gt_u32 vcc, {CH - 6 * 4096}, v0
            v_lshlrev_b32 v{tmp[9]}, 2, v0
            s_nop 0
            v_cndmask_b32 v{tmp[9]}, v{vX}, v{tmp[9]}, vcc
            buffer_load_dword v{O6[X]}, v{tmp[9]}, {sr(S_OUT, 4)}, s{sOI} offen{nt}
            buffer_load_dword v{I6[X]}, v{tmp[9]}, {sr(S_IN, 4)}, s{sOI} offen{nt}
            s_add_u32 s{sOI}, s{sOI}, {(CH - 6 * 4096) * 4}
            """)

    def issue_ang(X, r):
        vmq.append((X, "a", r))
        if r < 6:
            a(f"""
            buffer_load_dwordx2 {vr(G + 2 * r, 2)}, v{vT8}, {sr(S_ANG, 4)}, s{sOA} offen{nt}
            s_add_u32 s{sOA}, s{sOA}, 8192
            """)
        else:
            a(f"""
            v_cmp_gt_u32 vcc, {CH - 6 * 4096}, v0
            v_lshlrev_b32 v{tmp[9]}, 1, v0
            s_nop 0
            v_cndmask_b32 v{tmp[9]}, v{vX}, v{tmp[9]}, vcc
            buffer_load_ushort v{G6}, v{tmp[9]}, {sr(S_ANG, 4)}, s{sOA} offen{nt}
            s_add_u32 s{sOA}, s{sOA}, {(CH - 6 * 4096) * 2}
            """)

    def pack(recs):
        n = len(recs)
        tb = tmp[0:n]
        tc = tmp[4:4 + n]
        for k, (o, i, g, hi) in enumerate(recs):
            a(f"v_mul_hi_u32_u24 v{tb[k]}, s{sMAG}, v{o}")
            a(f"v_mul_u32_u24 v{tc[k]}, {(OPT['ns'] << 24) // E}, v{i}")
        if OPT["slide"]:
            for k in range(n):
                a(f"v_add_u32 v{tc[k]}, s39, v{tc[k]}")
            if OPT["ns"] != 8:
                for k in range(n):
                    a(f"v_subrev_u32 v{tmp[8]}, {OPT['ns'] << 24}, v{tc[k]}")
                    a(f"v_min_u32 v{tc[k]}, v{tc[k]}, v{tmp[8]}")
        for k, (o, i, g, hi) in enumerate(recs):
            a(f"v_mad_i32_i24 v{o}, v{tb[k]}, s{sNEG}, v{o}")
            if OPT["stag"] == 3:
                u = tmp[8 + (k & 1)]
                a(f"v_lshrrev_b32 v{u}, 5, v{tb[k]}")
                a(f"v_lshrrev_b32 v{tc[k]}, 24, v{tc[k]}")
                a(f"v_lshlrev_b32 v{u}, 2, v{u}")
                a(f"v_lshlrev_b32 v{tb[k]}, 2, v{tb[k]}")
                a(f"v_bfe_u32 v{u}, s46, v{u}, 4")
                a(f"v_sub_u32 v{tc[k]}, v{tc[k]}, v{u}")
                a(f"v_add_u32 v{u}, {OPT['ns']}, v{tc[k]}")
                a(f"v_min_u32 v{tc[k]}, v{tc[k]}, v{u}")
                continue
            a(f"v_lshrrev_b32 v{tc[k]}, 14, v{tc[k]}")
            if OPT["stag"]:
                u = tmp[8 + (k & 1)]
                a(f"v_lshrrev_b32 v{u}, 5, v{tb[k]}")
                a(f"v_bfe_i32 v{u}, s46, v{u}, 1")
                a(f"v_lshl_add_u32 v{tc[k]}, v{u}, 10, v{tc[k]}")
                if OPT["ns"] != 8:
                    a(f"v_add_u32 v{u}, {OPT['ns'] << 10}, v{tc[k]}")
                    a(f"v_min_u32 v{tc[k]}, v{tc[k]}, v{u}")
            a(f"v_lshlrev_b32 v{tb[k]}, 2, v{tb[k]}")
        for k, (o, i, g, hi) in enumerate(recs):
            a(f"v_lshl_or_b32 v{i}, v{i}, 12, v{o}")
            if OPT["stag"] == 3:
                a(f"v_lshl_or_b32 v{o}, v{tc[k]}, 10, v{tb[k]}")
            else:
                a(f"v_and_or_b32 v{o}, v{tc[k]}, s{sMASK}, v{tb[k]}")
        for k, (o, i, g, hi) in enumerate(recs):
            a(f"ds_add_u32 v{o}, v{vSIX} offset:{P1_CNT}")

    def round_recs(X, r):
        if r < 6:
            return [(O[X] + 4 * r + k, I[X] + 4 * r + k, G + 2 * r + (k >> 1), k & 1) for k in range(4)]
        return [(O6[X], I6[X], G6, 0)]

    def tail_begin(lbl):
        a(f"""
        v_cmp_gt_u32 vcc, {CH - 6 * 4096}, v0
        s_and_saveexec_b64 {sr(sEX, 2)}, vcc
        s_cbranch_execz {lbl}
        """)

    def tail_end(lbl):
        a(f"{lbl}:")
        a(f"s_mov_b64 exec, {sr(sEX, 2)}")

    def wave_scan(v):
        a(f"""
        s_nop 1
        v_add_u32_dpp v{v}, v{v}, v{v} row_shr:1 row_mask:0xf bank_mask:0xf bound_ctrl:0
        s_nop 1
        v_add_u32_dpp v{v}, v{v}, v{v} row_shr:2 row_mask:0xf bank_mask:0xf bound_ctrl:0
        s_nop 1
        v_add_u32_dpp v{v}, v{v}, v{v} row_shr:4 row_mask:0xf bank_mask:0xf bound_ctrl:0
        s_nop 1
        v_add_u32_dpp v{v}, v{v}, v{v} row_shr:8 row_mask:0xf bank_mask:0xf bound_ctrl:0
        """)

    def sort_chunk(X):
        c01, s, inc, p, q = tmp[0], tmp[2], tmp[3], tmp[4], tmp[5]
        st1()
        a.c("exclusive scan of the 2048 counters (units: bytes, 6 per record)")
        a(f"""
        s_waitcnt lgkmcnt(0)
        s_barrier
        """)
        if X == 'A' or OPT['stpos'] < 3:
            slot()
        a(f"""
        ds_read_b64 {vr(c01, 2)}, v{vT8} offset:{P1_CNT}
        s_waitcnt lgkmcnt(0)
        v_add_u32 v{s}, v{c01}, v{c01 + 1}
        v_mov_b32 v{inc}, v{s}
        """)
        wave_scan(inc)
        a(f"""
        s_nop 1
        v_add_u32_dpp v{inc}, v{inc}, v{inc} row_bcast:15 row_mask:0xa bank_mask:0xf
        s_nop 1
        v_add_u32_dpp v{inc}, v{inc}, v{inc} row_bcast:31 row_mask:0xc bank_mask:0xf
        s_lshl_b32 s{sT1}, s{sW}, 2
        v_mov_b32 v{q}, s{sT1}
        v_readlane_b32 s{sT0}, v{inc}, 63
        s_nop 1
        v_mov_b32 v{p}, s{sT0}
        ds_write_b32 v{q}, v{p} offset:{P1_PART}
        v_and_b32 v{q}, 15, v0
        v_lshlrev_b32 v{p}, 2, v{q}
        s_waitcnt lgkmcnt(0)
        s_barrier
        """)
        if X == 'A' or OPT['stpos'] < 3:
            slot()
        a(f"""
        v_cmp_gt_u32 vcc, s{sW}, v{q}
        ds_read_b32 v{p}, v{p} offset:{P1_PART}
        s_waitcnt lgkmcnt(0)
        v_cndmask_b32 v{p}, 0, v{p}, vcc
        """)
        wave_scan(p)
        a(f"""
        v_sub_u32 v{inc}, v{inc}, v{s}
        v_readlane_b32 s{sT0}, v{p}, 15
        s_add_u32 s{sT0}, s{sT0}, {P1_REC}
        s_nop 0
        v_add_u32 v{q + 1}, s{sT0}, v{inc}
        v_add_u32 v{q + 2}, v{q + 1}, v{c01}
        ds_write_b64 v{vT8}, {vr(q + 1, 2)} offset:{P1_CNT}
        s_waitcnt lgkmcnt(0)
        s_barrier
        """)
        assert (q + 1) % 2 == 0
        st1()
        a.c("rank and scatter into the LDS image")
        def rank_issue(recs):
            for k, (o, i, g, hi) in enumerate(recs):
                a(f"ds_add_rtn_u32 v{o}, v{o}, v{vSIX} offset:{P1_CNT}")

        def put_words(recs):
            for k, (o, i, g, hi) in enumerate(recs):
                a(f"v_and_b32 v{tmp[k]}, 2, v{o}")
            for k, (o, i, g, hi) in enumerate(recs):
                a(f"v_add_u32 v{tmp[k]}, v{o}, v{tmp[k]}")
            for k, (o, i, g, hi) in enumerate(recs):
                a(f"ds_write_b32 v{tmp[k]}, v{i}")

        def put_angles(recs):
            for k, (o, i, g, hi) in enumerate(recs):
                a(f"v_and_b32 v{tmp[4 + k]}, 2, v{o}")
            for k, (o, i, g, hi) in enumerate(recs):
                a(f"v_mad_i32_i24 v{tmp[4 + k]}, v{tmp[4 + k]}, -2, v{o}")
            for k, (o, i, g, hi) in enumerate(recs):
                a(f"ds_write_b16{'_d16_hi' if hi else ''} v{tmp[4 + k]}, v{g} offset:4")

        nslot = lambda r: (2 if OPT["stpos"] < 4 or r >= 2 else 0) if X == "B" else OPT["aslot"]
        rank_issue(round_recs(X, 0))
        rank_issue(round_recs(X, 1))
        for r in range(6):
            if r < 4:
                rank_issue(round_recs(X, r + 2))
            a(f"s_waitcnt lgkmcnt({[8, 12, 12, 12, 8, 4][r]})")
            put_words(round_recs(X, r))
            slot(nslot(r))
        tail_begin(f"P1_sc6{X}")
        rank_issue(round_recs(X, 6))
        a("s_waitcnt lgkmcnt(0)")
        put_words(round_recs(X, 6))
        tail_end(f"P1_sc6{X}")
        slot(99)
        for r in range(7):
            vm_wait((X, "a", r))
            if r == 6:
                tail_begin(f"P1_an6{X}")
            put_angles(round_recs(X, r))
            if r == 6:
                tail_end(f"P1_an6{X}")
            if X == "A" and OPT["bang"] == 1 and r < 6:
                issue_ang("B", r)
        slot(99)
        a("""
        s_waitcnt lgkmcnt(0)
        s_barrier
        """)
        st1()
        a.c("read the image back (into the dead record registers) and the counters (now segment ends)")
        dst = [O[X] + 4 * r for r in range(6)] + [I[X] + 4 * r for r in range(4)]
        ra, rb = tmp[8], tmp[9]
        a(f"v_add_u32 v{ra}, 0x10000, v{vT16}")
        a(f"v_add_u32 v{rb}, 0x20000, v{vT16}")
        for r in range(9):
            base = [vT16, ra, rb][r >> 2]
            a(f"ds_read_b128 {vr(dst[r], 4)}, v{base} offset:{P1_REC + (r & 3) * 16384}")
        nlast = CH * 6 // 16 - 9 * 1024
        a(f"""
        v_cmp_gt_u32 vcc, {nlast}, v0
        s_and_saveexec_b64 {sr(sEX, 2)}, vcc
        ds_read_b128 {vr(dst[9], 4)}, v{rb} offset:{P1_REC + 16384}
        s_mov_b64 exec, {sr(sEX, 2)}
        v_cndmask_b32 v{rb}, v{vX}, v{vT16}, vcc
        v_and_b32 v{ra}, 1, v0
        v_lshlrev_b32 v{ra}, 12, v{ra}
        v_lshrrev_b32 v{tmp[0]}, 1, v0
        v_lshl_add_u32 v{ra}, v{tmp[0]}, 2, v{ra}
        s_cmp_lt_u32 s{sW}, 8
        s_cbranch_scc0 P1_notab{X}
        """)
        for qq in range(4):
            if qq:
                a(f"v_add_u32 v{ra}, 1024, v{ra}")
            a(f"ds_read2_b32 {vr(tmp[2 * qq], 2)}, v{ra} offset0:{P1_CNT // 4 - 1} offset1:{P1_CNT // 4}")
        a("s_waitcnt lgkmcnt(0)")
        for qq in range(4):
            s_, e_ = tmp[2 * qq], tmp[2 * qq + 1]
            a(f"""
            v_sub_u32 v{e_}, v{e_}, v{s_}
            v_subrev_u32 v{s_}, {P1_REC}, v{s_}
            v_mul_hi_u32 v{e_}, v{e_}, s{sDIV6}
            v_mul_hi_u32 v{s_}, v{s_}, s{sDIV6}
            v_lshl_or_b32 v{tmp[qq]}, v{e_}, 16, v{s_}
            """)
        a(f"""
        v_lshrrev_b32 v{tmp[4]}, 1, v0
        v_and_b32 v{tmp[5]}, 1, v0
        v_lshlrev_b32 v{tmp[4]}, {5 if OPT["tabc"] else 14}, v{tmp[4]}
        v_lshl_or_b32 v{tmp[4]}, v{tmp[5]}, 4, v{tmp[4]}
        s_branch P1_tab{X}
        P1_notab{X}:
        v_mov_b32 v{tmp[4]}, v{vX}
        P1_tab{X}:
        s_lshl_b32 s{sT0}, s{sCH}, {13 if OPT['tabc'] else 5}
        s_mul_i32 s{sT1}, s{sCH}, {CHB}
        buffer_store_dwordx4 {vr(tmp[0], 4)}, v{tmp[4]}, {sr(S_TAB, 4)}, s{sT0} offen
        s_waitcnt lgkmcnt(0)
        """)
        vmq.append("st")
        a(f"s_add_u32 s{sT0}, s{sT1}, {9 * 16384}")
        a(f"buffer_store_dwordx4 {vr(dst[9], 4)}, v{rb}, {sr(S_REC, 4)}, s{sT0} offen{STMS[X]}")
        vmq.append("st")
        a(f"s_mov_b32 s47, s{sT1}")

        def mk(r):
            def f():
                a(f"buffer_store_dwordx4 {vr(dst[r], 4)}, v{vT16}, {sr(S_REC, 4)}, s47 offen{STMS[X]}")
                a(f"s_add_u32 s47, s47, 16384")
                vmq.append("st")
            return f
        pend.extend(mk(r) for r in range(9))
        if X == "B" or OPT["stpos"] == 0:
            slot(99)
        st1()

    st1()
    a(f"v_mov_b32 v{vX}, 0x7fffff00")
    AD = OPT["adepth"]
    aq = [lambda r=r: issue_idx("A", r) for r in range(7)] + [lambda: [issue_ang("A", r) for r in range(0, 2)], lambda: [issue_ang("A", r) for r in range(2, 4)], lambda: [issue_ang("A", r) for r in range(4, 7)]]

    def first_loads():
        if AD:
            for _ in range(AD):
                aq.pop(0)()
            return
        for r in range(7):
            issue_idx("A", r)
            if not OPT["angl"]:
                issue_ang("A", r)
        if OPT["angl"]:
            for r in range(7):
                issue_ang("A", r)
    builder(a, (62, 78, 94, 102), 4, 5, 6, 7, 12, 124, 8, sW, sT0, S_TAB, first_loads, 2 * AD if AD else 21)
    a("s_barrier")
    order = [6, 0, 1, 2, 3, 4, 5]
    nb = 0
    for r in range(7):
        vm_wait(("A", r))
        if r == 6:
            tail_begin("P1_pk6A")
        pack(round_recs("A", r))
        if r == 6:
            tail_end("P1_pk6A")
        if AD and aq:
            aq.pop(0)()
            if r == 6:
                while aq:
                    aq.pop(0)()
        elif r < 6 and r >= 6 - OPT["early"]:
            issue_idx("B", nb)
            nb += 1
    for r in range(nb, 6):
        pend.append(lambda r=r: (vm_wait(("B", r - OPT["bfair"])) if OPT["bfair"] and r >= OPT["bfair"] else None, issue_idx("B", r)))
    a(f"s_lshl_b32 s{sCH}, s2, 1")
    sort_chunk("A")
    a(f"""
    s_barrier
    v_mov_b32 v{tmp[8]}, 0
    v_mov_b32 v{tmp[9]}, 0
    ds_write_b64 v{vT8}, {vr(tmp[8], 2)} offset:{P1_CNT}
    s_add_u32 s{sCH}, s{sCH}, 1
    s_waitcnt lgkmcnt(0)
    """)
    issue_idx("B", 6)
    if OPT["bang"] == 2:
        for r in range(6):
            issue_ang("B", r)
    issue_ang("B", 6)
    a("s_barrier")
    for r in range(7):
        vm_wait(("B", r))
        if r == 6:
            tail_begin("P1_pk6B")
        pack(round_recs("B", r))
        if r == 6:
            tail_end("P1_pk6B")
        if OPT["stpos"] == 1:
            slot()
    def prefetch_m():
        a.c("touch this workgroup's share of m (one load per 128-byte line) so that the second kernel finds it on chip")
        srd(a, 80, 70, E * 32)
        a(f"""
        v_cmp_gt_u32 vcc, {OPT["pfp1"] or 782}, v0
        v_lshlrev_b32 v{G + 1}, 7, v0
        s_mul_i32 s{sT0}, s2, {OPT["pfp1"] * 128 or 100000}
        s_and_b32 s{sT0}, s{sT0}, 0xffffff80
        v_cndmask_b32 v{G + 1}, v{vX}, v{G + 1}, vcc
        buffer_load_dword v{G}, v{G + 1}, {sr(80, 4)}, s{sT0} offen
        """)
    if OPT["pfm"] or OPT["pfp1"]:
        prefetch_m()
    sort_chunk("B")
    if OPT["stamp1"]:
        a("s_waitcnt vmcnt(0)")
        st1()
        a(f"""
        s_lshl_b32 s3, s2, 4
        s_add_u32 s3, s3, s{sW}
        s_lshl_b32 s3, s3, 6
        s_add_u32 s44, s44, {17 << 20}
        s_addc_u32 s45, s45, 0
        """)
        srd(a, S_TAB, 44, 1 << 20)
        a("v_mov_b32 v4, 0")
        for i in range(stn[0]):
            a(f"v_mov_b32 v5, s{48 + 2 * i}")
            a(f"buffer_store_dword v5, v4, {sr(S_TAB, 4)}, s3 offen offset:{4 * i}")
    a("P1_done:")
    a("s_endpgm")
    kernel_desc(a, name, 128, 88)


L_LOCK = 0
L_RBF = 800
L_ACC0 = L_RBF + EB * 16
L_ACC1 = L_ACC0 + EB * 16
L_RING = L_ACC1 + EB * 16
RING_CAP = 101
RING_STRIDE = RING_CAP * 8
P2_LDS = 163840
assert L_RING + 16 * RING_STRIDE <= P2_LDS


def gen_main(a, name):
    BIG = OPT["big"]
    CB = 2 * CHB if BIG else CHB
    NCW = 16 if BIG else 32
    SPL = OPT['spl']
    LPS = 64 // SPL
    LSH = LPS.bit_length() - 1
    SPP = NCW // SPL
    TSH = 14 if BIG else 13
    NSTEP = SPP * OPT["ns"]
    ntr = " nt" if OPT["nt_rec"] else (" sc1" if OPT["ldsc"] & 1 else "")
    tsc = " sc1" if OPT["ldsc"] & 2 else ""
    nto = ["", " sc1", " nt", " sc0 sc1", " sc1 nt"][OPT["outm"]]
    S_REC, S_M, S_TMP, S_OUT = 8, 12, 16, 20
    sB, sW = 24, 25
    sCNT, sTOP = 26, 27
    sM = [28, 30]
    sN, sT0, sT1, sT2 = 32, 33, 34, 35
    sACQ, sFAIL = 36, 38
    sM0, sM1 = 40, 42
    sRET, sRET2 = 44, 46
    sLONG = [48, 50]
    sEX = 52
    sCO = 54
    sCOB = [55, 56]
    sK, sJ, sPH = 57, 58, 59
    sP = 60
    sRB, sHI, sG, sKF0, sKF1, sN0 = 76, 77, 78, 79, 80, 81
    sCEN = 84
    sEVEN = 92
    sCAP = 97
    sF = [98, 100]
    assert not (OPT['pfn'] or OPT['spf'] or OPT['x_fake'] or OPT['gexec'])
    vLANE = 1
    A1a, A1b, A2a, A2b, A3a, A3b = 2, 6, 10, 14, 18, 22
    D1, D2 = 26, 42
    GP, GQ = [58, 66], [62, 70]
    TF = 74
    S0, S1 = 78, 82
    AX, AY = S0, S1
    WA = [86, 88]
    O = [90, 91]
    C = [92, 93]
    TT = 94
    RB = [98, 102]
    RD = [101, 105]
    RL = [106, 107]
    RA = [108, 109]
    vBP, vCB, vL2, vL8, vH16, vOOB, vE = range(110, 117)
    t = list(range(117, 128)) + [0]
    vDUM = GP[1]
    vPF = 0

    FUS = OPT["fused"]
    sDBG, sA1, sTO = 62, 82, 96
    ILV = FUS and OPT["ilv"]
    stq = list(OPT.get("_stores", [])) if ILV else []
    nst = [0]

    def put(n):
        for _ in range(n):
            if stq:
                a(stq.pop(0))
                nst[0] += 1
    if not FUS:
        kernel_head(a, name)
        a(f"s_cmp_ge_u32 s2, {NB}\ns_cbranch_scc1 P2_done")
    a(f"""
    P2_entry:

    {"s_memrealtime s[94:95]" if OPT["stamp2"] else ""}
    s_load_dwordx2 {sr(sP, 2)}, s[0:1], 0
    s_load_dwordx2 {sr(sP + 2, 2)}, s[0:1], 24
    s_load_dwordx4 {sr(sP + 4, 4)}, s[0:1], 40
    s_load_dwordx2 s[4:5], s[0:1], 88
    s_load_dwordx2 s[6:7], s[0:1], 104
    s_and_b32 s{sB}, s2, 7
    s_lshl_b32 s{sB}, s{sB}, 5
    s_lshr_b32 s{sT0}, s2, 3
    s_add_u32 s{sB}, s{sB}, s{sT0}
    v_lshrrev_b32 v{t[0]}, 6, v0
    v_and_b32 v{vLANE}, 63, v0
    s_mov_b32 s{sHI}, 0xffff0000
    v_readfirstlane_b32 s{sW}, v{t[0]}
    v_mov_b32 v{vOOB}, 0x7fffff00
    s_mov_b32 s{sEVEN}, 0x55555555
    s_mov_b32 s{sEVEN + 1}, 0x55555555
    """)
    put(1)
    a("s_waitcnt lgkmcnt(0)")
    pM, pDIST, pCEN, pFREQ, pWRBF, pWSBF, pWDN, pWUP = [sP + 2 * k for k in range(8)]
    a(f"""
    s_load_dwordx4 {sr(sCEN, 4)}, {sr(pCEN, 2)}, 0
    s_load_dword s{sT2}, {sr(pFREQ, 2)}, 0
    """)
    sPM, sPFO, sPFD = 100, 99, 82

    def spf():
        return f"""
        s_load_dword s{sPFD}, {sr(sPM, 2)}, s{sPFO}
        s_add_u32 s{sPFO}, s{sPFO}, {4096 * 128}
        s_min_u32 s{sPFO}, s{sPFO}, {E * 32 - 4}
        """
    srd(a, S_REC, 6, REC_BYTES)
    srd(a, S_M, pM, E * 32)
    srd(a, S_OUT, 4, E * 32)
    a(f"s_add_u32 s6, s6, {TAB_OFF}")
    a("s_addc_u32 s7, s7, 0")
    S_TAB = S_TMP
    S_DST = 68
    srd(a, S_TAB, 6, TAB_BYTES + 8192)
    def table_loads():
        a.c("this wave's table entries: a lane holds four consecutive slots of one chunk")
        a(f"""
        v_and_b32 v{t[0]}, {NCW - 1}, v{vLANE}
        v_lshrrev_b32 v{t[1]}, {4 if BIG else 5}, v{vLANE}
        v_lshlrev_b32 v{vL8}, 3, v{vLANE}
        v_lshlrev_b32 v{t[2]}, 4, v{t[1]}
        v_lshl_add_u32 v{t[2]}, v{t[0]}, {TSH}, v{t[2]}
        s_lshl_b32 s{sT0}, s{sB}, {TSH - 8}
        s_lshl_b32 s{sT1}, s{sW}, 18
        s_add_u32 s{sT0}, s{sT0}, s{sT1}
        v_lshrrev_b32 v{t[3]}, {LSH}, v{vLANE}
        v_lshlrev_b32 v{t[3]}, {TSH}, v{t[3]}
        s_add_u32 s{sT1}, s{sT0}, {SPL << TSH}
        buffer_load_dword v{vE}, v{t[3]}, {sr(S_TAB, 4)}, s{sT0} offen{tsc}
        buffer_load_dword v{C[0]}, v{t[3]}, {sr(S_TAB, 4)}, s{sT1} offen{tsc}
        buffer_load_dwordx4 {vr(TT, 4)}, v{t[2]}, {sr(S_TAB, 4)}, s{sT0} offen{tsc}
        """)

    def dist_loads():
        srd(a, S_DST, pDIST, E * 2)

        a.c("dist of the bucket's edges t, t+1024, t+2048, t+3072")
        a(f"""
        s_mul_i32 s{sT0}, s{sB}, {EB * 2}
        v_lshlrev_b32 v{t[2]}, 1, v0
        buffer_load_ushort v{t[4]}, v{t[2]}, {sr(S_DST, 4)}, s{sT0} offen
        buffer_load_ushort v{t[5]}, v{t[2]}, {sr(S_DST, 4)}, s{sT0} offen offset:2048
        s_add_u32 s{sT0}, s{sT0}, 4096
        buffer_load_ushort v{t[6]}, v{t[2]}, {sr(S_DST, 4)}, s{sT0} offen
        buffer_load_ushort v{t[7]}, v{t[2]}, {sr(S_DST, 4)}, s{sT0} offen offset:2048
        """)

    def ops_loads():
        a.c("matrix operands prepared in part 1")
        a(f"v_lshlrev_b32 v{t[3]}, 4, v{vLANE}")
        for k in range(4 if FUS else 6):
            a(f"s_mov_b32 s{sT0}, {TAB_BYTES + 1024 * k}")
            a(f"buffer_load_dwordx4 {vr(A1a + 4 * k, 4)}, v{t[3]}, {sr(S_TAB, 4)}, s{sT0} offen{tsc}")

    def poll(off, lbl):
        return f"""
        s_mov_b32 s{sTO}, {1 << 21}
        v_mov_b32 v{t[2]}, 0
        {lbl}:
        global_load_dword v{t[3]}, v{t[2]}, {sr(sDBG, 2)} offset:{off} sc1
        s_sub_u32 s{sTO}, s{sTO}, 1
        s_cbranch_scc1 {lbl}x
        s_waitcnt vmcnt(0)
        v_readfirstlane_b32 s{sT0}, v{t[3]}
        s_cmp_lt_u32 s{sT0}, {NB}
        s_cbranch_scc1 {lbl}
        {lbl}x:
        {'' if OPT['x_noinv'] & (2 if off else 1) else 'buffer_inv sc1'}
        """
    def poll0():
        a(f"""
        s_cmp_eq_u32 s{sW}, 0
        s_cbranch_scc0 P2_nopoll
        {poll(0, "P2_poll0")}
        P2_nopoll:
        """)
    if FUS:
        if not OPT["edist"] and not ILV:
            dist_loads()
        a(f"s_load_dwordx2 {sr(sDBG, 2)}, s[0:1], 96\ns_mov_b32 s{sA1}, 0")
    else:
        table_loads()
        dist_loads()
        ops_loads()
    npf = 0
    if OPT["pf0"]:
        a.c("touch a share of the first slice of m, one load per 128-byte line")
        lines = (E // OPT["ns"] * 32 // 128 + 31) // 32
        a(f"""
        v_cmp_gt_u32 vcc, {min(lines, 1024)}, v0
        v_lshlrev_b32 v{t[8]}, 7, v0
        s_lshr_b32 s{sT0}, s2, 3
        s_mul_i32 s{sT0}, s{sT0}, {lines * 128}
        v_cndmask_b32 v{t[8]}, v{vOOB}, v{t[8]}, vcc
        buffer_load_dword v{vDUM}, v{t[8]}, {sr(S_M, 4)}, s{sT0} offen
        """)
        npf = 1
    put(1)
    a.c("zero the locks and the accumulators")
    D = D1
    a(f"""
    v_mov_b32 v{D}, 0
    v_mov_b32 v{D + 1}, 0
    v_mov_b32 v{D + 2}, 0
    v_mov_b32 v{D + 3}, 0
    v_lshlrev_b32 v{t[2]}, 4, v0
    v_add_u32 v{t[9]}, {L_ACC0}, v{t[2]}
    """)
    for r in range(4):
        a(f"ds_write_b128 v{t[9]}, {vr(D, 4)} offset:{r * 16384}")
    a(f"v_add_u32 v{t[9]}, 0x10000, v{t[9]}")
    for r in range(2):
        a(f"ds_write_b128 v{t[9]}, {vr(D, 4)} offset:{r * 16384}")
    a(f"""
    v_cmp_gt_u32 vcc, {2 * EB - 6 * 1024}, v0
    s_and_saveexec_b64 {sr(sEX, 2)}, vcc
    ds_write_b128 v{t[9]}, {vr(D, 4)} offset:{2 * 16384}
    s_mov_b64 exec, {sr(sEX, 2)}
    v_cmp_gt_u32 vcc, {L_RBF // 16}, v0
    s_and_saveexec_b64 {sr(sEX, 2)}, vcc
    ds_write_b128 v{t[2]}, {vr(D, 4)}
    s_mov_b64 exec, {sr(sEX, 2)}
    s_waitcnt lgkmcnt(0)
    """)
    if OPT["spf"]:
        a.c("scalar loads walk over m, one per 128-byte line chip-wide, ahead of the gathers")
        a(f"""
        s_lshl_b32 s{sPFO}, s2, 4
        s_add_u32 s{sPFO}, s{sPFO}, s{sW}
        s_lshl_b32 s{sPFO}, s{sPFO}, 7
        """)
        for k in range(OPT["spf"]):
            a(spf())
    put(1)
    a.c("centers and frequencies to f32")
    for k in (3, 2, 1, 0):
        a(f"s_and_b32 s{sCEN + 2 * k + 1}, s{sCEN + k}, 0xffff0000")
        a(f"s_lshl_b32 s{sCEN + 2 * k}, s{sCEN + k}, 16")
    a(f"""
    s_lshl_b32 s{sT0}, s{sT2}, 16
    s_and_b32 s{sT1}, s{sT2}, 0xffff0000
    v_mov_b32 v{t[8]}, 0.15915494
    v_mul_f32 v{t[9]}, s{sT0}, v{t[8]}
    v_mul_f32 v{t[8]}, s{sT1}, v{t[8]}
    v_and_b32 v{vH16}, 1, v{vLANE}
    v_lshlrev_b32 v{vH16}, 4, v{vH16}
    v_readfirstlane_b32 s{sKF0}, v{t[9]}
    v_readfirstlane_b32 s{sKF1}, v{t[8]}
    """)
    a.c("record-stream lane constants")
    a(f"""
    v_and_b32 v{t[8]}, {LPS - 1}, v{vLANE}
    v_lshrrev_b32 v{t[9]}, {LSH}, v{vLANE}
    v_lshlrev_b32 v{vL2}, 1, v{t[8]}
    v_lshlrev_b32 v{vBP}, 2, v{t[9]}
    v_mul_u32_u24 v{t[9]}, {CB}, v{t[9]}
    v_mad_u32_u24 v{vCB}, v{t[8]}, 12, v{t[9]}
    s_mul_i32 s{sCO}, s{sW}, {32 * CHB}
    s_mul_i32 s{sRB}, s{sW}, {RING_STRIDE}
    s_add_u32 s{sRB}, s{sRB}, {L_RING}
    s_mov_b32 s{sTOP}, s{sRB}
    s_mov_b32 s{sCNT}, 0
    s_mov_b64 {sr(sM[0], 2)}, 0
    s_mov_b64 {sr(sM[1], 2)}, 0
    s_mov_b32 s{sJ}, 0
    s_mov_b32 s{sPH}, 0
    s_mov_b32 s{sG}, 100000
    s_mov_b32 s{sCAP}, {OPT['lim']}
    s_mov_b64 {sr(sF[0], 2)}, 0
    s_mov_b64 {sr(sF[1], 2)}, 0
    s_and_b32 s3, s2, {3 if OPT["stag"] == 1 else (6 if OPT["stag"] == 2 else 0)}
    s_lshl_b32 s3, s3, {1 if OPT["stag"] == 1 else 0}
    s_mov_b32 s83, {-16 * OPT["lag"] + OPT["lagoff"]}
    {'s_mov_b32 s95, 0' if OPT['cntreq'] else ''}
    """)

    uid = [0]
    kmul = (OPT["ns"] << 24) // E
    SLB = ((1 << 24) // kmul * 32) & ~127
    SHARE = (SLB // 128 + 64 * OPT['pfx']) // (64 * OPT['pfx'])

    PER = (SHARE + OPT["pfw"] - 1) // OPT["pfw"]

    def pf_share(sS, tmpv, vPF=vPF):
        return f"""
        s_mul_i32 s{sT0}, s{sS}, {SLB}
        s_mul_i32 s{sT1}, s82, {SHARE * 128}
        s_add_u32 s{sT0}, s{sT0}, s{sT1}
        s_mul_i32 s{sT1}, s{sW}, {PER}
        v_add_u32 v{tmpv}, s{sT1}, v{vLANE}
        v_cmp_gt_u32 vcc, {PER}, v{vLANE}
        v_lshlrev_b32 v{tmpv}, 7, v{tmpv}
        s_nop 0
        v_cndmask_b32 v{tmpv}, v{vOOB}, v{tmpv}, vcc
        buffer_load_dword v{vPF}, v{tmpv}, {sr(S_M, 4)}, s{sT0} offen
        """

    def prep(buf, mid=None, pf=True):
        uid[0] += 1
        u = uid[0]
        a(f"""
        v_lshrrev_b32 v{RL[buf]}, 16, v{vE}
        v_and_b32 v{t[0]}, 1, v{vE}
        v_and_b32 v{t[1]}, 0xfffe, v{vE}
        v_sub_u32 v{RD[buf]}, v{vL2}, v{t[0]}
        v_mad_u32_u24 v{RA[buf]}, v{t[1]}, 6, v{vCB}
        v_cmp_lt_i32 vcc, v{RD[buf]}, v{RL[buf]}
        v_cmp_lt_u32 {sr(sLONG[buf], 2)}, {2 * LPS - 1}, v{RL[buf]}
        s_mov_b32 s{sCOB[buf]}, s{sCO}
        {"s_or_b32 vcc_lo, vcc_lo, 1" if OPT["rexec"] else f"v_cndmask_b32 v{t[1]}, v{vOOB}, v{RA[buf]}, vcc"}
        v_add_u32 v{vBP}, {4 * SPL}, v{vBP}
        s_add_u32 s{sCO}, s{sCO}, {SPL * CB}
        s_add_u32 s{sJ}, s{sJ}, 1
        s_cmp_lt_u32 s{sJ}, {SPP}
        s_cbranch_scc0 P2_adv{u}
        P2_advr{u}:
        {f"ds_bpermute_b32 v{vE}, v{vBP}, v{TT}" if mid else ""}
        """)
        if mid:
            a(mid)
        if OPT["x_fake"]:
            a(f"buffer_load_dword v{D2}, v{vOOB}, {sr(S_REC, 4)}, s{sCOB[buf]} offen{ntr}")
            sz = E // OPT['ns']
            a(f"""
            s_add_u32 s98, s{sK}, {2 + buf}
            s_lshr_b32 s98, s98, 3
            s_min_u32 s98, s98, {OPT['ns'] - 1}
            s_mul_i32 s98, s98, {sz}
            s_mov_b32 s99, {sz}
            s_mov_b32 s97, 0x9E3779B1
            """)
            for dd in (RB[buf], RB[buf] + 2):
                a(f"""
                v_mul_lo_u32 v{D1}, v{D1}, s97
                v_add_u32 v{D1}, 0x3c6ef35f, v{D1}
                v_lshrrev_b32 v{D1 + 1}, 15, v{D1}
                v_xor_b32 v{D1}, v{D1}, v{D1 + 1}
                v_mul_hi_u32 v{dd}, v{D1}, s99
                v_add_u32 v{dd}, s98, v{dd}
                v_lshlrev_b32 v{dd}, 12, v{dd}
                """)
        else:
            if OPT["rexec"]:
                a(f"""
                s_mov_b64 exec, vcc
                buffer_load_dwordx3 {vr(RB[buf], 3)}, v{RA[buf]}, {sr(S_REC, 4)}, s{sCOB[buf]} offen{ntr}
                s_mov_b64 exec, -1
                """)
            else:
                a(f"buffer_load_dwordx3 {vr(RB[buf], 3)}, v{t[1]}, {sr(S_REC, 4)}, s{sCOB[buf]} offen{ntr}")
        if OPT["pfn"] and mid and pf:
            a(f"""
            s_cmp_eq_u32 s{sJ}, s99
            s_cbranch_scc1 P2_pf{u}
            P2_pfr{u}:
            """)
            cold.append(f"""
            P2_pf{u}:
            s_cmp_eq_u32 s{sPH}, s98
            s_cbranch_scc0 P2_pfr{u}
            s_add_u32 s98, s98, {OPT["pfg"]}
            """ + "".join(f"s_add_u32 s{sT2}, s{sPH}, {OPT['pfn'] + g}\n" + pf_share(sT2, t[3]) for g in range(OPT["pfg"])) + f"""
            s_branch P2_pfr{u}
            """)
        cold.append(f"""
        P2_adv{u}:
        s_mov_b32 s{sJ}, 0
        s_sub_u32 s{sCO}, s{sCO}, {32 * CHB}
        s_add_u32 s{sPH}, s{sPH}, 1
        s_and_b32 s{sT0}, s{sPH}, 3
        s_cselect_b32 s{sT0}, {4 * NCW}, 0
        v_subrev_u32 v{vBP}, s{sT0}, v{vBP}
        v_mov_b32 v{t[0]}, v{TT}
        v_mov_b32 v{TT}, v{TT + 1}
        v_mov_b32 v{TT + 1}, v{TT + 2}
        v_mov_b32 v{TT + 2}, v{TT + 3}
        v_mov_b32 v{TT + 3}, v{t[0]}
        {f"s_call_b64 {sr(sRET, 2)}, P2_w1" if FUS else ""}
        s_cmp_lt_u32 s{sPH}, {16 if BIG else 8}
        s_cbranch_scc1 P2_advr{u}
        v_mov_b32 v{TT}, 0
        s_branch P2_advr{u}
        """)

    cold = []
    def first_recs():
        prep(0)
        a(f"v_mov_b32 v{vE}, v{C[0]}")
        prep(1)
    if not FUS:
        a(f"s_waitcnt vmcnt({11 + npf})")
        first_recs()

    def pf_prologue():
        a(f"""
        s_bfe_u32 s99, s2, {(3 << 16) | 3 if OPT["pfs"] else 0}
        s_cmp_lt_u32 s99, {4 if OPT['peel'] else 3}
        s_cselect_b32 s98, {OPT["pfg"]}, 0
        s_lshr_b32 s82, s2, 2
        s_mul_i32 s82, s82, {OPT["pfx"]}
        s_and_b32 s{sT0}, s2, 3
        s_add_u32 s82, s82, s{sT0}
        s_cmp_lt_u32 s{sT0}, {OPT["pfx"]}
        s_cselect_b32 s{sT0}, s{sW}, 99
        s_cmp_lt_u32 s{sT0}, {OPT["pfw"]}
        s_cselect_b32 s99, s99, 99
        s_cbranch_scc0 P2_nopf
        """)
        for k in range(OPT["pffirst"], OPT["pfn"] + OPT["pfg"]):
            if k == OPT["pfn"]:
                a(f"s_cmp_lt_u32 s99, {4 if OPT['peel'] else 3}\ns_cbranch_scc0 P2_nopf")
            a(f"s_mov_b32 s{sT2}, {k}")
            a(pf_share(sT2, t[3], vDUM))
        a("P2_nopf:")
    if OPT["pfn"] and OPT["pfpos"] == 0:
        pf_prologue()
    a.c("radial basis table exp(-10 (d - c)^2), stored as f16")
    ED = FUS and OPT["edist"]
    a(f"s_waitcnt vmcnt({nst[0] if ILV else OPT['_nst'] if ED else (0 if FUS else 8 + npf)})")
    ED = ED or ILV

    def signal1():
        a.c("second half is out: the last wave to see its stores done tells the other workgroups")
        a(f"""
        v_mov_b32 v{t[2]}, {P2_LDS - 4}
        v_mov_b32 v{t[3]}, 1
        s_mov_b64 exec, 1
        ds_add_rtn_u32 v{t[2]}, v{t[2]}, v{t[3]}
        s_waitcnt lgkmcnt(0)
        v_readfirstlane_b32 s{sT0}, v{t[2]}
        v_mov_b32 v{t[2]}, 0
        s_cmp_eq_u32 s{sT0}, 31
        s_cbranch_scc0 P2_nosig
        global_atomic_add v{t[2]}, v{t[3]}, {sr(sDBG, 2)} offset:128 sc1
        P2_nosig:
        s_mov_b64 exec, -1
        """)
    if FUS:
        if OPT["stamp2"] and not ED:
            a("s_memrealtime s[74:75]\ns_waitcnt lgkmcnt(0)\ns_mov_b32 s78, s74")
        if not ED:
            signal1()
        if OPT["pfm"] == 6:
            a(f"""
            v_cmp_gt_u32 vcc, 782, v0
            v_lshlrev_b32 v{t[2]}, 15, v0
            s_lshl_b32 s{sT0}, s2, 7
            v_cndmask_b32 v{t[2]}, v{vOOB}, v{t[2]}, vcc
            buffer_load_dword v{vDUM}, v{t[2]}, {sr(S_M, 4)}, s{sT0} offen
            """)
        if OPT["pollpos"] == 0:
            poll0()
    sTEN, sL2E = sRET, sRET + 1
    a(f"s_mov_b32 s{sTEN}, 0xc1200000")
    a(f"s_mov_b32 s{sL2E}, {0x3fb8aa3b if OPT['mimic'] else 0xc166d4ca:#x}")
    def rbf_round(r):
        dd = 12 + r if FUS and OPT['edist'] else t[4 + r]
        if r == 3:
            a(f"""
            v_cmp_gt_u32 vcc, {EB - 3 * 1024}, v0
            s_and_saveexec_b64 {sr(sEX, 2)}, vcc
            s_cbranch_execz P2_rbf3
            """)
        a(f"v_lshlrev_b32 v{dd}, 16, v{dd}")
        x = [D + k for k in range(8)]
        for k in range(8):
            a(f"v_subrev_f32 v{x[k]}, s{sCEN + k}, v{dd}")

        def rnd():
            if not OPT["mimic"]:
                return
            for k in range(0, 8, 2):
                a(f"v_cvt_pk_bf16_f32 v{D + 8 + k // 2}, v{x[k]}, v{x[k + 1]}")
            for k in range(0, 8, 2):
                a(f"v_lshlrev_b32 v{x[k]}, 16, v{D + 8 + k // 2}")
                a(f"v_and_b32 v{x[k + 1]}, s{sHI}, v{D + 8 + k // 2}")
        rnd()
        for k in range(8):
            a(f"v_mul_f32 v{x[k]}, v{x[k]}, v{x[k]}")
        rnd()
        if OPT["mimic"]:
            for k in range(8):
                a(f"v_mul_f32 v{x[k]}, s{sRET}, v{x[k]}")
        rnd()
        for k in range(8):
            a(f"v_mul_f32 v{x[k]}, s{sRET + 1}, v{x[k]}")
        for k in range(8):
            a(f"v_exp_f32 v{x[k]}, v{x[k]}")
        a("s_nop 0")
        rnd()
        for k in range(0, 8, 2):
            a(f"v_cvt_pk_f16_f32 v{D + 8 + k // 2}, v{x[k]}, v{x[k + 1]}")
        a(f"ds_write_b128 v{t[8]}, {vr(D + 8, 4)} offset:{L_RBF + r * 16384}")
        if r == 3:
            a("P2_rbf3:")
            a(f"s_mov_b64 exec, {sr(sEX, 2)}")


    def rbf_consts():
        a(f"v_lshlrev_b32 v{t[8]}, 4, v0")
    rbf_consts()
    if FUS:
        assert OPT["peel"] == 1
        for r in range(4):
            rbf_round(r)
            put(2)
        put(99)
        if ED:
            a("s_waitcnt vmcnt(0)")
            if OPT["stamp2"]:
                a("s_memrealtime s[74:75]\ns_waitcnt lgkmcnt(0)\ns_mov_b32 s78, s74")
            signal1()
        if OPT["pollpos"] == 1:
            poll0()
        a("s_waitcnt vmcnt(0) lgkmcnt(0)\ns_barrier")
        if OPT["stamp2"]:
            a("s_memrealtime s[74:75]\ns_waitcnt lgkmcnt(0)\ns_mov_b32 s3, s74")
        assert OPT["valu_add"] and OPT["xpop"]
        table_loads()
        a(f"s_waitcnt vmcnt(0)\ns_call_b64 {sr(sRET, 2)}, P2_w1")
        first_recs()
        ops_loads()
        a(f"ds_bpermute_b32 v{vE}, v{vBP}, v{TT}")
        cold.append(f"""
        P2_w1:
        s_cmp_eq_u32 s{sA1}, 1
        s_cbranch_scc1 P2_w1r
        v_and_b32 v{t[2]}, 0xffff, v{TT}
        v_lshrrev_b32 v{t[3]}, 16, v{TT}
        v_add_u32 v{t[2]}, v{t[2]}, v{t[3]}
        s_lshr_b32 s{sT0}, s{sPH}, 2
        s_lshl_b32 s{sT0}, s{sT0}, 4
        v_cmp_lt_u32 vcc, {OPT["h0"]}, v{t[2]}
        s_lshr_b64 vcc, vcc, s{sT0}
        s_and_b32 s{sT0}, vcc_lo, 0xffff
        s_cbranch_scc0 P2_w1r
        s_mov_b32 s{sA1}, 1
        v_mov_b32 v{t[2]}, 0
        v_mov_b32 v{t[3]}, 1
        s_mov_b64 exec, 1
        ds_or_rtn_b32 v{t[3]}, v{t[2]}, v{t[3]} offset:788
        s_mov_b64 exec, -1
        s_waitcnt lgkmcnt(0)
        v_readfirstlane_b32 s{sT0}, v{t[3]}
        s_cmp_eq_u32 s{sT0}, 0
        s_cbranch_scc0 P2_w1o
        {poll(128, "P2_poll1")}
        s_waitcnt vmcnt(0)
        v_mov_b32 v{t[3]}, 3
        ds_write_b32 v{t[2]}, v{t[3]} offset:788
        P2_w1r:
        s_setpc_b64 {sr(sRET, 2)}
        P2_w1o:
        s_cmp_eq_u32 s{sT0}, 3
        s_cbranch_scc1 P2_w1r
        ds_read_b32 v{t[3]}, v{t[2]} offset:788
        s_waitcnt lgkmcnt(0)
        v_readfirstlane_b32 s{sT0}, v{t[3]}
        s_branch P2_w1o
        """)
    else:
        a(f"ds_bpermute_b32 v{vE}, v{vBP}, v{TT}")
        for r in range(2 if OPT["peel"] else 4):
            rbf_round(r)
    a(f"""
    v_mov_b32 v{O[1]}, 0
    v_mov_b32 v{WA[1]}, 0
    """)
    a(f"s_mov_b32 s{sK}, 0")
    if OPT["gexec"]:
        for j in range(16):
            a(f"v_mov_b32 v{GP[0] + j}, 0")

    def prologue_tail():
        if FUS:
            a("s_waitcnt lgkmcnt(0)")
            return
        if OPT["peel"]:
            rbf_round(2)
            rbf_round(3)
        if OPT["pfn"] and OPT["pfpos"] == 1:
            pf_prologue()
        a("s_waitcnt lgkmcnt(0)\ns_barrier")
    if not OPT["peel"]:
        a.c("two out-of-range loads stand in for the gathers of the steps before the first one")
        for k in range(2):
            a(f"buffer_load_dword v{vDUM}, v{vOOB}, {sr(S_REC, 4)}, 0 offen")
        prologue_tail()

    la, bit, aX, aY, old = t[5], t[6], t[7], t[8], t[9]
    STAMP = OPT["stamp"]

    def st(i):
        return f"s_memtime s[{60 + 2 * i}:{61 + 2 * i}]" if STAMP else ""

    def lg(n):
        return f"s_waitcnt lgkmcnt({0 if STAMP else n})"

    def pop_issue(buf):
        F, NF = sF[buf], sACQ
        return f"""
        s_bcnt0_i32_b64 s{sN}, {sr(F, 2)}
        s_not_b64 {sr(NF, 2)}, {sr(F, 2)}
        s_min_u32 s{sN}, s{sCNT}, s{sN}
        v_mbcnt_lo_u32_b32 v{t[2]}, s{NF}, 0
        s_sub_u32 s{sCNT}, s{sCNT}, s{sN}
        v_mbcnt_hi_u32_b32 v{t[2]}, s{NF + 1}, v{t[2]}
        s_lshl3_add_u32 s{sTOP}, s{sCNT}, s{sRB}
        v_cmp_gt_u32 vcc, s{sN}, v{t[2]}
        v_lshl_add_u32 v{t[2]}, v{t[2]}, 3, s{sTOP}
        s_mov_b64 exec, {sr(NF, 2)}
        v_mov_b32 v{WA[buf]}, 0xfffff000
        v_mov_b32 v{WA[buf] + 1}, 0
        s_and_b64 exec, vcc, {sr(NF, 2)}
        ds_read_b64 {vr(WA[buf], 2)}, v{t[2]}
        s_or_b64 {sr(sM[buf], 2)}, exec, {sr(F, 2)}
        s_mov_b64 exec, -1
        """

    def gathers(buf):
        W, F, X, Y = WA[buf], sF[buf], sACQ, sFAIL
        g0 = f"v_mov_b32 v{t[2]}, v{vOOB}" if OPT["x_nogather"] else f"v_and_b32 v{t[2]}, 0xffffffe0, v{t[2]}"
        return f"""
        v_lshrrev_b32 v{t[2]}, 7, v{W}
        s_and_b64 {sr(X, 2)}, {sr(F, 2)}, {sr(sEVEN, 2)}
        {g0}
        s_lshl_b64 {sr(Y, 2)}, {sr(X, 2)}, 1
        v_lshlrev_b32 v{O[buf]}, 4, v{W}
        v_and_b32 v{t[4]}, s{sHI}, v{W + 1}
        v_or_b32_dpp v{t[3]}, v{t[2]}, v{vH16} quad_perm:[0,0,2,2] row_mask:0xf bank_mask:0xf
        v_or_b32_dpp v{t[2]}, v{t[2]}, v{vH16} quad_perm:[1,1,3,3] row_mask:0xf bank_mask:0xf
        s_nor_b64 exec, {sr(X, 2)}, {sr(Y, 2)}
        s_andn2_b64 {sr(X, 2)}, {sr(F, 2)}, {sr(sEVEN, 2)}
        buffer_load_dwordx4 {vr(GP[buf], 4)}, v{t[3]}, {sr(S_M, 4)}, 0 offen
        s_lshr_b64 {sr(Y, 2)}, {sr(X, 2)}, 1
        s_nor_b64 exec, {sr(X, 2)}, {sr(Y, 2)}
        buffer_load_dwordx4 {vr(GQ[buf], 4)}, v{t[2]}, {sr(S_M, 4)}, 0 offen
        s_mov_b64 exec, -1
        """

    def coschain(buf):
        return f"""
        {f"v_lshlrev_b32 v{O[buf]}, 4, v{vLANE}" if OPT["x_lin"] else f"v_and_b32 v{O[buf]}, 0xfff0, v{O[buf]}"}
        v_mul_f32 v{C[buf]}, s{sKF0}, v{t[4]}
        v_mul_f32 v{t[4]}, s{sKF1}, v{t[4]}
        v_fract_f32 v{C[buf]}, v{C[buf]}
        v_fract_f32 v{t[4]}, v{t[4]}
        v_cos_f32 v{C[buf]}, v{C[buf]}
        v_cos_f32 v{t[4]}, v{t[4]}
        """

    def cospack(buf):
        return f"v_cvt_pk_f16_f32 v{C[buf]}, v{C[buf]}, v{t[4]}"

    def rbf_read(buf):
        return f"ds_read_b128 {vr(S1, 4)}, v{O[buf]} offset:{L_RBF}"

    def gate(buf):
        s = ""
        for j in range(4):
            s += f"v_pk_mul_f16 v{S0 + j}, v{S1 + j}, v{C[buf]} op_sel_hi:[1,0]\n"
        for j in range(4):
            s += f"v_pk_mul_f16 v{S1 + j}, v{S1 + j}, v{C[buf]} op_sel:[0,1]\n"
        s += f"""
        v_mfma_f32_32x32x16_f16 {vr(D2, 16)}, {vr(A2a, 4)}, {vr(S0, 4)}, 0
        s_mov_b64 vcc, {sr(sEVEN, 2)}
        v_mfma_f32_32x32x16_f16 {vr(D2, 16)}, {vr(A2b, 4)}, {vr(S1, 4)}, {vr(D2, 16)}
        """
        return s

    def fixup(buf):
        s = ""
        for j in range(4):
            s += f"v_cndmask_b32_dpp v{S0 + j}, v{GQ[buf] + j}, v{GP[buf] + j}, vcc quad_perm:[0,0,2,2] row_mask:0xf bank_mask:0xf\n"
        s += "s_not_b64 vcc, vcc\n"
        for j in range(4):
            s += f"v_cndmask_b32_dpp v{S1 + j}, v{GP[buf] + j}, v{GQ[buf] + j}, vcc quad_perm:[1,1,3,3] row_mask:0xf bank_mask:0xf\n"
        return s

    def muls():
        for j in range(0, 16, 2):
            a(f"v_pk_mul_f32 {vr(D1 + j, 2)}, {vr(D1 + j, 2)}, {vr(D2 + j, 2)}")

    def core_a(buf, fill, fill2=""):
        W = WA[buf]
        a(f"""
        v_mfma_f32_32x32x16_bf16 {vr(D1, 16)}, {vr(A1a, 4)}, {vr(S0, 4)}, 0
        v_add_u32 v{aX}, {L_ACC0}, v{O[buf]}
        v_mfma_f32_32x32x16_bf16 {vr(D1, 16)}, {vr(A1b, 4)}, {vr(S1, 4)}, {vr(D1, 16)}
        v_add_u32 v{aY}, {L_ACC1}, v{O[buf]}
        v_lshrrev_b32 v{la}, 2, v{W}
        v_lshlrev_b32_e64 v{bit}, v{W}, 1
        v_permlane32_swap_b32 v{aX}, v{aY}
        """)
        a(fill)
        a(f"v_and_b32 v{la}, 0x3fc, v{la}")
        if not OPT["valu_add"]:
            muls()
        a(fill2)

    def core_b(buf, inline):
        uid[0] += 1
        u = uid[0]
        W, M = WA[buf], sM[buf]
        nrm = OPT["x_normw"]
        va = OPT["valu_add"]
        guard = f"s_sub_u32 s{sG}, s{sG}, 1\ns_cbranch_scc1 P2_done" if OPT["guard"] else ""
        a(f"""
        {st(5) if inline else ""}
        {"s_setprio 3" if OPT["prio"] else ""}
        s_mov_b64 exec, {sr(M, 2)}
        {f"v_mov_b32 v{old}, 0" if nrm else f"ds_or_rtn_b32 v{old}, v{la}, v{bit}"}
        s_mov_b64 exec, -1
        {"" if nrm else f"ds_read_b128 {vr(AX, 4)}, v{aX}"}
        {"" if nrm else f"ds_read_b128 {vr(AY, 4)}, v{aY}"}
        {f"ds_read_b32 v{t[10]}, v{vH16} offset:784" if inline else ""}
        {lg(2 if inline else 1)}
        {st(6) if inline else ""}
        """)
        check = f"""
        v_cmp_eq_u32 vcc, 0, v{old}
        s_and_b64 {sr(sACQ, 2)}, vcc, {sr(M, 2)}
        s_andn2_b64 {sr(sF[buf], 2)}, {sr(M, 2)}, vcc
        s_bcnt1_i32_b64 s{sN}, {sr(sF[buf], 2)}
        {"s_add_u32 s95, s95, s%d" % sN if OPT["cntreq"] else ""}
        s_mov_b32 exec_lo, s{sACQ}
        s_mov_b32 exec_hi, s{sACQ}
        s_cmp_gt_u32 s{sN}, s{sCAP}
        """
        U = [TF, TF + 1, TF + 2, TF + 3, t[1], t[2], t[3], t[4]]
        assert t[1] % 2 == 0

        def addhalf(Ac, off):
            for j in range(4):
                a(f"v_lshlrev_b32 v{U[2 * j]}, 16, v{Ac + j}")
                a(f"v_and_b32 v{U[2 * j + 1]}, s{sHI}, v{Ac + j}")
            for j in range(4):
                a(f"v_pk_fma_f32 {vr(U[2 * j], 2)}, {vr(D1 + off + 2 * j, 2)}, {vr(D2 + off + 2 * j, 2)}, {vr(U[2 * j], 2)}")
            for j in range(4):
                a(f"v_cvt_pk_bf16_f32 v{Ac + j}, v{U[2 * j]}, v{U[2 * j + 1]}")
        if va:
            a(f"v_and_b32 v{old}, v{old}, v{bit}")
            a(check)
            addhalf(AX, 0)
            a(f"s_waitcnt lgkmcnt({1 if inline else 0})")
        else:
            a(f"""
            v_mfma_f32_32x32x16_bf16 {vr(D2, 16)}, {vr(A3a, 4)}, {vr(AX, 4)}, {vr(D1, 16)}
            v_and_b32 v{old}, v{old}, v{bit}
            s_waitcnt lgkmcnt({1 if inline else 0})
            v_mfma_f32_32x32x16_bf16 {vr(D2, 16)}, {vr(A3b, 4)}, {vr(AY, 4)}, {vr(D2, 16)}
            """)
            a(check)
            a("s_nop 4")
            for j in range(4):
                a(f"v_cvt_pk_bf16_f32 v{AX + j}, v{D2 + 2 * j}, v{D2 + 2 * j + 1}")
        a(f"""
        {"" if nrm else f"ds_write_b128 v{aX}, {vr(AX, 4)}"}
        s_mov_b32 exec_lo, s{sACQ + 1}
        s_mov_b32 exec_hi, s{sACQ + 1}
        """)
        if va:
            addhalf(AY, 8)
        else:
            for j in range(4):
                a(f"v_cvt_pk_bf16_f32 v{AY + j}, v{D2 + 8 + 2 * j}, v{D2 + 8 + 2 * j + 1}")
        a(f"""
        {"" if nrm else f"ds_write_b128 v{aY}, {vr(AY, 4)}"}
        s_mov_b64 exec, {sr(sACQ, 2)}
        {"" if nrm else f"ds_xor_b32 v{la}, v{bit}"}
        {f"s_setprio {OPT['pbase']}" if OPT["prio"] else ""}
        s_mov_b64 exec, -1
        s_cbranch_scc1 P2_full{u}
        """)
        if inline:
            a(f"P2_fullr{u}:")
            cold.append(f"""
            P2_full{u}:
            s_mov_b64 {sr(M, 2)}, {sr(sF[buf], 2)}
            s_call_b64 {sr(sRET2, 2)}, P2_rmw{buf}
            s_branch P2_fullr{u}
            """)
        else:
            a(f"""
            s_setpc_b64 {sr(sRET2, 2)}
            P2_full{u}:
            {guard}
            s_mov_b64 {sr(M, 2)}, {sr(sF[buf], 2)}
            s_branch P2_rmw{buf}
            """)

    def slow_push(buf, slot):
        uid[0] += 1
        u = uid[0]
        d0, d1, d2 = RB[buf], RB[buf] + 1, RB[buf] + 2
        if slot == 0:
            s = f"""
            v_cmp_lt_u32 {sr(sM0, 2)}, v{RD[buf]}, v{RL[buf]}
            v_lshlrev_b32 v{t[11]}, 16, v{d1}
            """
            w, an = d0, t[11]
        else:
            s = f"""
            v_add_u32 v{t[11]}, 1, v{RD[buf]}
            v_cmp_lt_u32 {sr(sM0, 2)}, v{t[11]}, v{RL[buf]}
            """
            w, an = d2, d1
        return s + f"""
        P2_push{u}:
        s_bcnt1_i32_b64 s{sN0}, {sr(sM0, 2)}
        s_add_u32 s{sT0}, s{sCNT}, s{sN0}
        s_cmp_le_u32 s{sT0}, {RING_CAP}
        s_cbranch_scc1 P2_pok{u}
        s_call_b64 {sr(sRET, 2)}, P2_pop{buf}
        s_branch P2_push{u}
        P2_pok{u}:
        v_mbcnt_lo_u32_b32 v{t[4]}, s{sM0}, 0
        v_mbcnt_hi_u32_b32 v{t[4]}, s{sM0 + 1}, v{t[4]}
        v_lshl_add_u32 v{t[4]}, v{t[4]}, 3, s{sTOP}
        s_mov_b64 exec, {sr(sM0, 2)}
        ds_write2_b32 v{t[4]}, v{w}, v{an} offset1:1
        s_mov_b64 exec, -1
        s_mov_b32 s{sCNT}, s{sT0}
        s_lshl3_add_u32 s{sTOP}, s{sN0}, s{sTOP}
        """

    def step(buf, peeled=False):
        uid[0] += 1
        u = uid[0]
        prev = buf ^ 1
        d0, d1, d2 = RB[buf], RB[buf] + 1, RB[buf] + 2
        a.c(f"---- step, buffer {buf}: compact the loaded records onto the stack")
        if OPT["rot"] and (OPT["rot"] == 1 or buf == 0):
            a(f"""
            s_add_u32 s82, s82, 1
            s_bitcmp1_b32 s82, 1
            s_cbranch_scc1 P2_prh{u}
            s_setprio 0
            s_bitcmp1_b32 s82, 0
            s_cbranch_scc0 P2_pre{u}
            s_setprio 1
            s_branch P2_pre{u}
            P2_prh{u}:
            s_setprio 2
            s_bitcmp1_b32 s82, 0
            s_cbranch_scc0 P2_pre{u}
            s_setprio 3
            P2_pre{u}:
            """)
        a(f"""
        {st(0)}
        s_waitcnt vmcnt({(5 if FUS else 1) if peeled and buf == 0 else 3})
        {st(1)}
        v_cmp_lt_u32 {sr(sM0, 2)}, v{RD[buf]}, v{RL[buf]}
        v_add_u32 v{t[1]}, 1, v{RD[buf]}
        v_lshlrev_b32 v{t[2]}, 16, v{d1}
        v_cmp_lt_u32 {sr(sM1, 2)}, v{t[1]}, v{RL[buf]}
        s_bcnt1_i32_b64 s{sN0}, {sr(sM0, 2)}
        v_mbcnt_lo_u32_b32 v{t[0]}, s{sM0}, 0
        s_bcnt1_i32_b64 s{sN}, {sr(sM1, 2)}
        v_mbcnt_hi_u32_b32 v{t[0]}, s{sM0 + 1}, v{t[0]}
        v_mbcnt_lo_u32_b32 v{t[1]}, s{sM1}, 0
        s_add_u32 s{sT0}, s{sCNT}, s{sN0}
        v_mbcnt_hi_u32_b32 v{t[1]}, s{sM1 + 1}, v{t[1]}
        s_add_u32 s{sT0}, s{sT0}, s{sN}
        s_lshl3_add_u32 s{sT1}, s{sN0}, s{sTOP}
        v_lshl_add_u32 v{t[0]}, v{t[0]}, 3, s{sTOP}
        s_cmp_lg_u64 {sr(sLONG[buf], 2)}, 0
        s_cselect_b32 s{sT2}, 0, {RING_CAP + 1}
        v_lshl_add_u32 v{t[1]}, v{t[1]}, 3, s{sT1}
        s_cmp_ge_u32 s{sT0}, s{sT2}
        s_cbranch_scc1 {f"P2_alt{buf}" if peeled else f"P2_slow{u}"}
        s_mov_b64 exec, {sr(sM0, 2)}
        ds_write2_b32 v{t[0]}, v{d0}, v{t[2]} offset1:1
        s_mov_b64 exec, {sr(sM1, 2)}
        ds_write2_b32 v{t[1]}, v{d2}, v{d1} offset1:1
        s_mov_b64 exec, -1
        s_mov_b32 s{sCNT}, s{sT0}
        P2_slowr{u}:
        """)
        if peeled:
            a(pop_issue(buf))
            a("s_waitcnt lgkmcnt(0)")
            prep(buf, gathers(buf), False)
            a(coschain(buf))
            a("s_nop 0")
            a(cospack(buf))
            return
        cold.append(f"P2_slow{u}:\n" + slow_push(buf, 0) + slow_push(buf, 1) + f"""
        P2_long{u}:
        v_add_u32 v{RD[buf]}, {2 * LPS}, v{RD[buf]}
        v_add_u32 v{RA[buf]}, {12 * LPS}, v{RA[buf]}
        v_cmp_lt_i32 vcc, v{RD[buf]}, v{RL[buf]}
        s_cbranch_vccz P2_slowr{u}
        s_nop 0
        v_cndmask_b32 v{t[4]}, v{vOOB}, v{RA[buf]}, vcc
        buffer_load_dwordx3 {vr(RB[buf], 3)}, v{t[4]}, {sr(S_REC, 4)}, s{sCOB[buf]} offen{ntr}
        s_waitcnt vmcnt(0)
        """ + slow_push(buf, 0) + slow_push(buf, 1) + f"s_branch P2_long{u}\n")
        if OPT["x_nopop"]:
            a(f"s_mov_b32 s{sCNT}, 0\ns_mov_b32 s{sTOP}, s{sRB}")
            prep(buf)
            for k in range(2):
                a(f"buffer_load_dword v{vDUM}, v{vOOB}, {sr(S_REC, 4)}, 0 offen")
            a("s_waitcnt lgkmcnt(0)")
            return
        a(pop_issue(buf))
        a(rbf_read(prev))
        prep(buf, lg(2) + "\n" + st(2) + "\n" + gathers(buf))
        a(st(3))
        a(lg(1))
        if OPT["x_nocore"]:
            a("s_waitcnt vmcnt(4) lgkmcnt(0)")
            a(f"s_mov_b64 {sr(sM[buf], 2)}, 0")
        else:
            a(gate(prev))
            a("s_waitcnt vmcnt(4)")
            a(st(4))
            a(fixup(prev))
            core_a(prev, coschain(buf), cospack(buf))
            core_b(prev, True)
        if OPT["lag"]:
            a(f"""
            s_waitcnt lgkmcnt(3)
            v_readfirstlane_b32 s{sT1}, v{t[10]}
            {spf() if OPT["spf"] else ""}
            s_mov_b64 exec, 1
            s_add_u32 s83, s83, 16
            ds_inc_u32 v{vH16}, v{vOOB} offset:784
            s_mov_b64 exec, -1
            s_cmp_lt_i32 s{sT1}, s83
            s_cbranch_scc1 P2_poll{u}
            """)
            if OPT["dynp"]:
                a(f"""
                s_sub_u32 s{sT1}, s{sT1}, {OPT["dynp"]}
                s_cmp_lt_i32 s{sT1}, s83
                s_cbranch_scc1 P2_pollr{u}
                s_setprio 2
                """)
            a(f"P2_pollr{u}:")
            cold.append(f"""
            P2_poll{u}:
            s_setprio 0
            s_mov_b64 exec, 1
            ds_read_b32 v{t[10]}, v{vH16} offset:784
            s_mov_b64 exec, -1
            s_waitcnt lgkmcnt(0)
            v_readfirstlane_b32 s{sT1}, v{t[10]}
            s_cmp_ge_i32 s{sT1}, s83
            s_setprio {OPT['pbase']}
            s_cbranch_scc1 P2_pollr{u}
            {f"s_sleep {OPT['sleep']}" if OPT['sleep'] else ''}
            {f"s_sub_u32 s{sG}, s{sG}, 1" if OPT["guard"] else ""}
            {"s_cbranch_scc1 P2_done" if OPT["guard"] else ""}
            s_branch P2_poll{u}
            """)
        if STAMP:
            a("s_waitcnt lgkmcnt(0)")
            a("s_sub_u32 s96, s60, s74\ns_add_u32 s84, s84, s96")
            a("s_memtime s[74:75]\ns_waitcnt lgkmcnt(0)")
            for i in range(7):
                a(f"s_sub_u32 s96, s{62 + 2 * i}, s{60 + 2 * i}\ns_add_u32 s{85 + i}, s{85 + i}, s96")

    if OPT["peel"]:
        a.c("the first halves of the first steps run before the rest of the setup, so that their gathers are under way")
        stamp = "s_memrealtime s[60:61]\ns_memtime s[72:73]\ns_waitcnt lgkmcnt(0)" if OPT["stamp2"] else ""
        done1 = f"""
        s_mov_b64 exec, 1
        s_add_u32 s83, s83, 16
        ds_inc_u32 v{vH16}, v{vOOB} offset:784
        s_mov_b64 exec, -1
        """ if OPT["lag"] else ""
        step(0, True)
        if OPT["peel"] == 2:
            step(1, True)
            a(f"""
            s_call_b64 {sr(sRET2, 2)}, P2_tail
            {stamp}
            {rbf_read(0)}
            {done1}
            s_mov_b32 s{sK}, 2
            s_waitcnt lgkmcnt(0)
            """)
            a(gate(0))
            a("s_waitcnt vmcnt(4)")
            a(fixup(0))
            core_a(0, "s_nop 6")
            a(f"""
            s_call_b64 {sr(sRET2, 2)}, P2_rmw0
            {done1}
            s_branch P2_loop
            P2_alt1:
            """)
        a(f"""
        s_call_b64 {sr(sRET2, 2)}, P2_tail
        {stamp}
        {done1}
        s_branch P2_step1
        P2_tail:
        """)
        prologue_tail()
        a(f"""
        s_setpc_b64 {sr(sRET2, 2)}
        P2_alt0:
        s_call_b64 {sr(sRET2, 2)}, P2_tail
        """)
    if OPT["stamp2"]:
        a("s_memrealtime s[60:61]\ns_memtime s[72:73]\ns_waitcnt lgkmcnt(0)")
    if STAMP:
        for i in range(8):
            a(f"s_mov_b32 s{84 + i}, 0")
        a("s_memtime s[74:75]")
    if OPT["x_fake"]:
        a(f"s_lshl_b32 s98, s2, 10\nv_add_u32 v{D1}, s98, v0\nv_mul_lo_u32 v{D1}, v{D1}, v{D1}\nv_add_u32 v{D1}, v{D1}, v0")
    a("P2_loop:")
    if OPT["phase_bar"]:
        a(f"""
        s_add_u32 s{sT0}, s{sK}, s3
        s_and_b32 s{sT0}, s{sT0}, 7
        s_cbranch_scc1 P2_nobar
        s_barrier
        P2_nobar:
        """)
    a(f"""
    {f"s_cmp_eq_u32 s{sK}, {NSTEP - OPT['endn']}" if OPT["endn"] else ""}
    {f"s_cselect_b32 s{sT0}, {OPT['endd']}, 0" if OPT["endn"] else ""}
    {f"s_add_u32 s83, s83, s{sT0}" if OPT["endn"] else ""}
    {"" if OPT["xpop"] else f"s_cmp_lt_u32 s{sK}, {NSTEP - 2}"}
    {"" if OPT["xpop"] else f"s_cselect_b32 s{sCAP}, {OPT['lim']}, 0"}
    """)
    step(0)
    a("P2_step1:")
    step(1)
    a(f"""
    s_add_u32 s{sK}, s{sK}, 2
    s_cmp_lt_u32 s{sK}, {NSTEP}
    s_cbranch_scc1 P2_loop
    """)
    if STAMP:
        a(f"""
        s_lshl_b32 s96, s2, 4
        s_add_u32 s96, s96, s{sW}
        s_lshl_b32 s96, s96, 6
        s_add_u32 s6, s6, {16 << 20}
        s_addc_u32 s7, s7, 0
        """)
        srd(a, S_DST, 6, 1 << 20)
        a(f"v_mov_b32 v{t[0]}, 0")
        for i in range(8):
            a(f"v_mov_b32 v{t[1]}, s{84 + i}")
            a(f"buffer_store_dword v{t[1]}, v{t[0]}, {sr(S_DST, 4)}, s96 offen offset:{4 * i}")
        a("s_waitcnt vmcnt(0)")
    if OPT["stamp2"]:
        a("s_memrealtime s[62:63]\ns_memtime s[74:75]\ns_waitcnt lgkmcnt(0)\ns_sub_u32 s72, s74, s72")
    a.c("fetch the epilogue's operands and the bucket's own m rows; finish the last pop; empty the stack")
    MP = [TT, RB[0], RB[1], RL[0], GP[1], GQ[1], WA[0]]
    XP = OPT["xpop"]
    assert not XP or OPT["valu_add"]
    A1, A2, A3, DX, DY, SX, SY = (A3b, vBP, A3a, D1, D2, A2a, A2b) if XP else (GP[0], GQ[0], A3a, D1, D2, A2a, A2b)
    vMO = vE
    if XP:
        a(f"s_mov_b32 s{sCAP}, 0")
        a(pop_issue(0))
    a(f"""
    v_and_b32 v{t[0]}, 31, v{vLANE}
    v_lshrrev_b32 v{t[1]}, 5, v{vLANE}
    v_lshlrev_b32 v{t[1]}, 4, v{t[1]}
    s_lshl_b32 s{sT0}, s{sW}, 10
    v_lshl_add_u32 v{vMO}, v{t[0]}, 5, v{t[1]}
    v_add_u32 v{vMO}, s{sT0}, v{vMO}
    s_mul_i32 s{sCO}, s{sB}, {EB * 32}
    s_mov_b32 s{sJ}, s{sCO}
    v_lshlrev_b32 v{t[0]}, 4, v{vLANE}
    s_mov_b32 s{sT0}, {TAB_BYTES + 1024 * 6}
    s_mov_b32 s{sT1}, {TAB_BYTES + 1024 * 7}
    {rbf_read(1)}
    """)
    if XP:
        a("s_waitcnt lgkmcnt(1)")
        a(gathers(0))
    LT = OPT["late"]
    assert not LT or (XP and FUS)

    def epi_ops():
        a(f"""
        v_lshlrev_b32 v{t[0]}, 4, v{vLANE}
        s_mov_b32 s{sT0}, {TAB_BYTES + 1024 * 6}
        s_mov_b32 s{sT1}, {TAB_BYTES + 1024 * 7}
        buffer_load_dwordx4 {vr(A1, 4)}, v{t[0]}, {sr(S_TAB, 4)}, s{sT0} offen{tsc}
        buffer_load_dwordx4 {vr(A2, 4)}, v{t[0]}, {sr(S_TAB, 4)}, s{sT1} offen{tsc}
        {f"s_mov_b32 s{sT0}, {TAB_BYTES + 1024 * 4}" if FUS else ""}
        {f"buffer_load_dwordx4 {vr(A3, 4)}, v{t[0]}, {sr(S_TAB, 4)}, s{sT0} offen{tsc}" if FUS else ""}
        """)

    def mload(i):
        a(f"buffer_load_dwordx4 {vr(MP[i], 4)}, v{vMO}, {sr(S_M, 4)}, s{sJ} offen")
        a(f"s_add_u32 s{sJ}, s{sJ}, 16384")
    if not LT:
        epi_ops()
        mload(0)
    a("s_waitcnt lgkmcnt(0)")
    a(gate(1))
    a(f"s_waitcnt vmcnt({2 if LT else ((6 if FUS else 5) if XP else 3)})")
    if not LT:
        for i in range(1, 4):
            mload(i)
    a(fixup(1))
    if XP:
        core_a(1, coschain(0), cospack(0))
    else:
        core_a(1, "s_nop 6")
    a(f"s_call_b64 {sr(sRET2, 2)}, P2_rmw1")
    if LT:
        epi_ops()
        for i in range(4):
            mload(i)
    if XP:
        a(f"""
        s_cmp_eq_u64 {sr(sM[0], 2)}, 0
        s_cbranch_scc1 P2_drain
        {rbf_read(0)}
        s_waitcnt lgkmcnt(0)
        """)
        a(gate(0))
        a(f"s_waitcnt vmcnt({7 if FUS else 6})")
        a(fixup(0))
        core_a(0, "s_nop 6")
        a(f"s_call_b64 {sr(sRET2, 2)}, P2_rmw0")
    a(f"""
    P2_drain:
    s_cmp_eq_u32 s{sCNT}, 0
    s_cbranch_scc1 P2_epi
    s_call_b64 {sr(sRET, 2)}, P2_pop1
    s_branch P2_drain
    P2_epi:
    """)
    for i in range(4, 7):
        a(f"buffer_load_dwordx4 {vr(MP[i], 4)}, v{vMO}, {sr(S_M, 4)}, s{sJ} offen")
        a(f"s_add_u32 s{sJ}, s{sJ}, 16384")
    if OPT["cntreq"]:
        a(f"""
        s_load_dwordx2 s[60:61], s[0:1], 96
        s_waitcnt lgkmcnt(0)
        v_mov_b32 v{t[0]}, s95
        v_mov_b32 v{t[1]}, 0
        s_mov_b64 exec, 1
        global_atomic_add v{t[1]}, v{t[0]}, s[60:61]
        s_mov_b64 exec, -1
        s_waitcnt vmcnt(0)
        """)
    a(f"""
    s_lshl_b32 s{sT0}, s{sW}, 9
    s_mov_b32 s{sT2}, {L_ACC0}
    v_and_b32 v{t[1]}, 31, v{vLANE}
    v_lshlrev_b32 v{t[1]}, 4, v{t[1]}
    v_add_u32 v{t[1]}, s{sT0}, v{t[1]}
    v_lshrrev_b32 v{t[0]}, 5, v{vLANE}
    v_mul_u32_u24 v{t[0]}, {EB * 16}, v{t[0]}
    v_add3_u32 v{t[0]}, v{t[0]}, v{t[1]}, s{sT2}
    s_waitcnt vmcnt(3) lgkmcnt(0)
    """)
    if OPT["stamp2"]:
        a("s_memrealtime s[64:65]\ns_waitcnt lgkmcnt(0)")
    a("s_barrier")
    if OPT["stamp2"]:
        a("s_memrealtime s[66:67]\ns_waitcnt lgkmcnt(0)")
    a.c("epilogue: out = m + (agg @ w_up) * (rbf @ w_rbf), 32 edges per pass, two passes at a time")
    OBX, OBY = TF, (O[0] if XP else A3b)

    EB_ = [(AX, SX, AY, SY), (A1a, A1b, GP[0], GQ[0]) if XP else (A1a, A1b, vBP, t[5])]
    assert t[5] % 2 == 0

    def epi_reads(groups, st_):
        for (i, va), (Ac, Sb) in zip(groups, (EB_[st_][0:2], EB_[st_][2:4])):
            a(f"ds_read_b128 {vr(Ac, 4)}, v{t[0]} offset:{8192 * i}")
            a(f"ds_read_b128 {vr(Sb, 4)}, v{t[1]} offset:{L_RBF + 8192 * i}")

    def epi(groups, st_, nxt):
        regs = [(DX,) + EB_[st_][0:2] + (OBX,), (DY,) + EB_[st_][2:4] + (OBY,)]
        n = len(groups)
        for k, ((i, va), (Dd, Ac, Sb, Ob)) in enumerate(zip(groups, regs)):
            a(f"s_waitcnt lgkmcnt({2 * (n - 1 - k)})")
            a(f"v_mfma_f32_32x32x16_bf16 {vr(Dd, 16)}, {vr(A1, 4)}, {vr(Ac, 4)}, 0")
            a(f"v_mfma_f32_32x32x16_f16 {vr(Dd, 16)}, {vr(A2, 4)}, {vr(Sb, 4)}, {vr(Dd, 16)}")
        if nxt:
            epi_reads(nxt, st_ ^ 1)
        done = 2 * len(nxt) if nxt else 0
        a(f"s_nop {11 - done - (3 if n == 2 else 0)}")
        for k, ((i, va), (Dd, Ac, Sb, Ob)) in enumerate(zip(groups, regs)):
            for j in range(0, 8, 2):
                a(f"v_pk_mul_f32 {vr(Dd + j, 2)}, {vr(Dd + j, 2)}, {vr(Dd + 8 + j, 2)}")
            if OPT["x_err"]:
                import struct
                cst = struct.unpack("<I", struct.pack("<f", 1 + OPT["x_err"] / 1000))[0]
                for j in range(8):
                    a(f"v_mul_f32 v{Dd + j}, {cst:#x}, v{Dd + j}")
        a({4: "s_waitcnt vmcnt(5)", 6: "s_waitcnt vmcnt(6)"}.get(groups[0][0], "s_nop 0"))
        if n == 1:
            a("s_nop 0")
        for (i, va), (Dd, Ac, Sb, Ob) in zip(groups, regs):
            a(f"v_mfma_f32_32x32x16_bf16 {vr(Dd, 16)}, {vr(A3, 4)}, {vr(MP[i], 4)}, {vr(Dd, 16)}")
        a(f"s_nop {11 - (n - 1)}")
        for (i, va), (Dd, Ac, Sb, Ob) in zip(groups, regs):
            for j in range(4):
                a(f"v_cvt_pk_bf16_f32 v{Ob + j}, v{Dd + 2 * j}, v{Dd + 2 * j + 1}")
            a(f"buffer_store_dwordx4 {vr(Ob, 4)}, v{va}, {sr(S_OUT, 4)}, s{sCO} offen{nto}")
            a(f"s_add_u32 s{sCO}, s{sCO}, 16384")

    gl = [[(i, vMO), (i + 1, vMO)] for i in (0, 2, 4)] + [[(6, t[2])]]
    epi_reads(gl[0], 0)
    for q in range(3):
        epi(gl[q], q & 1, gl[q + 1])
    if OPT["stamp2"]:
        a(f"""
        s_memrealtime s[84:85]
        s_waitcnt vmcnt(0) lgkmcnt(0)
        s_memrealtime s[86:87]
        s_lshl_b32 s98, s2, 4
        s_add_u32 s98, s98, s{sW}
        s_lshl_b32 s98, s98, 6
        s_add_u32 s6, s6, {16 << 20}
        s_addc_u32 s7, s7, 0
        s_waitcnt lgkmcnt(0)
        """)
        srd(a, S_TMP, 6, 1 << 20)
        a(f"v_mov_b32 v{t[5]}, 0")
        for i, r in enumerate([94, 60, 62, 64, 66, 84, 86, 72, 78, 3]):
            a(f"v_mov_b32 v{t[6]}, s{r}")
            a(f"buffer_store_dword v{t[6]}, v{t[5]}, {sr(S_TMP, 4)}, s98 offen offset:{4 * i}")
    a(f"""
    s_cmp_lt_u32 s{sW}, 2
    s_cbranch_scc0 P2_done
    v_cmp_gt_u32 vcc, {(EB - 6 * 512) * 32}, v{vMO}
    v_mov_b32 v{t[2]}, 0x7fffff00
    s_nop 0
    v_cndmask_b32 v{t[2]}, v{t[2]}, v{vMO}, vcc
    """)
    epi(gl[3], 1, None)
    a("P2_done:")
    a("s_endpgm")
    for buf in range(2):
        a.c(f"subroutine: pop up to 64 records into buffer {buf} and finish them")
        a(f"P2_pop{buf}:")
        if OPT["guard"]:
            a(f"s_sub_u32 s{sG}, s{sG}, 1\ns_cbranch_scc1 P2_done")
        a(pop_issue(buf))
        a("s_waitcnt lgkmcnt(0)")
        a(gathers(buf))
        a(coschain(buf))
        a(f"""
        {rbf_read(buf)}
        {cospack(buf)}
        s_mov_b64 {sr(sRET2, 2)}, {sr(sRET, 2)}
        s_waitcnt lgkmcnt(0)
        """)
        a(gate(buf))
        a("s_waitcnt vmcnt(0)")
        a(fixup(buf))
        core_a(buf, "s_nop 6")
        a(f"P2_rmw{buf}:")
        core_b(buf, False)
    for c in cold:
        a(c)
    kernel_desc(a, name, 128, 102)


DESCRIPTION = """
One launch, 256 workgroups (one per CU), two parts.
Part 1: workgroup c takes triplets [50000c, 50000c+50000), keeps them in registers, counting-sorts them by
  key = slot(idx_in) * 256 + idx_out / 3125 (histogram, scan and ranks with integer LDS atomics) and writes them to
  d_ws as 6-byte records (idx_in << 12 | idx_out % 3125, angle), in two halves through LDS, plus a table of
  (start, length) per key. slot() is the slice of m the row lies in, rotated per group of 32 buckets. One wave also
  lays the weights out as matrix operands.
Hand-off: every handed-off byte is stored write-through (sc1); once all waves of a workgroup have seen their stores
  complete, one of them adds to a counter in d_debug (word 0: table, operands, first half; word 32: second half).
  A workgroup loads such bytes (sc1 loads) only after one of its waves has polled the matching counter to 256 and
  passed that on through a barrier or an LDS word; no line of d_ws is read earlier in the launch (the halves meet
  at a 128-byte boundary). The polls are bounded.
Part 2: a workgroup owns 3125 output edges: their sums (bf16) and radial basis (f16) live in LDS. Each wave walks
  its 16 chunks slot by slot, so all gathers of a moment fall in one L2-sized slice of m: load four segments,
  compact them on a small LDS stack, gather 64 rows, (m @ w_down) and (sbf @ w_sbf) on the matrix cores, multiply,
  and add to the sums under one lock bit per edge; a record whose lock was taken stays in its lane for the next
  round. A progress word in LDS keeps the waves of a workgroup in the same slice. Segments of any length and any
  number of records per edge take slower paths to the same result.
  Epilogue: out = m + (sum @ w_up) * (rbf @ w_rbf).
"""


def build():
    assert OPT['lagoff'] + OPT['endd'] <= 16 * OPT['lag']
    assert OPT['stag'] != 3 or max((OPT['rotl'] >> (4 * q)) & 15 for q in range(4)) < OPT['ns']
    a = A()
    ref = open(f"cdna_kernels/{NAME}.s.ref").read().split("\n")
    for line in ref:
        if line.startswith("; Override"):
            break
        a.raw(line)
    if OPT["fused"]:
        a.raw(f"; @launch grid=({NB},1,1) block=(1024,1,1) lds={P2_LDS}")
    elif not OPT["only2"]:
        a.raw(f"; @launch kernel=part_kernel grid=({NB},1,1) block=(1024,1,1) lds={B_LDS if OPT['big'] else P1_LDS}")
    if not OPT["x_fuse"] and not OPT["fused"]:
        a.raw(f"; @launch kernel={NAME}_kernel grid=({NB},1,1) block=(1024,1,1) lds={P2_LDS}")
    for line in DESCRIPTION.strip("\n").split("\n"):
        a.raw(("; " + line).rstrip())
    a.raw('.amdgcn_target "amdgcn-amd-amdhsa--gfx950"')
    (gen_part_big if OPT["big"] else gen_part)(a, f"{NAME}_kernel" if OPT["fused"] else "part_kernel")
    gen_main(a, f"{NAME}_kernel")
    return a.text()


def main():
    out = f"cdna_kernels/{NAME}.s"
    for arg in sys.argv[1:]:
        if "=" in arg:
            k, v = arg.split("=")
            assert k in OPT, k
            OPT[k] = type(OPT[k])(int(v))
        else:
            out = arg
    open(out, "w").write(build())


if __name__ == "__main__":
    main()
```
